```python
import torch

def _softmax(x, axis=-1):
    return torch.softmax(x, dim=axis)
def _gelu(x):
    return torch.nn.functional.gelu(x, approximate="tanh")
def _silu(x):
    return torch.nn.functional.silu(x)
def _sigmoid(x):
    return torch.sigmoid(x)
def _layernorm(x, axis=-1, eps=1e-5):
    m = x.mean(dim=axis, keepdim=True)
    v = x.var(dim=axis, keepdim=True, unbiased=False)
    return (x - m) / torch.sqrt(v + eps)
def _scatter_add(tgt, idx, src, axis=0):
    return tgt.clone().index_add_(axis, idx, src)
def _segment_sum(src, seg, n):
    out = torch.zeros((n,) + src.shape[1:], dtype=src.dtype)
    return out.index_add_(0, seg, src)
def _pad(x, pw):
    flat = tuple(v for pair in reversed(pw) for v in pair)
    return torch.nn.functional.pad(x, flat)

kernel_name = 'concat_heads__sliding_local_dilated__softmax_full_mha__prompt'

def setup_inputs():

    _w = (lambda a: (lambda t: t.to(torch.bfloat16) if t.is_floating_point() else t)(torch.as_tensor(a)))
    def _A_setup():
        B, S, D = 1, 2048, 512
        return {
            "x": _w((lambda *s: torch.randn(*s, dtype=torch.bfloat16) * 0.4)(B, S, D)),
            "wqkv": _w((lambda *s: torch.randn(*s, dtype=torch.bfloat16) * 0.4)(D, 3 * D)),
            "wo": _w((lambda *s: torch.randn(*s, dtype=torch.bfloat16) * 0.05)(D, D)),
        }
    _A_in = _A_setup()

    def _B_setup():
        B, S, D = 1, 2048, 512
        return {
            "x": _w((lambda *s: torch.randn(*s, dtype=torch.bfloat16) * 0.2)(B, S, D)),
            "wqkv": _w((lambda *s: torch.randn(*s, dtype=torch.bfloat16) * 0.4)(D, 3 * D)),
            "wo": _w((lambda *s: torch.randn(*s, dtype=torch.bfloat16) * 0.1)(D, D)),
        }
    _B_in = _B_setup()

    return {
        "A_x": _A_in["x"],
        "A_wqkv": _A_in["wqkv"],
        "A_wo": _A_in["wo"],
        "B_x": _B_in["x"],
        "B_wqkv": _B_in["wqkv"],
        "B_wo": _B_in["wo"],
    }

def reference(A_x, A_wqkv, A_wo, B_x, B_wqkv, B_wo):
    def _A_ref(x, wqkv, wo):
        B, S, D = x.shape
        H = 32; Dh = D // H
        W, dil = 8, 2
        qkv = (lambda x, *d: x.permute(*d))((x @ wqkv).reshape(B, S, 3, H, Dh), 2, 0, 3, 1, 4)
        q, k, v = qkv[0], qkv[1], qkv[2]
        scale = Dh ** -0.5
        pos = torch.arange(S)
        off = torch.arange(W) * dil
        idx = pos[:, None] - off[None, :]
        mask = idx >= 0
        idx_c = torch.where(mask, idx, 0).reshape(-1)
        kg = k[:, :, idx_c, :].reshape(B, H, S, W, Dh)
        vg = v[:, :, idx_c, :].reshape(B, H, S, W, Dh)
        logits = torch.einsum("bhsd,bhswd->bhsw", q, kg) * scale
        logits = torch.where(mask[None, None, :, :], logits, -1e9)
        attn = _softmax(logits, axis=-1)
        o = torch.einsum("bhsw,bhswd->bhsd", attn, vg)
        return (lambda x, *d: x.permute(*d))(o, 0, 2, 1, 3).reshape(B, S, D) @ wo

    def _B_ref(x, wqkv, wo):
        B, S, D = x.shape
        H = 32; Dh = D // H
        qkv = (lambda x, *d: x.permute(*d))((x @ wqkv).reshape(B, S, 3, H, Dh), 2, 0, 3, 1, 4)
        q, k, v = qkv[0], qkv[1], qkv[2]
        scale = Dh ** -0.5
        scores = torch.einsum("bhqd,bhkd->bhqk", q, k) * scale
        p = _softmax(scores, axis=-1)
        o = torch.einsum("bhqk,bhkd->bhqd", p, v)
        return (lambda x, *d: x.permute(*d))(o, 0, 2, 1, 3).reshape(B, S, D) @ wo

    a = _A_ref(A_x, A_wqkv, A_wo)
    b = _B_ref(B_x, B_wqkv, B_wo)
    return torch.concatenate([a, b], axis=-1)
```

```python
import re
class Asm:
    def __init__(self):
        self.lines=[]
        self.vm=[]
        self.lg=[]
        self.uid=0
    def __call__(self, s):
        for l in s.strip('\n').split('\n'):
            l=l.strip()
            if l: self.lines.append(l)
    def label(self, n): self.lines.append(n+':')
    def c(self, s): self.lines.append('; '+s)
    def newlabel(self, p='L'):
        self.uid+=1; return f"{p}_{self.uid}"
    def vmem(self, s, tag=None):
        self(s); self.vm.append(tag)
    def lds(self, s, tag=None):
        self(s); self.lg.append(tag)
    def wait_vm(self, tag):
        tags = tag if isinstance(tag,(list,set)) else [tag]
        idx=[i for i,t in enumerate(self.vm) if t in tags]
        if not idx: return
        n=len(self.vm)-1-max(idx)
        assert n<=63
        self(f"s_waitcnt vmcnt({n})"); self.vm=self.vm[max(idx)+1:]
    def wait_lg(self, tag):
        tags = tag if isinstance(tag,(list,set)) else [tag]
        idx=[i for i,t in enumerate(self.lg) if t in tags]
        if not idx: return
        n=len(self.lg)-1-max(idx)
        assert n<=15, n
        self(f"s_waitcnt lgkmcnt({n})"); self.lg=self.lg[max(idx)+1:]
    def wait_vm_all(self): self("s_waitcnt vmcnt(0)"); self.vm=[]
    def wait_lg_all(self): self("s_waitcnt lgkmcnt(0)"); self.lg=[]
    def reset(self): self.vm=[]; self.lg=[]; self.lines.append('; @reset')
    def text(self):
        out=[]
        for l in self.lines:
            if l.endswith(':') or l.startswith('.') or l.startswith(';'): out.append(l)
            else: out.append('    '+l)
        return '\n'.join(out)+'\n'

def vr(b,n=1): return f"v{b}" if n==1 else f"v[{b}:{b+n-1}]"
def sr(b,n=1): return f"s{b}" if n==1 else f"s[{b}:{b+n-1}]"

class Alloc:
    def __init__(self, start, limit): self.p=start; self.limit=limit; self.hi=start
    def take(self, n=1, align=1):
        self.p=(self.p+align-1)//align*align
        b=self.p; self.p+=n; self.hi=max(self.hi,self.p)
        assert self.p<=self.limit, f"out of regs {self.p}>{self.limit}"
        return b
    def mark(self): return self.p
    def release(self, m): self.p=m

TRANS=('v_exp_','v_log_','v_rcp_','v_rsq_','v_sqrt_','v_sin_','v_cos_')
def regs_of(op):
    op=op.strip()
    op=re.sub(r'^-|^abs\(|\)$|^\|','',op)
    m=re.fullmatch(r'([vsa])(\d+)',op)
    if m: return {(m.group(1),int(m.group(2)))}
    m=re.fullmatch(r'([vsa])\[(\d+):(\d+)\]',op)
    if m: return {(m.group(1),i) for i in range(int(m.group(2)),int(m.group(3))+1)}
    if op in('vcc','vcc_lo','vcc_hi'): return {('s','vcc')}
    if op=='exec': return {('s','exec')}
    if op=='m0': return {('s','m0')}
    return set()
def split_ops(rest):
    rest=rest.split(';')[0]
    parts=[];cur='';d=0
    for ch in rest:
        if ch=='[': d+=1
        if ch==']': d-=1
        if ch==',' and d==0: parts.append(cur.strip()); cur=''
        else: cur+=ch
    parts.append(cur.strip())
    last=parts[-1].split()
    mods=[]
    if last:
        parts[-1]=last[0]; mods=last[1:]
    else: parts=parts[:-1]
    return parts,mods
def parse(line):
    mn,_,rest=line.partition(' ')
    ops,mods=split_ops(rest) if rest.strip() else ([],[])
    R=[regs_of(o) for o in ops]
    U=lambda l: set().union(*l) if l else set()
    d=dict(mn=mn,ops=ops,mods=mods,w=set(),r=set(),cls='other',states=1)
    if mn.startswith('v_mfma') or mn.startswith('v_smfmac'):
        d['cls']='mfma'; d['w']=R[0]; d['A']=R[1]; d['B']=R[2]
        d['passes']=8 if '32x32' in mn else 4
        if mn.startswith('v_smfmac'): d['C']=R[0]; d['idx']=R[3]; d['r']=U(R)
        else: d['C']=R[3]; d['idx']=set(); d['r']=U(R[1:])
    elif mn.startswith('v_cmp'):
        d['cls']='valu'; d['w']=R[0]; d['r']=U(R[1:])
    elif mn.startswith('v_readfirstlane') or mn.startswith('v_readlane'):
        d['cls']='valu'; d['w']=R[0]; d['r']=U(R[1:]); d['rl']=True
    elif mn.startswith('v_permlane'):
        d['cls']='valu'; d['w']=U(R); d['r']=U(R); d['perm']=True
    elif mn.startswith('v_'):
        d['cls']='valu'; d['w']=set(R[0]) if R else set(); rs=R[1:]
        if '_co_' in mn: d['w']|=R[1]; rs=R[2:]
        d['r']=U(rs)
        if 'fmac' in mn or 'dot2c' in mn or mn.startswith('v_writelane'): d['r']|=R[0]
        if mn.startswith('v_cndmask') and len(ops)==3: d['r']|={('s','vcc')}
        if any(m.startswith(('row_','quad_perm','wave_')) for m in mods): d['dpp']=True
        d['trans']=mn.startswith(TRANS)
    elif mn.startswith('ds_'):
        d['cls']='ds'
        if 'read' in mn or 'rtn' in mn or 'permute' in mn or 'swizzle' in mn: d['w']=R[0]; d['r']=U(R[1:])
        else: d['r']=U(R)
    elif mn.startswith('buffer_') or mn.startswith('global_'):
        d['cls']='vmem'
        if mn in('buffer_inv','buffer_wbl2'): pass
        elif 'lds' in mods or 'load_lds' in mn: d['r']=U(R)|{('s','m0')}; d['dma']=True
        elif 'load' in mn: d['w']=R[0]; d['r']=U(R[1:])
        elif 'atomic' in mn:
            d['r']=U(R)
            if 'sc0' in mods: d['w']=R[0]
        else:
            d['r']=U(R); d['store']=True
            d['sdata']=R[0] if mn.startswith('buffer') else R[1]
            d['wide']=('x3' in mn or 'x4' in mn)
    elif mn.startswith('s_'):
        d['cls']='salu'
        if mn=='s_nop': d['states']=int(ops[0],0)+1
        elif mn.startswith('s_load') or mn.startswith('s_memtime') or mn.startswith('s_memrealtime'):
            d['cls']='smem'; d['w']=R[0]; d['r']=U(R[1:])
        elif mn.startswith(('s_cmp','s_bitcmp','s_cbranch','s_branch','s_waitcnt','s_barrier','s_endpgm','s_setprio','s_sleep')): d['r']=U(R)
        else:
            d['w']=R[0] if R else set(); d['r']=U(R[1:])
            if 'saveexec' in mn: d['w']=d['w']|{('s','exec')}
    return d
def check(lines):
    ins=[]; errs=[]
    vmq=[]; lgq=[]
    for ln,l in enumerate(lines):
        if l.startswith('; @reset'):
            ins=[]; vmq=[]; lgq=[]; continue
        if l.endswith(':') or l.startswith('.') or l.startswith(';'): continue
        d=parse(l); d['ln']=ln; d['txt']=l
        if d['mn']=='s_waitcnt':
            m=re.search(r'vmcnt\((\d+)\)',l)
            if m: n=int(m.group(1)); vmq=vmq[len(vmq)-n:] if n>0 else []
            m=re.search(r'lgkmcnt\((\d+)\)',l)
            if m:
                n=int(m.group(1))
                if n==0: lgq=[]
                else:
                    if any(x['cls']=='smem' for x in lgq): errs.append(f"{ln}: counted lgkmcnt with smem outstanding: {l}")
                    lgq=lgq[len(lgq)-n:]
        else:
            touch=d['r']|d['w']
            for q in (vmq,lgq):
                for p in q:
                    ov=p['w']&touch
                    if ov and not (p['cls']==d['cls'] and not (p['w']&d['r'])):
                        errs.append(f"{ln}: uses pending load dest {sorted(ov)[:3]} of line {p['ln']} [{p['txt']}] in [{l}]")
        dist=0
        for p in reversed(ins):
            if dist>=20: break
            need=0; why=''
            def req(n,w):
                nonlocal need,why
                if n>need: need=n; why=w
            pv={x for x in p['w'] if x[0] in 'va'}; ps={x for x in p['w'] if x[0]=='s'}
            if p['cls']=='valu':
                if d['cls']=='mfma' and pv&d['r']: req(2,'valu->mfma')
                if p.get('trans') and d['cls']=='valu' and not d.get('trans') and pv&d['r']: req(1,'trans->valu')
                if d['cls']=='vmem' and ps&d['r']: req(5,'valu sgpr->vmem')
                if d['cls']=='valu' and ps&d['r']: req(4 if d.get('rl') else 2,'valu sgpr->valu')
                if d.get('rl') and pv&d['r']: req(1,'valu->readlane')
                if d.get('perm') and pv&d['r']: req(2,'valu->permlane')
                if d.get('dpp') and pv&d['r']: req(2,'valu->dpp')
            if p['cls']=='mfma':
                big=p['passes']==8
                if d['cls'] in('valu','ds','vmem') and p['w']&(d['r']|d['w']): req(12 if big else 8,'mfma D->valu/mem')
                if d['cls']=='mfma':
                    if p['w']&(d['A']|d['B']|d['idx']): req(12 if big else 8,'mfma D->mfma AB')
                    if p['w']&d['C'] and not (p['w']==d['C'] and p['passes']==d['passes']): req(10 if big else 6,'mfma D->C overlap')
                if d['cls']=='valu' and p['C']&d['w']: req(7 if big else 3,'mfma C WAR')
            if p['cls']=='salu' and ('s','m0') in p['w'] and d.get('dma'): req(1,'m0->dma')
            if p.get('store') and p.get('wide') and p['sdata']&d['w']: req(2 if d['cls']=='valu' else 1,'store data WAR')
            if need>dist: errs.append(f"{ln}: hazard {why} need {need} have {dist}: [{p['txt']}] -> [{l}]")
            dist+=p['states']
        ins.append(d)
        if d['cls']=='vmem' and d['mn'] not in('buffer_inv',): vmq.append(d)
        if d['cls'] in('ds','smem'): lgq.append(d)
        if len(lgq)>15 and d['cls']=='ds': errs.append(f"{ln}: >15 lgkm outstanding")
        if len(vmq)>63: errs.append(f"{ln}: >63 vm outstanding")
    return errs
```

```python
import sys, math, struct
from asmlib import *
NAME="concat_heads__sliding_local_dilated__softmax_full_mha__prompt_kernel"
OPT=dict(dump=0, stamp=0, map=3, prio=1, p1=28, p2=56)
for a in sys.argv[2:]:
    k,v=a.split('='); OPT[k]=int(v) if v.lstrip('-').isdigit() else v

LW=0; LX=49152; LH=114688; EX=131072; LF=155648
EA=EX; WOB=0; WOA=65536; RED=98304; OX=131072
LDS_BYTES=163840
WS_KV=0; WS_OFB=4<<20; WS_OFA=6<<20
WS_FKV=8<<20; WS_FOB=(8<<20)+65536; WS_FOA=(8<<20)+131072; WS_EPOCH=(8<<20)+196608
WS_DQB=16<<20; WS_DQA=20<<20; WS_DKVA=24<<20; WS_DHALO=28<<20; WS_STAMP=30<<20
WS_BYTES=32<<20
CSCALE=0.25*math.log2(math.e)
def f2u(x): return struct.unpack('<I',struct.pack('<f',x))[0]
NEGBIG=f2u(-1e30)
SPIN=30000

A=Asm()
sW=22; sHP=23; sRB=24; sSG=25; sT0=26; sT1=27
SRD_XB=28; SRD_WB=32; SRD_XA=36; SRD_WA=40; SRD_WS=44; SRD_DBG=48; SRD_M=52; SRD_OUT=56
sA0=60

def srd(base, ptr, nbytes):
    A(f"""s_mov_b32 s{base}, s{ptr}
    s_mov_b32 s{base+1}, s{ptr+1}
    s_mov_b32 s{base+2}, {nbytes}
    s_mov_b32 s{base+3}, 0x00020000""")
vSt=1
def stamp(idx, lvl=1):
    if OPT['stamp']<lvl: return
    A(f"""s_memrealtime s[96:97]
    s_memtime s[98:99]
    s_waitcnt lgkmcnt(0)
    v_writelane_b32 v{vSt}, s96, {idx}
    v_writelane_b32 v{vSt}, s98, {idx+32}""")
    A.lg=[]
def stamp_out(vtmp):
    if not OPT['stamp']: return
    A(f"""s_mul_i32 s96, s2, 12
    s_add_u32 s96, s96, s{sW}
    s_lshl_b32 s96, s96, 8
    s_add_u32 s96, s96, {WS_STAMP}
    v_lshlrev_b32 v{vtmp}, 2, v0
    buffer_store_dword v{vSt}, v{vtmp}, {sr(SRD_WS,4)}, s96 offen""")
def poll_issue(vdst, voff, soff):
    A.vmem(f"buffer_load_dwordx2 {vr(vdst,2)}, v{voff}, {sr(SRD_WS,4)}, s{soff} offen sc1",'poll')
def poll_check(vdst, voff, soff, scnt, snon):
    L=A.newlabel('L_poll'); Ld=A.newlabel('L_polld')
    A(f"s_mov_b32 s{scnt}, 0")
    A.label(L)
    A.wait_vm_all()
    A(f"""v_cmp_eq_u64 vcc, {sr(snon,2)}, {vr(vdst,2)}
    s_add_u32 s{scnt}, s{scnt}, 1
    s_cmp_eq_u64 vcc, -1
    s_cbranch_scc1 {Ld}
    s_cmp_gt_u32 s{scnt}, {SPIN}
    s_cbranch_scc1 {Ld}
    buffer_load_dwordx2 {vr(vdst,2)}, v{voff}, {sr(SRD_WS,4)}, s{soff} offen sc1
    s_branch {L}""")
    A.label(Ld)
def nonce_check(vN, vZ, snon, scnt, stmp):
    L=A.newlabel('L_non'); Ld=A.newlabel('L_nond')
    A(f"s_mov_b32 s{scnt}, 0")
    A.label(L)
    A(f"""v_readfirstlane_b32 s{snon}, v{vN}
    v_readfirstlane_b32 s{snon+1}, v{vN+1}
    s_add_u32 s{scnt}, s{scnt}, 1
    s_cmp_gt_u32 s{scnt}, {SPIN}
    s_cbranch_scc1 {Ld}
    s_cmp_eq_u32 s{snon}, 0
    s_cselect_b32 s{stmp}, 0, s{snon+1}
    s_cmp_lg_u32 s{stmp}, 0
    s_cbranch_scc1 {Ld}
    buffer_load_dwordx2 {vr(vN,2)}, v{vZ}, {sr(SRD_DBG,4)}, 0 offen sc1
    s_waitcnt vmcnt(0)
    s_branch {L}""")
    A.label(Ld)
def flag_store(vN, vZ, soff):
    A("s_mov_b64 exec, 1")
    A.vmem(f"buffer_store_dwordx2 {vr(vN,2)}, v{vZ}, {sr(SRD_WS,4)}, s{soff} offen sc1",'flag')
    A("s_mov_b64 exec, -1")

A.label(NAME)
LHB=OPT['map']; HG=4-LHB
A(f"""s_cmp_ge_u32 s2, 256
s_cbranch_scc1 L_end
s_load_dwordx16 s[4:19], s[0:1], 0
s_load_dwordx2 s[20:21], s[0:1], 64
v_lshrrev_b32 v1, 6, v0
v_and_b32 v0, 63, v0
s_and_b32 s{sT0}, s2, 7
v_readfirstlane_b32 s{sW}, v1
s_lshr_b32 s{sT1}, s2, 3
s_and_b32 s{sHP}, s{sT0}, {(1<<HG)-1}
s_lshl_b32 s{sHP}, s{sHP}, {LHB}
s_and_b32 s{sSG}, s{sT1}, {(1<<LHB)-1}
s_add_u32 s{sHP}, s{sHP}, s{sSG}
s_lshr_b32 s{sRB}, s{sT0}, {HG}
s_lshl_b32 s{sRB}, s{sRB}, {5-LHB}
s_lshr_b32 s{sSG}, s{sT1}, {LHB}
s_add_u32 s{sRB}, s{sRB}, s{sSG}
s_lshr_b32 s{sSG}, s{sHP}, 1
s_add_u32 s{sSG}, s{sSG}, s{sRB}
s_and_b32 s{sSG}, s{sSG}, 7
s_cmp_ge_u32 s{sW}, 8
s_cbranch_scc1 L_aux""")

VA=Alloc(2,168)
vx0=VA.take(); vx1=VA.take(); vw=VA.take(); vh=VA.take(); vt0=VA.take(); vt1=VA.take()
vL16=VA.take(); vVo=VA.take(); vIdx=VA.take(); vFl=VA.take(); vP=VA.take(2,2); vN=VA.take(2,2); vZ=VA.take()
vEQ0=VA.take(); vEK=VA.take(); vEV=VA.take()
ND=6
vBig=VA.mark()
Qf=[VA.take(4,4) for _ in range(2)]
Sb=[VA.take(16,4) for _ in range(2)]
Oa=[VA.take(16,4) for _ in range(2)]
Kf=[VA.take(4,4) for _ in range(ND)]
Vf=[VA.take(8,4) for _ in range(ND)]
sXoff=sA0; sXm0=sA0+1; sWoffA=sA0+2; sWm0A=sA0+3; sWoffB=sA0+4; sWm0B=sA0+5; sHoff=sA0+6; sHm0=sA0+7
sU0=sA0+8; sU1=sA0+9; sU2=sA0+10
sE=sA0+11; sKH=sA0+12; sTile=sA0+13; sKVb=sA0+14; sOff=sA0+15; sNon=sA0+16; sVM=sA0+18; sCnt=sA0+20; sBlk=sA0+21
sFKVr=sA0+22; sFKVw=sA0+23; sOwn=sA0+24; sLo=sA0+25; sHi=sA0+26; sX0=sA0+28
A(f"""v_lshrrev_b32 v{vt0}, 2, v0
v_mul_u32_u24 v{vt0}, 3072, v{vt0}
v_and_b32 v{vt1}, 3, v0
v_lshl_add_u32 v{vw}, v{vt1}, 4, v{vt0}
v_lshrrev_b32 v{vt0}, 3, v0
v_lshlrev_b32 v{vt0}, 10, v{vt0}
v_lshrrev_b32 v{vt1}, 4, v0
v_xor_b32 v{vt1}, v{vt1}, v0
v_and_b32 v{vt1}, 7, v{vt1}
v_lshl_add_u32 v{vx0}, v{vt1}, 4, v{vt0}
v_xor_b32 v{vx1}, 64, v{vx0}
v_add_u32 v{vx1}, 8192, v{vx1}
s_lshl_b32 s{sXoff}, s{sRB}, 17
s_lshl_b32 s{sU0}, s{sW}, 14
s_add_u32 s{sXoff}, s{sXoff}, s{sU0}
s_lshl_b32 s{sXm0}, s{sW}, 11
s_add_u32 s{sXm0}, s{sXm0}, {LX}
s_and_b32 s{sU0}, s{sW}, 3
s_mul_i32 s{sU0}, s{sU0}, 49152
s_lshl_b32 s{sU1}, s{sHP}, 6
s_add_u32 s{sU0}, s{sU0}, s{sU1}
s_lshr_b32 s{sU1}, s{sW}, 2
s_lshl_b32 s{sU1}, s{sU1}, 10
s_add_u32 s{sWoffA}, s{sU0}, s{sU1}
s_add_u32 s{sWoffB}, s{sU0}, 2048
s_lshl_b32 s{sWm0A}, s{sW}, 10
s_add_u32 s{sWm0B}, s{sWm0A}, {LW+8192}
s_mov_b32 s{SRD_XB+2}, 2097152
s_mov_b32 s{SRD_XB+3}, 0x00020000
s_mov_b32 s{SRD_WB+2}, 1572864
s_mov_b32 s{SRD_WB+3}, 0x00020000
s_waitcnt lgkmcnt(0)
s_mov_b32 s{SRD_XB}, s10
s_mov_b32 s{SRD_XB+1}, s11
s_mov_b32 s{SRD_WB}, s12
s_mov_b32 s{SRD_WB+1}, s13
s_cmp_ge_u32 s{sW}, 6
s_cbranch_scc1 L_ld2
s_cmp_ge_u32 s{sW}, 4
s_cbranch_scc1 L_ld1""")
assert LW==0

def issue_stage(cls, s):
    if OPT.get('nodma') and s>=2: return
    slot=s%4
    X,W=(SRD_XB,SRD_WB) if s<8 else (SRD_XA,SRD_WA)
    A(f"""s_add_u32 s{sU0}, s{sSG}, {s}
    s_and_b32 s{sU0}, s{sU0}, 7
    s_mul_i32 s{sU1}, s{sU0}, 196608
    s_lshl_b32 s{sU0}, s{sU0}, 7
    s_add_u32 m0, s{sWm0A}, {slot*12288}
    s_add_u32 s{sU2}, s{sU1}, s{sWoffA}""")
    A.vmem(f"buffer_load_dwordx4 v{vw}, {sr(W,4)}, s{sU2} offen lds", s)
    A(f"""s_add_u32 m0, s{sXm0}, {slot*16384}
    s_add_u32 s{sU2}, s{sU0}, s{sXoff}""")
    A.vmem(f"buffer_load_dwordx4 v{vx0}, {sr(X,4)}, s{sU2} offen lds", s)
    A(f"s_add_u32 m0, s{sXm0}, {slot*16384+1024}\ns_nop 0")
    A.vmem(f"buffer_load_dwordx4 v{vx1}, {sr(X,4)}, s{sU2} offen lds", s)
    if cls==0:
        A(f"""s_add_u32 m0, s{sWm0B}, {slot*12288}
        s_add_u32 s{sU2}, s{sU1}, s{sWoffB}""")
        A.vmem(f"buffer_load_dwordx4 v{vw}, {sr(W,4)}, s{sU2} offen lds", s)
    if cls==1 and s>=8:
        A(f"""s_add_u32 m0, s{sHm0}, {slot*4096}
        s_add_u32 s{sU2}, s{sU0}, s{sHoff}""")
        A.vmem(f"buffer_load_dwordx4 v{vh}, {sr(X,4)}, s{sU2} offen lds", s)

def att_setup1(cls):
    srd(SRD_XA,4,2097152); srd(SRD_WA,6,1572864); srd(SRD_DBG,18,256)
    if cls==1:
        A(f"""s_lshl_b32 s{sU0}, s{sRB}, 7
        s_sub_i32 s{sU0}, s{sU0}, 32
        s_max_i32 s{sU0}, s{sU0}, 0
        s_sub_u32 s{sU1}, s{sW}, 2
        s_lshl_b32 s{sU2}, s{sU1}, 3
        s_add_u32 s{sU0}, s{sU0}, s{sU2}
        s_lshl_b32 s{sHoff}, s{sU0}, 10
        s_lshl_b32 s{sHm0}, s{sU1}, 10
        s_add_u32 s{sHm0}, s{sHm0}, {LH}
        s_and_b32 s{sU0}, s{sW}, 1
        s_lshl_b32 s{sU0}, s{sU0}, 6
        v_xor_b32 v{vh}, s{sU0}, v{vx0}""")
    A(f"""s_lshr_b32 s{sE}, s{sW}, 2
    s_and_b32 s{sKH}, s{sW}, 1
    s_and_b32 s{sTile}, s{sW}, 3
    s_lshl_b32 s{sU1}, s{sHP}, 1
    s_add_u32 s{sU1}, s{sU1}, s{sE}
    s_lshl_b32 s{sKVb}, s{sU1}, 17
    s_lshl_b32 s{sU0}, s{sKH}, 11
    s_add_u32 s{sKVb}, s{sKVb}, s{sU0}
    s_lshl_b32 s{sU1}, s{sU1}, 1
    s_add_u32 s{sU1}, s{sU1}, s{sKH}
    s_lshl_b32 s{sFKVr}, s{sU1}, 8
    s_add_u32 s{sFKVr}, s{sFKVr}, {WS_FKV}
    s_bfe_u32 s{sU0}, s{sW}, 0x10001
    s_lshl_b32 s{sU1}, s{sRB}, 1
    s_add_u32 s{sU1}, s{sU1}, s{sU0}
    s_lshl_b32 s{sU2}, s{sU1}, 3
    s_add_u32 s{sFKVw}, s{sFKVr}, s{sU2}
    s_lshl_b32 s{sU2}, s{sU1}, 12
    s_add_u32 s{sOwn}, s{sKVb}, s{sU2}
    s_mov_b32 s{sVM}, 0x0000ffff
    s_mov_b32 s{sVM+1}, 0x0000ffff
    v_lshlrev_b32 v{vL16}, 4, v0
    v_and_b32 v{vt0}, 15, v0
    v_lshlrev_b32 v{vt0}, 4, v{vt0}
    v_lshrrev_b32 v{vt1}, 5, v0
    v_lshl_add_u32 v{vVo}, v{vt1}, 8, v{vt0}
    v_mov_b32 v{vIdx}, 0xdddddddd
    v_mov_b32 v{vZ}, 0
    v_and_b32 v{vFl}, 31, v0
    v_lshlrev_b32 v{vFl}, 3, v{vFl}
    s_lshl_b32 s{sU1}, s{sE}, 12
    s_lshl_b32 s{sU2}, s{sTile}, 10
    s_add_u32 s{sU1}, s{sU1}, s{sU2}
    s_add_u32 s{sU1}, s{sU1}, {EX}
    v_add_u32 v{vEQ0}, s{sU1}, v{vL16}
    s_lshl_b32 s{sU1}, s{sE}, 13
    s_lshl_b32 s{sU2}, s{sKH}, 11
    s_add_u32 s{sU1}, s{sU1}, s{sU2}
    s_lshl_b32 s{sU2}, s{sU0}, 12
    s_add_u32 s{sU1}, s{sU1}, s{sU2}
    s_add_u32 s{sU1}, s{sU1}, {EX+8192}
    v_add_u32 v{vEK}, s{sU1}, v{vL16}
    v_add_u32 v{vEV}, s{sU1}, v{vVo}""")
def att_setup2():
    A(f"""v_and_b32 v{vt0}, 27, v0
    v_cmp_eq_u32 vcc, 16, v{vt0}
    v_mov_b32 v{vt1}, 0x3f803f80
    s_nop 0
    v_cndmask_b32 v{vt1}, 0, v{vt1}, vcc""")
    for d in range(ND):
        for i in range(8): A(f"v_mov_b32 v{Vf[d]+i}, v{vt1}")
def att_setup3():
    for d in range(2):
        for i in range(16): A(f"v_mov_b32 v{Oa[d]+i}, 0")
def att_read_ex():
    A.lds(f"ds_read_b128 {vr(Kf[0],4)}, v{vEK}",'k0')
    A(f"s_mov_b64 exec, {sr(sVM,2)}")
    for t in range(2): A.lds(f"ds_read_b128 {vr(Vf[0]+4*t,4)}, v{vEV} offset:{1024+t*512}",'v0')
    A(f"s_mov_b64 exec, -1\nv_xor_b32 v{vEK}, 4096, v{vEK}\nv_xor_b32 v{vEV}, 4096, v{vEV}")
    A.wait_lg('k0')
    A.vmem(f"buffer_store_dwordx4 {vr(Kf[0],4)}, v{vL16}, {sr(SRD_WS,4)}, s{sOwn} offen sc1",'kvst')
    A.wait_lg('v0')
    A(f"s_mov_b64 exec, {sr(sVM,2)}")
    for t in range(2): A.vmem(f"buffer_store_dwordx4 {vr(Vf[0]+4*t,4)}, v{vVo}, {sr(SRD_WS,4)}, s{sOwn} offen offset:{1024+t*512} sc1",'kvst')
    for t in range(2): A.lds(f"ds_read_b128 {vr(Vf[1]+4*t,4)}, v{vEV} offset:{1024+t*512}")
    A("s_mov_b64 exec, -1")
    A.lds(f"ds_read_b128 {vr(Kf[1],4)}, v{vEK}")
    A.lds(f"ds_read_b128 {vr(Qf[0],4)}, v{vEQ0}")
    A(f"v_xor_b32 v{vEQ0}, 1024, v{vEQ0}")
    A.lds(f"ds_read_b128 {vr(Qf[1],4)}, v{vEQ0}")
def loader(cls):
    A.reset()
    issue_stage(cls,0); issue_stage(cls,1)
    srd(SRD_WS,20,WS_BYTES)
    stamp(0)
    for s in range(16):
        A.wait_vm(s)
        if s==OPT.get('flagstage',11): flag_store(vN,vZ,sFKVw)
        A("s_barrier")
        stamp(1+s, 1 if s in (0,4,8,12,15) else 2)
        if s==0: issue_stage(cls,2); issue_stage(cls,3); att_setup1(cls)
        if s==8:
            nonce_check(vN,vZ,sNon,sCnt,sU0)
            A("s_barrier")
            att_read_ex()
        if 1<=s and s+3<=15: issue_stage(cls,s+3)
        if s==8: A.wait_lg_all()
        if s==1: att_setup2()
        if s==2: att_setup3()
        if s==4: A.vmem(f"buffer_load_dwordx2 {vr(vN,2)}, v{vZ}, {sr(SRD_DBG,4)}, 0 offen sc1",'non')
    A("s_branch L_att")
loader(0)
A.label("L_ld1"); loader(1)
A.label("L_ld2"); loader(2)
A.label("L_att")
A.reset()
if OPT.get('gonly'):
    stamp_out(vt0); A("s_endpgm")
def kv_load(i):
    d=i%ND
    if i%2==0:
        A(f"""s_add_u32 s{sBlk}, s{sRB}, {i//2}
        s_and_b32 s{sBlk}, s{sBlk}, 15
        s_lshl_b32 s{sBlk}, s{sBlk}, 13
        s_add_u32 s{sOff}, s{sBlk}, s{sKVb}""")
    else:
        A(f"s_add_u32 s{sOff}, s{sOff}, 4096")
    A.vmem(f"buffer_load_dwordx4 {vr(Kf[d],4)}, v{vL16}, {sr(SRD_WS,4)}, s{sOff} offen sc1",('kv',i))
    A(f"s_mov_b64 exec, {sr(sVM,2)}")
    A.vmem(f"buffer_load_dwordx4 {vr(Vf[d],4)}, v{vVo}, {sr(SRD_WS,4)}, s{sOff} offen offset:1024 sc1",('kv',i))
    A.vmem(f"buffer_load_dwordx4 {vr(Vf[d]+4,4)}, v{vVo}, {sr(SRD_WS,4)}, s{sOff} offen offset:1536 sc1",('kv',i))
    A("s_mov_b64 exec, -1")
def QK(u): A(f"v_mfma_f32_32x32x16_bf16 {vr(Sb[u%2],16)}, {vr(Kf[(u//2)%ND],4)}, {vr(Qf[u%2],4)}, 0")
def PV(u,t): A(f"v_smfmac_f32_32x32x32_bf16 {vr(Oa[u%2],16)}, {vr(Vf[(u//2)%ND]+4*t,4)}, {vr(Sb[u%2]+8*t,8)}, v{vIdx}")
NU=64
poll_issue(vP,vFl,sFKVr)
if OPT['prio']: A("s_setprio 2")
QK(0)
A("s_nop 11")
for u in range(NU):
    S=Sb[u%2]
    E=lambda r: A(f"v_exp_f32 v{S+r}, v{S+r}")
    E(0);E(1)
    if u>0: PV(u-1,1)
    E(2);E(3);E(4)
    if u==2:
        poll_check(vP,vFl,sFKVr,sCnt,sNon)
        stamp(17)
        for i in range(2,ND+1): kv_load(i)
    elif u>2 and u%2==0 and (u//2-1+ND)<32: kv_load(u//2-1+ND)
    if OPT['prio'] and u==OPT['p1']: A("s_setprio 1")
    if OPT['prio'] and u==OPT['p2']: A("s_setprio 0")
    if u+1<NU:
        if (u+1)%2==0: A.wait_vm(('kv',(u+1)//2))
        QK(u+1)
    for r in range(5,10): E(r)
    PV(u,0)
    for r in range(10,16): E(r)
    if u in (3,5,9,17,33): stamp(18+(3,5,9,17,33).index(u), 1 if u in (5,33) else 2)
A("s_nop 1")
PV(NU-1,1)
stamp(23)
vR=Sb[0]; vRa=Sb[1]
A(f"""s_mul_i32 s{sU0}, s{sW}, 2304
s_add_u32 s{sU0}, s{sU0}, {RED}
v_add_u32 v{vRa}, s{sU0}, v{vL16}
v_lshlrev_b32 v{vRa+1}, 2, v0
v_add_u32 v{vRa+1}, s{sU0}, v{vRa+1}
s_xor_b32 s{sU1}, s{sW}, 1
s_mul_i32 s{sU1}, s{sU1}, 2304
s_add_u32 s{sU1}, s{sU1}, {RED}
v_add_u32 v{vRa+2}, s{sU1}, v{vL16}
v_lshlrev_b32 v{vRa+3}, 2, v0
v_add_u32 v{vRa+3}, s{sU1}, v{vRa+3}
s_nop 1""")
A.lds(f"ds_write_b128 v{vRa}, {vr(Oa[1],4)}")
A.lds(f"ds_write_b128 v{vRa}, {vr(Oa[1]+4,4)} offset:1024")
A.lds(f"ds_write_b32 v{vRa+1}, v{Oa[1]+8} offset:2048")
sOst=sXoff; sFOw=sXm0; sFOr=sWoffA; sOld=sWm0A; sOut=sWoffB
A(f"""v_bfe_u32 v{vRa+4}, v0, 4, 1
v_lshlrev_b32 v{vRa+4}, 14, v{vRa+4}
v_add_u32 v{vRa+4}, v{vRa+4}, v{vVo}
s_lshl_b32 s{sU0}, s{sE}, 9
v_add_u32 v{vRa+4}, s{sU0}, v{vRa+4}
s_lshl_b32 s{sU0}, s{sRB}, 2
s_add_u32 s{sU0}, s{sU0}, s{sTile}
s_lshl_b32 s{sOst}, s{sU0}, 5
s_add_u32 s{sOst}, s{sOst}, s{sHP}
s_lshl_b32 s{sOst}, s{sOst}, 10
s_add_u32 s{sOst}, s{sOst}, {WS_OFB}
s_lshl_b32 s{sFOw}, s{sU0}, 4
s_add_u32 s{sFOw}, s{sFOw}, s{sHP}
s_lshl_b32 s{sFOw}, s{sFOw}, 1
s_add_u32 s{sFOw}, s{sFOw}, s{sE}
s_lshl_b32 s{sFOw}, s{sFOw}, 3
s_add_u32 s{sFOw}, s{sFOw}, {WS_FOB}
s_mov_b32 s{sLo}, {f2u(2.0**-64):#x}
s_mov_b32 s{sHi}, {f2u(2.0**64):#x}""")
A.wait_lg_all()
A("s_barrier")
stamp(24)
A.lds(f"ds_read_b32 v{vR+8}, v{vRa+3} offset:2048",'r2')
A.lds(f"ds_read_b128 {vr(vR,4)}, v{vRa+2}",'r0')
A.lds(f"ds_read_b128 {vr(vR+4,4)}, v{vRa+2} offset:1024",'r1')
A.wait_lg('r2')
A(f"""v_add_f32 v{Oa[0]+8}, v{Oa[0]+8}, v{vR+8}
v_cmp_nle_f32 vcc, s{sLo}, v{Oa[0]+8}
v_cmp_nge_f32 {sr(sX0,2)}, s{sHi}, v{Oa[0]+8}""")
A.wait_lg('r0')
for i in range(4): A(f"v_add_f32 v{Oa[0]+i}, v{Oa[0]+i}, v{vR+i}")
A.wait_lg('r1')
for i in range(4,8): A(f"v_add_f32 v{Oa[0]+i}, v{Oa[0]+i}, v{vR+i}")
A(f"""s_or_b64 vcc, vcc, {sr(sX0,2)}
s_cmp_lg_u64 vcc, 0
s_cbranch_scc1 L_fallback""")
A.label("L_norm")
A(f"v_rcp_f32 v{vR+9}, v{Oa[0]+8}\ns_nop 0")
for i in range(8): A(f"v_mul_f32 v{Oa[0]+i}, v{Oa[0]+i}, v{vR+9}")
for i in range(4): A(f"v_cvt_pk_bf16_f32 v{vR+i}, v{Oa[0]+2*i}, v{Oa[0]+2*i+1}")
A.vmem(f"buffer_store_dwordx4 {vr(vR,4)}, v{vRa+4}, {sr(SRD_WS,4)}, s{sOst} offen sc1")
VB=Alloc(vBig,168)
Of=[VB.take(4,4) for _ in range(8)]
Wf=[[VB.take(4,4) for _ in range(4)] for _ in range(6)]
Ac=[VB.take(4,4) for _ in range(4)]
vWA=[vx0,vx1,vw,vh]; vOo=vEQ0; vXw=vEK; vXr=vEV
print("OUTB regs hi",VB.hi)
A(f"""v_lshrrev_b32 v{vt0}, 2, v0
v_and_b32 v{vt0}, 7, v{vt0}
v_lshrrev_b32 v{vt1}, 5, v0
v_lshl_add_u32 v{vt1}, v{vt1}, 4, v{vt0}
v_lshlrev_b32 v{vt1}, 7, v{vt1}
v_and_b32 v{vt0}, 6, v{vt0}
v_bfe_u32 v{vx0}, v0, 1, 1
v_xor_b32 v{vt0}, v{vt0}, v{vx0}
v_lshl_add_u32 v{vt1}, v{vt0}, 4, v{vt1}
v_and_b32 v{vt0}, 1, v0
v_lshl_add_u32 v{vt1}, v{vt0}, 3, v{vt1}
s_lshl_b32 s{sU0}, s{sE}, 15
s_lshl_b32 s{sU1}, s{sE}, 6
v_add_u32 v{vt1}, s{sU0}, v{vt1}
v_xor_b32 v{vx0}, s{sU1}, v{vt1}
v_xor_b32 v{vx1}, 32, v{vx0}
v_xor_b32 v{vw}, 64, v{vx0}
v_xor_b32 v{vh}, 96, v{vx0}""")
assert WOB==0
def wo_read(hp_, slotset):
    for c in range(4):
        A.lds(f"ds_read_b64_tr_b16 {vr(Wf[slotset][c],2)}, v{vWA[c]} offset:{hp_*4096}",('wo',hp_))
        A.lds(f"ds_read_b64_tr_b16 {vr(Wf[slotset][c]+2,2)}, v{vWA[c]} offset:{hp_*4096+1024}",('wo',hp_))
wo_read(0,0)
A(f"""s_lshr_b32 s{sU0}, s{sHP}, 3
s_lshl_b32 s{sU1}, s{sRB}, 3
s_lshl_b32 s{sU2}, s{sU0}, 2
s_add_u32 s{sU1}, s{sU1}, s{sU2}
s_add_u32 s{sU1}, s{sU1}, s{sTile}
s_lshl_b32 s{sOld}, s{sU1}, 14
s_lshl_b32 s{sU2}, s{sE}, 13
s_add_u32 s{sOld}, s{sOld}, s{sU2}
s_add_u32 s{sOld}, s{sOld}, {WS_OFB}
s_lshr_b32 s{sFOr}, s{sU1}, 1
s_lshl_b32 s{sFOr}, s{sFOr}, 1
s_add_u32 s{sFOr}, s{sFOr}, s{sE}
s_lshl_b32 s{sFOr}, s{sFOr}, 7
s_add_u32 s{sFOr}, s{sFOr}, {WS_FOB}
s_lshl_b32 s{sOut}, s{sU1}, 15
s_and_b32 s{sU2}, s{sHP}, 7
s_lshl_b32 s{sU2}, s{sU2}, 7
s_add_u32 s{sOut}, s{sOut}, s{sU2}
s_lshl_b32 s{sU2}, s{sE}, 6
s_add_u32 s{sOut}, s{sOut}, s{sU2}
s_add_u32 s{sOut}, s{sOut}, 1024
v_and_b32 v{vFl}, 15, v0
v_lshlrev_b32 v{vOo}, 11, v{vFl}
v_lshlrev_b32 v{vFl}, 3, v{vFl}
v_lshrrev_b32 v{vt0}, 4, v0
v_lshl_add_u32 v{vOo}, v{vt0}, 3, v{vOo}
s_lshl_b32 s{sU0}, s{sW}, 11
s_add_u32 s{sU0}, s{sU0}, {OX}
v_add_u32 v{vXw}, s{sU0}, v{vL16}
v_xor_b32 v{vXr}, 8192, v{vXw}""")
assert (OX & 8192)==0 or True
srd(SRD_OUT,16,4194304)
A.wait_lg_all(); wo_read(1,1)
A.wait_vm_all()
flag_store(vN,vZ,sFOw)
poll_issue(vP,vFl,sFOr)
stamp(25)
for i in range(2,6):
    A.wait_lg_all(); wo_read(i,i)
poll_check(vP,vFl,sFOr,sCnt,sNon)
stamp(26)
for i in range(8):
    if i==4: A(f"s_add_u32 s{sOld}, s{sOld}, 4096")
    A.vmem(f"buffer_load_dwordx4 {vr(Of[i],4)}, v{vL16}, {sr(SRD_WS,4)}, s{sOld} offen offset:{(i%4)*1024} sc1",('of',i))
A.wait_lg_all()
for i in range(8):
    A.wait_vm(('of',i))
    if i>=6: A.wait_lg(('wo',i))
    for c in range(4):
        A(f"v_mfma_f32_16x16x32_bf16 {vr(Ac[c],4)}, {vr(Wf[i%6][c],4)}, {vr(Of[i],4)}, {'0' if i==0 else vr(Ac[c],4)}")
    if i<2:
        A.wait_lg_all(); wo_read(6+i,i)
A("s_nop 7")
A.lds(f"ds_write_b128 v{vXw}, {vr(Ac[2],4)}")
A.lds(f"ds_write_b128 v{vXw}, {vr(Ac[3],4)} offset:1024")
A.wait_lg_all()
A("s_barrier")
A.lds(f"ds_read_b128 {vr(Ac[2],4)}, v{vXr}",'x0')
A.lds(f"ds_read_b128 {vr(Ac[3],4)}, v{vXr} offset:1024",'x1')
for c in range(2):
    A.wait_lg(f'x{c}')
    for i in range(4): A(f"v_add_f32 v{Ac[c]+i}, v{Ac[c]+i}, v{Ac[2+c]+i}")
    A(f"v_cvt_pk_bf16_f32 v{Ac[c]}, v{Ac[c]}, v{Ac[c]+1}\nv_cvt_pk_bf16_f32 v{Ac[c]+1}, v{Ac[c]+2}, v{Ac[c]+3}")
    A.vmem(f"buffer_store_dwordx2 {vr(Ac[c],2)}, v{vOo}, {sr(SRD_OUT,4)}, s{sOut} offen offset:{c*32}")
stamp(27)
stamp_out(vt0)
A("s_endpgm")

A.label("L_fallback"); A.reset()
fC=Oa[1]; fM=vt0; fT=vt1; fS=Kf[0]
fK=Kf[4]; fV=Vf[0]
A(f"""s_lshl_b32 s{sU0}, s{sKH}, 11
s_sub_u32 s{sU2}, s{sKVb}, s{sU0}
s_mov_b32 s{sOff}, s{sU2}
s_mov_b32 s{sCnt}, 0
v_mov_b32 v{fM}, {NEGBIG:#x}""")
A.label("L_fb1")
A(f"""buffer_load_dwordx4 {vr(fK,4)}, v{vL16}, {sr(SRD_WS,4)}, s{sOff} offen sc1
s_waitcnt vmcnt(0)
v_mfma_f32_32x32x16_bf16 {vr(fS,16)}, {vr(fK,4)}, {vr(Qf[0],4)}, 0
s_add_u32 s{sOff}, s{sOff}, 2048
s_add_u32 s{sCnt}, s{sCnt}, 1
s_nop 11""")
for i in range(8): A(f"v_max3_f32 v{fM}, v{fM}, v{fS+2*i}, v{fS+2*i+1}")
A(f"""s_cmp_lt_u32 s{sCnt}, 64
s_cbranch_scc1 L_fb1
v_mov_b32 v{fT}, v{fM}
s_nop 1
v_permlane32_swap_b32 v{fM}, v{fT}
s_nop 1
v_max_f32 v{fM}, v{fM}, v{fT}""")
for i in range(16): A(f"v_sub_f32 v{fC+i}, 0, v{fM}")
for i in range(16): A(f"v_mov_b32 v{Oa[0]+i}, 0")
A(f"""s_mov_b32 s{sOff}, s{sU2}
s_mov_b32 s{sCnt}, 0""")
A.label("L_fb2")
A(f"""buffer_load_dwordx4 {vr(fK,4)}, v{vL16}, {sr(SRD_WS,4)}, s{sOff} offen sc1
s_mov_b64 exec, {sr(sVM,2)}
buffer_load_dwordx4 {vr(fV,4)}, v{vVo}, {sr(SRD_WS,4)}, s{sOff} offen offset:1024 sc1
buffer_load_dwordx4 {vr(fV+4,4)}, v{vVo}, {sr(SRD_WS,4)}, s{sOff} offen offset:1536 sc1
s_mov_b64 exec, -1
s_waitcnt vmcnt(0)
v_mfma_f32_32x32x16_bf16 {vr(fS,16)}, {vr(fK,4)}, {vr(Qf[0],4)}, {vr(fC,16)}
s_add_u32 s{sOff}, s{sOff}, 2048
s_add_u32 s{sCnt}, s{sCnt}, 1
s_nop 11""")
for i in range(16): A(f"v_exp_f32 v{fS+i}, v{fS+i}")
A(f"""s_nop 1
v_smfmac_f32_32x32x32_bf16 {vr(Oa[0],16)}, {vr(fV,4)}, {vr(fS,8)}, v{vIdx}
v_smfmac_f32_32x32x32_bf16 {vr(Oa[0],16)}, {vr(fV+4,4)}, {vr(fS+8,8)}, v{vIdx}
s_cmp_lt_u32 s{sCnt}, 64
s_cbranch_scc1 L_fb2
s_nop 15
s_branch L_norm""")

A.label("L_aux")
A.reset()
VX=Alloc(2,168)
xt0=VX.take(); xt1=VX.take(); xt2=VX.take(); xZ=VX.take(); xN=VX.take(2,2)
xL16=VX.take(); xVo=VX.take()
xBig=VX.mark()
va=[VX.take() for _ in range(4)]; vhx=[VX.take() for _ in range(4)]; vwa=VX.take()
vKpos=VX.take(); vLK=VX.take(); vLV=VX.take(); vLQ=VX.take(); vV1=VX.take()
accQ=VX.take(16,4); accK=VX.take(16,4); accV=VX.take(16,4); accH=VX.take(16,4)
xf=[VX.take(4,4) for _ in range(2)]; hf=[VX.take(4,4) for _ in range(2)]
wf=[[VX.take(4,4) for _ in range(3)] for _ in range(2)]
Mk=VX.take(24,4)
pQ=VX.take(8,4)
sT=sA0; sC=sA0+1; sV0=sA0+2; sV1=sA0+3; sNx=sA0+4; sCx=sA0+6; sVMx=sA0+8; sKV0=sA0+10; sV2=sA0+11; sV3=sA0+12
A(f"""s_setprio 3
s_sub_u32 s{sT}, s{sW}, 8
v_mov_b32 v{xZ}, 0
s_waitcnt lgkmcnt(0)""")
srd(SRD_WS,20,WS_BYTES); srd(SRD_DBG,18,256)
A(f"""s_add_u32 s{sV0}, s2, s{sT}
s_cmp_lg_u32 s{sV0}, 0
s_cbranch_scc1 L_nonon
s_mov_b32 s{sV0}, {WS_EPOCH}
s_mov_b64 exec, 1
buffer_load_dwordx2 {vr(xN,2)}, v{xZ}, {sr(SRD_WS,4)}, s{sV0} offen sc1
s_waitcnt vmcnt(0)
v_add_u32 v{xN}, 2, v{xN}
v_or_b32 v{xN}, 1, v{xN}
v_or_b32 v{xN+1}, 0x80000000, v{xN+1}
buffer_store_dwordx2 {vr(xN,2)}, v{xZ}, {sr(SRD_DBG,4)}, 0 offen sc1
buffer_store_dwordx2 {vr(xN,2)}, v{xZ}, {sr(SRD_WS,4)}, s{sV0} offen sc1
s_mov_b64 exec, -1""")
A.label("L_nonon")
stamp(0)
A(f"""v_mov_b32 v{xt0}, {LF}
v_lshl_add_u32 v{xt0}, v0, 2, v{xt0}
ds_write_b32 v{xt0}, v{xZ}
v_and_b32 v{xt0}, 31, v0
v_lshrrev_b32 v{xt1}, 5, v0
v_bfe_u32 v{xt2}, v0, 1, 3
v_xor_b32 v{xt2}, v{xt2}, v{xt1}
v_lshlrev_b32 v{xt2}, 4, v{xt2}
v_lshl_add_u32 v{xt2}, v{xt0}, 7, v{xt2}
s_lshl_b32 s{sV0}, s{sT}, 12
s_add_u32 s{sV0}, s{sV0}, {LX}""")
for s in range(4): A(f"v_xor_b32 v{vhx[s]}, {32*s}, v{xt2}")
for s in range(4):
    A(f"v_add_u32 v{va[s]}, s{sV0}, v{vhx[s]}")
    A(f"v_add_u32 v{vhx[s]}, {LH}, v{vhx[s]}")
A(f"""v_bfe_u32 v{xt2}, v0, 2, 2
v_lshl_add_u32 v{xt2}, v{xt1}, 3, v{xt2}
v_lshlrev_b32 v{xt2}, 6, v{xt2}
v_bfe_u32 v{vwa}, v0, 4, 1
v_lshl_add_u32 v{xt2}, v{vwa}, 5, v{xt2}
v_and_b32 v{vwa}, 3, v0
v_lshl_add_u32 v{vwa}, v{vwa}, 3, v{xt2}
v_and_b32 v{vKpos}, 0x33, v0
v_bfe_u32 v{xt2}, v0, 2, 1
v_lshl_add_u32 v{vKpos}, v{xt2}, 3, v{vKpos}
v_bfe_u32 v{xt2}, v0, 3, 1
v_lshl_add_u32 v{vKpos}, v{xt2}, 2, v{vKpos}
v_lshlrev_b32 v{vKpos}, 4, v{vKpos}
v_and_b32 v{xt2}, 15, v0
v_lshlrev_b32 v{xt2}, 4, v{xt2}
v_lshl_add_u32 v{xVo}, v{xt1}, 8, v{xt2}
v_bfe_u32 v{vV1}, v0, 4, 1
v_lshl_add_u32 v{vLV}, v{vV1}, 13, v{xVo}
s_lshl_b32 s{sV0}, s{sT}, 11
s_add_u32 s{sV0}, s{sV0}, {EX+8192}
v_add_u32 v{vLV}, s{sV0}, v{vLV}
v_add_u32 v{vLK}, s{sV0}, v{vKpos}
s_lshl_b32 s{sV0}, s{sT}, 10
s_add_u32 s{sV0}, s{sV0}, {EX}
v_lshlrev_b32 v{xL16}, 4, v0
v_add_u32 v{vLQ}, s{sV0}, v{xL16}
s_mov_b32 s{sC}, {f2u(CSCALE):#x}
s_mov_b32 s{sVMx}, 0x0000ffff
s_mov_b32 s{sVMx+1}, 0x0000ffff""")
A(f"""v_lshlrev_b32 v{xt1}, 3, v{xt1}
v_sub_u32 v{xt0}, v{xt0}, v{xt1}
s_add_u32 s{sV0}, s{sRB}, s{sT}
s_cmp_eq_u32 s{sV0}, 0
s_cselect_b32 s{sV0}, 1016, 16
v_add_u32 v{xt1}, s{sV0}, v{xt0}
v_mov_b32 v{xt2}, {NEGBIG:#x}
s_mov_b32 s{sV1}, 0xfffffff1""")
for r in range(24):
    src,c=(xt0,16*(r//8)+r%8) if r<16 else (xt1,r-16)
    A(f"v_subrev_u32 v{Mk+r}, {c}, v{src}")
    A(f"v_and_b32 v{Mk+r}, s{sV1}, v{Mk+r}")
for r in range(0,24,2):
    A(f"v_cmp_eq_u32 vcc, 0, v{Mk+r}")
    A(f"v_cmp_eq_u32 {sr(sNx,2)}, 0, v{Mk+r+1}")
    A("s_nop 0")
    A(f"v_cndmask_b32 v{Mk+r}, v{xt2}, 0, vcc")
    A(f"v_cndmask_b32 v{Mk+r+1}, v{xt2}, 0, {sr(sNx,2)}")

def g_reads(s, ks, halo):
    if OPT.get('nord'): return
    slot=s%4; b=ks%2
    A.lds(f"ds_read_b128 {vr(xf[b],4)}, v{va[ks]} offset:{slot*16384}", ('x',ks))
    for p in range(3):
        o=slot*12288+p*4096+ks*1024
        A.lds(f"ds_read_b64_tr_b16 {vr(wf[b][p],2)}, v{vwa} offset:{o}", ('w',ks,p))
        A.lds(f"ds_read_b64_tr_b16 {vr(wf[b][p]+2,2)}, v{vwa} offset:{o+256}", ('w',ks,p))
    if halo and s>=8:
        A.lds(f"ds_read_b128 {vr(hf[b],4)}, v{vhx[ks]} offset:{slot*4096}", ('h',ks))
def g_stage(s, halo):
    for ks in range(4):
        b=ks%2; first=(s%8==0 and ks==0)
        C=lambda acc: "0" if first else vr(acc,16)
        if ks<3:
            A.wait_lg([('x',ks),('w',ks,0)])
            g_reads(s,ks+1,halo)
        else:
            A.wait_lg_all()
            if s<15:
                A("s_barrier")
                g_reads(s+1,0,halo)
        A(f"v_mfma_f32_32x32x16_bf16 {vr(accQ,16)}, {vr(wf[b][0],4)}, {vr(xf[b],4)}, {C(accQ)}")
        if ks<3: A.wait_lg(('w',ks,1))
        A(f"v_mfma_f32_32x32x16_bf16 {vr(accK,16)}, {vr(wf[b][1],4)}, {vr(xf[b],4)}, {C(accK)}")
        if ks<3: A.wait_lg([('w',ks,2),('h',ks)])
        A(f"v_mfma_f32_32x32x16_bf16 {vr(accV,16)}, {vr(xf[b],4)}, {vr(wf[b][2],4)}, {C(accV)}")
        if s>=8 and halo=='k': A(f"v_mfma_f32_32x32x16_bf16 {vr(accH,16)}, {vr(wf[b][1],4)}, {vr(hf[b],4)}, {C(accH)}")
        if s>=8 and halo=='v': A(f"v_mfma_f32_32x32x16_bf16 {vr(accH,16)}, {vr(hf[b],4)}, {vr(wf[b][2],4)}, {C(accH)}")
def pack16(dst, acc, scale=False):
    if scale:
        for i in range(16): A(f"v_mul_f32 v{acc+i}, s{sC}, v{acc+i}")
    for i in range(8): A(f"v_cvt_pk_bf16_f32 v{dst+i}, v{acc+2*i}, v{acc+2*i+1}")
A.wait_lg_all()
A("s_barrier")
g_reads(0,0,None)
for s in range(7): g_stage(s,None)
A(f"""s_cmp_eq_u32 s{sT}, 1
s_cbranch_scc1 L_gak
s_cmp_eq_u32 s{sT}, 2
s_cbranch_scc1 L_gav""")
sv=list(A.lg); svl=len(A.lines)
for lab,halo in ((None,None),('L_gak','k'),('L_gav','v')):
    if lab:
        A.label(lab); A.reset(); A.lg=list(sv)
    g_stage(7,halo)
    A("s_nop 10")
    pack16(accK,accK)
    A.lds(f"ds_write_b128 v{vLK}, {vr(accK,4)}",'e')
    A.lds(f"ds_write_b128 v{vLK}, {vr(accK+4,4)} offset:8192",'e')
    pack16(accV,accV)
    A.lds(f"ds_write_b128 v{vLV}, {vr(accV,4)} offset:1024",'e')
    A.lds(f"ds_write_b128 v{vLV}, {vr(accV+4,4)} offset:1536",'e')
    pack16(accQ,accQ,True)
    A.lds(f"ds_write_b128 v{vLQ}, {vr(accQ,4)}",'e')
    A.lds(f"ds_write_b128 v{vLQ}, {vr(accQ+4,4)} offset:4096",'e')
    A.wait_lg_all()
    A("s_barrier")
    stamp(9)
    for s in range(8,16): g_stage(s,halo)
    A("s_nop 11")
    if halo=='k':
        pack16(accH,accH)
        A(f"v_add_u32 v{xt0}, {EA}, v{vKpos}")
        A.lds(f"ds_write_b128 v{xt0}, {vr(accH,4)}")
        A.lds(f"ds_write_b128 v{xt0}, {vr(accH+4,4)} offset:2048")
    if halo=='v':
        pack16(accH,accH)
        A(f"v_lshl_add_u32 v{xt0}, v{vV1}, 11, v{xVo}\nv_add_u32 v{xt0}, {EA}, v{xt0}")
        A.lds(f"ds_write_b128 v{xt0}, {vr(accH+4,4)} offset:1536")
    A("s_branch L_epa")
A.label("L_epa"); A.reset()
stamp(17)
if OPT.get('gonly'):
    stamp_out(xt0); A("s_endpgm")
pack16(accK,accK); pack16(accV,accV)
A(f"""s_lshl_b32 s{sV0}, s{sT}, 12
s_add_u32 s{sV0}, s{sV0}, {EA}
s_add_u32 s{sV1}, s{sV0}, 4096
v_add_u32 v{vLK}, s{sV1}, v{vKpos}
v_lshl_add_u32 v{vLV}, v{vV1}, 11, v{xVo}
v_add_u32 v{vLV}, s{sV1}, v{vLV}""")
A.lds(f"ds_write_b128 v{vLK}, {vr(accK,4)}")
A.lds(f"ds_write_b128 v{vLK}, {vr(accK+4,4)} offset:2048")
A.lds(f"ds_write_b128 v{vLV}, {vr(accV,4)} offset:1024")
A.lds(f"ds_write_b128 v{vLV}, {vr(accV+4,4)} offset:1536")
A.vmem(f"buffer_load_dwordx2 {vr(xN,2)}, v{xZ}, {sr(SRD_DBG,4)}, 0 offen sc1",'non')
pack16(pQ,accQ,True)
if OPT['dump']:
    A(f"""s_lshl_b32 s{sKV0}, s{sHP}, 18
    s_lshl_b32 s{sV2}, s{sRB}, 2
    s_add_u32 s{sV2}, s{sV2}, s{sT}
    s_lshl_b32 s{sV2}, s{sV2}, 11
    s_add_u32 s{sKV0}, s{sKV0}, s{sV2}
    s_add_u32 s{sV2}, s{sKV0}, {WS_DKVA}
    s_add_u32 s{sV3}, s{sV2}, 131072
    v_lshl_add_u32 v{xt1}, v{vV1}, 17, v{xVo}""")
    A.vmem(f"buffer_store_dwordx4 {vr(accK,4)}, v{vKpos}, {sr(SRD_WS,4)}, s{sV2} offen")
    A.vmem(f"buffer_store_dwordx4 {vr(accK+4,4)}, v{vKpos}, {sr(SRD_WS,4)}, s{sV3} offen")
    A.vmem(f"buffer_store_dwordx4 {vr(accV,4)}, v{xt1}, {sr(SRD_WS,4)}, s{sV2} offen offset:1024")
    A.vmem(f"buffer_store_dwordx4 {vr(accV+4,4)}, v{xt1}, {sr(SRD_WS,4)}, s{sV2} offen offset:1536")
    A(f"""s_lshr_b32 s{sV2}, s{sKV0}, 1
    s_add_u32 s{sV2}, s{sV2}, {WS_DQA}
    s_add_u32 s{sV3}, s{sV2}, 65536""")
    A.vmem(f"buffer_store_dwordx4 {vr(pQ,4)}, v{xL16}, {sr(SRD_WS,4)}, s{sV2} offen")
    A.vmem(f"buffer_store_dwordx4 {vr(pQ+4,4)}, v{xL16}, {sr(SRD_WS,4)}, s{sV3} offen")
    A.wait_vm_all()
A(f"""s_lshl_b32 s{sV1}, s{sT}, 2
s_add_u32 s{sV1}, s{sV1}, {LF}
v_mov_b32 v{xt0}, s{sV1}
v_mov_b32 v{xt1}, 1
v_mov_b32 v{xt2}, {LF}""")
A.wait_lg_all()
A(f"ds_write_b32 v{xt0}, v{xt1}")
Sc=accK; Sp=accV; Oc=accH; Kc=xf[0]; Kp=xf[1]; Vc=accQ; Vp=accQ+8; FL=wf[0][0]
vAK=va[0]; vAV=va[1]; vOf=va[2]; mx=va[3]; mt=vhx[0]
A(f"""v_add_u32 v{vAK}, s{sV0}, v{xL16}
v_add_u32 v{vAV}, s{sV0}, v{xVo}
v_and_b32 v{xt0}, 27, v0
v_cmp_eq_u32 vcc, 16, v{xt0}
v_mov_b32 v{xt1}, 0x3f803f80
v_lshl_add_u32 v{vOf}, v{vV1}, 14, v{xVo}
v_cndmask_b32 v{xt1}, 0, v{xt1}, vcc
v_mov_b32 v{vhx[1]}, 0xdddddddd""")
xIdx=vhx[1]
for i in range(12): A(f"v_mov_b32 v{Vc+i}, v{xt1}")
A(f"""s_lshl_b32 s{sV2}, s{sRB}, 2
s_add_u32 s{sV2}, s{sV2}, s{sT}
s_lshl_b32 s{sV3}, s{sV2}, 5
s_add_u32 s{sV3}, s{sV3}, s{sHP}
s_lshl_b32 s{sV3}, s{sV3}, 10
s_add_u32 s{sV3}, s{sV3}, {WS_OFA}
s_mov_b32 s{sCx}, 0""")
A.label("L_xsync")
A(f"""ds_read_b128 {vr(FL,4)}, v{xt2}
s_add_u32 s{sCx}, s{sCx}, 1
s_waitcnt lgkmcnt(0)
v_and_b32 v{FL}, v{FL}, v{FL+1}
v_and_b32 v{FL+2}, v{FL+2}, v{FL+3}
v_and_b32 v{FL}, v{FL}, v{FL+2}
s_cmp_gt_u32 s{sCx}, {SPIN*4}
v_readfirstlane_b32 s{sV1}, v{FL}
s_cbranch_scc1 L_xsyncd
s_cmp_eq_u32 s{sV1}, 0
s_cbranch_scc1 L_xsync""")
A.label("L_xsyncd")
A.lg=[]
stamp(18)
for e in range(2):
    A.lds(f"ds_read_b128 {vr(Kc,4)}, v{vAK} offset:{4096+e*2048}",'kc')
    A.lds(f"ds_read_b128 {vr(Kp,4)}, v{vAK} offset:{e*2048}",'kp')
    A(f"s_mov_b64 exec, {sr(sVMx,2)}")
    A.lds(f"ds_read_b128 {vr(Vc,4)}, v{vAV} offset:{4096+e*2048+1024}",'v')
    A.lds(f"ds_read_b128 {vr(Vc+4,4)}, v{vAV} offset:{4096+e*2048+1536}",'v')
    A.lds(f"ds_read_b128 {vr(Vp,4)}, v{vAV} offset:{e*2048+1536}",'v')
    A("s_mov_b64 exec, -1")
    A.wait_lg('kc')
    A(f"v_mfma_f32_32x32x16_bf16 {vr(Sc,16)}, {vr(Kc,4)}, {vr(pQ+4*e,4)}, {vr(Mk,16)}")
    A.wait_lg('kp')
    A(f"v_mfma_f32_32x32x16_bf16 {vr(Sp,16)}, {vr(Kp,4)}, {vr(pQ+4*e,4)}, {vr(Mk+8,16)}")
    for i in range(9): A(f"v_mov_b32 v{Oc+i}, 0")
    A("s_nop 1")
    A(f"v_max_f32 v{mx}, v{Sc}, v{Sc+1}")
    for i in range(1,8): A(f"v_max3_f32 v{mx}, v{mx}, v{Sc+2*i}, v{Sc+2*i+1}")
    for i in range(4,8): A(f"v_max3_f32 v{mx}, v{mx}, v{Sp+2*i}, v{Sp+2*i+1}")
    A(f"""v_mov_b32 v{mt}, v{mx}
    s_nop 1
    v_permlane32_swap_b32 v{mx}, v{mt}
    s_nop 1
    v_max_f32 v{mx}, v{mx}, v{mt}""")
    regs=[Sp+8+i for i in range(8)]+[Sc+i for i in range(16)]
    for r in regs: A(f"v_sub_f32 v{r}, v{r}, v{mx}")
    A.wait_lg('v')
    for j,r in enumerate(regs):
        A(f"v_exp_f32 v{r}, v{r}")
        if j==9: A(f"v_smfmac_f32_32x32x32_bf16 {vr(Oc,16)}, {vr(Vp,4)}, {vr(Sp+8,8)}, v{xIdx}")
        if j==17: A(f"v_smfmac_f32_32x32x32_bf16 {vr(Oc,16)}, {vr(Vc,4)}, {vr(Sc,8)}, v{xIdx}")
    A("s_nop 1")
    A(f"v_smfmac_f32_32x32x32_bf16 {vr(Oc,16)}, {vr(Vc+4,4)}, {vr(Sc+8,8)}, v{xIdx}")
    A("s_nop 11")
    A(f"v_rcp_f32 v{mt}, v{Oc+8}\ns_nop 0")
    for i in range(8): A(f"v_mul_f32 v{Oc+i}, v{Oc+i}, v{mt}")
    dst=wf[1][e]
    for i in range(4): A(f"v_cvt_pk_bf16_f32 v{dst+i}, v{Oc+2*i}, v{Oc+2*i+1}")
    A.vmem(f"buffer_store_dwordx4 {vr(dst,4)}, v{vOf}, {sr(SRD_WS,4)}, s{sV3} offen offset:{e*512} sc1",'oa')
stamp(19)
A.wait_vm('non')
nonce_check(xN,xZ,sNx,sCx,sV0)
A(f"""s_lshl_b32 s{sV0}, s{sV2}, 7
s_add_u32 s{sV0}, s{sV0}, {WS_FOA}
s_lshl_b32 s{sV1}, s{sHP}, 3
s_add_u32 s{sV1}, s{sV1}, s{sV0}""")
A.wait_vm_all()
flag_store(xN,xZ,sV1)
srd(SRD_M,14,524288); srd(SRD_XA,8,524288); srd(SRD_OUT,16,4194304)
sB0=sA0+13; sB1=sA0+14; sB2=sA0+15
A(f"""v_lshrrev_b32 v{xt0}, 3, v0
v_and_b32 v{xt1}, 6, v{xt0}
v_xor_b32 v{xt1}, v{xt1}, v0
v_and_b32 v{xt1}, 7, v{xt1}
v_lshlrev_b32 v{xt0}, 10, v{xt0}
v_lshl_add_u32 v{xt0}, v{xt1}, 4, v{xt0}
v_lshrrev_b32 v{xt1}, 2, v0
v_bfe_u32 v{xt2}, v0, 4, 1
v_lshlrev_b32 v{xt2}, 1, v{xt2}
v_xor_b32 v{xt2}, v{xt2}, v0
v_and_b32 v{xt2}, 3, v{xt2}
v_lshlrev_b32 v{xt1}, 10, v{xt1}
v_lshl_add_u32 v{xt1}, v{xt2}, 4, v{xt1}
s_lshl_b32 s{sB0}, s{sT}, 17
s_and_b32 s{sB1}, s{sHP}, 7
s_lshl_b32 s{sB1}, s{sB1}, 7
s_add_u32 s{sB1}, s{sB1}, s{sB0}
s_lshl_b32 s{sB2}, s{sT}, 14""")
for j in range(16):
    A(f"s_add_u32 m0, s{sB2}, {WOB+j*1024}")
    if j: A(f"s_add_u32 s{sB1}, s{sB1}, 8192")
    else: A("s_nop 0")
    A.vmem(f"buffer_load_dwordx4 v{xt0}, {sr(SRD_M,4)}, s{sB1} offen lds")
A(f"""s_lshl_b32 s{sB1}, s{sHP}, 6
s_add_u32 s{sB1}, s{sB1}, s{sB0}
s_lshl_b32 s{sB2}, s{sT}, 13""")
for j in range(8):
    A(f"s_add_u32 m0, s{sB2}, {WOA+j*1024}")
    if j: A(f"s_add_u32 s{sB1}, s{sB1}, 16384")
    else: A("s_nop 0")
    A.vmem(f"buffer_load_dwordx4 v{xt1}, {sr(SRD_XA,4)}, s{sB1} offen lds")
VY=Alloc(xBig,168)
yFl=VY.take(); yP=VY.take(2,2); yWA=[VY.take() for _ in range(2)]; yOo=VY.take()
yO=[VY.take(4,4) for _ in range(32)]
yW=[[VY.take(4,4) for _ in range(2)] for _ in range(2)]
print("OUTA regs hi (w/o acc)",VY.hi)
A(f"""v_and_b32 v{yFl}, 15, v0
v_lshlrev_b32 v{yOo}, 11, v{yFl}
v_lshlrev_b32 v{yFl}, 3, v{yFl}
v_lshrrev_b32 v{xt0}, 4, v0
v_lshl_add_u32 v{yOo}, v{xt0}, 3, v{yOo}""")
poll_issue(yP,yFl,sV0)
poll_check(yP,yFl,sV0,sCx,sNx)
stamp(20)
A(f"""s_lshl_b32 s{sB0}, s{sV2}, 15
s_add_u32 s{sB0}, s{sB0}, {WS_OFA}""")
for i in range(32):
    if i and i%4==0: A(f"s_add_u32 s{sB0}, s{sB0}, 4096")
    A.vmem(f"buffer_load_dwordx4 {vr(yO[i],4)}, v{xL16}, {sr(SRD_WS,4)}, s{sB0} offen offset:{(i%4)*1024} sc1")
A(f"""v_lshrrev_b32 v{xt0}, 2, v0
v_and_b32 v{xt0}, 7, v{xt0}
v_lshrrev_b32 v{xt1}, 5, v0
v_lshl_add_u32 v{xt1}, v{xt1}, 4, v{xt0}
v_lshlrev_b32 v{xt1}, 6, v{xt1}
v_bfe_u32 v{xt0}, v0, 4, 1
v_lshlrev_b32 v{xt0}, 1, v{xt0}
v_bfe_u32 v{xt2}, v0, 1, 1
v_xor_b32 v{xt0}, v{xt0}, v{xt2}
v_lshl_add_u32 v{xt1}, v{xt0}, 4, v{xt1}
v_and_b32 v{xt0}, 1, v0
v_lshl_add_u32 v{xt1}, v{xt0}, 3, v{xt1}
v_add_u32 v{yWA[0]}, {WOA}, v{xt1}
v_xor_b32 v{yWA[1]}, 32, v{yWA[0]}
s_lshl_b32 s{sB0}, s{sV2}, 16
s_lshl_b32 s{sB1}, s{sHP}, 6
s_add_u32 s{sB0}, s{sB0}, s{sB1}
s_add_u32 s{sB1}, s{sB0}, 32768""")
A.wait_vm_all()
stamp(21)
A("s_barrier")
yA=[VY.take(4,4),10,2,6]
assert yFl==10 and yP==12 and yWA[0]==14
def woa_read(hp_):
    b=hp_%2
    for c in range(2):
        A.lds(f"ds_read_b64_tr_b16 {vr(yW[b][c],2)}, v{yWA[c]} offset:{hp_*2048}",('wa',hp_))
        A.lds(f"ds_read_b64_tr_b16 {vr(yW[b][c]+2,2)}, v{yWA[c]} offset:{hp_*2048+512}",('wa',hp_))
woa_read(0)
for i in range(16):
    if i<15: woa_read(i+1)
    A.wait_lg(('wa',i))
    for rt in range(2):
        for c in range(2):
            acc=yA[rt*2+c]
            A(f"v_mfma_f32_16x16x32_bf16 {vr(acc,4)}, {vr(yW[i%2][c],4)}, {vr(yO[rt*16+i],4)}, {'0' if i==0 else vr(acc,4)}")
A("s_nop 7")
for rt in range(2):
    for c in range(2):
        acc=yA[rt*2+c]
        A(f"v_cvt_pk_bf16_f32 v{acc}, v{acc}, v{acc+1}\nv_cvt_pk_bf16_f32 v{acc+1}, v{acc+2}, v{acc+3}")
        A.vmem(f"buffer_store_dwordx2 {vr(acc,2)}, v{yOo}, {sr(SRD_OUT,4)}, s{sB0 if rt==0 else sB1} offen offset:{c*32}")
stamp(22)
stamp_out(17)
A.label("L_end")
A("s_endpgm")

errs=check(A.lines)
for e in errs[:25]: print("CHECK:",e, file=sys.stderr)
hdr=open('concat_heads__sliding_local_dilated__softmax_full_mha__prompt.s.ref').read().split('; Override')[0]
nv=168
out=hdr+f"""; @launch grid=(256,1,1) block=(768,1,1) lds={LDS_BYTES}
.amdgcn_target "amdgcn-amd-amdhsa--gfx950"
.text
.globl {NAME}
.p2align 8
.type {NAME},@function
"""+A.text()+f""".section .rodata,"a"
.p2align 6
.amdhsa_kernel {NAME}
  .amdhsa_next_free_vgpr {nv}
  .amdhsa_next_free_sgpr 102
  .amdhsa_accum_offset {nv}
  .amdhsa_group_segment_fixed_size 0
  .amdhsa_kernarg_size 72
  .amdhsa_user_sgpr_count 2
  .amdhsa_user_sgpr_kernarg_segment_ptr 1
  .amdhsa_system_sgpr_workgroup_id_x 1
.end_amdhsa_kernel
"""
open(sys.argv[1],'w').write(out)
print("vgpr att",VA.hi,"aux",VX.hi,VY.hi,"lines",len(A.lines),"errs",len(errs))
```

```python
import sys, math, struct
from asmlib import *
NAME="concat_heads__sliding_local_dilated__softmax_full_mha__prompt_kernel"
OPT=dict(stamp=0, prio=1, p1=28, p2=56, flagstage=11, pfc=1)
for a in sys.argv[2:]:
    k,v=a.split('='); OPT[k]=int(v) if v.lstrip('-').isdigit() else v

LW=0; LX=98304; EX=131072; LF=155648
EA=EX; WOB=0; WOA=65536; RED=EX
LDS_BYTES=163840
WS_KV=0; WS_OFB=4<<20; WS_OFA=6<<20
WS_FKV=8<<20; WS_FOB=(8<<20)+65536; WS_FOA=(8<<20)+131072; WS_EPOCH=(8<<20)+196608; WS_FHA=(8<<20)+262144; WS_HA=9<<20
WS_STAMP=30<<20
WS_BYTES=32<<20
CSCALE=0.25*math.log2(math.e)
def f2u(x): return struct.unpack('<I',struct.pack('<f',x))[0]
NEGBIG=f2u(-1e30)
SPIN=30000

A=Asm()
sW=22; sHQ=23; sRB=24; sSG=25; sT0=26; sT1=27
SRD_XB=28; SRD_WB=32; SRD_XA=36; SRD_WA=40; SRD_WS=44; SRD_DBG=48; SRD_M=52; SRD_OUT=56
sA0=60

def srd(base, ptr, nbytes):
    A(f"""s_mov_b32 s{base}, s{ptr}
    s_mov_b32 s{base+1}, s{ptr+1}
    s_mov_b32 s{base+2}, {nbytes}
    s_mov_b32 s{base+3}, 0x00020000""")
vSt=1
def stamp(idx, lvl=1):
    if OPT['stamp']<lvl: return
    A(f"""s_memrealtime s[96:97]
    s_memtime s[98:99]
    s_waitcnt lgkmcnt(0)
    v_writelane_b32 v{vSt}, s96, {idx}
    v_writelane_b32 v{vSt}, s98, {idx+32}""")
    A.lg=[]
def stamp_out(vtmp):
    if not OPT['stamp']: return
    A(f"""s_mul_i32 s96, s2, 12
    s_add_u32 s96, s96, s{sW}
    s_lshl_b32 s96, s96, 8
    s_add_u32 s96, s96, {WS_STAMP}
    v_lshlrev_b32 v{vtmp}, 2, v0
    buffer_store_dword v{vSt}, v{vtmp}, {sr(SRD_WS,4)}, s96 offen""")
def poll_issue(vdst, voff, soff):
    A.vmem(f"buffer_load_dwordx2 {vr(vdst,2)}, v{voff}, {sr(SRD_WS,4)}, s{soff} offen sc1",'poll')
def poll_check(vdst, voff, soff, scnt, snon):
    L=A.newlabel('L_poll'); Ld=A.newlabel('L_polld')
    A(f"s_mov_b32 s{scnt}, 0")
    A.label(L)
    A.wait_vm_all()
    A(f"""v_cmp_eq_u64 vcc, {sr(snon,2)}, {vr(vdst,2)}
    s_add_u32 s{scnt}, s{scnt}, 1
    s_cmp_eq_u64 vcc, -1
    s_cbranch_scc1 {Ld}
    s_cmp_gt_u32 s{scnt}, {SPIN}
    s_cbranch_scc1 {Ld}
    buffer_load_dwordx2 {vr(vdst,2)}, v{voff}, {sr(SRD_WS,4)}, s{soff} offen sc1
    s_branch {L}""")
    A.label(Ld)
def nonce_check(vN, vZ, snon, scnt, stmp):
    L=A.newlabel('L_non'); Ld=A.newlabel('L_nond')
    A(f"s_mov_b32 s{scnt}, 0")
    A.label(L)
    A(f"""v_readfirstlane_b32 s{snon}, v{vN}
    v_readfirstlane_b32 s{snon+1}, v{vN+1}
    s_add_u32 s{scnt}, s{scnt}, 1
    s_cmp_gt_u32 s{scnt}, {SPIN}
    s_cbranch_scc1 {Ld}
    s_cmp_eq_u32 s{snon}, 0
    s_cselect_b32 s{stmp}, 0, s{snon+1}
    s_cmp_lg_u32 s{stmp}, 0
    s_cbranch_scc1 {Ld}
    buffer_load_dwordx2 {vr(vN,2)}, v{vZ}, {sr(SRD_DBG,4)}, 0 offen sc1
    s_waitcnt vmcnt(0)
    s_branch {L}""")
    A.label(Ld)
def flag_store(vN, vZ, soff):
    A("s_mov_b64 exec, 1")
    A.vmem(f"buffer_store_dwordx2 {vr(vN,2)}, v{vZ}, {sr(SRD_WS,4)}, s{soff} offen sc1",'flag')
    A("s_mov_b64 exec, -1")
def lds_flags_spin(vF, vAddr, scnt, stmp, issued=False):
    L=A.newlabel('L_xs'); Ld=A.newlabel('L_xsd'); Lc=A.newlabel('L_xsc')
    A(f"s_mov_b32 s{scnt}, 0")
    if issued: A(f"s_branch {Lc}")
    A.label(L)
    A(f"ds_read_b128 {vr(vF,4)}, v{vAddr}")
    A.label(Lc)
    A(f"""s_add_u32 s{scnt}, s{scnt}, 1
    s_waitcnt lgkmcnt(0)
    v_and_b32 v{vF}, v{vF}, v{vF+1}
    v_and_b32 v{vF+2}, v{vF+2}, v{vF+3}
    v_and_b32 v{vF}, v{vF}, v{vF+2}
    s_cmp_gt_u32 s{scnt}, {SPIN*4}
    v_readfirstlane_b32 s{stmp}, v{vF}
    s_cbranch_scc1 {Ld}
    s_cmp_eq_u32 s{stmp}, 0
    s_cbranch_scc1 {L}""")
    A.label(Ld)
    A.lg=[]
def wo_tr_addr(dst, t0, t1):
    A(f"""v_lshrrev_b32 v{t0}, 2, v0
    v_and_b32 v{t0}, 7, v{t0}
    v_lshrrev_b32 v{t1}, 5, v0
    v_lshl_add_u32 v{t1}, v{t1}, 4, v{t0}
    v_lshlrev_b32 v{t1}, 7, v{t1}
    v_and_b32 v{t0}, 6, v{t0}
    v_bfe_u32 v{dst}, v0, 1, 1
    v_xor_b32 v{t0}, v{t0}, v{dst}
    v_lshl_add_u32 v{t1}, v{t0}, 4, v{t1}
    v_and_b32 v{t0}, 1, v0
    v_lshl_add_u32 v{dst}, v{t0}, 3, v{t1}""")

A.label(NAME)
A(f"""s_cmp_ge_u32 s2, 256
s_cbranch_scc1 L_end
s_load_dwordx16 s[4:19], s[0:1], 0
s_load_dwordx2 s[20:21], s[0:1], 64
v_lshrrev_b32 v1, 6, v0
v_and_b32 v0, 63, v0
s_lshr_b32 s{sT1}, s2, 3
v_readfirstlane_b32 s{sW}, v1
s_and_b32 s{sHQ}, s2, 1
s_lshl_b32 s{sHQ}, s{sHQ}, 2
s_and_b32 s{sT0}, s{sT1}, 3
s_add_u32 s{sHQ}, s{sHQ}, s{sT0}
s_and_b32 s{sRB}, s2, 6
s_lshl_b32 s{sRB}, s{sRB}, 2
s_lshr_b32 s{sT0}, s{sT1}, 2
s_add_u32 s{sRB}, s{sRB}, s{sT0}
s_lshl_b32 s{sSG}, s{sHQ}, 1
s_add_u32 s{sSG}, s{sSG}, s{sRB}
s_cmp_ge_u32 s{sW}, 8
s_cbranch_scc1 L_aux""")

VA=Alloc(2,168)
vx=VA.take(); vw=VA.take(); vt0=VA.take(); vt1=VA.take(); vt2=VA.take(); vt3=VA.take()
vL16=VA.take(); vVo=VA.take(); vIdx=VA.take(); vFl=VA.take(); vP=VA.take(2,2); vN=VA.take(2,2); vZ=VA.take()
vEQ0=VA.take(); vEK=VA.take(); vEV=VA.take()
ND=6
vBig=VA.mark()
Qf=[VA.take(4,4) for _ in range(2)]
Sb=[VA.take(16,4) for _ in range(2)]
Oa=[VA.take(16,4) for _ in range(2)]
Kf=[VA.take(4,4) for _ in range(ND)]
Vf=[VA.take(8,4) for _ in range(ND)]
sXoff=sA0; sM0=sA0+1; sWoff=sA0+2; sFOr=sA0+3; sOld=sA0+4; sOut=sA0+5; sOst=sA0+6; sFOw=sA0+7
sU0=sA0+8; sU1=sA0+9; sU2=sA0+10
sE=sA0+11; sKH=sA0+12; sKVb=sA0+14; sOff=sA0+15; sNon=sA0+16; sVM=sA0+18; sCnt=sA0+20; sBlk=sA0+21
sFKVr=sA0+22; sFKVw=sA0+23; sOwn=sA0+24; sLo=sA0+25; sHi=sA0+26; sX0=sA0+28
A(f"""v_lshrrev_b32 v{vt0}, 3, v0
v_mul_u32_u24 v{vw}, 3072, v{vt0}
v_lshlrev_b32 v{vt0}, 10, v{vt0}
v_lshrrev_b32 v{vt1}, 2, v0
v_and_b32 v{vt1}, 4, v{vt1}
v_xor_b32 v{vt1}, v{vt1}, v0
v_and_b32 v{vt1}, 7, v{vt1}
v_lshl_add_u32 v{vw}, v{vt1}, 4, v{vw}
v_lshrrev_b32 v{vt1}, 4, v0
v_xor_b32 v{vt1}, v{vt1}, v0
v_and_b32 v{vt1}, 7, v{vt1}
v_lshl_add_u32 v{vx}, v{vt1}, 4, v{vt0}
s_and_b32 s{sU0}, s{sW}, 1
s_lshl_b32 s{sU0}, s{sU0}, 6
v_xor_b32 v{vx}, s{sU0}, v{vx}
s_lshl_b32 s{sXoff}, s{sRB}, 16
s_lshl_b32 s{sU0}, s{sW}, 13
s_add_u32 s{sXoff}, s{sXoff}, s{sU0}
s_lshl_b32 s{sM0}, s{sW}, 10
s_mul_i32 s{sWoff}, s{sW}, 24576
s_lshl_b32 s{sU0}, s{sHQ}, 7
s_add_u32 s{sWoff}, s{sWoff}, s{sU0}
s_mov_b32 s{SRD_XB+2}, 2097152
s_mov_b32 s{SRD_XB+3}, 0x00020000
s_mov_b32 s{SRD_WB+2}, 1572864
s_mov_b32 s{SRD_WB+3}, 0x00020000
s_waitcnt lgkmcnt(0)
s_mov_b32 s{SRD_XB}, s10
s_mov_b32 s{SRD_XB+1}, s11
s_mov_b32 s{SRD_WB}, s12
s_mov_b32 s{SRD_WB+1}, s13""")

def issue_stage(s):
    if OPT.get('nodma') and s>=2: return
    slot=s%4
    X,W=(SRD_XB,SRD_WB) if s<8 else (SRD_XA,SRD_WA)
    A(f"""s_add_u32 s{sU0}, s{sSG}, {s}
    s_and_b32 s{sU0}, s{sU0}, 7
    s_mul_i32 s{sU1}, s{sU0}, 196608
    s_lshl_b32 s{sU0}, s{sU0}, 7
    s_add_u32 m0, s{sM0}, {LX+slot*8192}
    s_add_u32 s{sU0}, s{sU0}, s{sXoff}""")
    A.vmem(f"buffer_load_dwordx4 v{vx}, {sr(X,4)}, s{sU0} offen lds", s)
    for p in (1,2,0):
        A(f"s_add_u32 m0, s{sM0}, {LW+slot*24576+p*7168}")
        if p==1: A(f"s_add_u32 s{sU1}, s{sU1}, s{sWoff}")
        else: A("s_nop 0")
        A.vmem(f"buffer_load_dwordx4 v{vw}, {sr(W,4)}, s{sU1} offen offset:{p*1024} lds", s)

def att_setup1():
    srd(SRD_XA,4,2097152); srd(SRD_WA,6,1572864); srd(SRD_DBG,18,256)
    A(f"""s_lshr_b32 s{sE}, s{sW}, 1
    s_and_b32 s{sKH}, s{sW}, 1
    s_lshl_b32 s{sU1}, s{sHQ}, 2
    s_add_u32 s{sU1}, s{sU1}, s{sE}
    s_lshl_b32 s{sKVb}, s{sU1}, 17
    s_lshl_b32 s{sU0}, s{sKH}, 11
    s_add_u32 s{sKVb}, s{sKVb}, s{sU0}
    s_lshl_b32 s{sU1}, s{sU1}, 1
    s_add_u32 s{sU1}, s{sU1}, s{sKH}
    s_lshl_b32 s{sFKVr}, s{sU1}, 8
    s_add_u32 s{sFKVr}, s{sFKVr}, {WS_FKV}
    s_lshl_b32 s{sU2}, s{sRB}, 3
    s_add_u32 s{sFKVw}, s{sFKVr}, s{sU2}
    s_lshl_b32 s{sU2}, s{sRB}, 12
    s_add_u32 s{sOwn}, s{sKVb}, s{sU2}
    s_mov_b32 s{sVM}, 0x0000ffff
    s_mov_b32 s{sVM+1}, 0x0000ffff
    v_lshlrev_b32 v{vL16}, 4, v0
    v_and_b32 v{vt0}, 15, v0
    v_lshlrev_b32 v{vt0}, 4, v{vt0}
    v_lshrrev_b32 v{vt1}, 5, v0
    v_lshl_add_u32 v{vVo}, v{vt1}, 8, v{vt0}
    v_mov_b32 v{vIdx}, 0xdddddddd
    v_mov_b32 v{vZ}, 0
    v_and_b32 v{vFl}, 31, v0
    v_lshlrev_b32 v{vFl}, 3, v{vFl}
    s_add_u32 s{sU1}, s{sM0}, {EX}
    v_add_u32 v{vEQ0}, s{sU1}, v{vL16}
    s_lshl_b32 s{sU1}, s{sW}, 11
    s_add_u32 s{sU1}, s{sU1}, {EX+8192}
    v_add_u32 v{vEK}, s{sU1}, v{vL16}
    v_add_u32 v{vEV}, s{sU1}, v{vVo}""")
def att_setup2():
    A(f"""v_and_b32 v{vt0}, 27, v0
    v_cmp_eq_u32 vcc, 16, v{vt0}
    v_mov_b32 v{vt1}, 0x3f803f80
    s_nop 0
    v_cndmask_b32 v{vt1}, 0, v{vt1}, vcc""")
    for d in range(ND):
        for i in range(8): A(f"v_mov_b32 v{Vf[d]+i}, v{vt1}")
def att_setup3():
    for d in range(2):
        for i in range(16): A(f"v_mov_b32 v{Oa[d]+i}, 0")
    A(f"""s_lshl_b32 s{sU0}, s{sRB}, 1
    s_add_u32 s{sU0}, s{sU0}, s{sKH}
    s_lshl_b32 s{sOst}, s{sU0}, 5
    s_lshl_b32 s{sU1}, s{sHQ}, 1
    s_add_u32 s{sOst}, s{sOst}, s{sU1}
    s_lshr_b32 s{sU1}, s{sE}, 1
    s_add_u32 s{sOst}, s{sOst}, s{sU1}
    s_lshl_b32 s{sOst}, s{sOst}, 10
    s_add_u32 s{sOst}, s{sOst}, {WS_OFB}
    s_lshl_b32 s{sFOw}, s{sU0}, 3
    s_add_u32 s{sFOw}, s{sFOw}, s{sHQ}
    s_lshl_b32 s{sFOw}, s{sFOw}, 2
    s_add_u32 s{sFOw}, s{sFOw}, s{sE}
    s_lshl_b32 s{sFOw}, s{sFOw}, 3
    s_add_u32 s{sFOw}, s{sFOw}, {WS_FOB}
    s_and_b32 s{sU0}, s{sW}, 3
    s_lshl_b32 s{sU1}, s{sRB}, 2
    s_add_u32 s{sU1}, s{sU1}, s{sU0}
    s_lshr_b32 s{sU2}, s{sW}, 2
    s_lshl_b32 s{sOld}, s{sU1}, 1
    s_add_u32 s{sOld}, s{sOld}, s{sU2}
    s_lshl_b32 s{sOld}, s{sOld}, 13
    s_add_u32 s{sOld}, s{sOld}, {WS_OFB}
    s_andn2_b32 s{sFOr}, s{sU1}, 1
    s_add_u32 s{sFOr}, s{sFOr}, s{sU2}
    s_lshl_b32 s{sFOr}, s{sFOr}, 7
    s_add_u32 s{sFOr}, s{sFOr}, {WS_FOB}
    s_lshl_b32 s{sOut}, s{sU1}, 15
    s_lshl_b32 s{sU0}, s{sHQ}, 7
    s_add_u32 s{sOut}, s{sOut}, s{sU0}
    s_lshl_b32 s{sU0}, s{sU2}, 6
    s_add_u32 s{sOut}, s{sOut}, s{sU0}
    s_add_u32 s{sOut}, s{sOut}, 1024
    s_mov_b32 s{sLo}, {f2u(2.0**-64):#x}
    s_mov_b32 s{sHi}, {f2u(2.0**64):#x}""")
    srd(SRD_OUT,16,4194304)
def att_read_ex():
    A.lds(f"ds_read_b128 {vr(Kf[0],4)}, v{vEK}",'k0')
    A(f"s_mov_b64 exec, {sr(sVM,2)}")
    for t in range(2): A.lds(f"ds_read_b128 {vr(Vf[0]+4*t,4)}, v{vEV} offset:{1024+t*512}",'v0')
    A(f"s_mov_b64 exec, -1")
    A.wait_lg('k0')
    A.vmem(f"buffer_store_dwordx4 {vr(Kf[0],4)}, v{vL16}, {sr(SRD_WS,4)}, s{sOwn} offen sc1",'kvst')
    A.wait_lg('v0')
    A(f"s_mov_b64 exec, {sr(sVM,2)}")
    for t in range(2): A.vmem(f"buffer_store_dwordx4 {vr(Vf[0]+4*t,4)}, v{vVo}, {sr(SRD_WS,4)}, s{sOwn} offen offset:{1024+t*512} sc1",'kvst')
    A("s_mov_b64 exec, -1")
def kv_load(i):
    if OPT.get('nokv'): return
    d=i%ND
    A(f"""s_add_u32 s{sBlk}, s{sRB}, {i}
    s_and_b32 s{sBlk}, s{sBlk}, 31
    s_lshl_b32 s{sBlk}, s{sBlk}, 12
    s_add_u32 s{sOff}, s{sBlk}, s{sKVb}""")
    A.vmem(f"buffer_load_dwordx4 {vr(Kf[d],4)}, v{vL16}, {sr(SRD_WS,4)}, s{sOff} offen sc1",('kv',i))
    A(f"s_mov_b64 exec, {sr(sVM,2)}")
    A.vmem(f"buffer_load_dwordx4 {vr(Vf[d],4)}, v{vVo}, {sr(SRD_WS,4)}, s{sOff} offen offset:1024 sc1",('kv',i))
    A.vmem(f"buffer_load_dwordx4 {vr(Vf[d]+4,4)}, v{vVo}, {sr(SRD_WS,4)}, s{sOff} offen offset:1536 sc1",('kv',i))
    A("s_mov_b64 exec, -1")
def QK(u): A(f"v_mfma_f32_32x32x16_bf16 {vr(Sb[u%2],16)}, {vr(Kf[(u//2)%ND],4)}, {vr(Qf[u%2],4)}, 0")
def PV(u,t): A(f"v_smfmac_f32_32x32x32_bf16 {vr(Oa[u%2],16)}, {vr(Vf[(u//2)%ND]+4*t,4)}, {vr(Sb[u%2]+8*t,8)}, v{vIdx}")
NU=64
def unit(u, noqk=False):
    S=Sb[u%2]
    E=lambda r: A(f"v_exp_f32 v{S+r}, v{S+r}")
    E(0);E(1)
    if u>0 and u!=2: PV(u-1,1)
    E(2);E(3);E(4)
    if u>=2 and u%2==0 and (u//2-1+ND)<32: kv_load(u//2-1+ND)
    if OPT['prio'] and u==OPT['p1']: A("s_setprio 1")
    if OPT['prio'] and u==OPT['p2']: A("s_setprio 0")
    if u==NU-3:
        A(f"v_mov_b32 v{vt0}, {LF+16}")
        A.lds(f"ds_read_b128 {vr(Kf[0],4)}, v{vt0}")
    if u+1<NU and not noqk:
        if (u+1)%2==0: A.wait_vm(('kv',(u+1)//2))
        QK(u+1)
    for r in range(5,10): E(r)
    PV(u,0)
    for r in range(10,16): E(r)
    if u in (3,5,9,17,33): stamp(18+(3,5,9,17,33).index(u), 1 if u in (5,33) else 2)
sPX=sA0+30; sPW=sA0+32; sPD=sA0+34
PFL=[(sPX,i*128) for i in range(16)]+[(sPW,r*3072+p*1024+i*128) for r in range(2) for p in range(3) for i in range(4)]
def spf_setup():
    A(f"""s_and_b32 s{sU0}, s2, 6
    s_lshl_b32 s{sU0}, s{sU0}, 18
    s_lshl_b32 s{sU1}, s{sT1}, 14
    s_add_u32 s{sU0}, s{sU0}, s{sU1}
    s_lshl_b32 s{sU1}, s{sW}, 11
    s_add_u32 s{sU0}, s{sU0}, s{sU1}
    s_add_u32 s{sPX}, s4, s{sU0}
    s_addc_u32 s{sPX+1}, s5, 0
    s_mul_i32 s{sU0}, s{sT1}, 49152
    s_mul_i32 s{sU1}, s{sW}, 6144
    s_add_u32 s{sU0}, s{sU0}, s{sU1}
    s_and_b32 s{sU1}, s2, 1
    s_lshl_b32 s{sU1}, s{sU1}, 9
    s_add_u32 s{sU0}, s{sU0}, s{sU1}
    s_add_u32 s{sPW}, s6, s{sU0}
    s_addc_u32 s{sPW+1}, s7, 0""")
def spf(k):
    for (bs,off) in PFL[8*k:8*k+8]: A(f"s_load_dword s{sPD}, {sr(bs,2)}, {off}")
SPF0=OPT.get('spf0',1)
issue_stage(0); issue_stage(1)
srd(SRD_WS,20,WS_BYTES)
stamp(0)
for s in range(16):
    if s==8:
        A.wait_vm('non')
        nonce_check(vN,vZ,sNon,sCnt,sU0)
        A("s_waitcnt lgkmcnt(0)")
        A("s_barrier")
        stamp(30,2)
        att_read_ex()
        issue_stage(11)
    A.wait_vm(s)
    if s==OPT['flagstage']:
        A.wait_vm('kvst'); flag_store(vN,vZ,sFKVw)
    A("s_barrier")
    stamp(1+s, 1 if s in (0,4,8,12,15) else 2)
    if s==0: issue_stage(2); issue_stage(3); att_setup1(); spf_setup()
    if 1<=s and s+3<=15 and s!=8: issue_stage(s+3)
    if OPT.get('spf',1) and SPF0<=s<SPF0+5: spf(s-SPF0)
    if s==8:
        A.lds(f"ds_read_b128 {vr(Qf[0],4)}, v{vEQ0}")
        A(f"v_xor_b32 v{vEQ0}, 1024, v{vEQ0}")
        A.lds(f"ds_read_b128 {vr(Qf[1],4)}, v{vEQ0}")
        A.wait_lg_all()
    if s==1: att_setup2()
    if s==2: att_setup3()
    if s==3: A.vmem(f"buffer_load_dwordx2 {vr(vN,2)}, v{vZ}, {sr(SRD_DBG,4)}, 0 offen sc1",'non')
    if s==12: QK(0); A("s_nop 9")
    if s==13:
        poll_issue(vP,vFl,sFKVr)
        unit(0)
    if s==14:
        unit(1,noqk=True)
        A("s_nop 1"); PV(1,1)
        A.wait_vm_all()
        A(f"""v_cmp_eq_u64 vcc, {sr(sNon,2)}, {vr(vP,2)}
        s_cmp_eq_u64 vcc, -1
        s_cbranch_scc0 L_late""")
        for i in range(1,ND): kv_load(i)
        A("s_barrier\ns_branch L_go")
        A.label("L_late")
        A("s_barrier")
        sv=list(A.vm); A.vm=[]
        poll_issue(vP,vFl,sFKVr)
        poll_check(vP,vFl,sFKVr,sCnt,sNon)
        for i in range(1,ND): kv_load(i)
        assert A.vm==sv
        A.label("L_go")
        break
if OPT.get('gonly'):
    stamp_out(vt0); A("s_endpgm")
stamp(17)
if OPT['prio']: A("s_setprio 2")
A.wait_vm(('kv',1))
QK(2)
A("s_nop 11")
for u in range(2,NU): unit(u)
A("s_nop 1")
PV(NU-1,1)
stamp(23)
A("s_setprio 3")
vR=Sb[0]; vRa=Sb[1]
A(f"""s_mul_i32 s{sU0}, s{sW}, 2304
s_add_u32 s{sU0}, s{sU0}, {RED}
v_add_u32 v{vRa}, s{sU0}, v{vL16}
v_lshlrev_b32 v{vRa+1}, 2, v0
v_add_u32 v{vRa+1}, s{sU0}, v{vRa+1}
s_xor_b32 s{sU1}, s{sW}, 1
s_mul_i32 s{sU1}, s{sU1}, 2304
s_add_u32 s{sU1}, s{sU1}, {RED}
v_add_u32 v{vEK}, s{sU1}, v{vL16}
v_lshlrev_b32 v{vRa+3}, 2, v0
v_add_u32 v{vRa+3}, s{sU1}, v{vRa+3}""")
lds_flags_spin(Kf[0],vt0,sCnt,sU2,issued=True)
A.lds(f"ds_write_b128 v{vRa}, {vr(Oa[1],4)}")
A.lds(f"ds_write_b128 v{vRa}, {vr(Oa[1]+4,4)} offset:1024")
A.lds(f"ds_write_b32 v{vRa+1}, v{Oa[1]+8} offset:2048")
A(f"""v_bfe_u32 v{vRa+4}, v0, 4, 1
v_lshlrev_b32 v{vRa+4}, 14, v{vRa+4}
v_add_u32 v{vRa+4}, v{vRa+4}, v{vVo}
s_and_b32 s{sU0}, s{sE}, 1
s_lshl_b32 s{sU0}, s{sU0}, 9
v_add_u32 v{vRa+4}, s{sU0}, v{vRa+4}""")
A.wait_lg_all()
A("s_barrier")
stamp(24)
A.lds(f"ds_read_b32 v{vR+8}, v{vRa+3} offset:2048",'r2')
A.lds(f"ds_read_b128 {vr(vR,4)}, v{vEK}",'r0')
A.lds(f"ds_read_b128 {vr(vR+4,4)}, v{vEK} offset:1024",'r1')
A.wait_lg('r2')
A(f"""v_add_f32 v{Oa[0]+8}, v{Oa[0]+8}, v{vR+8}
v_cmp_nle_f32 vcc, s{sLo}, v{Oa[0]+8}
v_cmp_nge_f32 {sr(sX0,2)}, s{sHi}, v{Oa[0]+8}""")
A.wait_lg('r0')
for i in range(4): A(f"v_add_f32 v{Oa[0]+i}, v{Oa[0]+i}, v{vR+i}")
A.wait_lg('r1')
for i in range(4,8): A(f"v_add_f32 v{Oa[0]+i}, v{Oa[0]+i}, v{vR+i}")
A(f"""s_or_b64 vcc, vcc, {sr(sX0,2)}
s_cmp_lg_u64 vcc, 0
s_cbranch_scc1 L_fallback""")
A.label("L_norm")
A(f"v_rcp_f32 v{vR+9}, v{Oa[0]+8}\ns_nop 0")
for i in range(8): A(f"v_mul_f32 v{Oa[0]+i}, v{Oa[0]+i}, v{vR+9}")
for i in range(4): A(f"v_cvt_pk_bf16_f32 v{vR+i}, v{Oa[0]+2*i}, v{Oa[0]+2*i+1}")
A.vmem(f"buffer_store_dwordx4 {vr(vR,4)}, v{vRa+4}, {sr(SRD_WS,4)}, s{sOst} offen sc1")
stamp(28,2)
VB=Alloc(vBig,168)
Of=[VB.take(4,4) for _ in range(8)]
Wf=[[VB.take(4,4) for _ in range(4)] for _ in range(6)]
Ac=[VB.take(4,4) for _ in range(4)]
vWA=[vx,vw,vt2,vt3]; vOo=vEQ0; vXw=vEK; vXr=vEV
wo_tr_addr(vx,vt0,vt1)
A(f"""s_lshr_b32 s{sU2}, s{sW}, 2
s_lshl_b32 s{sU0}, s{sU2}, 15
s_lshl_b32 s{sU1}, s{sU2}, 6
v_add_u32 v{vx}, s{sU0}, v{vx}
v_xor_b32 v{vx}, s{sU1}, v{vx}
v_xor_b32 v{vw}, 32, v{vx}
v_xor_b32 v{vt2}, 64, v{vx}
v_xor_b32 v{vt3}, 96, v{vx}""")
assert WOB==0
def wo_read(hp_, slotset):
    for c in range(4):
        A.lds(f"ds_read_b64_tr_b16 {vr(Wf[slotset][c],2)}, v{vWA[c]} offset:{hp_*4096}",('wo',hp_))
        A.lds(f"ds_read_b64_tr_b16 {vr(Wf[slotset][c]+2,2)}, v{vWA[c]} offset:{hp_*4096+1024}",('wo',hp_))
wo_read(0,0)
A(f"""v_and_b32 v{vFl}, 15, v0
v_lshlrev_b32 v{vOo}, 11, v{vFl}
v_lshlrev_b32 v{vFl}, 3, v{vFl}
v_lshrrev_b32 v{vt0}, 4, v0
v_lshl_add_u32 v{vOo}, v{vt0}, 3, v{vOo}
s_xor_b32 s{sU1}, s{sW}, 5
s_mul_i32 s{sU1}, s{sU1}, 2304
s_add_u32 s{sU1}, s{sU1}, {RED}
v_add_u32 v{vXr}, s{sU1}, v{vL16}""")
A.wait_lg_all(); wo_read(1,1)
stamp(29,2)
A.wait_vm_all()
flag_store(vN,vZ,sFOw)
poll_issue(vP,vFl,sFOr)
stamp(25)
for i in range(2,6):
    A.wait_lg_all(); wo_read(i,i)
poll_check(vP,vFl,sFOr,sCnt,sNon)
stamp(26)
for i in range(8):
    if i==4: A(f"s_add_u32 s{sOld}, s{sOld}, 4096")
    A.vmem(f"buffer_load_dwordx4 {vr(Of[i],4)}, v{vL16}, {sr(SRD_WS,4)}, s{sOld} offen offset:{(i%4)*1024} sc1",('of',i))
A.wait_lg_all()
for i in range(8):
    A.wait_vm(('of',i))
    if i>=6: A.wait_lg(('wo',i))
    for c in range(4):
        A(f"v_mfma_f32_16x16x32_bf16 {vr(Ac[c],4)}, {vr(Wf[i%6][c],4)}, {vr(Of[i],4)}, {'0' if i==0 else vr(Ac[c],4)}")
    if i<2:
        A.wait_lg_all(); wo_read(6+i,i)
A("s_nop 7")
A.lds(f"ds_write_b128 v{vXw}, {vr(Ac[2],4)}")
A.lds(f"ds_write_b128 v{vXw}, {vr(Ac[3],4)} offset:1024")
A.wait_lg_all()
A("s_barrier")
A.lds(f"ds_read_b128 {vr(Ac[2],4)}, v{vXr}",'x0')
A.lds(f"ds_read_b128 {vr(Ac[3],4)}, v{vXr} offset:1024",'x1')
for c in range(2):
    A.wait_lg(f'x{c}')
    for i in range(4): A(f"v_add_f32 v{Ac[c]+i}, v{Ac[c]+i}, v{Ac[2+c]+i}")
    A(f"v_cvt_pk_bf16_f32 v{Ac[c]}, v{Ac[c]}, v{Ac[c]+1}\nv_cvt_pk_bf16_f32 v{Ac[c]+1}, v{Ac[c]+2}, v{Ac[c]+3}")
    A.vmem(f"buffer_store_dwordx2 {vr(Ac[c],2)}, v{vOo}, {sr(SRD_OUT,4)}, s{sOut} offen offset:{c*32}")
stamp(27)
stamp_out(vt0)
A("s_endpgm")

A.label("L_fallback"); A.reset()
fC=Oa[1]; fM=vt0; fT=vt1; fS=Kf[0]
fK=Kf[4]; fV=Vf[0]
A(f"""s_lshl_b32 s{sU0}, s{sKH}, 11
s_sub_u32 s{sU2}, s{sKVb}, s{sU0}
s_mov_b32 s{sOff}, s{sU2}
s_mov_b32 s{sCnt}, 0
v_mov_b32 v{fM}, {NEGBIG:#x}""")
A.label("L_fb1")
A(f"""buffer_load_dwordx4 {vr(fK,4)}, v{vL16}, {sr(SRD_WS,4)}, s{sOff} offen sc1
s_waitcnt vmcnt(0)
v_mfma_f32_32x32x16_bf16 {vr(fS,16)}, {vr(fK,4)}, {vr(Qf[0],4)}, 0
s_add_u32 s{sOff}, s{sOff}, 2048
s_add_u32 s{sCnt}, s{sCnt}, 1
s_nop 11""")
for i in range(8): A(f"v_max3_f32 v{fM}, v{fM}, v{fS+2*i}, v{fS+2*i+1}")
A(f"""s_cmp_lt_u32 s{sCnt}, 64
s_cbranch_scc1 L_fb1
v_mov_b32 v{fT}, v{fM}
s_nop 1
v_permlane32_swap_b32 v{fM}, v{fT}
s_nop 1
v_max_f32 v{fM}, v{fM}, v{fT}""")
for i in range(16): A(f"v_sub_f32 v{fC+i}, 0, v{fM}")
for i in range(16): A(f"v_mov_b32 v{Oa[0]+i}, 0")
A(f"""s_mov_b32 s{sOff}, s{sU2}
s_mov_b32 s{sCnt}, 0""")
A.label("L_fb2")
A(f"""buffer_load_dwordx4 {vr(fK,4)}, v{vL16}, {sr(SRD_WS,4)}, s{sOff} offen sc1
s_mov_b64 exec, {sr(sVM,2)}
buffer_load_dwordx4 {vr(fV,4)}, v{vVo}, {sr(SRD_WS,4)}, s{sOff} offen offset:1024 sc1
buffer_load_dwordx4 {vr(fV+4,4)}, v{vVo}, {sr(SRD_WS,4)}, s{sOff} offen offset:1536 sc1
s_mov_b64 exec, -1
s_waitcnt vmcnt(0)
v_mfma_f32_32x32x16_bf16 {vr(fS,16)}, {vr(fK,4)}, {vr(Qf[0],4)}, {vr(fC,16)}
s_add_u32 s{sOff}, s{sOff}, 2048
s_add_u32 s{sCnt}, s{sCnt}, 1
s_nop 11""")
for i in range(16): A(f"v_exp_f32 v{fS+i}, v{fS+i}")
A(f"""s_nop 1
v_smfmac_f32_32x32x32_bf16 {vr(Oa[0],16)}, {vr(fV,4)}, {vr(fS,8)}, v{vIdx}
v_smfmac_f32_32x32x32_bf16 {vr(Oa[0],16)}, {vr(fV+4,4)}, {vr(fS+8,8)}, v{vIdx}
s_cmp_lt_u32 s{sCnt}, 64
s_cbranch_scc1 L_fb2
s_nop 15
s_branch L_norm""")

A.label("L_aux")
A.reset()
VX=Alloc(2,168)
xt0=VX.take(); xt1=VX.take(); xt2=VX.take(); xZ=VX.take(); xN=VX.take(2,2)
xL16=VX.take(); xVo=VX.take()
xBig=VX.mark()
va=[VX.take() for _ in range(4)]; vwa=[VX.take() for _ in range(2)]
vKpos=VX.take(); vLK=VX.take(); vLV=VX.take(); vLQ=VX.take(); vV1=VX.take(); xIdx=VX.take(); mt=VX.take()
accQ=VX.take(16,4); accK=VX.take(16,4); accV=VX.take(16,4)
xf=[VX.take(4,4) for _ in range(3)]
wf=[[VX.take(4,4) for _ in range(3)] for _ in range(3)]
Mk=VX.take(24,4)
pQ=VX.take(8,4)
Oc=VX.take(16,4)
sT=sA0; sC=sA0+1; sV0=sA0+2; sV1=sA0+3; sNx=sA0+4; sCx=sA0+6; sVMx=sA0+8; sRT=sA0+10; sV2=sA0+11; sV3=sA0+12
sB0=sA0+13; sB1=sA0+14; sB2=sA0+15; sHa=sA0+16; sHf=sA0+17; sJ=sA0+18
A(f"""s_setprio 3
s_sub_u32 s{sT}, s{sW}, 8
s_and_b32 s{sRT}, s{sT}, 1
s_lshr_b32 s{sJ}, s{sT}, 1
v_mov_b32 v{xZ}, 0
s_waitcnt lgkmcnt(0)""")
srd(SRD_WS,20,WS_BYTES); srd(SRD_DBG,18,256)
A(f"""s_add_u32 s{sV0}, s2, s{sT}
s_cmp_lg_u32 s{sV0}, 0
s_cbranch_scc1 L_nonon
s_mov_b32 s{sV0}, {WS_EPOCH}
s_mov_b64 exec, 1
buffer_load_dwordx2 {vr(xN,2)}, v{xZ}, {sr(SRD_WS,4)}, s{sV0} offen sc1
s_waitcnt vmcnt(0)
v_add_u32 v{xN}, 2, v{xN}
v_or_b32 v{xN}, 1, v{xN}
v_or_b32 v{xN+1}, 0x80000000, v{xN+1}
buffer_store_dwordx2 {vr(xN,2)}, v{xZ}, {sr(SRD_DBG,4)}, 0 offen sc1
buffer_store_dwordx2 {vr(xN,2)}, v{xZ}, {sr(SRD_WS,4)}, s{sV0} offen sc1
s_mov_b64 exec, -1""")
A.label("L_nonon")
stamp(0)
A(f"""v_mov_b32 v{xt0}, {LF}
v_lshl_add_u32 v{xt0}, v0, 2, v{xt0}
ds_write_b32 v{xt0}, v{xZ}
v_and_b32 v{xt0}, 31, v0
v_lshrrev_b32 v{xt1}, 5, v0
v_bfe_u32 v{xt2}, v0, 1, 3
v_xor_b32 v{xt2}, v{xt2}, v{xt1}
v_lshlrev_b32 v{xt2}, 4, v{xt2}
v_lshl_add_u32 v{xt2}, v{xt0}, 7, v{xt2}
s_lshl_b32 s{sV0}, s{sRT}, 12
s_add_u32 s{sV0}, s{sV0}, {LX}
v_add_u32 v{va[0]}, s{sV0}, v{xt2}""")
for s in range(1,4): A(f"v_xor_b32 v{va[s]}, {32*s}, v{va[0]}")
A(f"""v_bfe_u32 v{xt2}, v0, 2, 2
v_lshl_add_u32 v{xt2}, v{xt1}, 3, v{xt2}
v_lshlrev_b32 v{xt2}, 7, v{xt2}
v_bfe_u32 v{vV1}, v0, 4, 1
v_lshl_add_u32 v{xt2}, v{vV1}, 5, v{xt2}
v_and_b32 v{vwa[0]}, 3, v0
v_lshl_add_u32 v{xt2}, v{vwa[0]}, 3, v{xt2}
v_bfe_u32 v{vwa[0]}, v0, 3, 1
v_lshl_add_u32 v{xt2}, v{vwa[0]}, 6, v{xt2}
s_lshl_b32 s{sV0}, s{sJ}, 6
v_xor_b32 v{vwa[0]}, s{sV0}, v{xt2}
v_add_u32 v{vwa[1]}, 49152, v{vwa[0]}
v_and_b32 v{vKpos}, 0x33, v0
v_bfe_u32 v{xt2}, v0, 2, 1
v_lshl_add_u32 v{vKpos}, v{xt2}, 3, v{vKpos}
v_bfe_u32 v{xt2}, v0, 3, 1
v_lshl_add_u32 v{vKpos}, v{xt2}, 2, v{vKpos}
v_lshlrev_b32 v{vKpos}, 4, v{vKpos}
v_and_b32 v{xt2}, 15, v0
v_lshlrev_b32 v{xt2}, 4, v{xt2}
v_lshl_add_u32 v{xVo}, v{xt1}, 8, v{xt2}
v_lshl_add_u32 v{vLV}, v{vV1}, 12, v{xVo}
s_lshl_b32 s{sV0}, s{sJ}, 13
s_lshl_b32 s{sV1}, s{sRT}, 11
s_add_u32 s{sV0}, s{sV0}, s{sV1}
s_add_u32 s{sV1}, s{sV0}, {EX+8192}
v_add_u32 v{vLV}, s{sV1}, v{vLV}
v_add_u32 v{vLK}, s{sV1}, v{vKpos}
s_lshr_b32 s{sV0}, s{sV0}, 1
s_add_u32 s{sV0}, s{sV0}, {EX}
v_lshlrev_b32 v{xL16}, 4, v0
v_add_u32 v{vLQ}, s{sV0}, v{xL16}
s_mov_b32 s{sC}, {f2u(CSCALE):#x}
s_mov_b32 s{sVMx}, 0x0000ffff
s_mov_b32 s{sVMx+1}, 0x0000ffff""")
assert LW==0
A(f"""v_lshlrev_b32 v{xt1}, 3, v{xt1}
v_sub_u32 v{xt0}, v{xt0}, v{xt1}
s_add_u32 s{sV0}, s{sRB}, s{sRT}
s_cmp_eq_u32 s{sV0}, 0
s_cselect_b32 s{sV0}, 1016, 16
v_add_u32 v{xt1}, s{sV0}, v{xt0}
v_mov_b32 v{xt2}, {NEGBIG:#x}
s_mov_b32 s{sV1}, 0xfffffff1""")
for r in range(24):
    src,c=(xt0,16*(r//8)+r%8) if r<16 else (xt1,r-16)
    A(f"v_subrev_u32 v{Mk+r}, {c}, v{src}")
    A(f"v_and_b32 v{Mk+r}, s{sV1}, v{Mk+r}")
for r in range(0,24,2):
    A(f"v_cmp_eq_u32 vcc, 0, v{Mk+r}")
    A(f"v_cmp_eq_u32 {sr(sNx,2)}, 0, v{Mk+r+1}")
    A("s_nop 0")
    A(f"v_cndmask_b32 v{Mk+r}, v{xt2}, 0, vcc")
    A(f"v_cndmask_b32 v{Mk+r+1}, v{xt2}, 0, {sr(sNx,2)}")
if OPT['pfc']:
    A(f"s_getpc_b64 {sr(sNx,2)}")
    A.label("L_pc")
    A(f"""s_sub_u32 s{sNx}, s{sNx}, L_pc-{NAME}
    s_subb_u32 s{sNx+1}, s{sNx+1}, 0
    s_lshl_b32 s{sV0}, s{sT}, 13
    s_mov_b32 s{sV1}, L_codeend-{NAME}-4
    v_lshlrev_b32 v{xt2}, 7, v0
    v_add_u32 v{xt2}, s{sV0}, v{xt2}
    v_min_u32 v{xt2}, s{sV1}, v{xt2}""")

def g_rd(n, part, force=False):
    if OPT.get('nord') or n>=64 or (n in (32,33) and not force): return
    s,ks=divmod(n,4); slot=s%4; b=n%3
    if part==0: A.lds(f"ds_read_b128 {vr(xf[b],4)}, v{va[ks]} offset:{slot*8192}", ('x',n))
    p=(1,2,0)[part]
    o=(slot%2)*24576+p*8192+ks*2048
    A.lds(f"ds_read_b64_tr_b16 {vr(wf[b][p],2)}, v{vwa[slot//2]} offset:{o}", ('w',n,p))
    A.lds(f"ds_read_b64_tr_b16 {vr(wf[b][p]+2,2)}, v{vwa[slot//2]} offset:{o+512}", ('w',n,p))
def g_step(n):
    s,ks=divmod(n,4); b=n%3; first=(n%32==0)
    C=lambda acc: "0" if first else vr(acc,16)
    if ks==2:
        A.wait_lg_all()
        if s<15 and s!=7: A("s_barrier")
    else: A.wait_lg(('w',n,1))
    A(f"v_mfma_f32_32x32x16_bf16 {vr(accK,16)}, {vr(wf[b][1],4)}, {vr(xf[b],4)}, {C(accK)}")
    g_rd(n+2,0)
    A.wait_lg(('w',n,2))
    A(f"v_mfma_f32_32x32x16_bf16 {vr(accV,16)}, {vr(xf[b],4)}, {vr(wf[b][2],4)}, {C(accV)}")
    g_rd(n+2,1)
    A.wait_lg(('w',n,0))
    A(f"v_mfma_f32_32x32x16_bf16 {vr(accQ,16)}, {vr(wf[b][0],4)}, {vr(xf[b],4)}, {C(accQ)}")
    g_rd(n+2,2)
    if n==9 and OPT['pfc']: A(f"global_load_dword v{mt}, v{xt2}, {sr(sNx,2)}")
def pack16(dst, acc, scale=False):
    if scale:
        for i in range(16): A(f"v_mul_f32 v{acc+i}, s{sC}, v{acc+i}")
    for i in range(8): A(f"v_cvt_pk_bf16_f32 v{dst+i}, v{acc+2*i}, v{acc+2*i+1}")
A.wait_lg_all()
A("s_barrier")
for n in range(2):
    for p in range(3): g_rd(n,p)
for n in range(32): g_step(n)
A("s_nop 9")
pack16(accK,accK)
A.lds(f"ds_write_b128 v{vLK}, {vr(accK,4)}",'e')
A.lds(f"ds_write_b128 v{vLK}, {vr(accK+4,4)} offset:4096",'e')
pack16(accV,accV)
A.lds(f"ds_write_b128 v{vLV}, {vr(accV,4)} offset:1024",'e')
A.lds(f"ds_write_b128 v{vLV}, {vr(accV+4,4)} offset:1536",'e')
for i in range(16): A(f"v_mul_f32 v{accQ+i}, s{sC}, v{accQ+i}")
A.wait_lg_all()
A("s_barrier")
pack16(accQ,accQ)
A.lds(f"ds_write_b128 v{vLQ}, {vr(accQ,4)}",'e')
A.lds(f"ds_write_b128 v{vLQ}, {vr(accQ+4,4)} offset:2048",'e')
stamp(9)
A.wait_lg_all()
A("s_barrier")
for n in (32,33):
    for p in range(3): g_rd(n,p,True)
for n in range(32,64): g_step(n)
A("s_nop 9")
stamp(17)
if OPT.get('gonly'):
    stamp_out(xt0); A("s_endpgm")
if OPT.get('noaux'):
    A(f"""s_lshl_b32 s{sV1}, s{sT}, 2
    s_add_u32 s{sV1}, s{sV1}, {LF}
    v_mov_b32 v{vLQ}, s{sV1}
    v_mov_b32 v{vLK}, 1
    ds_write_b32 v{vLQ}, v{vLK} offset:16
    s_waitcnt lgkmcnt(0)""")
    stamp_out(xt0)
    A("s_endpgm")
pack16(accK,accK); pack16(accV,accV)
A(f"""s_lshl_b32 s{sV0}, s{sRT}, 13
s_lshl_b32 s{sV1}, s{sJ}, 12
s_add_u32 s{sV0}, s{sV0}, s{sV1}
s_add_u32 s{sV0}, s{sV0}, {EA}
s_add_u32 s{sV1}, s{sV0}, 8192
v_add_u32 v{vLK}, s{sV1}, v{vKpos}
v_lshl_add_u32 v{xt0}, v{vV1}, 11, v{xVo}
v_add_u32 v{vLV}, s{sV1}, v{xt0}""")
A.lds(f"ds_write_b128 v{vLK}, {vr(accK,4)}")
A.lds(f"ds_write_b128 v{vLK}, {vr(accK+4,4)} offset:2048")
A.lds(f"ds_write_b128 v{vLV}, {vr(accV,4)} offset:1024")
A.lds(f"ds_write_b128 v{vLV}, {vr(accV+4,4)} offset:1536")
A.vmem(f"buffer_load_dwordx2 {vr(xN,2)}, v{xZ}, {sr(SRD_DBG,4)}, 0 offen sc1",'non')
A(f"""s_lshl_b32 s{sHf}, s{sHQ}, 5
s_add_u32 s{sHf}, s{sHf}, s{sRB}
s_lshl_b32 s{sHf}, s{sHf}, 1
s_add_u32 s{sHf}, s{sHf}, s{sJ}
s_lshl_b32 s{sHa}, s{sHf}, 12
s_add_u32 s{sHa}, s{sHa}, {WS_HA}
s_lshl_b32 s{sHf}, s{sHf}, 7
s_add_u32 s{sHf}, s{sHf}, {WS_FHA}
s_cmp_lg_u32 s{sRT}, 1
s_cbranch_scc1 L_noha
buffer_store_dwordx4 {vr(accK,4)}, v{vKpos}, {sr(SRD_WS,4)}, s{sHa} offen sc1
buffer_store_dwordx4 {vr(accK+4,4)}, v{vKpos}, {sr(SRD_WS,4)}, s{sHa} offen offset:2048 sc1
buffer_store_dwordx4 {vr(accV+4,4)}, v{xt0}, {sr(SRD_WS,4)}, s{sHa} offen offset:1536 sc1""")
A.label("L_noha")
pack16(pQ,accQ,True)
A(f"""s_lshl_b32 s{sV1}, s{sT}, 2
s_add_u32 s{sV1}, s{sV1}, {LF}
v_mov_b32 v{vLQ}, s{sV1}
v_mov_b32 v{vLK}, 1
v_mov_b32 v{xt2}, {LF}""")
A.wait_lg_all()
A(f"ds_write_b32 v{vLQ}, v{vLK}")
Sc=accK; Sp=accV; Kc=xf[0]; Kp=xf[1]; Vc=accQ; Vp=accQ+8; FL=wf[0][0]
vAK=va[0]; vAV=va[1]; vOf=va[2]; mx=va[3]
A(f"""v_add_u32 v{vAK}, s{sV0}, v{xL16}
v_add_u32 v{vAV}, s{sV0}, v{xVo}
v_and_b32 v{xt0}, 27, v0
v_cmp_eq_u32 vcc, 16, v{xt0}
v_mov_b32 v{xt1}, 0x3f803f80
v_lshl_add_u32 v{vOf}, v{vV1}, 14, v{xVo}
v_cndmask_b32 v{xt1}, 0, v{xt1}, vcc
v_mov_b32 v{xIdx}, 0xdddddddd""")
for i in range(12): A(f"v_mov_b32 v{Vc+i}, v{xt1}")
A(f"""s_lshl_b32 s{sV2}, s{sRB}, 1
s_add_u32 s{sV2}, s{sV2}, s{sRT}
s_lshl_b32 s{sV3}, s{sV2}, 5
s_lshl_b32 s{sB0}, s{sHQ}, 1
s_add_u32 s{sB0}, s{sB0}, s{sJ}
s_add_u32 s{sV3}, s{sV3}, s{sB0}
s_lshl_b32 s{sV3}, s{sV3}, 10
s_add_u32 s{sV3}, s{sV3}, {WS_OFA}""")
lds_flags_spin(FL,xt2,sCx,sV1)
A.wait_vm_all()
nonce_check(xN,xZ,sNx,sCx,sV1)
A(f"""s_cmp_lg_u32 s{sRT}, 1
s_cbranch_scc1 L_noha2""")
flag_store(xN,xZ,sHf)
A("s_branch L_hdone")
A.label("L_noha2")
HB=wf[1][0]
for i in range(16): A(f"v_mov_b32 v{HB+i}, 0")
A(f"""s_cmp_eq_u32 s{sRB}, 0
s_cbranch_scc1 L_hwr
s_sub_u32 s{sHf}, s{sHf}, 256
s_sub_u32 s{sHa}, s{sHa}, 8192""")
poll_issue(FL,xZ,sHf)
poll_check(FL,xZ,sHf,sCx,sNx)
for i in range(4): A.vmem(f"buffer_load_dwordx4 {vr(HB+4*i,4)}, v{xL16}, {sr(SRD_WS,4)}, s{sHa} offen offset:{i*1024} sc1")
A.wait_vm_all()
A.label("L_hwr")
for i in range(4): A.lds(f"ds_write_b128 v{vAK}, {vr(HB+4*i,4)} offset:{i*1024}")
A.wait_lg_all()
A.label("L_hdone")
stamp(18)
for e in range(2):
    A.lds(f"ds_read_b128 {vr(Kc,4)}, v{vAK} offset:{8192+e*2048}",'kc')
    A.lds(f"ds_read_b128 {vr(Kp,4)}, v{vAK} offset:{e*2048}",'kp')
    A(f"s_mov_b64 exec, {sr(sVMx,2)}")
    A.lds(f"ds_read_b128 {vr(Vc,4)}, v{vAV} offset:{8192+e*2048+1024}",'v')
    A.lds(f"ds_read_b128 {vr(Vc+4,4)}, v{vAV} offset:{8192+e*2048+1536}",'v')
    A.lds(f"ds_read_b128 {vr(Vp,4)}, v{vAV} offset:{e*2048+1536}",'v')
    A("s_mov_b64 exec, -1")
    A.wait_lg('kc')
    A(f"v_mfma_f32_32x32x16_bf16 {vr(Sc,16)}, {vr(Kc,4)}, {vr(pQ+4*e,4)}, {vr(Mk,16)}")
    A.wait_lg('kp')
    A(f"v_mfma_f32_32x32x16_bf16 {vr(Sp,16)}, {vr(Kp,4)}, {vr(pQ+4*e,4)}, {vr(Mk+8,16)}")
    for i in range(9): A(f"v_mov_b32 v{Oc+i}, 0")
    A("s_nop 1")
    A(f"v_max_f32 v{mx}, v{Sc}, v{Sc+1}")
    for i in range(1,8): A(f"v_max3_f32 v{mx}, v{mx}, v{Sc+2*i}, v{Sc+2*i+1}")
    for i in range(4,8): A(f"v_max3_f32 v{mx}, v{mx}, v{Sp+2*i}, v{Sp+2*i+1}")
    A(f"""v_mov_b32 v{mt}, v{mx}
    s_nop 1
    v_permlane32_swap_b32 v{mx}, v{mt}
    s_nop 1
    v_max_f32 v{mx}, v{mx}, v{mt}""")
    regs=[Sp+8+i for i in range(8)]+[Sc+i for i in range(16)]
    for r in regs: A(f"v_sub_f32 v{r}, v{r}, v{mx}")
    A.wait_lg('v')
    if e==1: A(f"ds_write_b32 v{vLQ}, v{vLK} offset:16")
    for j,r in enumerate(regs):
        A(f"v_exp_f32 v{r}, v{r}")
        if j==9: A(f"v_smfmac_f32_32x32x32_bf16 {vr(Oc,16)}, {vr(Vp,4)}, {vr(Sp+8,8)}, v{xIdx}")
        if j==17: A(f"v_smfmac_f32_32x32x32_bf16 {vr(Oc,16)}, {vr(Vc,4)}, {vr(Sc,8)}, v{xIdx}")
    A("s_nop 1")
    A(f"v_smfmac_f32_32x32x32_bf16 {vr(Oc,16)}, {vr(Vc+4,4)}, {vr(Sc+8,8)}, v{xIdx}")
    A("s_nop 11")
    A(f"v_rcp_f32 v{mt}, v{Oc+8}\ns_nop 0")
    for i in range(8): A(f"v_mul_f32 v{Oc+i}, v{Oc+i}, v{mt}")
    dst=wf[2][1+e]
    for i in range(4): A(f"v_cvt_pk_bf16_f32 v{dst+i}, v{Oc+2*i}, v{Oc+2*i+1}")
    A.vmem(f"buffer_store_dwordx4 {vr(dst,4)}, v{vOf}, {sr(SRD_WS,4)}, s{sV3} offen offset:{e*512} sc1",'oa')
stamp(19)
A(f"""s_lshl_b32 s{sV1}, s{sV2}, 7
s_lshl_b32 s{sB0}, s{sB0}, 3
s_add_u32 s{sV1}, s{sV1}, s{sB0}
s_add_u32 s{sV1}, s{sV1}, {WS_FOA}
s_lshl_b32 s{sV0}, s{sRB}, 1
s_add_u32 s{sV0}, s{sV0}, s{sJ}
s_lshl_b32 s{sV0}, s{sV0}, 7
s_add_u32 s{sV0}, s{sV0}, {WS_FOA}""")
A.wait_vm_all()
flag_store(xN,xZ,sV1)
srd(SRD_M,14,524288); srd(SRD_XA,8,524288); srd(SRD_OUT,16,4194304)
A(f"""v_lshrrev_b32 v{xt0}, 3, v0
v_and_b32 v{xt1}, 6, v{xt0}
v_xor_b32 v{xt1}, v{xt1}, v0
v_and_b32 v{xt1}, 7, v{xt1}
v_lshlrev_b32 v{xt0}, 10, v{xt0}
v_lshl_add_u32 v{xt0}, v{xt1}, 4, v{xt0}
s_lshl_b32 s{sB0}, s{sT}, 17
s_lshl_b32 s{sB1}, s{sHQ}, 7
s_add_u32 s{sB1}, s{sB1}, s{sB0}
s_lshl_b32 s{sB2}, s{sT}, 14""")
for j in range(16):
    A(f"s_add_u32 m0, s{sB2}, {WOB+j*1024}")
    if j: A(f"s_add_u32 s{sB1}, s{sB1}, 8192")
    else: A("s_nop 0")
    A.vmem(f"buffer_load_dwordx4 v{xt0}, {sr(SRD_M,4)}, s{sB1} offen lds")
    A(f"s_add_u32 m0, s{sB2}, {WOA+j*1024}\ns_nop 0")
    A.vmem(f"buffer_load_dwordx4 v{xt0}, {sr(SRD_XA,4)}, s{sB1} offen lds")
    if OPT.get('pace',1): A("s_waitcnt vmcnt(1)"); A.vm=A.vm[-1:]
VY=Alloc(xBig,168)
yFl=VY.take(); yP=VY.take(2,2); yWA=[VY.take() for _ in range(4)]; yOo=VY.take()
yO=[VY.take(4,4) for _ in range(16)]
yW=[[VY.take(4,4) for _ in range(4)] for _ in range(3)]
yA=[VY.take(4,4) for _ in range(4)]
A(f"""v_and_b32 v{yFl}, 15, v0
v_lshlrev_b32 v{yOo}, 11, v{yFl}
v_lshlrev_b32 v{yFl}, 3, v{yFl}
v_lshrrev_b32 v{xt0}, 4, v0
v_lshl_add_u32 v{yOo}, v{xt0}, 3, v{yOo}""")
poll_issue(yP,yFl,sV0)
poll_check(yP,yFl,sV0,sCx,sNx)
stamp(20)
A(f"""s_lshl_b32 s{sV2}, s{sRB}, 2
s_add_u32 s{sV2}, s{sV2}, s{sT}
s_lshl_b32 s{sB0}, s{sV2}, 14
s_add_u32 s{sB0}, s{sB0}, {WS_OFA}""")
for i in range(16):
    if i and i%4==0: A(f"s_add_u32 s{sB0}, s{sB0}, 4096")
    A.vmem(f"buffer_load_dwordx4 {vr(yO[i],4)}, v{xL16}, {sr(SRD_WS,4)}, s{sB0} offen offset:{(i%4)*1024} sc1")
    if OPT.get('pace',1) and i%2==1: A("s_waitcnt vmcnt(1)"); A.vm=A.vm[-1:]
wo_tr_addr(yWA[0],xt0,xt1)
A(f"""v_add_u32 v{yWA[0]}, {WOA}, v{yWA[0]}
v_xor_b32 v{yWA[1]}, 32, v{yWA[0]}
v_xor_b32 v{yWA[2]}, 64, v{yWA[0]}
v_xor_b32 v{yWA[3]}, 96, v{yWA[0]}
s_lshl_b32 s{sB0}, s{sV2}, 15
s_lshl_b32 s{sB1}, s{sHQ}, 7
s_add_u32 s{sB0}, s{sB0}, s{sB1}""")
A.wait_vm_all()
stamp(21)
A("s_setprio 0")
A("s_barrier")
def woa_read(hp_,c):
    if hp_>=16: return
    b=hp_%3
    A.lds(f"ds_read_b64_tr_b16 {vr(yW[b][c],2)}, v{yWA[c]} offset:{hp_*4096}",('wa',hp_,c))
    A.lds(f"ds_read_b64_tr_b16 {vr(yW[b][c]+2,2)}, v{yWA[c]} offset:{hp_*4096+1024}",('wa',hp_,c))
for c in range(4): woa_read(0,c)
for c in range(2): woa_read(1,c)
for i in range(16):
    for c in range(4):
        A.wait_lg(('wa',i,c))
        A(f"v_mfma_f32_16x16x32_bf16 {vr(yA[c],4)}, {vr(yW[i%3][c],4)}, {vr(yO[i],4)}, {'0' if i==0 else vr(yA[c],4)}")
        woa_read(i+1+(c+2)//4,(c+2)%4)
A("s_nop 7")
for c in range(4):
    acc=yA[c]
    A(f"v_cvt_pk_bf16_f32 v{acc}, v{acc}, v{acc+1}\nv_cvt_pk_bf16_f32 v{acc+1}, v{acc+2}, v{acc+3}")
    A.vmem(f"buffer_store_dwordx2 {vr(acc,2)}, v{yOo}, {sr(SRD_OUT,4)}, s{sB0} offen offset:{c*32}")
stamp(22)
stamp_out(yFl)
A.label("L_end")
A("s_endpgm")
A.label("L_codeend")

errs=check(A.lines)
for e in errs[:25]: print("CHECK:",e, file=sys.stderr)
hdr=open('concat_heads__sliding_local_dilated__softmax_full_mha__prompt.s.ref').read().split('; Override')[0]
nv=168
out=hdr+f"""; @launch grid=(256,1,1) block=(768,1,1) lds={LDS_BYTES}
.amdgcn_target "amdgcn-amd-amdhsa--gfx950"
.text
.globl {NAME}
.p2align 8
.type {NAME},@function
"""+A.text()+f""".section .rodata,"a"
.p2align 6
.amdhsa_kernel {NAME}
  .amdhsa_next_free_vgpr {nv}
  .amdhsa_next_free_sgpr 102
  .amdhsa_accum_offset {nv}
  .amdhsa_group_segment_fixed_size 0
  .amdhsa_kernarg_size 72
  .amdhsa_user_sgpr_count 2
  .amdhsa_user_sgpr_kernarg_segment_ptr 1
  .amdhsa_system_sgpr_workgroup_id_x 1
.end_amdhsa_kernel
"""
open(sys.argv[1],'w').write(out)
print("vgpr att",VA.hi,VB.hi,"aux",VX.hi,VY.hi,"lines",len(A.lines),"errs",len(errs))
```

```python
import sys, math, struct
from asmlib import *
NAME="concat_heads__sliding_local_dilated__softmax_full_mha__prompt_kernel"
OPT=dict(stamp=0, prio=1, p1=28, p2=56, flagstage=11, pfc=1)
for a in sys.argv[2:]:
    k,v=a.split('='); OPT[k]=int(v) if v.lstrip('-').isdigit() else v

LW=0; LX=98304; EX=131072; LF=155648
EA=EX; WOB=0; WOA=65536; RED=EX
LDS_BYTES=163840
WS_KV=0; WS_OFB=4<<20; WS_OFA=6<<20
WS_FKV=8<<20; WS_FOB=(8<<20)+65536; WS_FOA=(8<<20)+131072; WS_EPOCH=(8<<20)+196608; WS_FHA=(8<<20)+262144; WS_HA=9<<20
WS_STAMP=30<<20
WS_BYTES=32<<20
CSCALE=0.25*math.log2(math.e)
def f2u(x): return struct.unpack('<I',struct.pack('<f',x))[0]
NEGBIG=f2u(-1e30)
SPIN=30000

A=Asm()
sW=22; sHQ=23; sRB=24; sSG=25; sT0=26; sT1=27
SRD_XB=28; SRD_WB=32; SRD_XA=36; SRD_WA=40; SRD_WS=44; SRD_DBG=48; SRD_M=52; SRD_OUT=56
sA0=60

def srd(base, ptr, nbytes):
    A(f"""s_mov_b32 s{base}, s{ptr}
    s_mov_b32 s{base+1}, s{ptr+1}
    s_mov_b32 s{base+2}, {nbytes}
    s_mov_b32 s{base+3}, 0x00020000""")
vSt=1
def stamp(idx, lvl=1):
    if OPT['stamp']<lvl: return
    A(f"""s_memrealtime s[96:97]
    s_memtime s[98:99]
    s_waitcnt lgkmcnt(0)
    v_writelane_b32 v{vSt}, s96, {idx}
    v_writelane_b32 v{vSt}, s98, {idx+32}""")
    A.lg=[]
def stamp_out(vtmp):
    if not OPT['stamp']: return
    A(f"""s_mul_i32 s96, s2, 12
    s_add_u32 s96, s96, s{sW}
    s_lshl_b32 s96, s96, 8
    s_add_u32 s96, s96, {WS_STAMP}
    v_lshlrev_b32 v{vtmp}, 2, v0
    buffer_store_dword v{vSt}, v{vtmp}, {sr(SRD_WS,4)}, s96 offen""")
def poll_issue(vdst, voff, soff):
    A.vmem(f"buffer_load_dwordx2 {vr(vdst,2)}, v{voff}, {sr(SRD_WS,4)}, s{soff} offen sc1",'poll')
def poll_check(vdst, voff, soff, scnt, snon):
    L=A.newlabel('L_poll'); Ld=A.newlabel('L_polld')
    A(f"s_mov_b32 s{scnt}, 0")
    A.label(L)
    A.wait_vm_all()
    A(f"""v_cmp_eq_u64 vcc, {sr(snon,2)}, {vr(vdst,2)}
    s_add_u32 s{scnt}, s{scnt}, 1
    s_cmp_eq_u64 vcc, -1
    s_cbranch_scc1 {Ld}
    s_cmp_gt_u32 s{scnt}, {SPIN}
    s_cbranch_scc1 {Ld}
    buffer_load_dwordx2 {vr(vdst,2)}, v{voff}, {sr(SRD_WS,4)}, s{soff} offen sc1
    s_branch {L}""")
    A.label(Ld)
def nonce_check(vN, vZ, snon, scnt, stmp):
    L=A.newlabel('L_non'); Ld=A.newlabel('L_nond')
    A(f"s_mov_b32 s{scnt}, 0")
    A.label(L)
    A(f"""v_readfirstlane_b32 s{snon}, v{vN}
    v_readfirstlane_b32 s{snon+1}, v{vN+1}
    s_add_u32 s{scnt}, s{scnt}, 1
    s_cmp_gt_u32 s{scnt}, {SPIN}
    s_cbranch_scc1 {Ld}
    s_cmp_eq_u32 s{snon}, 0
    s_cselect_b32 s{stmp}, 0, s{snon+1}
    s_cmp_lg_u32 s{stmp}, 0
    s_cbranch_scc1 {Ld}
    buffer_load_dwordx2 {vr(vN,2)}, v{vZ}, {sr(SRD_DBG,4)}, 0 offen sc1
    s_waitcnt vmcnt(0)
    s_branch {L}""")
    A.label(Ld)
def flag_store(vN, vZ, soff):
    A("s_mov_b64 exec, 1")
    A.vmem(f"buffer_store_dwordx2 {vr(vN,2)}, v{vZ}, {sr(SRD_WS,4)}, s{soff} offen sc1",'flag')
    A("s_mov_b64 exec, -1")
def lds_flags_spin(vF, vAddr, scnt, stmp, issued=False):
    L=A.newlabel('L_xs'); Ld=A.newlabel('L_xsd'); Lc=A.newlabel('L_xsc')
    A(f"s_mov_b32 s{scnt}, 0")
    if issued: A(f"s_branch {Lc}")
    A.label(L)
    A(f"ds_read_b128 {vr(vF,4)}, v{vAddr}")
    A.label(Lc)
    A(f"""s_add_u32 s{scnt}, s{scnt}, 1
    s_waitcnt lgkmcnt(0)
    v_and_b32 v{vF}, v{vF}, v{vF+1}
    v_and_b32 v{vF+2}, v{vF+2}, v{vF+3}
    v_and_b32 v{vF}, v{vF}, v{vF+2}
    s_cmp_gt_u32 s{scnt}, {SPIN*4}
    v_readfirstlane_b32 s{stmp}, v{vF}
    s_cbranch_scc1 {Ld}
    s_cmp_eq_u32 s{stmp}, 0
    s_cbranch_scc1 {L}""")
    A.label(Ld)
    A.lg=[]
def wo_tr_addr(dst, t0, t1):
    A(f"""v_lshrrev_b32 v{t0}, 2, v0
    v_and_b32 v{t0}, 7, v{t0}
    v_lshrrev_b32 v{t1}, 5, v0
    v_lshl_add_u32 v{t1}, v{t1}, 4, v{t0}
    v_lshlrev_b32 v{t1}, 7, v{t1}
    v_and_b32 v{t0}, 6, v{t0}
    v_bfe_u32 v{dst}, v0, 1, 1
    v_xor_b32 v{t0}, v{t0}, v{dst}
    v_lshl_add_u32 v{t1}, v{t0}, 4, v{t1}
    v_and_b32 v{t0}, 1, v0
    v_lshl_add_u32 v{dst}, v{t0}, 3, v{t1}""")

A.label(NAME)
if OPT.get('dbgst'): A("s_memrealtime s[100:101]")
A(f"""s_cmp_ge_u32 s2, 256
s_cbranch_scc1 L_end
s_load_dwordx16 s[4:19], s[0:1], 0
s_load_dwordx2 s[20:21], s[0:1], 64
v_lshrrev_b32 v1, 6, v0
v_and_b32 v0, 63, v0
s_lshr_b32 s{sT1}, s2, 3
v_readfirstlane_b32 s{sW}, v1
s_and_b32 s{sHQ}, s2, 1
s_lshl_b32 s{sHQ}, s{sHQ}, 2
s_and_b32 s{sT0}, s{sT1}, 3
s_add_u32 s{sHQ}, s{sHQ}, s{sT0}
s_and_b32 s{sRB}, s2, 6
s_lshl_b32 s{sRB}, s{sRB}, 2
s_lshr_b32 s{sT0}, s{sT1}, 2
s_add_u32 s{sRB}, s{sRB}, s{sT0}
s_lshl_b32 s{sSG}, s{sHQ}, 1
s_add_u32 s{sSG}, s{sSG}, s{sRB}
s_cmp_ge_u32 s{sW}, 8
s_cbranch_scc1 L_aux""")

VA=Alloc(2,168)
vx=VA.take(); vw=VA.take(); vt0=VA.take(); vt1=VA.take(); vt2=VA.take(); vt3=VA.take()
vL16=VA.take(); vVo=VA.take(); vIdx=VA.take(); vFl=VA.take(); vP=VA.take(2,2); vN=VA.take(2,2); vZ=VA.take()
vEQ0=VA.take(); vEK=VA.take(); vEV=VA.take()
ND=6
vBig=VA.mark()
Qf=[VA.take(4,4) for _ in range(2)]
Sb=[VA.take(16,4) for _ in range(2)]
Oa=[VA.take(16,4) for _ in range(2)]
Kf=[VA.take(4,4) for _ in range(ND)]
Vf=[VA.take(8,4) for _ in range(ND)]
sXoff=sA0; sM0=sA0+1; sWoff=sA0+2; sFOr=sA0+3; sOld=sA0+4; sOut=sA0+5; sOst=sA0+6; sFOw=sA0+7
sU0=sA0+8; sU1=sA0+9; sU2=sA0+10
sE=sA0+11; sKH=sA0+12; sKVb=sA0+14; sOff=sA0+15; sNon=sA0+16; sVM=sA0+18; sCnt=sA0+20; sBlk=sA0+21
sFKVr=sA0+22; sFKVw=sA0+23; sOwn=sA0+24; sLo=sA0+25; sHi=sA0+26; sX0=sA0+28
A(f"""v_lshrrev_b32 v{vt0}, 3, v0
v_mul_u32_u24 v{vw}, 3072, v{vt0}
v_lshlrev_b32 v{vt0}, 10, v{vt0}
v_lshrrev_b32 v{vt1}, 2, v0
v_and_b32 v{vt1}, 4, v{vt1}
v_xor_b32 v{vt1}, v{vt1}, v0
v_and_b32 v{vt1}, 7, v{vt1}
v_lshl_add_u32 v{vw}, v{vt1}, 4, v{vw}
v_lshrrev_b32 v{vt1}, 4, v0
v_xor_b32 v{vt1}, v{vt1}, v0
v_and_b32 v{vt1}, 7, v{vt1}
v_lshl_add_u32 v{vx}, v{vt1}, 4, v{vt0}
s_and_b32 s{sU0}, s{sW}, 1
s_lshl_b32 s{sU0}, s{sU0}, 6
v_xor_b32 v{vx}, s{sU0}, v{vx}
s_lshl_b32 s{sXoff}, s{sRB}, 16
s_lshl_b32 s{sU0}, s{sW}, 13
s_add_u32 s{sXoff}, s{sXoff}, s{sU0}
s_lshl_b32 s{sM0}, s{sW}, 10
s_mul_i32 s{sWoff}, s{sW}, 24576
s_lshl_b32 s{sU0}, s{sHQ}, 7
s_add_u32 s{sWoff}, s{sWoff}, s{sU0}
s_mov_b32 s{SRD_XB+2}, 2097152
s_mov_b32 s{SRD_XB+3}, 0x00020000
s_mov_b32 s{SRD_WB+2}, 1572864
s_mov_b32 s{SRD_WB+3}, 0x00020000
s_waitcnt lgkmcnt(0)
s_mov_b32 s{SRD_XB}, s10
s_mov_b32 s{SRD_XB+1}, s11
s_mov_b32 s{SRD_WB}, s12
s_mov_b32 s{SRD_WB+1}, s13""")

def issue_stage(s):
    if OPT.get('nodma') and s>=2: return
    slot=s%4
    X,W=(SRD_XB,SRD_WB) if s<8 else (SRD_XA,SRD_WA)
    A(f"""s_add_u32 s{sU0}, s{sSG}, {s}
    s_and_b32 s{sU0}, s{sU0}, 7
    s_mul_i32 s{sU1}, s{sU0}, 196608
    s_lshl_b32 s{sU0}, s{sU0}, 7
    s_add_u32 m0, s{sM0}, {LX+slot*8192}
    s_add_u32 s{sU0}, s{sU0}, s{sXoff}""")
    A.vmem(f"buffer_load_dwordx4 v{vx}, {sr(X,4)}, s{sU0} offen lds", s)
    for p in (1,2,0):
        A(f"s_add_u32 m0, s{sM0}, {LW+slot*24576+p*7168}")
        if p==1: A(f"s_add_u32 s{sU1}, s{sU1}, s{sWoff}")
        else: A("s_nop 0")
        A.vmem(f"buffer_load_dwordx4 v{vw}, {sr(W,4)}, s{sU1} offen offset:{p*1024} lds", s)

def att_setup1():
    srd(SRD_XA,4,2097152); srd(SRD_WA,6,1572864); srd(SRD_DBG,18,256)
    A(f"""s_lshr_b32 s{sE}, s{sW}, 1
    s_and_b32 s{sKH}, s{sW}, 1
    s_lshl_b32 s{sU1}, s{sHQ}, 2
    s_add_u32 s{sU1}, s{sU1}, s{sE}
    s_lshl_b32 s{sKVb}, s{sU1}, 17
    s_lshl_b32 s{sU0}, s{sKH}, 11
    s_add_u32 s{sKVb}, s{sKVb}, s{sU0}
    s_lshl_b32 s{sU1}, s{sU1}, 1
    s_add_u32 s{sU1}, s{sU1}, s{sKH}
    s_lshl_b32 s{sFKVr}, s{sU1}, 8
    s_add_u32 s{sFKVr}, s{sFKVr}, {WS_FKV}
    s_lshl_b32 s{sU2}, s{sRB}, 3
    s_add_u32 s{sFKVw}, s{sFKVr}, s{sU2}
    s_lshl_b32 s{sU2}, s{sRB}, 12
    s_add_u32 s{sOwn}, s{sKVb}, s{sU2}
    s_mov_b32 s{sVM}, 0x0000ffff
    s_mov_b32 s{sVM+1}, 0x0000ffff
    v_lshlrev_b32 v{vL16}, 4, v0
    v_and_b32 v{vt0}, 15, v0
    v_lshlrev_b32 v{vt0}, 4, v{vt0}
    v_lshrrev_b32 v{vt1}, 5, v0
    v_lshl_add_u32 v{vVo}, v{vt1}, 8, v{vt0}
    v_mov_b32 v{vIdx}, 0xdddddddd
    v_mov_b32 v{vZ}, 0
    v_and_b32 v{vFl}, 31, v0
    v_lshlrev_b32 v{vFl}, 3, v{vFl}
    s_add_u32 s{sU1}, s{sM0}, {EX}
    v_add_u32 v{vEQ0}, s{sU1}, v{vL16}
    s_lshl_b32 s{sU1}, s{sW}, 11
    s_add_u32 s{sU1}, s{sU1}, {EX+8192}
    v_add_u32 v{vEK}, s{sU1}, v{vL16}
    v_add_u32 v{vEV}, s{sU1}, v{vVo}""")
def att_setup2():
    A(f"""v_and_b32 v{vt0}, 27, v0
    v_cmp_eq_u32 vcc, 16, v{vt0}
    v_mov_b32 v{vt1}, 0x3f803f80
    s_nop 0
    v_cndmask_b32 v{vt1}, 0, v{vt1}, vcc""")
    for d in range(ND):
        for i in range(8): A(f"v_mov_b32 v{Vf[d]+i}, v{vt1}")
def att_setup3():
    for d in range(2):
        for i in range(16): A(f"v_mov_b32 v{Oa[d]+i}, 0")
    A(f"""s_lshl_b32 s{sU0}, s{sRB}, 1
    s_add_u32 s{sU0}, s{sU0}, s{sKH}
    s_lshl_b32 s{sOst}, s{sU0}, 5
    s_lshl_b32 s{sU1}, s{sHQ}, 1
    s_add_u32 s{sOst}, s{sOst}, s{sU1}
    s_lshr_b32 s{sU1}, s{sE}, 1
    s_add_u32 s{sOst}, s{sOst}, s{sU1}
    s_lshl_b32 s{sOst}, s{sOst}, 10
    s_add_u32 s{sOst}, s{sOst}, {WS_OFB}
    s_lshl_b32 s{sFOw}, s{sU0}, 3
    s_add_u32 s{sFOw}, s{sFOw}, s{sHQ}
    s_lshl_b32 s{sFOw}, s{sFOw}, 2
    s_add_u32 s{sFOw}, s{sFOw}, s{sE}
    s_lshl_b32 s{sFOw}, s{sFOw}, 3
    s_add_u32 s{sFOw}, s{sFOw}, {WS_FOB}
    s_and_b32 s{sU0}, s{sW}, 3
    s_lshl_b32 s{sU1}, s{sRB}, 2
    s_add_u32 s{sU1}, s{sU1}, s{sU0}
    s_lshr_b32 s{sU2}, s{sW}, 2
    s_lshl_b32 s{sOld}, s{sU1}, 1
    s_add_u32 s{sOld}, s{sOld}, s{sU2}
    s_lshl_b32 s{sOld}, s{sOld}, 13
    s_add_u32 s{sOld}, s{sOld}, {WS_OFB}
    s_andn2_b32 s{sFOr}, s{sU1}, 1
    s_add_u32 s{sFOr}, s{sFOr}, s{sU2}
    s_lshl_b32 s{sFOr}, s{sFOr}, 7
    s_add_u32 s{sFOr}, s{sFOr}, {WS_FOB}
    s_lshl_b32 s{sOut}, s{sU1}, 15
    s_lshl_b32 s{sU0}, s{sHQ}, 7
    s_add_u32 s{sOut}, s{sOut}, s{sU0}
    s_lshl_b32 s{sU0}, s{sU2}, 6
    s_add_u32 s{sOut}, s{sOut}, s{sU0}
    s_add_u32 s{sOut}, s{sOut}, 1024
    s_mov_b32 s{sLo}, {f2u(2.0**-64):#x}
    s_mov_b32 s{sHi}, {f2u(2.0**64):#x}""")
    srd(SRD_OUT,16,4194304)
def att_read_ex():
    A.lds(f"ds_read_b128 {vr(Kf[0],4)}, v{vEK}",'k0')
    A(f"s_mov_b64 exec, {sr(sVM,2)}")
    for t in range(2): A.lds(f"ds_read_b128 {vr(Vf[0]+4*t,4)}, v{vEV} offset:{1024+t*512}",'v0')
    A(f"s_mov_b64 exec, -1")
    A.wait_lg('k0')
    A.vmem(f"buffer_store_dwordx4 {vr(Kf[0],4)}, v{vL16}, {sr(SRD_WS,4)}, s{sOwn} offen sc1",'kvst')
    A.wait_lg('v0')
    A(f"s_mov_b64 exec, {sr(sVM,2)}")
    for t in range(2): A.vmem(f"buffer_store_dwordx4 {vr(Vf[0]+4*t,4)}, v{vVo}, {sr(SRD_WS,4)}, s{sOwn} offen offset:{1024+t*512} sc1",'kvst')
    A("s_mov_b64 exec, -1")
def kv_load(i):
    if OPT.get('nokv'): return
    d=i%ND
    A(f"""s_add_u32 s{sBlk}, s{sRB}, {i}
    s_and_b32 s{sBlk}, s{sBlk}, 31
    s_lshl_b32 s{sBlk}, s{sBlk}, 12
    s_add_u32 s{sOff}, s{sBlk}, s{sKVb}""")
    A.vmem(f"buffer_load_dwordx4 {vr(Kf[d],4)}, v{vL16}, {sr(SRD_WS,4)}, s{sOff} offen sc1",('kv',i))
    A(f"s_mov_b64 exec, {sr(sVM,2)}")
    A.vmem(f"buffer_load_dwordx4 {vr(Vf[d],4)}, v{vVo}, {sr(SRD_WS,4)}, s{sOff} offen offset:1024 sc1",('kv',i))
    A.vmem(f"buffer_load_dwordx4 {vr(Vf[d]+4,4)}, v{vVo}, {sr(SRD_WS,4)}, s{sOff} offen offset:1536 sc1",('kv',i))
    A("s_mov_b64 exec, -1")
def QK(u): A(f"v_mfma_f32_32x32x16_bf16 {vr(Sb[u%2],16)}, {vr(Kf[(u//2)%ND],4)}, {vr(Qf[u%2],4)}, 0")
def PV(u,t): A(f"v_smfmac_f32_32x32x32_bf16 {vr(Oa[u%2],16)}, {vr(Vf[(u//2)%ND]+4*t,4)}, {vr(Sb[u%2]+8*t,8)}, v{vIdx}")
NU=64
def unit(u, noqk=False):
    S=Sb[u%2]
    E=lambda r: A(f"v_exp_f32 v{S+r}, v{S+r}")
    E(0);E(1)
    if u>0 and u!=2: PV(u-1,1)
    E(2);E(3);E(4)
    if u>=2 and u%2==0 and (u//2-1+ND)<32: kv_load(u//2-1+ND)
    if OPT['prio'] and u==OPT['p1']: A("s_setprio 1")
    if OPT['prio'] and u==OPT['p2']: A("s_setprio 0")
    if u==NU-3:
        A(f"v_mov_b32 v{vt0}, {LF+16}")
        A.lds(f"ds_read_b128 {vr(Kf[0],4)}, v{vt0}")
    if u+1<NU and not noqk:
        if (u+1)%2==0: A.wait_vm(('kv',(u+1)//2))
        QK(u+1)
    for r in range(5,10): E(r)
    PV(u,0)
    for r in range(10,16): E(r)
    if u in (3,5,9,17,33): stamp(18+(3,5,9,17,33).index(u), 1 if u in (5,33) else 2)
sPX=sA0+30; sPW=sA0+32; sPD=sA0+34
PFL=[(sPX,i*128) for i in range(16)]+[(sPW,r*3072+p*1024+i*128) for r in range(2) for p in range(3) for i in range(4)]
def spf_setup():
    A(f"""s_and_b32 s{sU0}, s2, 6
    s_lshl_b32 s{sU0}, s{sU0}, 18
    s_lshl_b32 s{sU1}, s{sT1}, 14
    s_add_u32 s{sU0}, s{sU0}, s{sU1}
    s_lshl_b32 s{sU1}, s{sW}, 11
    s_add_u32 s{sU0}, s{sU0}, s{sU1}
    s_add_u32 s{sPX}, s4, s{sU0}
    s_addc_u32 s{sPX+1}, s5, 0
    s_mul_i32 s{sU0}, s{sT1}, 49152
    s_mul_i32 s{sU1}, s{sW}, 6144
    s_add_u32 s{sU0}, s{sU0}, s{sU1}
    s_and_b32 s{sU1}, s2, 1
    s_lshl_b32 s{sU1}, s{sU1}, 9
    s_add_u32 s{sU0}, s{sU0}, s{sU1}
    s_add_u32 s{sPW}, s6, s{sU0}
    s_addc_u32 s{sPW+1}, s7, 0""")
def spf(k):
    for (bs,off) in PFL[8*k:8*k+8]: A(f"s_load_dword s{sPD}, {sr(bs,2)}, {off}")
SPF0=OPT.get('spf0',1)
issue_stage(0); issue_stage(1)
srd(SRD_WS,20,WS_BYTES)
stamp(0)
for s in range(16):
    if s==8:
        A.wait_vm('non')
        nonce_check(vN,vZ,sNon,sCnt,sU0)
        A("s_waitcnt lgkmcnt(0)")
        A("s_barrier")
        stamp(30,2)
        att_read_ex()
        issue_stage(11)
    A.wait_vm(s)
    if s==OPT['flagstage']:
        A.wait_vm('kvst'); flag_store(vN,vZ,sFKVw)
    A("s_barrier")
    stamp(1+s, 1 if s in (0,4,8,12,15) else 2)
    if s==0: issue_stage(2); issue_stage(3); att_setup1(); spf_setup()
    if 1<=s and s+3<=15 and s!=8: issue_stage(s+3)
    if OPT.get('spf',1) and SPF0<=s<SPF0+5: spf(s-SPF0)
    if s==8:
        A.lds(f"ds_read_b128 {vr(Qf[0],4)}, v{vEQ0}")
        A(f"v_xor_b32 v{vEQ0}, 1024, v{vEQ0}")
        A.lds(f"ds_read_b128 {vr(Qf[1],4)}, v{vEQ0}")
        A.wait_lg_all()
    if s==1: att_setup2()
    if s==2: att_setup3()
    if s==3: A.vmem(f"buffer_load_dwordx2 {vr(vN,2)}, v{vZ}, {sr(SRD_DBG,4)}, 0 offen sc1",'non')
    if s==12: QK(0); A("s_nop 9")
    if s==13:
        poll_issue(vP,vFl,sFKVr)
        unit(0)
    if s==14:
        unit(1,noqk=True)
        A("s_nop 1"); PV(1,1)
        A.wait_vm_all()
        A(f"""v_cmp_eq_u64 vcc, {sr(sNon,2)}, {vr(vP,2)}
        s_cmp_eq_u64 vcc, -1
        s_cbranch_scc0 L_late""")
        for i in range(1,ND): kv_load(i)
        A("s_barrier\ns_branch L_go")
        A.label("L_late")
        A("s_barrier")
        sv=list(A.vm); A.vm=[]
        poll_issue(vP,vFl,sFKVr)
        poll_check(vP,vFl,sFKVr,sCnt,sNon)
        for i in range(1,ND): kv_load(i)
        assert A.vm==sv
        A.label("L_go")
        break
if OPT.get('gonly'):
    stamp_out(vt0); A("s_endpgm")
stamp(17)
if OPT['prio']: A("s_setprio 2")
A.wait_vm(('kv',1))
QK(2)
A("s_nop 11")
for u in range(2,NU): unit(u)
A("s_nop 1")
PV(NU-1,1)
stamp(23)
A("s_setprio 3")
vR=Sb[0]; vRa=Sb[1]
A(f"""s_mul_i32 s{sU0}, s{sW}, 2304
s_add_u32 s{sU0}, s{sU0}, {RED}
v_add_u32 v{vRa}, s{sU0}, v{vL16}
v_lshlrev_b32 v{vRa+1}, 2, v0
v_add_u32 v{vRa+1}, s{sU0}, v{vRa+1}
s_xor_b32 s{sU1}, s{sW}, 1
s_mul_i32 s{sU1}, s{sU1}, 2304
s_add_u32 s{sU1}, s{sU1}, {RED}
v_add_u32 v{vEK}, s{sU1}, v{vL16}
v_lshlrev_b32 v{vRa+3}, 2, v0
v_add_u32 v{vRa+3}, s{sU1}, v{vRa+3}""")
lds_flags_spin(Kf[0],vt0,sCnt,sU2,issued=True)
A.lds(f"ds_write_b128 v{vRa}, {vr(Oa[1],4)}")
A.lds(f"ds_write_b128 v{vRa}, {vr(Oa[1]+4,4)} offset:1024")
A.lds(f"ds_write_b32 v{vRa+1}, v{Oa[1]+8} offset:2048")
A(f"""v_bfe_u32 v{vRa+4}, v0, 4, 1
v_lshlrev_b32 v{vRa+4}, 14, v{vRa+4}
v_add_u32 v{vRa+4}, v{vRa+4}, v{vVo}
s_and_b32 s{sU0}, s{sE}, 1
s_lshl_b32 s{sU0}, s{sU0}, 9
v_add_u32 v{vRa+4}, s{sU0}, v{vRa+4}""")
A.wait_lg_all()
A("s_barrier")
stamp(24)
A.lds(f"ds_read_b32 v{vR+8}, v{vRa+3} offset:2048",'r2')
A.lds(f"ds_read_b128 {vr(vR,4)}, v{vEK}",'r0')
A.lds(f"ds_read_b128 {vr(vR+4,4)}, v{vEK} offset:1024",'r1')
A.wait_lg('r2')
A(f"""v_add_f32 v{Oa[0]+8}, v{Oa[0]+8}, v{vR+8}
v_cmp_nle_f32 vcc, s{sLo}, v{Oa[0]+8}
v_cmp_nge_f32 {sr(sX0,2)}, s{sHi}, v{Oa[0]+8}""")
A.wait_lg('r0')
for i in range(4): A(f"v_add_f32 v{Oa[0]+i}, v{Oa[0]+i}, v{vR+i}")
A.wait_lg('r1')
for i in range(4,8): A(f"v_add_f32 v{Oa[0]+i}, v{Oa[0]+i}, v{vR+i}")
A(f"""s_or_b64 vcc, vcc, {sr(sX0,2)}
s_cmp_lg_u64 vcc, 0
s_cbranch_scc1 L_fallback""")
A.label("L_norm")
A(f"v_rcp_f32 v{vR+9}, v{Oa[0]+8}\ns_nop 0")
for i in range(8): A(f"v_mul_f32 v{Oa[0]+i}, v{Oa[0]+i}, v{vR+9}")
for i in range(4): A(f"v_cvt_pk_bf16_f32 v{vR+i}, v{Oa[0]+2*i}, v{Oa[0]+2*i+1}")
A.vmem(f"buffer_store_dwordx4 {vr(vR,4)}, v{vRa+4}, {sr(SRD_WS,4)}, s{sOst} offen sc1")
stamp(28,2)
VB=Alloc(vBig,168)
Of=[VB.take(4,4) for _ in range(8)]
Wf=[[VB.take(4,4) for _ in range(4)] for _ in range(6)]
Ac=[VB.take(4,4) for _ in range(4)]
vWA=[vx,vw,vt2,vt3]; vOo=vEQ0; vXw=vEK; vXr=vEV
wo_tr_addr(vx,vt0,vt1)
A(f"""s_lshr_b32 s{sU2}, s{sW}, 2
s_lshl_b32 s{sU0}, s{sU2}, 15
s_lshl_b32 s{sU1}, s{sU2}, 6
v_add_u32 v{vx}, s{sU0}, v{vx}
v_xor_b32 v{vx}, s{sU1}, v{vx}
v_xor_b32 v{vw}, 32, v{vx}
v_xor_b32 v{vt2}, 64, v{vx}
v_xor_b32 v{vt3}, 96, v{vx}""")
assert WOB==0
def wo_read(hp_, slotset):
    for c in range(4):
        A.lds(f"ds_read_b64_tr_b16 {vr(Wf[slotset][c],2)}, v{vWA[c]} offset:{hp_*4096}",('wo',hp_))
        A.lds(f"ds_read_b64_tr_b16 {vr(Wf[slotset][c]+2,2)}, v{vWA[c]} offset:{hp_*4096+1024}",('wo',hp_))
wo_read(0,0)
A(f"""v_and_b32 v{vFl}, 15, v0
v_lshlrev_b32 v{vOo}, 11, v{vFl}
v_lshlrev_b32 v{vFl}, 3, v{vFl}
v_lshrrev_b32 v{vt0}, 4, v0
v_lshl_add_u32 v{vOo}, v{vt0}, 3, v{vOo}
s_xor_b32 s{sU1}, s{sW}, 5
s_mul_i32 s{sU1}, s{sU1}, 2304
s_add_u32 s{sU1}, s{sU1}, {RED}
v_add_u32 v{vXr}, s{sU1}, v{vL16}""")
A.wait_lg_all(); wo_read(1,1)
stamp(29,2)
A.wait_vm_all()
flag_store(vN,vZ,sFOw)
poll_issue(vP,vFl,sFOr)
stamp(25)
for i in range(2,6):
    A.wait_lg_all(); wo_read(i,i)
poll_check(vP,vFl,sFOr,sCnt,sNon)
stamp(26)
for i in range(8):
    if i==4: A(f"s_add_u32 s{sOld}, s{sOld}, 4096")
    A.vmem(f"buffer_load_dwordx4 {vr(Of[i],4)}, v{vL16}, {sr(SRD_WS,4)}, s{sOld} offen offset:{(i%4)*1024} sc1",('of',i))
A.wait_lg_all()
for i in range(8):
    A.wait_vm(('of',i))
    if i>=6: A.wait_lg(('wo',i))
    for c in range(4):
        A(f"v_mfma_f32_16x16x32_bf16 {vr(Ac[c],4)}, {vr(Wf[i%6][c],4)}, {vr(Of[i],4)}, {'0' if i==0 else vr(Ac[c],4)}")
    if i<2:
        A.wait_lg_all(); wo_read(6+i,i)
A("s_nop 7")
A.lds(f"ds_write_b128 v{vXw}, {vr(Ac[2],4)}")
A.lds(f"ds_write_b128 v{vXw}, {vr(Ac[3],4)} offset:1024")
A.wait_lg_all()
A("s_barrier")
A.lds(f"ds_read_b128 {vr(Ac[2],4)}, v{vXr}",'x0')
A.lds(f"ds_read_b128 {vr(Ac[3],4)}, v{vXr} offset:1024",'x1')
for c in range(2):
    A.wait_lg(f'x{c}')
    for i in range(4): A(f"v_add_f32 v{Ac[c]+i}, v{Ac[c]+i}, v{Ac[2+c]+i}")
    A(f"v_cvt_pk_bf16_f32 v{Ac[c]}, v{Ac[c]}, v{Ac[c]+1}\nv_cvt_pk_bf16_f32 v{Ac[c]+1}, v{Ac[c]+2}, v{Ac[c]+3}")
    A.vmem(f"buffer_store_dwordx2 {vr(Ac[c],2)}, v{vOo}, {sr(SRD_OUT,4)}, s{sOut} offen offset:{c*32}")
stamp(27)
stamp_out(vt0)
if OPT.get('dbgst'):
    sel=[0,1,5,30,9,17,19,22,23,24,25,26,27]
    A(f"""s_cmp_lg_u32 s{sW}, 0
    s_cbranch_scc1 L_end
    s_sub_u32 s100, 0, s100
    v_mov_b32 v{vt1}, s100""")
    for j,ix in enumerate(sel):
        A(f"v_readlane_b32 s96, v{vSt}, {ix}\ns_nop 1\nv_writelane_b32 v{vt1}, s96, {j+1}")
    A(f"""v_lshlrev_b32 v{vt0}, 2, v0
    s_mov_b64 exec, 0x3fff
    buffer_atomic_umax v{vt1}, v{vt0}, {sr(SRD_DBG,4)}, 0 offen offset:8 sc1
    s_waitcnt vmcnt(0)""")
A("s_endpgm")

A.label("L_fallback"); A.reset()
fC=Oa[1]; fM=vt0; fT=vt1; fS=Kf[0]
fK=Kf[4]; fV=Vf[0]
A(f"""s_lshl_b32 s{sU0}, s{sKH}, 11
s_sub_u32 s{sU2}, s{sKVb}, s{sU0}
s_mov_b32 s{sOff}, s{sU2}
s_mov_b32 s{sCnt}, 0
v_mov_b32 v{fM}, {NEGBIG:#x}""")
A.label("L_fb1")
A(f"""buffer_load_dwordx4 {vr(fK,4)}, v{vL16}, {sr(SRD_WS,4)}, s{sOff} offen sc1
s_waitcnt vmcnt(0)
v_mfma_f32_32x32x16_bf16 {vr(fS,16)}, {vr(fK,4)}, {vr(Qf[0],4)}, 0
s_add_u32 s{sOff}, s{sOff}, 2048
s_add_u32 s{sCnt}, s{sCnt}, 1
s_nop 11""")
for i in range(8): A(f"v_max3_f32 v{fM}, v{fM}, v{fS+2*i}, v{fS+2*i+1}")
A(f"""s_cmp_lt_u32 s{sCnt}, 64
s_cbranch_scc1 L_fb1
v_mov_b32 v{fT}, v{fM}
s_nop 1
v_permlane32_swap_b32 v{fM}, v{fT}
s_nop 1
v_max_f32 v{fM}, v{fM}, v{fT}""")
for i in range(16): A(f"v_sub_f32 v{fC+i}, 0, v{fM}")
for i in range(16): A(f"v_mov_b32 v{Oa[0]+i}, 0")
A(f"""s_mov_b32 s{sOff}, s{sU2}
s_mov_b32 s{sCnt}, 0""")
A.label("L_fb2")
A(f"""buffer_load_dwordx4 {vr(fK,4)}, v{vL16}, {sr(SRD_WS,4)}, s{sOff} offen sc1
s_mov_b64 exec, {sr(sVM,2)}
buffer_load_dwordx4 {vr(fV,4)}, v{vVo}, {sr(SRD_WS,4)}, s{sOff} offen offset:1024 sc1
buffer_load_dwordx4 {vr(fV+4,4)}, v{vVo}, {sr(SRD_WS,4)}, s{sOff} offen offset:1536 sc1
s_mov_b64 exec, -1
s_waitcnt vmcnt(0)
v_mfma_f32_32x32x16_bf16 {vr(fS,16)}, {vr(fK,4)}, {vr(Qf[0],4)}, {vr(fC,16)}
s_add_u32 s{sOff}, s{sOff}, 2048
s_add_u32 s{sCnt}, s{sCnt}, 1
s_nop 11""")
for i in range(16): A(f"v_exp_f32 v{fS+i}, v{fS+i}")
A(f"""s_nop 1
v_smfmac_f32_32x32x32_bf16 {vr(Oa[0],16)}, {vr(fV,4)}, {vr(fS,8)}, v{vIdx}
v_smfmac_f32_32x32x32_bf16 {vr(Oa[0],16)}, {vr(fV+4,4)}, {vr(fS+8,8)}, v{vIdx}
s_cmp_lt_u32 s{sCnt}, 64
s_cbranch_scc1 L_fb2
s_nop 15
s_branch L_norm""")

A.label("L_aux")
A.reset()
VX=Alloc(2,168)
xt0=VX.take(); xt1=VX.take(); xt2=VX.take(); xZ=VX.take(); xN=VX.take(2,2)
xL16=VX.take(); xVo=VX.take()
xBig=VX.mark()
va=[VX.take() for _ in range(4)]; vwa=[VX.take() for _ in range(2)]
vKpos=VX.take(); vLK=VX.take(); vLV=VX.take(); vLQ=VX.take(); vV1=VX.take(); xIdx=VX.take(); mt=VX.take()
accQ=VX.take(16,4); accK=VX.take(16,4); accV=VX.take(16,4)
xf=[VX.take(4,4) for _ in range(3)]
wf=[[VX.take(4,4) for _ in range(3)] for _ in range(3)]
Mk=VX.take(24,4)
pQ=VX.take(8,4)
Oc=VX.take(16,4)
sT=sA0; sC=sA0+1; sV0=sA0+2; sV1=sA0+3; sNx=sA0+4; sCx=sA0+6; sVMx=sA0+8; sRT=sA0+10; sV2=sA0+11; sV3=sA0+12
sB0=sA0+13; sB1=sA0+14; sB2=sA0+15; sHa=sA0+16; sHf=sA0+17; sJ=sA0+18
A(f"""s_setprio 3
s_sub_u32 s{sT}, s{sW}, 8
s_and_b32 s{sRT}, s{sT}, 1
s_lshr_b32 s{sJ}, s{sT}, 1
v_mov_b32 v{xZ}, 0
s_waitcnt lgkmcnt(0)""")
srd(SRD_WS,20,WS_BYTES); srd(SRD_DBG,18,256)
A(f"""s_add_u32 s{sV0}, s2, s{sT}
s_cmp_lg_u32 s{sV0}, 0
s_cbranch_scc1 L_nonon
s_mov_b32 s{sV0}, {WS_EPOCH}
s_mov_b64 exec, 1
buffer_load_dwordx2 {vr(xN,2)}, v{xZ}, {sr(SRD_WS,4)}, s{sV0} offen sc1
s_waitcnt vmcnt(0)
v_add_u32 v{xN}, 2, v{xN}
v_or_b32 v{xN}, 1, v{xN}
v_or_b32 v{xN+1}, 0x80000000, v{xN+1}
buffer_store_dwordx2 {vr(xN,2)}, v{xZ}, {sr(SRD_DBG,4)}, 0 offen sc1
buffer_store_dwordx2 {vr(xN,2)}, v{xZ}, {sr(SRD_WS,4)}, s{sV0} offen sc1
s_mov_b64 exec, -1""")
A.label("L_nonon")
stamp(0)
A(f"""v_mov_b32 v{xt0}, {LF}
v_lshl_add_u32 v{xt0}, v0, 2, v{xt0}
ds_write_b32 v{xt0}, v{xZ}
v_and_b32 v{xt0}, 31, v0
v_lshrrev_b32 v{xt1}, 5, v0
v_bfe_u32 v{xt2}, v0, 1, 3
v_xor_b32 v{xt2}, v{xt2}, v{xt1}
v_lshlrev_b32 v{xt2}, 4, v{xt2}
v_lshl_add_u32 v{xt2}, v{xt0}, 7, v{xt2}
s_lshl_b32 s{sV0}, s{sRT}, 12
s_add_u32 s{sV0}, s{sV0}, {LX}
v_add_u32 v{va[0]}, s{sV0}, v{xt2}""")
for s in range(1,4): A(f"v_xor_b32 v{va[s]}, {32*s}, v{va[0]}")
A(f"""v_bfe_u32 v{xt2}, v0, 2, 2
v_lshl_add_u32 v{xt2}, v{xt1}, 3, v{xt2}
v_lshlrev_b32 v{xt2}, 7, v{xt2}
v_bfe_u32 v{vV1}, v0, 4, 1
v_lshl_add_u32 v{xt2}, v{vV1}, 5, v{xt2}
v_and_b32 v{vwa[0]}, 3, v0
v_lshl_add_u32 v{xt2}, v{vwa[0]}, 3, v{xt2}
v_bfe_u32 v{vwa[0]}, v0, 3, 1
v_lshl_add_u32 v{xt2}, v{vwa[0]}, 6, v{xt2}
s_lshl_b32 s{sV0}, s{sJ}, 6
v_xor_b32 v{vwa[0]}, s{sV0}, v{xt2}
v_add_u32 v{vwa[1]}, 49152, v{vwa[0]}
v_and_b32 v{vKpos}, 0x33, v0
v_bfe_u32 v{xt2}, v0, 2, 1
v_lshl_add_u32 v{vKpos}, v{xt2}, 3, v{vKpos}
v_bfe_u32 v{xt2}, v0, 3, 1
v_lshl_add_u32 v{vKpos}, v{xt2}, 2, v{vKpos}
v_lshlrev_b32 v{vKpos}, 4, v{vKpos}
v_and_b32 v{xt2}, 15, v0
v_lshlrev_b32 v{xt2}, 4, v{xt2}
v_lshl_add_u32 v{xVo}, v{xt1}, 8, v{xt2}
v_lshl_add_u32 v{vLV}, v{vV1}, 12, v{xVo}
s_lshl_b32 s{sV0}, s{sJ}, 13
s_lshl_b32 s{sV1}, s{sRT}, 11
s_add_u32 s{sV0}, s{sV0}, s{sV1}
s_add_u32 s{sV1}, s{sV0}, {EX+8192}
v_add_u32 v{vLV}, s{sV1}, v{vLV}
v_add_u32 v{vLK}, s{sV1}, v{vKpos}
s_lshr_b32 s{sV0}, s{sV0}, 1
s_add_u32 s{sV0}, s{sV0}, {EX}
v_lshlrev_b32 v{xL16}, 4, v0
v_add_u32 v{vLQ}, s{sV0}, v{xL16}
s_mov_b32 s{sC}, {f2u(CSCALE):#x}
s_mov_b32 s{sVMx}, 0x0000ffff
s_mov_b32 s{sVMx+1}, 0x0000ffff""")
assert LW==0
A(f"""v_lshlrev_b32 v{xt1}, 3, v{xt1}
v_sub_u32 v{xt0}, v{xt0}, v{xt1}
s_add_u32 s{sV0}, s{sRB}, s{sRT}
s_cmp_eq_u32 s{sV0}, 0
s_cselect_b32 s{sV0}, 1016, 16
v_add_u32 v{xt1}, s{sV0}, v{xt0}
v_mov_b32 v{xt2}, {NEGBIG:#x}
s_mov_b32 s{sV1}, 0xfffffff1""")
for r in range(24):
    src,c=(xt0,16*(r//8)+r%8) if r<16 else (xt1,r-16)
    A(f"v_subrev_u32 v{Mk+r}, {c}, v{src}")
    A(f"v_and_b32 v{Mk+r}, s{sV1}, v{Mk+r}")
for r in range(0,24,2):
    A(f"v_cmp_eq_u32 vcc, 0, v{Mk+r}")
    A(f"v_cmp_eq_u32 {sr(sNx,2)}, 0, v{Mk+r+1}")
    A("s_nop 0")
    A(f"v_cndmask_b32 v{Mk+r}, v{xt2}, 0, vcc")
    A(f"v_cndmask_b32 v{Mk+r+1}, v{xt2}, 0, {sr(sNx,2)}")
if OPT['pfc']:
    A(f"s_getpc_b64 {sr(sNx,2)}")
    A.label("L_pc")
    A(f"""s_sub_u32 s{sNx}, s{sNx}, L_pc-{NAME}
    s_subb_u32 s{sNx+1}, s{sNx+1}, 0
    s_lshl_b32 s{sV0}, s{sT}, 13
    s_mov_b32 s{sV1}, L_codeend-{NAME}-4
    v_lshlrev_b32 v{xt2}, 7, v0
    v_add_u32 v{xt2}, s{sV0}, v{xt2}
    v_min_u32 v{xt2}, s{sV1}, v{xt2}""")

def g_rd(n, part, force=False):
    if OPT.get('nord') or n>=64 or (n in (32,33) and not force): return
    s,ks=divmod(n,4); slot=s%4; b=n%3
    if part==0: A.lds(f"ds_read_b128 {vr(xf[b],4)}, v{va[ks]} offset:{slot*8192}", ('x',n))
    p=(1,2,0)[part]
    o=(slot%2)*24576+p*8192+ks*2048
    A.lds(f"ds_read_b64_tr_b16 {vr(wf[b][p],2)}, v{vwa[slot//2]} offset:{o}", ('w',n,p))
    A.lds(f"ds_read_b64_tr_b16 {vr(wf[b][p]+2,2)}, v{vwa[slot//2]} offset:{o+512}", ('w',n,p))
def g_step(n):
    s,ks=divmod(n,4); b=n%3; first=(n%32==0)
    C=lambda acc: "0" if first else vr(acc,16)
    if ks==2:
        A.wait_lg_all()
        if s<15 and s!=7: A("s_barrier")
    else: A.wait_lg(('w',n,1))
    A(f"v_mfma_f32_32x32x16_bf16 {vr(accK,16)}, {vr(wf[b][1],4)}, {vr(xf[b],4)}, {C(accK)}")
    g_rd(n+2,0)
    A.wait_lg(('w',n,2))
    A(f"v_mfma_f32_32x32x16_bf16 {vr(accV,16)}, {vr(xf[b],4)}, {vr(wf[b][2],4)}, {C(accV)}")
    g_rd(n+2,1)
    A.wait_lg(('w',n,0))
    A(f"v_mfma_f32_32x32x16_bf16 {vr(accQ,16)}, {vr(wf[b][0],4)}, {vr(xf[b],4)}, {C(accQ)}")
    g_rd(n+2,2)
    if n==9 and OPT['pfc']: A(f"global_load_dword v{mt}, v{xt2}, {sr(sNx,2)}")
def pack16(dst, acc, scale=False):
    if scale:
        for i in range(16): A(f"v_mul_f32 v{acc+i}, s{sC}, v{acc+i}")
    for i in range(8): A(f"v_cvt_pk_bf16_f32 v{dst+i}, v{acc+2*i}, v{acc+2*i+1}")
A.wait_lg_all()
A("s_barrier")
for n in range(2):
    for p in range(3): g_rd(n,p)
for n in range(32): g_step(n)
A("s_nop 9")
pack16(accK,accK)
A.lds(f"ds_write_b128 v{vLK}, {vr(accK,4)}",'e')
A.lds(f"ds_write_b128 v{vLK}, {vr(accK+4,4)} offset:4096",'e')
pack16(accV,accV)
A.lds(f"ds_write_b128 v{vLV}, {vr(accV,4)} offset:1024",'e')
A.lds(f"ds_write_b128 v{vLV}, {vr(accV+4,4)} offset:1536",'e')
for i in range(16): A(f"v_mul_f32 v{accQ+i}, s{sC}, v{accQ+i}")
A.wait_lg_all()
A("s_barrier")
pack16(accQ,accQ)
A.lds(f"ds_write_b128 v{vLQ}, {vr(accQ,4)}",'e')
A.lds(f"ds_write_b128 v{vLQ}, {vr(accQ+4,4)} offset:2048",'e')
stamp(9)
A.wait_lg_all()
A("s_barrier")
for n in (32,33):
    for p in range(3): g_rd(n,p,True)
for n in range(32,64): g_step(n)
A("s_nop 9")
stamp(17)
if OPT.get('gonly'):
    stamp_out(xt0); A("s_endpgm")
if OPT.get('noaux'):
    A(f"""s_lshl_b32 s{sV1}, s{sT}, 2
    s_add_u32 s{sV1}, s{sV1}, {LF}
    v_mov_b32 v{vLQ}, s{sV1}
    v_mov_b32 v{vLK}, 1
    ds_write_b32 v{vLQ}, v{vLK} offset:16
    s_waitcnt lgkmcnt(0)""")
    stamp_out(xt0)
    A("s_endpgm")
pack16(accK,accK); pack16(accV,accV)
A(f"""s_lshl_b32 s{sV0}, s{sRT}, 13
s_lshl_b32 s{sV1}, s{sJ}, 12
s_add_u32 s{sV0}, s{sV0}, s{sV1}
s_add_u32 s{sV0}, s{sV0}, {EA}
s_add_u32 s{sV1}, s{sV0}, 8192
v_add_u32 v{vLK}, s{sV1}, v{vKpos}
v_lshl_add_u32 v{xt0}, v{vV1}, 11, v{xVo}
v_add_u32 v{vLV}, s{sV1}, v{xt0}""")
A.lds(f"ds_write_b128 v{vLK}, {vr(accK,4)}")
A.lds(f"ds_write_b128 v{vLK}, {vr(accK+4,4)} offset:2048")
A.lds(f"ds_write_b128 v{vLV}, {vr(accV,4)} offset:1024")
A.lds(f"ds_write_b128 v{vLV}, {vr(accV+4,4)} offset:1536")
A.vmem(f"buffer_load_dwordx2 {vr(xN,2)}, v{xZ}, {sr(SRD_DBG,4)}, 0 offen sc1",'non')
A(f"""s_lshl_b32 s{sHf}, s{sHQ}, 5
s_add_u32 s{sHf}, s{sHf}, s{sRB}
s_lshl_b32 s{sHf}, s{sHf}, 1
s_add_u32 s{sHf}, s{sHf}, s{sJ}
s_lshl_b32 s{sHa}, s{sHf}, 12
s_add_u32 s{sHa}, s{sHa}, {WS_HA}
s_lshl_b32 s{sHf}, s{sHf}, 7
s_add_u32 s{sHf}, s{sHf}, {WS_FHA}
s_cmp_lg_u32 s{sRT}, 1
s_cbranch_scc1 L_noha
buffer_store_dwordx4 {vr(accK,4)}, v{vKpos}, {sr(SRD_WS,4)}, s{sHa} offen sc1
buffer_store_dwordx4 {vr(accK+4,4)}, v{vKpos}, {sr(SRD_WS,4)}, s{sHa} offen offset:2048 sc1
buffer_store_dwordx4 {vr(accV+4,4)}, v{xt0}, {sr(SRD_WS,4)}, s{sHa} offen offset:1536 sc1""")
A.label("L_noha")
pack16(pQ,accQ,True)
A(f"""s_lshl_b32 s{sV1}, s{sT}, 2
s_add_u32 s{sV1}, s{sV1}, {LF}
v_mov_b32 v{vLQ}, s{sV1}
v_mov_b32 v{vLK}, 1
v_mov_b32 v{xt2}, {LF}""")
A.wait_lg_all()
A(f"ds_write_b32 v{vLQ}, v{vLK}")
Sc=accK; Sp=accV; Kc=xf[0]; Kp=xf[1]; Vc=accQ; Vp=accQ+8; FL=wf[0][0]
vAK=va[0]; vAV=va[1]; vOf=va[2]; mx=va[3]
A(f"""v_add_u32 v{vAK}, s{sV0}, v{xL16}
v_add_u32 v{vAV}, s{sV0}, v{xVo}
v_and_b32 v{xt0}, 27, v0
v_cmp_eq_u32 vcc, 16, v{xt0}
v_mov_b32 v{xt1}, 0x3f803f80
v_lshl_add_u32 v{vOf}, v{vV1}, 14, v{xVo}
v_cndmask_b32 v{xt1}, 0, v{xt1}, vcc
v_mov_b32 v{xIdx}, 0xdddddddd""")
for i in range(12): A(f"v_mov_b32 v{Vc+i}, v{xt1}")
A(f"""s_lshl_b32 s{sV2}, s{sRB}, 1
s_add_u32 s{sV2}, s{sV2}, s{sRT}
s_lshl_b32 s{sV3}, s{sV2}, 5
s_lshl_b32 s{sB0}, s{sHQ}, 1
s_add_u32 s{sB0}, s{sB0}, s{sJ}
s_add_u32 s{sV3}, s{sV3}, s{sB0}
s_lshl_b32 s{sV3}, s{sV3}, 10
s_add_u32 s{sV3}, s{sV3}, {WS_OFA}""")
lds_flags_spin(FL,xt2,sCx,sV1)
A.wait_vm_all()
nonce_check(xN,xZ,sNx,sCx,sV1)
A(f"""s_cmp_lg_u32 s{sRT}, 1
s_cbranch_scc1 L_noha2""")
flag_store(xN,xZ,sHf)
A("s_branch L_hdone")
A.label("L_noha2")
HB=wf[1][0]
for i in range(16): A(f"v_mov_b32 v{HB+i}, 0")
A(f"""s_cmp_eq_u32 s{sRB}, 0
s_cbranch_scc1 L_hwr
s_sub_u32 s{sHf}, s{sHf}, 256
s_sub_u32 s{sHa}, s{sHa}, 8192""")
poll_issue(FL,xZ,sHf)
poll_check(FL,xZ,sHf,sCx,sNx)
for i in range(4): A.vmem(f"buffer_load_dwordx4 {vr(HB+4*i,4)}, v{xL16}, {sr(SRD_WS,4)}, s{sHa} offen offset:{i*1024} sc1")
A.wait_vm_all()
A.label("L_hwr")
for i in range(4): A.lds(f"ds_write_b128 v{vAK}, {vr(HB+4*i,4)} offset:{i*1024}")
A.wait_lg_all()
A.label("L_hdone")
stamp(18)
for e in range(2):
    A.lds(f"ds_read_b128 {vr(Kc,4)}, v{vAK} offset:{8192+e*2048}",'kc')
    A.lds(f"ds_read_b128 {vr(Kp,4)}, v{vAK} offset:{e*2048}",'kp')
    A(f"s_mov_b64 exec, {sr(sVMx,2)}")
    A.lds(f"ds_read_b128 {vr(Vc,4)}, v{vAV} offset:{8192+e*2048+1024}",'v')
    A.lds(f"ds_read_b128 {vr(Vc+4,4)}, v{vAV} offset:{8192+e*2048+1536}",'v')
    A.lds(f"ds_read_b128 {vr(Vp,4)}, v{vAV} offset:{e*2048+1536}",'v')
    A("s_mov_b64 exec, -1")
    A.wait_lg('kc')
    A(f"v_mfma_f32_32x32x16_bf16 {vr(Sc,16)}, {vr(Kc,4)}, {vr(pQ+4*e,4)}, {vr(Mk,16)}")
    A.wait_lg('kp')
    A(f"v_mfma_f32_32x32x16_bf16 {vr(Sp,16)}, {vr(Kp,4)}, {vr(pQ+4*e,4)}, {vr(Mk+8,16)}")
    for i in range(9): A(f"v_mov_b32 v{Oc+i}, 0")
    A("s_nop 1")
    A(f"v_max_f32 v{mx}, v{Sc}, v{Sc+1}")
    for i in range(1,8): A(f"v_max3_f32 v{mx}, v{mx}, v{Sc+2*i}, v{Sc+2*i+1}")
    for i in range(4,8): A(f"v_max3_f32 v{mx}, v{mx}, v{Sp+2*i}, v{Sp+2*i+1}")
    A(f"""v_mov_b32 v{mt}, v{mx}
    s_nop 1
    v_permlane32_swap_b32 v{mx}, v{mt}
    s_nop 1
    v_max_f32 v{mx}, v{mx}, v{mt}""")
    regs=[Sp+8+i for i in range(8)]+[Sc+i for i in range(16)]
    for r in regs: A(f"v_sub_f32 v{r}, v{r}, v{mx}")
    A.wait_lg('v')
    if e==1: A(f"ds_write_b32 v{vLQ}, v{vLK} offset:16")
    for j,r in enumerate(regs):
        A(f"v_exp_f32 v{r}, v{r}")
        if j==9: A(f"v_smfmac_f32_32x32x32_bf16 {vr(Oc,16)}, {vr(Vp,4)}, {vr(Sp+8,8)}, v{xIdx}")
        if j==17: A(f"v_smfmac_f32_32x32x32_bf16 {vr(Oc,16)}, {vr(Vc,4)}, {vr(Sc,8)}, v{xIdx}")
    A("s_nop 1")
    A(f"v_smfmac_f32_32x32x32_bf16 {vr(Oc,16)}, {vr(Vc+4,4)}, {vr(Sc+8,8)}, v{xIdx}")
    A("s_nop 11")
    A(f"v_rcp_f32 v{mt}, v{Oc+8}\ns_nop 0")
    for i in range(8): A(f"v_mul_f32 v{Oc+i}, v{Oc+i}, v{mt}")
    dst=wf[2][1+e]
    for i in range(4): A(f"v_cvt_pk_bf16_f32 v{dst+i}, v{Oc+2*i}, v{Oc+2*i+1}")
    A.vmem(f"buffer_store_dwordx4 {vr(dst,4)}, v{vOf}, {sr(SRD_WS,4)}, s{sV3} offen offset:{e*512} sc1",'oa')
stamp(19)
A(f"""s_lshl_b32 s{sV1}, s{sV2}, 7
s_lshl_b32 s{sB0}, s{sB0}, 3
s_add_u32 s{sV1}, s{sV1}, s{sB0}
s_add_u32 s{sV1}, s{sV1}, {WS_FOA}
s_lshl_b32 s{sV0}, s{sRB}, 1
s_add_u32 s{sV0}, s{sV0}, s{sJ}
s_lshl_b32 s{sV0}, s{sV0}, 7
s_add_u32 s{sV0}, s{sV0}, {WS_FOA}""")
A.wait_vm_all()
flag_store(xN,xZ,sV1)
srd(SRD_M,14,524288); srd(SRD_XA,8,524288); srd(SRD_OUT,16,4194304)
A(f"""v_lshrrev_b32 v{xt0}, 3, v0
v_and_b32 v{xt1}, 6, v{xt0}
v_xor_b32 v{xt1}, v{xt1}, v0
v_and_b32 v{xt1}, 7, v{xt1}
v_lshlrev_b32 v{xt0}, 10, v{xt0}
v_lshl_add_u32 v{xt0}, v{xt1}, 4, v{xt0}
s_lshl_b32 s{sB0}, s{sT}, 17
s_lshl_b32 s{sB1}, s{sHQ}, 7
s_add_u32 s{sB1}, s{sB1}, s{sB0}
s_lshl_b32 s{sB2}, s{sT}, 14""")
for j in range(16):
    A(f"s_add_u32 m0, s{sB2}, {WOB+j*1024}")
    if j: A(f"s_add_u32 s{sB1}, s{sB1}, 8192")
    else: A("s_nop 0")
    A.vmem(f"buffer_load_dwordx4 v{xt0}, {sr(SRD_M,4)}, s{sB1} offen lds")
    A(f"s_add_u32 m0, s{sB2}, {WOA+j*1024}\ns_nop 0")
    A.vmem(f"buffer_load_dwordx4 v{xt0}, {sr(SRD_XA,4)}, s{sB1} offen lds")
    if OPT.get('pace',1): A("s_waitcnt vmcnt(1)"); A.vm=A.vm[-1:]
VY=Alloc(xBig,168)
yFl=VY.take(); yP=VY.take(2,2); yWA=[VY.take() for _ in range(4)]; yOo=VY.take()
yO=[VY.take(4,4) for _ in range(16)]
yW=[[VY.take(4,4) for _ in range(4)] for _ in range(3)]
yA=[VY.take(4,4) for _ in range(4)]
A(f"""v_and_b32 v{yFl}, 15, v0
v_lshlrev_b32 v{yOo}, 11, v{yFl}
v_lshlrev_b32 v{yFl}, 3, v{yFl}
v_lshrrev_b32 v{xt0}, 4, v0
v_lshl_add_u32 v{yOo}, v{xt0}, 3, v{yOo}""")
poll_issue(yP,yFl,sV0)
poll_check(yP,yFl,sV0,sCx,sNx)
stamp(20)
A(f"""s_lshl_b32 s{sV2}, s{sRB}, 2
s_add_u32 s{sV2}, s{sV2}, s{sT}
s_lshl_b32 s{sB0}, s{sV2}, 14
s_add_u32 s{sB0}, s{sB0}, {WS_OFA}""")
for i in range(16):
    if i and i%4==0: A(f"s_add_u32 s{sB0}, s{sB0}, 4096")
    A.vmem(f"buffer_load_dwordx4 {vr(yO[i],4)}, v{xL16}, {sr(SRD_WS,4)}, s{sB0} offen offset:{(i%4)*1024} sc1")
    if OPT.get('pace',1) and i%2==1: A("s_waitcnt vmcnt(1)"); A.vm=A.vm[-1:]
wo_tr_addr(yWA[0],xt0,xt1)
A(f"""v_add_u32 v{yWA[0]}, {WOA}, v{yWA[0]}
v_xor_b32 v{yWA[1]}, 32, v{yWA[0]}
v_xor_b32 v{yWA[2]}, 64, v{yWA[0]}
v_xor_b32 v{yWA[3]}, 96, v{yWA[0]}
s_lshl_b32 s{sB0}, s{sV2}, 15
s_lshl_b32 s{sB1}, s{sHQ}, 7
s_add_u32 s{sB0}, s{sB0}, s{sB1}""")
A.wait_vm_all()
stamp(21)
A("s_setprio 0")
A("s_barrier")
def woa_read(hp_,c):
    if hp_>=16: return
    b=hp_%3
    A.lds(f"ds_read_b64_tr_b16 {vr(yW[b][c],2)}, v{yWA[c]} offset:{hp_*4096}",('wa',hp_,c))
    A.lds(f"ds_read_b64_tr_b16 {vr(yW[b][c]+2,2)}, v{yWA[c]} offset:{hp_*4096+1024}",('wa',hp_,c))
for c in range(4): woa_read(0,c)
for c in range(2): woa_read(1,c)
for i in range(16):
    for c in range(4):
        A.wait_lg(('wa',i,c))
        A(f"v_mfma_f32_16x16x32_bf16 {vr(yA[c],4)}, {vr(yW[i%3][c],4)}, {vr(yO[i],4)}, {'0' if i==0 else vr(yA[c],4)}")
        woa_read(i+1+(c+2)//4,(c+2)%4)
A("s_nop 7")
for c in range(4):
    acc=yA[c]
    A(f"v_cvt_pk_bf16_f32 v{acc}, v{acc}, v{acc+1}\nv_cvt_pk_bf16_f32 v{acc+1}, v{acc+2}, v{acc+3}")
    A.vmem(f"buffer_store_dwordx2 {vr(acc,2)}, v{yOo}, {sr(SRD_OUT,4)}, s{sB0} offen offset:{c*32}")
stamp(22)
stamp_out(yFl)
A.label("L_end")
A("s_endpgm")
A.label("L_codeend")

errs=check(A.lines)
for e in errs[:25]: print("CHECK:",e, file=sys.stderr)
hdr=open('concat_heads__sliding_local_dilated__softmax_full_mha__prompt.s.ref').read().split('; Override')[0]
nv=168
out=hdr+f"""; @launch grid=(256,1,1) block=(768,1,1) lds={LDS_BYTES}
.amdgcn_target "amdgcn-amd-amdhsa--gfx950"
.text
.globl {NAME}
.p2align 8
.type {NAME},@function
"""+A.text()+f""".section .rodata,"a"
.p2align 6
.amdhsa_kernel {NAME}
  .amdhsa_next_free_vgpr {nv}
  .amdhsa_next_free_sgpr 102
  .amdhsa_accum_offset {nv}
  .amdhsa_group_segment_fixed_size 0
  .amdhsa_kernarg_size 72
  .amdhsa_user_sgpr_count 2
  .amdhsa_user_sgpr_kernarg_segment_ptr 1
  .amdhsa_system_sgpr_workgroup_id_x 1
.end_amdhsa_kernel
"""
open(sys.argv[1],'w').write(out)
print("vgpr att",VA.hi,VB.hi,"aux",VX.hi,VY.hi,"lines",len(A.lines),"errs",len(errs))
```

```python
import sys, math, struct
from asmlib import *
NAME="concat_heads__sliding_local_dilated__softmax_full_mha__prompt_kernel"
OPT=dict(pm=0, slow=16, pace=2, spf=0, stamp=0, prio=1, p1=28, p2=56, flagstage=11, pfc=1)
for a in sys.argv[2:]:
    k,v=a.split('='); OPT[k]=int(v) if v.lstrip('-').isdigit() else v

LW=0; LX=98304; EX=131072; LF=155648
EA=EX; WOB=0; WOA=65536; RED=EX
LDS_BYTES=163840
WS_KV=0; WS_OFB=4<<20; WS_OFA=6<<20
WS_FKV=8<<20; WS_FOB=(8<<20)+65536; WS_FOA=(8<<20)+131072; WS_EPOCH=(8<<20)+196608; WS_FHA=(8<<20)+262144; WS_HA=9<<20
WS_STAMP=30<<20
WS_BYTES=32<<20
CSCALE=0.25*math.log2(math.e)
def f2u(x): return struct.unpack('<I',struct.pack('<f',x))[0]
NEGBIG=f2u(-1e30)
SPIN=30000

A=Asm()
sW=22; sHQ=23; sRB=24; sSG=25; sT0=26; sT1=27
SRD_XB=28; SRD_WB=32; SRD_XA=36; SRD_WA=40; SRD_WS=44; SRD_DBG=48; SRD_M=52; SRD_OUT=56
sA0=60

def srd(base, ptr, nbytes):
    A(f"""s_mov_b32 s{base}, s{ptr}
    s_mov_b32 s{base+1}, s{ptr+1}
    s_mov_b32 s{base+2}, {nbytes}
    s_mov_b32 s{base+3}, 0x00020000""")
vSt=1
def stamp(idx, lvl=1):
    if OPT['stamp']<lvl: return
    A(f"""s_memrealtime s[96:97]
    s_memtime s[98:99]
    s_waitcnt lgkmcnt(0)
    v_writelane_b32 v{vSt}, s96, {idx}
    v_writelane_b32 v{vSt}, s98, {idx+32}""")
    A.lg=[]
def stamp_out(vtmp):
    if not OPT['stamp']: return
    A(f"""s_mul_i32 s96, s2, 12
    s_add_u32 s96, s96, s{sW}
    s_lshl_b32 s96, s96, 8
    s_add_u32 s96, s96, {WS_STAMP}
    v_lshlrev_b32 v{vtmp}, 2, v0
    buffer_store_dword v{vSt}, v{vtmp}, {sr(SRD_WS,4)}, s96 offen""")
def poll_issue(vdst, voff, soff):
    A.vmem(f"buffer_load_dwordx2 {vr(vdst,2)}, v{voff}, {sr(SRD_WS,4)}, s{soff} offen sc1",'poll')
def poll_check(vdst, voff, soff, scnt, snon):
    L=A.newlabel('L_poll'); Ld=A.newlabel('L_polld')
    A(f"s_mov_b32 s{scnt}, 0")
    A.label(L)
    A.wait_vm_all()
    A(f"""v_cmp_eq_u64 vcc, {sr(snon,2)}, {vr(vdst,2)}
    s_add_u32 s{scnt}, s{scnt}, 1
    s_cmp_eq_u64 vcc, -1
    s_cbranch_scc1 {Ld}
    s_cmp_gt_u32 s{scnt}, {SPIN}
    s_cbranch_scc1 {Ld}
    buffer_load_dwordx2 {vr(vdst,2)}, v{voff}, {sr(SRD_WS,4)}, s{soff} offen sc1
    s_branch {L}""")
    A.label(Ld)
def nonce_check(vN, vZ, snon, scnt, stmp):
    L=A.newlabel('L_non'); Ld=A.newlabel('L_nond')
    A(f"s_mov_b32 s{scnt}, 0")
    A.label(L)
    A(f"""v_readfirstlane_b32 s{snon}, v{vN}
    v_readfirstlane_b32 s{snon+1}, v{vN+1}
    s_add_u32 s{scnt}, s{scnt}, 1
    s_cmp_gt_u32 s{scnt}, {SPIN}
    s_cbranch_scc1 {Ld}
    s_cmp_eq_u32 s{snon}, 0
    s_cselect_b32 s{stmp}, 0, s{snon+1}
    s_cmp_lg_u32 s{stmp}, 0
    s_cbranch_scc1 {Ld}
    buffer_load_dwordx2 {vr(vN,2)}, v{vZ}, {sr(SRD_DBG,4)}, 0 offen sc1
    s_waitcnt vmcnt(0)
    s_branch {L}""")
    A.label(Ld)
def flag_store(vN, vZ, soff):
    A("s_mov_b64 exec, 1")
    A.vmem(f"buffer_store_dwordx2 {vr(vN,2)}, v{vZ}, {sr(SRD_WS,4)}, s{soff} offen sc1",'flag')
    A("s_mov_b64 exec, -1")
def lds_flags_spin(vF, vAddr, scnt, stmp, issued=False):
    L=A.newlabel('L_xs'); Ld=A.newlabel('L_xsd'); Lc=A.newlabel('L_xsc')
    A(f"s_mov_b32 s{scnt}, 0")
    if issued: A(f"s_branch {Lc}")
    A.label(L)
    A(f"ds_read_b128 {vr(vF,4)}, v{vAddr}")
    A.label(Lc)
    A(f"""s_add_u32 s{scnt}, s{scnt}, 1
    s_waitcnt lgkmcnt(0)
    v_and_b32 v{vF}, v{vF}, v{vF+1}
    v_and_b32 v{vF+2}, v{vF+2}, v{vF+3}
    v_and_b32 v{vF}, v{vF}, v{vF+2}
    s_cmp_gt_u32 s{scnt}, {SPIN*4}
    v_readfirstlane_b32 s{stmp}, v{vF}
    s_cbranch_scc1 {Ld}
    s_cmp_eq_u32 s{stmp}, 0
    s_cbranch_scc1 {L}""")
    A.label(Ld)
    A.lg=[]
def wo_tr_addr(dst, t0, t1):
    A(f"""v_lshrrev_b32 v{t0}, 2, v0
    v_and_b32 v{t0}, 7, v{t0}
    v_lshrrev_b32 v{t1}, 5, v0
    v_lshl_add_u32 v{t1}, v{t1}, 4, v{t0}
    v_lshlrev_b32 v{t1}, 7, v{t1}
    v_and_b32 v{t0}, 6, v{t0}
    v_bfe_u32 v{dst}, v0, 1, 1
    v_xor_b32 v{t0}, v{t0}, v{dst}
    v_lshl_add_u32 v{t1}, v{t0}, 4, v{t1}
    v_and_b32 v{t0}, 1, v0
    v_lshl_add_u32 v{dst}, v{t0}, 3, v{t1}""")

ROT={1:"",0:f"s_mov_b32 s{sSG}, 0",2:f"s_add_u32 s{sSG}, s{sHQ}, s{sRB}\ns_and_b32 s{sSG}, s{sSG}, 1\ns_lshl_b32 s{sSG}, s{sSG}, 2",
     3:f"s_add_u32 s{sSG}, s{sHQ}, s{sRB}\ns_and_b32 s{sSG}, s{sSG}, 1", 4:f"s_and_b32 s{sSG}, s2, 7", 5:f"s_add_u32 s{sSG}, s{sHQ}, s{sRB}\ns_and_b32 s{sSG}, s{sSG}, 3"}[OPT.get('rot',0)]
A.label(NAME)
if OPT.get('dbgst'): A("s_memrealtime s[100:101]")
A(f"""s_cmp_ge_u32 s2, 256
s_cbranch_scc1 L_end
s_load_dwordx16 s[4:19], s[0:1], 0
s_load_dwordx2 s[20:21], s[0:1], 64
v_lshrrev_b32 v1, 6, v0
v_and_b32 v0, 63, v0
s_lshr_b32 s{sT1}, s2, 3
v_readfirstlane_b32 s{sW}, v1
s_and_b32 s{sHQ}, s2, 1
s_lshl_b32 s{sHQ}, s{sHQ}, 2
s_and_b32 s{sT0}, s{sT1}, 3
s_add_u32 s{sHQ}, s{sHQ}, s{sT0}
s_and_b32 s{sRB}, s2, 6
s_lshl_b32 s{sRB}, s{sRB}, 2
s_lshr_b32 s{sT0}, s{sT1}, 2
s_add_u32 s{sRB}, s{sRB}, s{sT0}
s_lshl_b32 s{sSG}, s{sHQ}, 1
s_add_u32 s{sSG}, s{sSG}, s{sRB}
{ROT}
s_cmp_ge_u32 s{sW}, 8
s_cbranch_scc1 L_aux""")

VA=Alloc(2,168)
vx=VA.take(); vw=VA.take(); vt0=VA.take(); vt1=VA.take(); vt2=VA.take(); vt3=VA.take()
vL16=VA.take(); vVo=VA.take(); vIdx=VA.take(); vFl=VA.take(); vP=VA.take(2,2); vN=VA.take(2,2); vZ=VA.take()
vEQ0=VA.take(); vEK=VA.take(); vEV=VA.take()
ND=6
vBig=VA.mark()
Qf=[VA.take(4,4) for _ in range(2)]
Sb=[VA.take(16,4) for _ in range(2)]
Oa=[VA.take(16,4) for _ in range(2)]
Kf=[VA.take(4,4) for _ in range(ND)]
Vf=[VA.take(8,4) for _ in range(ND)]
sXoff=sA0; sM0=sA0+1; sWoff=sA0+2; sWoffK=sA0+33; sWoffV=sA0+34; sOwnV=sA0+35; sHK=sA0+36; sHV=sA0+37; sFOr=sA0+3; sOld=sA0+4; sOut=sA0+5; sOst=sA0+6; sFOw=sA0+7
sU0=sA0+8; sU1=sA0+9; sU2=sA0+10
sE=sA0+11; sKH=sA0+12; sKVb=sA0+14; sOff=sA0+15; sNon=sA0+16; sVM=sA0+18; sCnt=sA0+20; sBlk=sA0+21
sFKVr=sA0+22; sFKVw=sA0+23; sOwn=sA0+24; sLo=sA0+25; sHi=sA0+26; sX0=sA0+28
A(f"""v_lshrrev_b32 v{vt0}, 3, v0
v_mul_u32_u24 v{vw}, 3072, v{vt0}
v_lshlrev_b32 v{vt0}, 10, v{vt0}
v_lshrrev_b32 v{vt1}, 2, v0
v_and_b32 v{vt1}, 4, v{vt1}
v_xor_b32 v{vt1}, v{vt1}, v0
v_and_b32 v{vt1}, 7, v{vt1}
v_lshl_add_u32 v{vw}, v{vt1}, 4, v{vw}
v_lshrrev_b32 v{vt1}, 4, v0
v_xor_b32 v{vt1}, v{vt1}, v0
v_and_b32 v{vt1}, 7, v{vt1}
v_lshl_add_u32 v{vx}, v{vt1}, 4, v{vt0}
s_and_b32 s{sU0}, s{sW}, 1
s_lshl_b32 s{sU0}, s{sU0}, 6
v_xor_b32 v{vx}, s{sU0}, v{vx}
s_lshl_b32 s{sXoff}, s{sRB}, 16
s_lshl_b32 s{sU0}, s{sW}, 13
s_add_u32 s{sXoff}, s{sXoff}, s{sU0}
s_lshl_b32 s{sM0}, s{sW}, 10
s_mul_i32 s{sWoff}, s{sW}, 24576
s_and_b32 s{sU1}, s{sHQ}, 4
s_add_u32 s{sHK}, s{sHQ}, {OPT.get('rk',1)}
s_and_b32 s{sHK}, s{sHK}, 3
s_or_b32 s{sHK}, s{sHK}, s{sU1}
s_add_u32 s{sHV}, s{sHQ}, {OPT.get('rv',2)}
s_and_b32 s{sHV}, s{sHV}, 3
s_or_b32 s{sHV}, s{sHV}, s{sU1}
s_lshl_b32 s{sU0}, s{sHK}, 7
s_add_u32 s{sWoffK}, s{sWoff}, s{sU0}
s_lshl_b32 s{sU0}, s{sHV}, 7
s_add_u32 s{sWoffV}, s{sWoff}, s{sU0}
s_lshl_b32 s{sU0}, s{sHQ}, 7
s_add_u32 s{sWoff}, s{sWoff}, s{sU0}
s_mov_b32 s{SRD_XB+2}, 2097152
s_mov_b32 s{SRD_XB+3}, 0x00020000
s_mov_b32 s{SRD_WB+2}, 1572864
s_mov_b32 s{SRD_WB+3}, 0x00020000
s_waitcnt lgkmcnt(0)
s_mov_b32 s{SRD_XB}, s10
s_mov_b32 s{SRD_XB+1}, s11
s_mov_b32 s{SRD_WB}, s12
s_mov_b32 s{SRD_WB+1}, s13""")

def issue_stage(s):
    if OPT.get('nodma') and s>=2: return
    slot=s%4
    X,W=(SRD_XB,SRD_WB) if s<8 else (SRD_XA,SRD_WA)
    A(f"""s_add_u32 s{sU0}, s{sSG}, {s}
    s_and_b32 s{sU0}, s{sU0}, 7
    s_mul_i32 s{sU1}, s{sU0}, 196608
    s_lshl_b32 s{sU0}, s{sU0}, 7
    s_add_u32 m0, s{sM0}, {LX+slot*8192}
    s_add_u32 s{sU0}, s{sU0}, s{sXoff}""")
    A.vmem(f"buffer_load_dwordx4 v{vx}, {sr(X,4)}, s{sU0} offen lds", s)
    for p in (1,2,0):
        A(f"s_add_u32 m0, s{sM0}, {LW+slot*24576+p*7168}")
        A(f"s_add_u32 s{sU2}, s{sU1}, s{(sWoff,sWoffK,sWoffV)[p] if s<8 else sWoff}")
        A.vmem(f"buffer_load_dwordx4 v{vw}, {sr(W,4)}, s{sU2} offen offset:{p*1024} lds", s)

class Cap:
    def __enter__(self): self.n=len(A.lines); return self
    def __exit__(self,*a): self.l=A.lines[self.n:]; del A.lines[self.n:]
sF0=sA0+30; sF1=sA0+31; sF2=sA0+32
def att_setup1():
    srd(SRD_XA,4,2097152); srd(SRD_WA,6,1572864); srd(SRD_DBG,18,256)
    A(f"""s_lshr_b32 s{sE}, s{sW}, 1
    s_and_b32 s{sKH}, s{sW}, 1
    s_lshl_b32 s{sF1}, s{sHQ}, 2
    s_add_u32 s{sF1}, s{sF1}, s{sE}
    s_lshl_b32 s{sKVb}, s{sF1}, 17
    s_lshl_b32 s{sF0}, s{sKH}, 11
    s_add_u32 s{sKVb}, s{sKVb}, s{sF0}
    s_lshl_b32 s{sF1}, s{sHQ}, 3
    s_add_u32 s{sF1}, s{sF1}, s{sW}
    s_lshl_b32 s{sF1}, s{sF1}, 8
    s_lshl_b32 s{sF2}, s{sRB}, 3
    s_add_u32 s{sF1}, s{sF1}, s{sF2}
    s_add_u32 s{sFKVw}, s{sF1}, {WS_FKV}
    s_lshl_b32 s{sF1}, s{sE}, 17
    s_add_u32 s{sF0}, s{sF0}, s{sF1}
    s_lshl_b32 s{sF2}, s{sRB}, 12
    s_add_u32 s{sF0}, s{sF0}, s{sF2}
    s_lshl_b32 s{sF1}, s{sHK}, 19
    s_add_u32 s{sOwn}, s{sF0}, s{sF1}
    s_lshl_b32 s{sF1}, s{sHV}, 19
    s_add_u32 s{sOwnV}, s{sF0}, s{sF1}
    s_mov_b32 s{sVM}, 0x0000ffff
    s_mov_b32 s{sVM+1}, 0x0000ffff
    v_lshlrev_b32 v{vL16}, 4, v0
    v_and_b32 v{vt0}, 15, v0
    v_lshlrev_b32 v{vt0}, 4, v{vt0}
    v_lshrrev_b32 v{vt1}, 5, v0
    v_lshl_add_u32 v{vVo}, v{vt1}, 8, v{vt0}
    v_mov_b32 v{vIdx}, 0xdddddddd
    v_mov_b32 v{vZ}, 0
    s_add_u32 s{sF1}, s{sM0}, {EX}
    v_add_u32 v{vEQ0}, s{sF1}, v{vL16}
    s_lshl_b32 s{sF1}, s{sW}, 11
    s_add_u32 s{sF1}, s{sF1}, {EX+8192}
    v_add_u32 v{vEK}, s{sF1}, v{vL16}""")
def att_setup2():
    A(f"""s_and_b32 s{sF2}, s{sHQ}, 4
    s_sub_u32 s{sF0}, s{sHQ}, {OPT.get('rk',1)}
    s_and_b32 s{sF0}, s{sF0}, 3
    s_or_b32 s{sF0}, s{sF0}, s{sF2}
    s_lshl_b32 s{sF0}, s{sF0}, 11
    s_sub_u32 s{sF1}, s{sHQ}, {OPT.get('rv',2)}
    s_and_b32 s{sF1}, s{sF1}, 3
    s_or_b32 s{sF1}, s{sF1}, s{sF2}
    s_lshl_b32 s{sF1}, s{sF1}, 11
    v_mov_b32 v{vt0}, s{sF0}
    v_mov_b32 v{vt1}, s{sF1}
    v_cmp_gt_u32 vcc, 32, v0
    v_and_b32 v{vFl}, 31, v0
    s_lshl_b32 s{sFKVr}, s{sW}, 8
    v_cndmask_b32 v{vt0}, v{vt1}, v{vt0}, vcc
    v_lshl_add_u32 v{vFl}, v{vFl}, 3, v{vt0}
    s_add_u32 s{sFKVr}, s{sFKVr}, {WS_FKV}""")
    A(f"""v_and_b32 v{vt0}, 27, v0
    v_cmp_eq_u32 vcc, 16, v{vt0}
    v_mov_b32 v{vt1}, 0x3f803f80
    s_nop 0
    v_cndmask_b32 v{vt1}, 0, v{vt1}, vcc""")
    for d in range(ND):
        for i in range(8): A(f"v_mov_b32 v{Vf[d]+i}, v{vt1}")
def att_setup3():
    for d in range(2):
        for i in range(16): A(f"v_mov_b32 v{Oa[d]+i}, 0")
    A(f"""s_lshl_b32 s{sF0}, s{sRB}, 1
    s_add_u32 s{sF0}, s{sF0}, s{sKH}
    s_lshl_b32 s{sOst}, s{sF0}, 5
    s_lshl_b32 s{sF1}, s{sHQ}, 1
    s_add_u32 s{sOst}, s{sOst}, s{sF1}
    s_lshr_b32 s{sF1}, s{sE}, 1
    s_add_u32 s{sOst}, s{sOst}, s{sF1}
    s_lshl_b32 s{sOst}, s{sOst}, 10
    s_add_u32 s{sOst}, s{sOst}, {WS_OFB}
    s_lshl_b32 s{sFOw}, s{sF0}, 3
    s_add_u32 s{sFOw}, s{sFOw}, s{sHQ}
    s_lshl_b32 s{sFOw}, s{sFOw}, 2
    s_add_u32 s{sFOw}, s{sFOw}, s{sE}
    s_lshl_b32 s{sFOw}, s{sFOw}, 3
    s_add_u32 s{sFOw}, s{sFOw}, {WS_FOB}
    s_and_b32 s{sF0}, s{sW}, 3
    s_lshl_b32 s{sF1}, s{sRB}, 2
    s_add_u32 s{sF1}, s{sF1}, s{sF0}
    s_lshr_b32 s{sF2}, s{sW}, 2
    s_lshl_b32 s{sOld}, s{sF1}, 1
    s_add_u32 s{sOld}, s{sOld}, s{sF2}
    s_lshl_b32 s{sOld}, s{sOld}, 13
    s_add_u32 s{sOld}, s{sOld}, {WS_OFB}
    s_andn2_b32 s{sFOr}, s{sF1}, 1
    s_add_u32 s{sFOr}, s{sFOr}, s{sF2}
    s_lshl_b32 s{sFOr}, s{sFOr}, 7
    s_add_u32 s{sFOr}, s{sFOr}, {WS_FOB}
    s_lshl_b32 s{sOut}, s{sF1}, 15
    s_lshl_b32 s{sF0}, s{sHQ}, 7
    s_add_u32 s{sOut}, s{sOut}, s{sF0}
    s_lshl_b32 s{sF0}, s{sF2}, 6
    s_add_u32 s{sOut}, s{sOut}, s{sF0}
    s_add_u32 s{sOut}, s{sOut}, 1024
    s_mov_b32 s{sLo}, {f2u(2.0**-64):#x}
    s_mov_b32 s{sHi}, {f2u(2.0**64):#x}""")
    srd(SRD_OUT,16,4194304)
with Cap() as c1: att_setup1()
with Cap() as c2: att_setup2()
with Cap() as c3: att_setup3()
FILL1=c1.l
FILL2=c2.l+c3.l
def fill(q,n):
    k=min(n,len(q))
    while k<len(q) and any(x.startswith('v_cmp') for x in q[max(0,k-3):k]): k+=1
    for l in q[:k]: A(l)
    del q[:k]
def att_read_ex():
    A.lds(f"ds_read_b128 {vr(Sb[0],4)}, v{vEK}",'k0')
    A.lds(f"ds_read_b128 {vr(Sb[0]+4,4)}, v{vEK} offset:1024",'v0')
    A.wait_lg('k0')
    A.vmem(f"buffer_store_dwordx4 {vr(Sb[0],4)}, v{vL16}, {sr(SRD_WS,4)}, s{sOwn} offen sc1",'kvst')
    A.wait_lg('v0')
    A.vmem(f"buffer_store_dwordx4 {vr(Sb[0]+4,4)}, v{vL16}, {sr(SRD_WS,4)}, s{sOwnV} offen offset:1024 sc1",'kvst')
def kv_load(i):
    if OPT.get('nokv'): return
    d=i%ND
    A(f"""s_add_u32 s{sBlk}, s{sRB}, {i if not OPT.get('kvsame') else i%2}
    s_and_b32 s{sBlk}, s{sBlk}, 31
    s_lshl_b32 s{sBlk}, s{sBlk}, 12
    s_add_u32 s{sOff}, s{sBlk}, s{sKVb}""")
    A.vmem(f"buffer_load_dwordx4 {vr(Kf[d],4)}, v{vL16}, {sr(SRD_WS,4)}, s{sOff} offen sc1",('kv',i))
    if OPT.get('konly'): return
    A(f"s_mov_b64 exec, {sr(sVM,2)}")
    A.vmem(f"buffer_load_dwordx4 {vr(Vf[d],4)}, v{vVo}, {sr(SRD_WS,4)}, s{sOff} offen offset:1024 sc1",('kv',i))
    A.vmem(f"buffer_load_dwordx4 {vr(Vf[d]+4,4)}, v{vVo}, {sr(SRD_WS,4)}, s{sOff} offen offset:1536 sc1",('kv',i))
    A("s_mov_b64 exec, -1")
def QK(u): A(f"v_mfma_f32_32x32x16_bf16 {vr(Sb[u%2],16)}, {vr(Kf[(u//2)%ND],4)}, {vr(Qf[u%2],4)}, 0")
def PV(u,t): A(f"v_smfmac_f32_32x32x32_bf16 {vr(Oa[u%2],16)}, {vr(Vf[(u//2)%ND]+4*t,4)}, {vr(Sb[u%2]+8*t,8)}, v{vIdx}")
NU=64
if OPT.get('pm',1)==0: PRIO0=2; PRIO={28:1,56:0}
else: PRIO0=3; PRIO={OPT.get('q1',20):2,OPT.get('q2',40):1,OPT.get('q3',58):0}
def unit(u, noqk=False):
    S=Sb[u%2]
    E=lambda r: A(f"v_exp_f32 v{S+r}, v{S+r}")
    E(0);E(1)
    if u>0: PV(u-1,1)
    E(2);E(3);E(4)
    if u<ND-2: kv_load(u+2)
    if u>=2 and u%2==0 and (u//2-1+ND)<32: kv_load(u//2-1+ND)
    if u in PRIO: A(f"s_setprio {PRIO[u]}")
    if u==NU-3:
        A(f"v_mov_b32 v{vt0}, {LF+16}")
        A.lds(f"ds_read_b128 {vr(Kf[0],4)}, v{vt0}")
    if u+1<NU and not noqk:
        if (u+1)%2==0: A.wait_vm(('kv',(u+1)//2))
        QK(u+1)
    for r in range(5,10): E(r)
    PV(u,0)
    for r in range(10,16): E(r)
    if u in (3,5,9,17,33): stamp(18+(3,5,9,17,33).index(u), 1 if u in (5,33) else 2)
issue_stage(0); issue_stage(1)
srd(SRD_WS,20,WS_BYTES)
stamp(0)
issue_stage(2)
for s in range(8):
    A.wait_vm(s)
    A("s_barrier")
    stamp(1+s, 1 if s in (0,4) else 2)
    if s<7: issue_stage(s+3)
    fill(FILL1, 9)
    if s==4: A.vmem(f"buffer_load_dwordx2 {vr(vN,2)}, v{vZ}, {sr(SRD_DBG,4)}, 0 offen sc1",'non')
    if not FILL1: fill(FILL2, 12 if s<7 else 60)
assert not FILL1
A.wait_vm('non')
nonce_check(vN,vZ,sNon,sCnt,sU0)
A("s_barrier")
stamp(30)
att_read_ex()
fill(FILL2, 999)
A.wait_vm('kvst'); flag_store(vN,vZ,sFKVw)
stamp(29,2)
A("s_barrier")
stamp(9)
A.lds(f"ds_read_b128 {vr(Qf[0],4)}, v{vEQ0}")
A(f"v_xor_b32 v{vEQ0}, 1024, v{vEQ0}")
A.lds(f"ds_read_b128 {vr(Qf[1],4)}, v{vEQ0}")
A.wait_lg_all()
if OPT.get('gonly'):
    stamp_out(vt0); A("s_endpgm")
poll_issue(vP,vFl,sFKVr)
poll_check(vP,vFl,sFKVr,sCnt,sNon)
stamp(16,2)
for i in range(2): kv_load(i)
stamp(17)
A(f"s_setprio {PRIO0}")
A.wait_vm(('kv',0))
QK(0)
A("s_nop 11")
for u in range(NU): unit(u)
A("s_nop 1")
PV(NU-1,1)
stamp(23)
A("s_setprio 3")
vR=Sb[0]; vRa=Sb[1]
A(f"""s_mul_i32 s{sU0}, s{sW}, 2304
s_add_u32 s{sU0}, s{sU0}, {RED}
v_add_u32 v{vRa}, s{sU0}, v{vL16}
v_lshlrev_b32 v{vRa+1}, 2, v0
v_add_u32 v{vRa+1}, s{sU0}, v{vRa+1}
s_xor_b32 s{sU1}, s{sW}, 1
s_mul_i32 s{sU1}, s{sU1}, 2304
s_add_u32 s{sU1}, s{sU1}, {RED}
v_add_u32 v{vEK}, s{sU1}, v{vL16}
v_lshlrev_b32 v{vRa+3}, 2, v0
v_add_u32 v{vRa+3}, s{sU1}, v{vRa+3}""")
lds_flags_spin(Kf[0],vt0,sCnt,sU2,issued=True)
A.lds(f"ds_write_b128 v{vRa}, {vr(Oa[1],4)}")
A.lds(f"ds_write_b128 v{vRa}, {vr(Oa[1]+4,4)} offset:1024")
A.lds(f"ds_write_b32 v{vRa+1}, v{Oa[1]+8} offset:2048")
A(f"""v_bfe_u32 v{vRa+4}, v0, 4, 1
v_lshlrev_b32 v{vRa+4}, 14, v{vRa+4}
v_add_u32 v{vRa+4}, v{vRa+4}, v{vVo}
s_and_b32 s{sU0}, s{sE}, 1
s_lshl_b32 s{sU0}, s{sU0}, 9
v_add_u32 v{vRa+4}, s{sU0}, v{vRa+4}""")
A.wait_lg_all()
A("s_barrier")
stamp(24)
A.lds(f"ds_read_b32 v{vR+8}, v{vRa+3} offset:2048",'r2')
A.lds(f"ds_read_b128 {vr(vR,4)}, v{vEK}",'r0')
A.lds(f"ds_read_b128 {vr(vR+4,4)}, v{vEK} offset:1024",'r1')
A.wait_lg('r2')
A(f"""v_add_f32 v{Oa[0]+8}, v{Oa[0]+8}, v{vR+8}
v_cmp_nle_f32 vcc, s{sLo}, v{Oa[0]+8}
v_cmp_nge_f32 {sr(sX0,2)}, s{sHi}, v{Oa[0]+8}""")
A.wait_lg('r0')
for i in range(4): A(f"v_add_f32 v{Oa[0]+i}, v{Oa[0]+i}, v{vR+i}")
A.wait_lg('r1')
for i in range(4,8): A(f"v_add_f32 v{Oa[0]+i}, v{Oa[0]+i}, v{vR+i}")
A(f"""s_or_b64 vcc, vcc, {sr(sX0,2)}
s_cmp_lg_u64 vcc, 0
s_cbranch_scc1 L_fallback""")
A.label("L_norm")
A(f"v_rcp_f32 v{vR+9}, v{Oa[0]+8}\ns_nop 0")
for i in range(8): A(f"v_mul_f32 v{Oa[0]+i}, v{Oa[0]+i}, v{vR+9}")
for i in range(4): A(f"v_cvt_pk_bf16_f32 v{vR+i}, v{Oa[0]+2*i}, v{Oa[0]+2*i+1}")
A.vmem(f"buffer_store_dwordx4 {vr(vR,4)}, v{vRa+4}, {sr(SRD_WS,4)}, s{sOst} offen sc1")
stamp(28,2)
VB=Alloc(vBig,168)
Of=[VB.take(4,4) for _ in range(8)]
Wf=[[VB.take(4,4) for _ in range(4)] for _ in range(6)]
Ac=[VB.take(4,4) for _ in range(4)]
vWA=[vx,vw,vt2,vt3]; vOo=vEQ0; vXw=vEK; vXr=vEV
wo_tr_addr(vx,vt0,vt1)
A(f"""s_lshr_b32 s{sU2}, s{sW}, 2
s_lshl_b32 s{sU0}, s{sU2}, 15
s_lshl_b32 s{sU1}, s{sU2}, 6
v_add_u32 v{vx}, s{sU0}, v{vx}
v_xor_b32 v{vx}, s{sU1}, v{vx}
v_xor_b32 v{vw}, 32, v{vx}
v_xor_b32 v{vt2}, 64, v{vx}
v_xor_b32 v{vt3}, 96, v{vx}""")
assert WOB==0
def wo_read(hp_, slotset):
    for c in range(4):
        A.lds(f"ds_read_b64_tr_b16 {vr(Wf[slotset][c],2)}, v{vWA[c]} offset:{hp_*4096}",('wo',hp_))
        A.lds(f"ds_read_b64_tr_b16 {vr(Wf[slotset][c]+2,2)}, v{vWA[c]} offset:{hp_*4096+1024}",('wo',hp_))
wo_read(0,0)
A(f"""v_and_b32 v{vFl}, 15, v0
v_lshlrev_b32 v{vOo}, 11, v{vFl}
v_lshlrev_b32 v{vFl}, 3, v{vFl}
v_lshrrev_b32 v{vt0}, 4, v0
v_lshl_add_u32 v{vOo}, v{vt0}, 3, v{vOo}
s_xor_b32 s{sU1}, s{sW}, 5
s_mul_i32 s{sU1}, s{sU1}, 2304
s_add_u32 s{sU1}, s{sU1}, {RED}
v_add_u32 v{vXr}, s{sU1}, v{vL16}""")
A.wait_lg_all(); wo_read(1,1)
A.wait_vm_all()
flag_store(vN,vZ,sFOw)
poll_issue(vP,vFl,sFOr)
stamp(25)
for i in range(2,6):
    A.wait_lg_all(); wo_read(i,i)
poll_check(vP,vFl,sFOr,sCnt,sNon)
stamp(26)
for i in range(8):
    if i==4: A(f"s_add_u32 s{sOld}, s{sOld}, 4096")
    A.vmem(f"buffer_load_dwordx4 {vr(Of[i],4)}, v{vL16}, {sr(SRD_WS,4)}, s{sOld} offen offset:{(i%4)*1024} sc1",('of',i))
A.wait_lg_all()
for i in range(8):
    A.wait_vm(('of',i))
    if i>=6: A.wait_lg(('wo',i))
    for c in range(4):
        A(f"v_mfma_f32_16x16x32_bf16 {vr(Ac[c],4)}, {vr(Wf[i%6][c],4)}, {vr(Of[i],4)}, {'0' if i==0 else vr(Ac[c],4)}")
    if i<2:
        A.wait_lg_all(); wo_read(6+i,i)
A("s_nop 7")
A.lds(f"ds_write_b128 v{vXw}, {vr(Ac[2],4)}")
A.lds(f"ds_write_b128 v{vXw}, {vr(Ac[3],4)} offset:1024")
A.wait_lg_all()
A("s_barrier")
A.lds(f"ds_read_b128 {vr(Ac[2],4)}, v{vXr}",'x0')
A.lds(f"ds_read_b128 {vr(Ac[3],4)}, v{vXr} offset:1024",'x1')
for c in range(2):
    A.wait_lg(f'x{c}')
    for i in range(4): A(f"v_add_f32 v{Ac[c]+i}, v{Ac[c]+i}, v{Ac[2+c]+i}")
    A(f"v_cvt_pk_bf16_f32 v{Ac[c]}, v{Ac[c]}, v{Ac[c]+1}\nv_cvt_pk_bf16_f32 v{Ac[c]+1}, v{Ac[c]+2}, v{Ac[c]+3}")
    A.vmem(f"buffer_store_dwordx2 {vr(Ac[c],2)}, v{vOo}, {sr(SRD_OUT,4)}, s{sOut} offen offset:{c*32}")
stamp(27)
stamp_out(vt0)
if OPT.get('dbgst'):
    sel=[0,1,5,30,9,17,19,22,23,24,25,26,27]
    A(f"""s_cmp_lg_u32 s{sW}, 0
    s_cbranch_scc1 L_end
    s_sub_u32 s100, 0, s100
    v_mov_b32 v{vt1}, s100""")
    for j,ix in enumerate(sel):
        A(f"v_readlane_b32 s96, v{vSt}, {ix}\ns_nop 1\nv_writelane_b32 v{vt1}, s96, {j+1}")
    A(f"""v_lshlrev_b32 v{vt0}, 2, v0
    s_mov_b64 exec, 0x3fff
    buffer_atomic_umax v{vt1}, v{vt0}, {sr(SRD_DBG,4)}, 0 offen offset:8 sc1
    s_waitcnt vmcnt(0)""")
A("s_endpgm")

A.label("L_fallback"); A.reset()
fC=Oa[1]; fM=vt0; fT=vt1; fS=Kf[0]
fK=Kf[4]; fV=Vf[0]
A(f"""s_lshl_b32 s{sU0}, s{sKH}, 11
s_sub_u32 s{sU2}, s{sKVb}, s{sU0}
s_mov_b32 s{sOff}, s{sU2}
s_mov_b32 s{sCnt}, 0
v_mov_b32 v{fM}, {NEGBIG:#x}""")
A.label("L_fb1")
A(f"""buffer_load_dwordx4 {vr(fK,4)}, v{vL16}, {sr(SRD_WS,4)}, s{sOff} offen sc1
s_waitcnt vmcnt(0)
v_mfma_f32_32x32x16_bf16 {vr(fS,16)}, {vr(fK,4)}, {vr(Qf[0],4)}, 0
s_add_u32 s{sOff}, s{sOff}, 2048
s_add_u32 s{sCnt}, s{sCnt}, 1
s_nop 11""")
for i in range(8): A(f"v_max3_f32 v{fM}, v{fM}, v{fS+2*i}, v{fS+2*i+1}")
A(f"""s_cmp_lt_u32 s{sCnt}, 64
s_cbranch_scc1 L_fb1
v_mov_b32 v{fT}, v{fM}
s_nop 1
v_permlane32_swap_b32 v{fM}, v{fT}
s_nop 1
v_max_f32 v{fM}, v{fM}, v{fT}""")
for i in range(16): A(f"v_sub_f32 v{fC+i}, 0, v{fM}")
for i in range(16): A(f"v_mov_b32 v{Oa[0]+i}, 0")
A(f"""s_mov_b32 s{sOff}, s{sU2}
s_mov_b32 s{sCnt}, 0""")
A.label("L_fb2")
A(f"""buffer_load_dwordx4 {vr(fK,4)}, v{vL16}, {sr(SRD_WS,4)}, s{sOff} offen sc1
s_mov_b64 exec, {sr(sVM,2)}
buffer_load_dwordx4 {vr(fV,4)}, v{vVo}, {sr(SRD_WS,4)}, s{sOff} offen offset:1024 sc1
buffer_load_dwordx4 {vr(fV+4,4)}, v{vVo}, {sr(SRD_WS,4)}, s{sOff} offen offset:1536 sc1
s_mov_b64 exec, -1
s_waitcnt vmcnt(0)
v_mfma_f32_32x32x16_bf16 {vr(fS,16)}, {vr(fK,4)}, {vr(Qf[0],4)}, {vr(fC,16)}
s_add_u32 s{sOff}, s{sOff}, 2048
s_add_u32 s{sCnt}, s{sCnt}, 1
s_nop 11""")
for i in range(16): A(f"v_exp_f32 v{fS+i}, v{fS+i}")
A(f"""s_nop 1
v_smfmac_f32_32x32x32_bf16 {vr(Oa[0],16)}, {vr(fV,4)}, {vr(fS,8)}, v{vIdx}
v_smfmac_f32_32x32x32_bf16 {vr(Oa[0],16)}, {vr(fV+4,4)}, {vr(fS+8,8)}, v{vIdx}
s_cmp_lt_u32 s{sCnt}, 64
s_cbranch_scc1 L_fb2
s_nop 15
s_branch L_norm""")

A.label("L_aux")
A.reset()
VX=Alloc(2,168)
xt0=VX.take(); xt1=VX.take(); xt2=VX.take(); xZ=VX.take(); xN=VX.take(2,2)
xL16=VX.take(); xVo=VX.take()
xBig=VX.mark()
va=[VX.take() for _ in range(4)]; vwa=[VX.take() for _ in range(2)]
gx=VX.take(); gw=VX.take(); gF=VX.take(); gDum=VX.take(); vKpos=VX.take(); vLK=VX.take(); vLV=VX.take(); vLQ=VX.take(); vV1=VX.take(); xIdx=VX.take(); mt=VX.take()
accQ=VX.take(16,4); accK=VX.take(16,4); accV=VX.take(16,4)
xf=[VX.take(4,4) for _ in range(3)]
wf=[[VX.take(4,4) for _ in range(3)] for _ in range(3)]
Mk=VX.take(24,4)
pQ=VX.take(8,4)
sT=sA0; sC=sA0+1; sV0=sA0+2; sV1=sA0+3; sNx=sA0+4; sCx=sA0+6; sVMx=sA0+8; sRT=sA0+10; sV2=sA0+11; sV3=sA0+12
sGX=sA0+19; sGW=sA0+20; sGM=sA0+21; sG0=sA0+22; sG1=sA0+23; sG2=sA0+24
sB0=sA0+13; sB1=sA0+14; sB2=sA0+15; sHa=sA0+16; sHf=sA0+17; sJ=sA0+18
A(f"""s_setprio 3
s_sub_u32 s{sT}, s{sW}, 8
s_and_b32 s{sRT}, s{sT}, 1
s_lshr_b32 s{sJ}, s{sT}, 1
v_mov_b32 v{xZ}, 0
s_waitcnt lgkmcnt(0)""")
srd(SRD_WS,20,WS_BYTES); srd(SRD_DBG,18,256)
A(f"""s_add_u32 s{sV0}, s2, s{sT}
s_cmp_lg_u32 s{sV0}, 0
s_cbranch_scc1 L_nonon
s_mov_b32 s{sV0}, {WS_EPOCH}
s_mov_b64 exec, 1
buffer_load_dwordx2 {vr(xN,2)}, v{xZ}, {sr(SRD_WS,4)}, s{sV0} offen sc1
s_waitcnt vmcnt(0)
v_add_u32 v{xN}, 2, v{xN}
v_or_b32 v{xN}, 1, v{xN}
v_or_b32 v{xN+1}, 0x80000000, v{xN+1}
buffer_store_dwordx2 {vr(xN,2)}, v{xZ}, {sr(SRD_DBG,4)}, 0 offen sc1
buffer_store_dwordx2 {vr(xN,2)}, v{xZ}, {sr(SRD_WS,4)}, s{sV0} offen sc1
s_mov_b64 exec, -1""")
A.label("L_nonon")
stamp(0)
A(f"""v_mov_b32 v{xt0}, {LF}
v_lshl_add_u32 v{xt0}, v0, 2, v{xt0}
ds_write_b32 v{xt0}, v{xZ}
v_and_b32 v{xt0}, 31, v0
v_lshrrev_b32 v{xt1}, 5, v0
v_bfe_u32 v{xt2}, v0, 1, 3
v_xor_b32 v{xt2}, v{xt2}, v{xt1}
v_lshlrev_b32 v{xt2}, 4, v{xt2}
v_lshl_add_u32 v{xt2}, v{xt0}, 7, v{xt2}
s_lshl_b32 s{sV0}, s{sRT}, 12
s_add_u32 s{sV0}, s{sV0}, {LX}
v_add_u32 v{va[0]}, s{sV0}, v{xt2}""")
for s in range(1,4): A(f"v_xor_b32 v{va[s]}, {32*s}, v{va[0]}")
A(f"""v_bfe_u32 v{xt2}, v0, 2, 2
v_lshl_add_u32 v{xt2}, v{xt1}, 3, v{xt2}
v_lshlrev_b32 v{xt2}, 7, v{xt2}
v_bfe_u32 v{vV1}, v0, 4, 1
v_lshl_add_u32 v{xt2}, v{vV1}, 5, v{xt2}
v_and_b32 v{vwa[0]}, 3, v0
v_lshl_add_u32 v{xt2}, v{vwa[0]}, 3, v{xt2}
v_bfe_u32 v{vwa[0]}, v0, 3, 1
v_lshl_add_u32 v{xt2}, v{vwa[0]}, 6, v{xt2}
s_lshl_b32 s{sV0}, s{sJ}, 6
v_xor_b32 v{vwa[0]}, s{sV0}, v{xt2}
v_add_u32 v{vwa[1]}, 49152, v{vwa[0]}
v_and_b32 v{vKpos}, 0x33, v0
v_bfe_u32 v{xt2}, v0, 2, 1
v_lshl_add_u32 v{vKpos}, v{xt2}, 3, v{vKpos}
v_bfe_u32 v{xt2}, v0, 3, 1
v_lshl_add_u32 v{vKpos}, v{xt2}, 2, v{vKpos}
v_lshlrev_b32 v{vKpos}, 4, v{vKpos}
v_and_b32 v{xt2}, 15, v0
v_lshlrev_b32 v{xt2}, 4, v{xt2}
v_lshl_add_u32 v{xVo}, v{xt1}, 8, v{xt2}
v_lshl_add_u32 v{vLV}, v{vV1}, 12, v{xVo}
s_lshl_b32 s{sV0}, s{sJ}, 13
s_lshl_b32 s{sV1}, s{sRT}, 11
s_add_u32 s{sV0}, s{sV0}, s{sV1}
s_add_u32 s{sV1}, s{sV0}, {EX+8192}
v_add_u32 v{vLV}, s{sV1}, v{vLV}
v_add_u32 v{vLK}, s{sV1}, v{vKpos}
s_lshr_b32 s{sV0}, s{sV0}, 1
s_add_u32 s{sV0}, s{sV0}, {EX}
v_lshlrev_b32 v{xL16}, 4, v0
v_add_u32 v{vLQ}, s{sV0}, v{xL16}
s_mov_b32 s{sC}, {f2u(CSCALE):#x}
s_mov_b32 s{sVMx}, 0x0000ffff
s_mov_b32 s{sVMx+1}, 0x0000ffff""")
assert LW==0
srd(SRD_XA,4,2097152); srd(SRD_WA,6,1572864)
A(f"""v_lshrrev_b32 v{gx}, 3, v0
v_mul_u32_u24 v{gw}, 3072, v{gx}
v_lshlrev_b32 v{gx}, 10, v{gx}
v_lshrrev_b32 v{xt2}, 2, v0
v_and_b32 v{xt2}, 4, v{xt2}
v_xor_b32 v{xt2}, v{xt2}, v0
v_and_b32 v{xt2}, 7, v{xt2}
v_lshl_add_u32 v{gw}, v{xt2}, 4, v{gw}
v_lshrrev_b32 v{xt2}, 4, v0
v_xor_b32 v{xt2}, v{xt2}, v0
v_and_b32 v{xt2}, 7, v{xt2}
v_lshl_add_u32 v{gx}, v{xt2}, 4, v{gx}
v_xor_b32 v{xIdx}, 64, v{gx}
s_lshl_b32 s{sGX}, s{sRB}, 16
s_lshl_b32 s{sV0}, s{sT}, 14
s_add_u32 s{sGX}, s{sGX}, s{sV0}
s_lshl_b32 s{sGM}, s{sT}, 11
s_mul_i32 s{sGW}, s{sT}, 49152
s_lshl_b32 s{sV0}, s{sHQ}, 7
s_add_u32 s{sGW}, s{sGW}, s{sV0}
s_lshl_b32 s{sV0}, s{sT}, 2
s_add_u32 s{sV0}, s{sV0}, {LF}
v_mov_b32 v{gF}, s{sV0}""")
def a_piece(s, i):
    if s>15: return
    slot=s%4; half,k=divmod(i,4)
    if i==0:
        A(f"""s_add_u32 s{sG0}, s{sSG}, {s}
        s_and_b32 s{sG0}, s{sG0}, 7
        s_mul_i32 s{sG1}, s{sG0}, 196608
        s_lshl_b32 s{sG0}, s{sG0}, 7
        s_add_u32 s{sG1}, s{sG1}, s{sGW}
        s_add_u32 s{sG0}, s{sG0}, s{sGX}""")
    if k==0:
        A(f"s_add_u32 m0, s{sGM}, {LX+slot*8192+half*1024}")
        A(f"s_add_u32 s{sG0}, s{sG0}, 8192" if half else "s_nop 0")
        A.vmem(f"buffer_load_dwordx4 v{gx if half==0 else xIdx}, {sr(SRD_XA,4)}, s{sG0} offen lds", ('a',s))
    else:
        p=(1,2,0)[k-1]
        A(f"s_add_u32 m0, s{sGM}, {LW+slot*24576+p*7168+half*1024}")
        A(f"s_add_u32 s{sG1}, s{sG1}, 24576" if i==5 else "s_nop 0")
        A.vmem(f"buffer_load_dwordx4 v{gw}, {sr(SRD_WA,4)}, s{sG1} offen offset:{p*1024} lds", ('a',s))
PQ=[]
def a_next(k=1):
    for _ in range(k):
        if PQ: a_piece(*PQ.pop(0))
A(f"""v_lshlrev_b32 v{xt1}, 3, v{xt1}
v_sub_u32 v{xt0}, v{xt0}, v{xt1}
s_add_u32 s{sV0}, s{sRB}, s{sRT}
s_cmp_eq_u32 s{sV0}, 0
s_cselect_b32 s{sV0}, 1016, 16
v_add_u32 v{xt1}, s{sV0}, v{xt0}
v_mov_b32 v{xt2}, {NEGBIG:#x}
s_mov_b32 s{sV1}, 0xfffffff1""")
for r in range(24):
    src,c=(xt0,16*(r//8)+r%8) if r<16 else (xt1,r-16)
    A(f"v_subrev_u32 v{Mk+r}, {c}, v{src}")
    A(f"v_and_b32 v{Mk+r}, s{sV1}, v{Mk+r}")
for r in range(0,24,2):
    A(f"v_cmp_eq_u32 vcc, 0, v{Mk+r}")
    A(f"v_cmp_eq_u32 {sr(sNx,2)}, 0, v{Mk+r+1}")
    A("s_nop 0")
    A(f"v_cndmask_b32 v{Mk+r}, v{xt2}, 0, vcc")
    A(f"v_cndmask_b32 v{Mk+r+1}, v{xt2}, 0, {sr(sNx,2)}")
if OPT['pfc']:
    A(f"s_getpc_b64 {sr(sNx,2)}")
    A.label("L_pc")
    A(f"""s_sub_u32 s{sNx}, s{sNx}, L_pc-{NAME}
    s_subb_u32 s{sNx+1}, s{sNx+1}, 0
    s_lshl_b32 s{sV0}, s{sT}, 13
    s_mov_b32 s{sV1}, L_codeend-{NAME}-4
    v_lshlrev_b32 v{xt2}, 7, v0
    v_add_u32 v{xt2}, s{sV0}, v{xt2}
    v_min_u32 v{xt2}, s{sV1}, v{xt2}""")

def g_rd(n, part, force=False):
    if OPT.get('nord') or n>=64 or (n in (32,33) and not force): return
    s,ks=divmod(n,4); slot=s%4; b=n%3
    if part==0: A.lds(f"ds_read_b128 {vr(xf[b],4)}, v{va[ks]} offset:{slot*8192}", ('x',n))
    p=(1,2,0)[part]
    o=(slot%2)*24576+p*8192+ks*2048
    A.lds(f"ds_read_b64_tr_b16 {vr(wf[b][p],2)}, v{vwa[slot//2]} offset:{o}", ('w',n,p))
    A.lds(f"ds_read_b64_tr_b16 {vr(wf[b][p]+2,2)}, v{vwa[slot//2]} offset:{o+512}", ('w',n,p))
SLOW=OPT.get('slow',14)
def g_step(n):
    s,ks=divmod(n,4); b=n%3; first=(n%32==0)
    C=lambda acc: "0" if first else vr(acc,16)
    M=[lambda: A(f"v_mfma_f32_32x32x16_bf16 {vr(accK,16)}, {vr(wf[b][1],4)}, {vr(xf[b],4)}, {C(accK)}"),
       lambda: A(f"v_mfma_f32_32x32x16_bf16 {vr(accV,16)}, {vr(xf[b],4)}, {vr(wf[b][2],4)}, {C(accV)}"),
       lambda: A(f"v_mfma_f32_32x32x16_bf16 {vr(accQ,16)}, {vr(wf[b][0],4)}, {vr(xf[b],4)}, {C(accQ)}")]
    fo=64+(s-8)*16
    def xpost():
        A.wait_lg_all()
        assert not any(p[0]==s+1 for p in PQ)
        A.wait_vm(('a',s+1))
        A.lds(f"ds_write_b32 v{gF}, v{gOne} offset:{fo}")
        A.lds(f"ds_read_b128 {vr(gFL,4)}, v{gLF} offset:{fo}")
    def xwait():
        A(f"v_add_u32 v{mt}, {fo}, v{gLF}")
        lds_flags_spin(gFL,mt,sCx,sV1,issued=True)
        PQ.extend((s+4,i) for i in range(8) if s+4<=15)
    if s>=SLOW:
        for j in range(3):
            g_rd(n,j); A.wait_lg_all(); M[j](); a_next()
        if ks==3 and s<15: xpost(); xwait()
        return
    if s>=8 and s<15 and ks>=2:
        if ks==2:
            xpost()
            M[0](); a_next(); M[1](); a_next(); M[2](); a_next()
        else:
            xwait()
            nx=(s+1<SLOW)
            M[0](); a_next()
            if nx: g_rd(n+1,0); g_rd(n+1,1)
            M[1](); a_next()
            if nx: g_rd(n+1,2); g_rd(n+2,0)
            M[2](); a_next()
            if nx: g_rd(n+2,1); g_rd(n+2,2)
        return
    if ks==2:
        A.wait_lg_all()
        if s<7: A("s_barrier")
    else: A.wait_lg(('w',n,1))
    M[0](); a_next()
    g_rd(n+2,0)
    A.wait_lg(('w',n,2))
    M[1](); a_next()
    g_rd(n+2,1)
    A.wait_lg(('w',n,0))
    M[2](); a_next()
    g_rd(n+2,2)
    if n==9 and OPT['pfc']: A.vmem(f"global_load_dword v{gDum}, v{xt2}, {sr(sNx,2)}")
def pack16(dst, acc, scale=False):
    if scale:
        for i in range(16): A(f"v_mul_f32 v{acc+i}, s{sC}, v{acc+i}")
    for i in range(8): A(f"v_cvt_pk_bf16_f32 v{dst+i}, v{acc+2*i}, v{acc+2*i+1}")
A.wait_lg_all()
A("s_barrier")
for n in range(2):
    for p in range(3): g_rd(n,p)
for n in range(32): g_step(n)
A("s_nop 9")
pack16(accK,accK)
A.lds(f"ds_write_b128 v{vLK}, {vr(accK,4)}",'e')
A.lds(f"ds_write_b128 v{vLK}, {vr(accK+4,4)} offset:4096",'e')
pack16(accV,accV)
A.lds(f"ds_write_b128 v{vLV}, {vr(accV,4)} offset:1024",'e')
A.lds(f"ds_write_b128 v{vLV}, {vr(accV+4,4)} offset:1536",'e')
for i in range(16): A(f"v_mul_f32 v{accQ+i}, s{sC}, v{accQ+i}")
A.wait_lg_all()
A("s_barrier")
pack16(accQ,accQ)
A.lds(f"ds_write_b128 v{vLQ}, {vr(accQ,4)}",'e')
A.lds(f"ds_write_b128 v{vLQ}, {vr(accQ+4,4)} offset:2048",'e')
gOne=vLQ; gLF=vLV; gFL=pQ
A.wait_lg_all()
A(f"v_mov_b32 v{gOne}, 1\nv_mov_b32 v{gLF}, {LF}")
stamp(9)
A("s_barrier")
for n in (32,33):
    for p in range(3): g_rd(n,p,True)
if OPT.get('pm',1): A(f"s_setprio {OPT.get('ap',2)}")
PQ.extend((st,i) for st in (10,11) for i in range(8))
a_next(4)
for n in range(32,64): g_step(n)
A("s_nop 9")
stamp(17)
if OPT.get('gonly'):
    stamp_out(xt0); A("s_endpgm")
if OPT.get('noaux'):
    A(f"""s_lshl_b32 s{sV1}, s{sT}, 2
    s_add_u32 s{sV1}, s{sV1}, {LF}
    v_mov_b32 v{vLQ}, s{sV1}
    v_mov_b32 v{vLK}, 1
    ds_write_b32 v{vLQ}, v{vLK} offset:16
    s_waitcnt lgkmcnt(0)""")
    stamp_out(xt0)
    A("s_endpgm")
pack16(accK,accK); pack16(accV,accV)
A(f"""s_lshl_b32 s{sV0}, s{sRT}, 13
s_lshl_b32 s{sV1}, s{sJ}, 12
s_add_u32 s{sV0}, s{sV0}, s{sV1}
s_add_u32 s{sV0}, s{sV0}, {EA}
s_add_u32 s{sV1}, s{sV0}, 8192
v_add_u32 v{vLK}, s{sV1}, v{vKpos}
v_lshl_add_u32 v{xt0}, v{vV1}, 11, v{xVo}
v_add_u32 v{vLV}, s{sV1}, v{xt0}""")
A.lds(f"ds_write_b128 v{vLK}, {vr(accK,4)}")
A.lds(f"ds_write_b128 v{vLK}, {vr(accK+4,4)} offset:2048")
A.lds(f"ds_write_b128 v{vLV}, {vr(accV,4)} offset:1024")
A.lds(f"ds_write_b128 v{vLV}, {vr(accV+4,4)} offset:1536")
A.vmem(f"buffer_load_dwordx2 {vr(xN,2)}, v{xZ}, {sr(SRD_DBG,4)}, 0 offen sc1",'non')
A(f"""s_lshl_b32 s{sHf}, s{sHQ}, 5
s_add_u32 s{sHf}, s{sHf}, s{sRB}
s_lshl_b32 s{sHf}, s{sHf}, 1
s_add_u32 s{sHf}, s{sHf}, s{sJ}
s_lshl_b32 s{sHa}, s{sHf}, 12
s_add_u32 s{sHa}, s{sHa}, {WS_HA}
s_lshl_b32 s{sHf}, s{sHf}, 7
s_add_u32 s{sHf}, s{sHf}, {WS_FHA}
s_cmp_lg_u32 s{sRT}, 1
s_cbranch_scc1 L_noha
buffer_store_dwordx4 {vr(accK,4)}, v{vKpos}, {sr(SRD_WS,4)}, s{sHa} offen sc1
buffer_store_dwordx4 {vr(accK+4,4)}, v{vKpos}, {sr(SRD_WS,4)}, s{sHa} offen offset:2048 sc1
buffer_store_dwordx4 {vr(accV+4,4)}, v{xt0}, {sr(SRD_WS,4)}, s{sHa} offen offset:1536 sc1""")
A.label("L_noha")
pack16(pQ,accQ,True)
A(f"""s_lshl_b32 s{sV1}, s{sT}, 2
s_add_u32 s{sV1}, s{sV1}, {LF}
v_mov_b32 v{vLQ}, s{sV1}
v_mov_b32 v{vLK}, 1
v_mov_b32 v{xt2}, {LF}""")
A.wait_lg_all()
A(f"ds_write_b32 v{vLQ}, v{vLK}")
Sc=accK; Sp=accV; Kc=xf[0]; Kp=xf[1]; Vc=accQ; Vp=accQ+8; FL=wf[0][0]; Oc=wf[1][0]
vAK=va[0]; vAV=va[1]; vOf=va[2]; mx=va[3]
A(f"""v_add_u32 v{vAK}, s{sV0}, v{xL16}
v_add_u32 v{vAV}, s{sV0}, v{xVo}
v_and_b32 v{xt0}, 27, v0
v_cmp_eq_u32 vcc, 16, v{xt0}
v_mov_b32 v{xt1}, 0x3f803f80
v_lshl_add_u32 v{vOf}, v{vV1}, 14, v{xVo}
v_cndmask_b32 v{xt1}, 0, v{xt1}, vcc
v_mov_b32 v{xIdx}, 0xdddddddd""")
for i in range(12): A(f"v_mov_b32 v{Vc+i}, v{xt1}")
A(f"""s_lshl_b32 s{sV2}, s{sRB}, 1
s_add_u32 s{sV2}, s{sV2}, s{sRT}
s_lshl_b32 s{sV3}, s{sV2}, 5
s_lshl_b32 s{sB0}, s{sHQ}, 1
s_add_u32 s{sB0}, s{sB0}, s{sJ}
s_add_u32 s{sV3}, s{sV3}, s{sB0}
s_lshl_b32 s{sV3}, s{sV3}, 10
s_add_u32 s{sV3}, s{sV3}, {WS_OFA}""")
lds_flags_spin(FL,xt2,sCx,sV1)
A.wait_vm_all()
nonce_check(xN,xZ,sNx,sCx,sV1)
A(f"""s_cmp_lg_u32 s{sRT}, 1
s_cbranch_scc1 L_noha2""")
flag_store(xN,xZ,sHf)
A("s_branch L_hdone")
A.label("L_noha2")
HB=wf[1][0]
for i in range(16): A(f"v_mov_b32 v{HB+i}, 0")
A(f"""s_cmp_eq_u32 s{sRB}, 0
s_cbranch_scc1 L_hwr
s_sub_u32 s{sHf}, s{sHf}, 256
s_sub_u32 s{sHa}, s{sHa}, 8192""")
poll_issue(FL,xZ,sHf)
poll_check(FL,xZ,sHf,sCx,sNx)
for i in range(4): A.vmem(f"buffer_load_dwordx4 {vr(HB+4*i,4)}, v{xL16}, {sr(SRD_WS,4)}, s{sHa} offen offset:{i*1024} sc1")
A.wait_vm_all()
A.label("L_hwr")
for i in range(4): A.lds(f"ds_write_b128 v{vAK}, {vr(HB+4*i,4)} offset:{i*1024}")
A.wait_lg_all()
A.label("L_hdone")
stamp(18)
for e in range(2):
    A.lds(f"ds_read_b128 {vr(Kc,4)}, v{vAK} offset:{8192+e*2048}",'kc')
    A.lds(f"ds_read_b128 {vr(Kp,4)}, v{vAK} offset:{e*2048}",'kp')
    A(f"s_mov_b64 exec, {sr(sVMx,2)}")
    A.lds(f"ds_read_b128 {vr(Vc,4)}, v{vAV} offset:{8192+e*2048+1024}",'v')
    A.lds(f"ds_read_b128 {vr(Vc+4,4)}, v{vAV} offset:{8192+e*2048+1536}",'v')
    A.lds(f"ds_read_b128 {vr(Vp,4)}, v{vAV} offset:{e*2048+1536}",'v')
    A("s_mov_b64 exec, -1")
    A.wait_lg('kc')
    A(f"v_mfma_f32_32x32x16_bf16 {vr(Sc,16)}, {vr(Kc,4)}, {vr(pQ+4*e,4)}, {vr(Mk,16)}")
    A.wait_lg('kp')
    A(f"v_mfma_f32_32x32x16_bf16 {vr(Sp,16)}, {vr(Kp,4)}, {vr(pQ+4*e,4)}, {vr(Mk+8,16)}")
    for i in range(9): A(f"v_mov_b32 v{Oc+i}, 0")
    A("s_nop 1")
    A(f"v_max_f32 v{mx}, v{Sc}, v{Sc+1}")
    for i in range(1,8): A(f"v_max3_f32 v{mx}, v{mx}, v{Sc+2*i}, v{Sc+2*i+1}")
    for i in range(4,8): A(f"v_max3_f32 v{mx}, v{mx}, v{Sp+2*i}, v{Sp+2*i+1}")
    A(f"""v_mov_b32 v{mt}, v{mx}
    s_nop 1
    v_permlane32_swap_b32 v{mx}, v{mt}
    s_nop 1
    v_max_f32 v{mx}, v{mx}, v{mt}""")
    regs=[Sp+8+i for i in range(8)]+[Sc+i for i in range(16)]
    for r in regs: A(f"v_sub_f32 v{r}, v{r}, v{mx}")
    A.wait_lg('v')
    if e==1: A(f"ds_write_b32 v{vLQ}, v{vLK} offset:16")
    for j,r in enumerate(regs):
        A(f"v_exp_f32 v{r}, v{r}")
        if j==9: A(f"v_smfmac_f32_32x32x32_bf16 {vr(Oc,16)}, {vr(Vp,4)}, {vr(Sp+8,8)}, v{xIdx}")
        if j==17: A(f"v_smfmac_f32_32x32x32_bf16 {vr(Oc,16)}, {vr(Vc,4)}, {vr(Sc,8)}, v{xIdx}")
    A("s_nop 1")
    A(f"v_smfmac_f32_32x32x32_bf16 {vr(Oc,16)}, {vr(Vc+4,4)}, {vr(Sc+8,8)}, v{xIdx}")
    A("s_nop 11")
    A(f"v_rcp_f32 v{mt}, v{Oc+8}\ns_nop 0")
    for i in range(8): A(f"v_mul_f32 v{Oc+i}, v{Oc+i}, v{mt}")
    dst=wf[2][1+e]
    for i in range(4): A(f"v_cvt_pk_bf16_f32 v{dst+i}, v{Oc+2*i}, v{Oc+2*i+1}")
    A.vmem(f"buffer_store_dwordx4 {vr(dst,4)}, v{vOf}, {sr(SRD_WS,4)}, s{sV3} offen offset:{e*512} sc1",'oa')
stamp(19)
A(f"""s_lshl_b32 s{sV1}, s{sV2}, 7
s_lshl_b32 s{sB0}, s{sB0}, 3
s_add_u32 s{sV1}, s{sV1}, s{sB0}
s_add_u32 s{sV1}, s{sV1}, {WS_FOA}
s_lshl_b32 s{sV0}, s{sRB}, 1
s_add_u32 s{sV0}, s{sV0}, s{sJ}
s_lshl_b32 s{sV0}, s{sV0}, 7
s_add_u32 s{sV0}, s{sV0}, {WS_FOA}""")
A.wait_vm_all()
flag_store(xN,xZ,sV1)
srd(SRD_M,14,524288); srd(SRD_XA,8,524288); srd(SRD_OUT,16,4194304)
A(f"""v_lshrrev_b32 v{xt0}, 3, v0
v_and_b32 v{xt1}, 6, v{xt0}
v_xor_b32 v{xt1}, v{xt1}, v0
v_and_b32 v{xt1}, 7, v{xt1}
v_lshlrev_b32 v{xt0}, 10, v{xt0}
v_lshl_add_u32 v{xt0}, v{xt1}, 4, v{xt0}
s_lshl_b32 s{sB0}, s{sT}, 17
s_lshl_b32 s{sB1}, s{sHQ}, 7
s_add_u32 s{sB1}, s{sB1}, s{sB0}
s_lshl_b32 s{sB2}, s{sT}, 14""")
for j in range(16):
    A(f"s_add_u32 m0, s{sB2}, {WOB+j*1024}")
    if j: A(f"s_add_u32 s{sB1}, s{sB1}, 8192")
    else: A("s_nop 0")
    A.vmem(f"buffer_load_dwordx4 v{xt0}, {sr(SRD_M,4)}, s{sB1} offen lds")
    A(f"s_add_u32 m0, s{sB2}, {WOA+j*1024}\ns_nop 0")
    A.vmem(f"buffer_load_dwordx4 v{xt0}, {sr(SRD_XA,4)}, s{sB1} offen lds")
    if OPT['pace']<60: A(f"s_waitcnt vmcnt({OPT['pace']})"); A.vm=A.vm[-OPT['pace']:]
VY=Alloc(xBig,168)
yFl=VY.take(); yP=VY.take(2,2); yWA=[VY.take() for _ in range(4)]; yOo=VY.take()
yO=[VY.take(4,4) for _ in range(16)]
yW=[[VY.take(4,4) for _ in range(4)] for _ in range(3)]
yA=[VY.take(4,4) for _ in range(4)]
A(f"""v_and_b32 v{yFl}, 15, v0
v_lshlrev_b32 v{yOo}, 11, v{yFl}
v_lshlrev_b32 v{yFl}, 3, v{yFl}
v_lshrrev_b32 v{xt0}, 4, v0
v_lshl_add_u32 v{yOo}, v{xt0}, 3, v{yOo}""")
poll_issue(yP,yFl,sV0)
poll_check(yP,yFl,sV0,sCx,sNx)
stamp(20)
A(f"""s_lshl_b32 s{sV2}, s{sRB}, 2
s_add_u32 s{sV2}, s{sV2}, s{sT}
s_lshl_b32 s{sB0}, s{sV2}, 14
s_add_u32 s{sB0}, s{sB0}, {WS_OFA}""")
for i in range(16):
    if i and i%4==0: A(f"s_add_u32 s{sB0}, s{sB0}, 4096")
    A.vmem(f"buffer_load_dwordx4 {vr(yO[i],4)}, v{xL16}, {sr(SRD_WS,4)}, s{sB0} offen offset:{(i%4)*1024} sc1")
    if OPT['pace']<60 and i%2==1 and len(A.vm)>OPT['pace']: A(f"s_waitcnt vmcnt({OPT['pace']})"); A.vm=A.vm[-OPT['pace']:]
wo_tr_addr(yWA[0],xt0,xt1)
A(f"""v_add_u32 v{yWA[0]}, {WOA}, v{yWA[0]}
v_xor_b32 v{yWA[1]}, 32, v{yWA[0]}
v_xor_b32 v{yWA[2]}, 64, v{yWA[0]}
v_xor_b32 v{yWA[3]}, 96, v{yWA[0]}
s_lshl_b32 s{sB0}, s{sV2}, 15
s_lshl_b32 s{sB1}, s{sHQ}, 7
s_add_u32 s{sB0}, s{sB0}, s{sB1}""")
A.wait_vm_all()
stamp(21)
A("s_setprio 0")
A("s_barrier")
def woa_read(hp_,c):
    if hp_>=16: return
    b=hp_%3
    A.lds(f"ds_read_b64_tr_b16 {vr(yW[b][c],2)}, v{yWA[c]} offset:{hp_*4096}",('wa',hp_,c))
    A.lds(f"ds_read_b64_tr_b16 {vr(yW[b][c]+2,2)}, v{yWA[c]} offset:{hp_*4096+1024}",('wa',hp_,c))
for c in range(4): woa_read(0,c)
for c in range(2): woa_read(1,c)
for i in range(16):
    for c in range(4):
        A.wait_lg(('wa',i,c))
        A(f"v_mfma_f32_16x16x32_bf16 {vr(yA[c],4)}, {vr(yW[i%3][c],4)}, {vr(yO[i],4)}, {'0' if i==0 else vr(yA[c],4)}")
        woa_read(i+1+(c+2)//4,(c+2)%4)
A("s_nop 7")
for c in range(4):
    acc=yA[c]
    A(f"v_cvt_pk_bf16_f32 v{acc}, v{acc}, v{acc+1}\nv_cvt_pk_bf16_f32 v{acc+1}, v{acc+2}, v{acc+3}")
    A.vmem(f"buffer_store_dwordx2 {vr(acc,2)}, v{yOo}, {sr(SRD_OUT,4)}, s{sB0} offen offset:{c*32}")
stamp(22)
stamp_out(yFl)
A.label("L_end")
A("s_endpgm")
A.label("L_codeend")

errs=check(A.lines)
for e in errs[:25]: print("CHECK:",e, file=sys.stderr)
hdr=open('concat_heads__sliding_local_dilated__softmax_full_mha__prompt.s.ref').read().split('; Override')[0]
nv=168
out=hdr+f"""; @launch grid=(256,1,1) block=(768,1,1) lds={LDS_BYTES}
.amdgcn_target "amdgcn-amd-amdhsa--gfx950"
.text
.globl {NAME}
.p2align 8
.type {NAME},@function
"""+A.text()+f""".section .rodata,"a"
.p2align 6
.amdhsa_kernel {NAME}
  .amdhsa_next_free_vgpr {nv}
  .amdhsa_next_free_sgpr 102
  .amdhsa_accum_offset {nv}
  .amdhsa_group_segment_fixed_size 0
  .amdhsa_kernarg_size 72
  .amdhsa_user_sgpr_count 2
  .amdhsa_user_sgpr_kernarg_segment_ptr 1
  .amdhsa_system_sgpr_workgroup_id_x 1
.end_amdhsa_kernel
"""
open(sys.argv[1],'w').write(out)
print("vgpr att",VA.hi,VB.hi,"aux",VX.hi,VY.hi,"lines",len(A.lines),"errs",len(errs))
```

```python
import sys, math, struct
from asmlib import *
NAME="concat_heads__sliding_local_dilated__softmax_full_mha__prompt_kernel"
OPT=dict(pm=0, slow=16, pace=2, spf=0, stamp=0, prio=1, p1=28, p2=56, flagstage=11, pfc=1)
for a in sys.argv[2:]:
    k,v=a.split('='); OPT[k]=int(v) if v.lstrip('-').isdigit() else v

LW=0; LX=98304; EX=131072; LF=155648
EA=EX; WOB=0; WOA=65536; RED=EX
LDS_BYTES=163840
WS_KV=0; WS_OFB=4<<20; WS_OFA=6<<20
WS_FKV=8<<20; WS_FOB=(8<<20)+32768; WS_EPOCH=(8<<20)+65536; WS_FOA=(8<<20)+131072; WS_FKA=(8<<20)+262144; WS_KVA=10<<20
WS_STAMP=30<<20
WS_BYTES=32<<20
CSCALE=0.25*math.log2(math.e)
def f2u(x): return struct.unpack('<I',struct.pack('<f',x))[0]
NEGBIG=f2u(-1e30)
SPIN=30000

A=Asm()
sW=22; sHQ=23; sRB=24; sSG=25; sT0=26; sT1=27
SRD_XB=28; SRD_WB=32; SRD_XA=36; SRD_WA=40; SRD_WS=44; SRD_DBG=48; SRD_M=52; SRD_OUT=56
sA0=60

def srd(base, ptr, nbytes):
    A(f"""s_mov_b32 s{base}, s{ptr}
    s_mov_b32 s{base+1}, s{ptr+1}
    s_mov_b32 s{base+2}, {nbytes}
    s_mov_b32 s{base+3}, 0x00020000""")
vSt=1
def stamp(idx, lvl=1):
    if OPT['stamp']<lvl: return
    if 'only' in OPT and idx not in [int(x) for x in str(OPT['only']).split(',')]: return
    A(f"""s_memrealtime s[96:97]
    s_memtime s[98:99]
    s_waitcnt lgkmcnt(0)
    v_writelane_b32 v{vSt}, s96, {idx}
    v_writelane_b32 v{vSt}, s98, {idx+32}""")
    A.lg=[]
def stamp_out(vtmp):
    if not OPT['stamp']: return
    A(f"""v_writelane_b32 v{vSt}, s100, 31
    s_mul_i32 s96, s2, 12
    s_add_u32 s96, s96, s{sW}
    s_lshl_b32 s96, s96, 8
    s_add_u32 s96, s96, {WS_STAMP}
    v_lshlrev_b32 v{vtmp}, 2, v0
    buffer_store_dword v{vSt}, v{vtmp}, {sr(SRD_WS,4)}, s96 offen""")
def poll_issue(vdst, voff, soff, mask=-1):
    if mask!=-1: A(f"s_mov_b64 exec, {mask:#x}")
    A.vmem(f"buffer_load_dwordx2 {vr(vdst,2)}, v{voff}, {sr(SRD_WS,4)}, s{soff} offen sc1",'poll')
    if mask!=-1: A("s_mov_b64 exec, -1")
def poll_check(vdst, voff, soff, scnt, snon, mask=-1, sleep=0, keep=0):
    L=A.newlabel('L_poll'); Ld=A.newlabel('L_polld'); Lc=A.newlabel('L_pollc')
    A(f"s_mov_b32 s{scnt}, 0")
    if mask!=-1: A(f"s_mov_b64 exec, {mask:#x}")
    A.wait_vm('poll')
    A(f"s_branch {Lc}")
    A.label(L)
    if sleep: A(f"s_sleep {sleep}")
    A(f"""buffer_load_dwordx2 {vr(vdst,2)}, v{voff}, {sr(SRD_WS,4)}, s{soff} offen sc1
    s_waitcnt vmcnt(0)""")
    A.label(Lc)
    A(f"""v_cmp_eq_u64 vcc, {sr(snon,2)}, {vr(vdst,2)}
    s_add_u32 s{scnt}, s{scnt}, 1
    s_cmp_eq_u64 vcc, exec
    s_cbranch_scc1 {Ld}
    s_cmp_le_u32 s{scnt}, {SPIN}
    s_cbranch_scc1 {L}""")
    A.label(Ld)
    if mask!=-1: A("s_mov_b64 exec, -1")
def lds_word_spin(vF, vAddr, off, scnt, stmp):
    L=A.newlabel('L_ws'); Ld=A.newlabel('L_wsd')
    A(f"s_mov_b32 s{scnt}, 0")
    A.label(L)
    A(f"""ds_read_b32 v{vF}, v{vAddr} offset:{off}
    s_add_u32 s{scnt}, s{scnt}, 1
    s_waitcnt lgkmcnt(0)
    v_readfirstlane_b32 s{stmp}, v{vF}
    s_cmp_gt_u32 s{scnt}, {SPIN*8}
    s_cbranch_scc1 {Ld}
    s_cmp_eq_u32 s{stmp}, 0
    s_cbranch_scc1 {L}""")
    A.label(Ld)
    A.lg=[]
def nonce_check(vN, vZ, snon, scnt, stmp):
    L=A.newlabel('L_non'); Ld=A.newlabel('L_nond')
    A(f"s_mov_b32 s{scnt}, 0")
    A.label(L)
    A(f"""v_readfirstlane_b32 s{snon}, v{vN}
    v_readfirstlane_b32 s{snon+1}, v{vN+1}
    s_add_u32 s{scnt}, s{scnt}, 1
    s_cmp_gt_u32 s{scnt}, {SPIN}
    s_cbranch_scc1 {Ld}
    s_cmp_eq_u32 s{snon}, 0
    s_cselect_b32 s{stmp}, 0, s{snon+1}
    s_cmp_lg_u32 s{stmp}, 0
    s_cbranch_scc1 {Ld}
    buffer_load_dwordx2 {vr(vN,2)}, v{vZ}, {sr(SRD_DBG,4)}, 0 offen sc1
    s_waitcnt vmcnt(0)
    s_branch {L}""")
    A.label(Ld)
def flag_store(vN, vZ, soff):
    A("s_mov_b64 exec, 1")
    A.vmem(f"buffer_store_dwordx2 {vr(vN,2)}, v{vZ}, {sr(SRD_WS,4)}, s{soff} offen sc1",'flag')
    A("s_mov_b64 exec, -1")
def lds_flags_spin(vF, vAddr, scnt, stmp, issued=False):
    L=A.newlabel('L_xs'); Ld=A.newlabel('L_xsd'); Lc=A.newlabel('L_xsc')
    A(f"s_mov_b32 s{scnt}, 0")
    if issued: A(f"s_branch {Lc}")
    A.label(L)
    A(f"ds_read_b128 {vr(vF,4)}, v{vAddr}")
    A.label(Lc)
    A(f"""s_add_u32 s{scnt}, s{scnt}, 1
    s_waitcnt lgkmcnt(0)
    v_and_b32 v{vF}, v{vF}, v{vF+1}
    v_and_b32 v{vF+2}, v{vF+2}, v{vF+3}
    v_and_b32 v{vF}, v{vF}, v{vF+2}
    s_cmp_gt_u32 s{scnt}, {SPIN*4}
    v_readfirstlane_b32 s{stmp}, v{vF}
    s_cbranch_scc1 {Ld}
    s_cmp_eq_u32 s{stmp}, 0
    s_cbranch_scc1 {L}""")
    A.label(Ld)
    A.lg=[]
def wo_tr_addr(dst, t0, t1):
    A(f"""v_lshrrev_b32 v{t0}, 2, v0
    v_and_b32 v{t0}, 7, v{t0}
    v_lshrrev_b32 v{t1}, 5, v0
    v_lshl_add_u32 v{t1}, v{t1}, 4, v{t0}
    v_lshlrev_b32 v{t1}, 7, v{t1}
    v_and_b32 v{t0}, 6, v{t0}
    v_bfe_u32 v{dst}, v0, 1, 1
    v_xor_b32 v{t0}, v{t0}, v{dst}
    v_lshl_add_u32 v{t1}, v{t0}, 4, v{t1}
    v_and_b32 v{t0}, 1, v0
    v_lshl_add_u32 v{dst}, v{t0}, 3, v{t1}""")

ROT={1:"",0:f"s_mov_b32 s{sSG}, 0",2:f"s_add_u32 s{sSG}, s{sHQ}, s{sRB}\ns_and_b32 s{sSG}, s{sSG}, 1\ns_lshl_b32 s{sSG}, s{sSG}, 2",
     3:f"s_add_u32 s{sSG}, s{sHQ}, s{sRB}\ns_and_b32 s{sSG}, s{sSG}, 1", 4:f"s_and_b32 s{sSG}, s2, 7", 5:f"s_add_u32 s{sSG}, s{sHQ}, s{sRB}\ns_and_b32 s{sSG}, s{sSG}, 3"}[OPT.get('rot',0)]
A.label(NAME)
if OPT.get('dbgst') or OPT['stamp']: A("s_memrealtime s[100:101]")
A(f"""s_cmp_ge_u32 s2, 256
s_cbranch_scc1 L_end
s_load_dwordx16 s[4:19], s[0:1], 0
s_load_dwordx2 s[20:21], s[0:1], 64
v_lshrrev_b32 v1, 6, v0
v_and_b32 v0, 63, v0
s_lshr_b32 s{sT1}, s2, 3
v_readfirstlane_b32 s{sW}, v1
s_and_b32 s{sHQ}, s2, 1
s_lshl_b32 s{sHQ}, s{sHQ}, 2
s_and_b32 s{sT0}, s{sT1}, 3
s_add_u32 s{sHQ}, s{sHQ}, s{sT0}
s_and_b32 s{sRB}, s2, 6
s_lshl_b32 s{sRB}, s{sRB}, 2
s_lshr_b32 s{sT0}, s{sT1}, 2
s_add_u32 s{sRB}, s{sRB}, s{sT0}
s_lshl_b32 s{sSG}, s{sHQ}, 1
s_add_u32 s{sSG}, s{sSG}, s{sRB}
{ROT}
s_cmp_ge_u32 s{sW}, 8
s_cbranch_scc1 L_aux""")

VA=Alloc(2,168)
vx=VA.take(); vw=VA.take(); vt0=VA.take(); vt1=VA.take(); vt2=VA.take(); vt3=VA.take()
vL16=VA.take(); vVo=VA.take(); vIdx=VA.take(); vFl=VA.take(); vP=VA.take(2,2); vN=VA.take(2,2); vZ=VA.take()
vEQ0=VA.take(); vEK=VA.take(); vEV=VA.take(); vFl1=vEV; vLF=vt3; sRB8=sA0+13
ND=6
vBig=VA.mark()
Qf=[VA.take(4,4) for _ in range(2)]
Sb=[VA.take(16,4) for _ in range(2)]
Oa=[VA.take(16,4) for _ in range(2)]
Kf=[VA.take(4,4) for _ in range(ND)]
Vf=[VA.take(8,4) for _ in range(ND)]
sXoff=sA0; sM0=sA0+1; sWoff=sA0+2; sWoffK=sA0+33; sWoffV=sA0+34; sOwnV=sA0+35; sHK=sA0+36; sHV=sA0+37; sFOr=sA0+3; sOld=sA0+4; sOut=sA0+5; sOst=sA0+6; sFOw=sA0+7
sU0=sA0+8; sU1=sA0+9; sU2=sA0+10
sE=sA0+11; sKH=sA0+12; sKVb=sA0+14; sOff=sA0+15; sNon=sA0+16; sVM=sA0+18; sCnt=sA0+20; sBlk=sA0+21
sFKVr=sA0+22; sFKVw=sA0+23; sOwn=sA0+24; sLo=sA0+25; sHi=sA0+26; sX0=sA0+28
A(f"""v_lshrrev_b32 v{vt0}, 3, v0
v_mul_u32_u24 v{vw}, 3072, v{vt0}
v_lshlrev_b32 v{vt0}, 10, v{vt0}
v_lshrrev_b32 v{vt1}, 2, v0
v_and_b32 v{vt1}, 4, v{vt1}
v_xor_b32 v{vt1}, v{vt1}, v0
v_and_b32 v{vt1}, 7, v{vt1}
v_lshl_add_u32 v{vw}, v{vt1}, 4, v{vw}
v_lshrrev_b32 v{vt1}, 4, v0
v_xor_b32 v{vt1}, v{vt1}, v0
v_and_b32 v{vt1}, 7, v{vt1}
v_lshl_add_u32 v{vx}, v{vt1}, 4, v{vt0}
s_and_b32 s{sU0}, s{sW}, 1
s_lshl_b32 s{sU0}, s{sU0}, 6
v_xor_b32 v{vx}, s{sU0}, v{vx}
s_lshl_b32 s{sXoff}, s{sRB}, 16
s_lshl_b32 s{sU0}, s{sW}, 13
s_add_u32 s{sXoff}, s{sXoff}, s{sU0}
s_lshl_b32 s{sM0}, s{sW}, 10
s_mul_i32 s{sWoff}, s{sW}, 24576
s_and_b32 s{sU1}, s{sHQ}, 4
s_add_u32 s{sHK}, s{sHQ}, {OPT.get('rk',1)}
s_and_b32 s{sHK}, s{sHK}, 3
s_or_b32 s{sHK}, s{sHK}, s{sU1}
s_add_u32 s{sHV}, s{sHQ}, {OPT.get('rv',2)}
s_and_b32 s{sHV}, s{sHV}, 3
s_or_b32 s{sHV}, s{sHV}, s{sU1}
s_lshl_b32 s{sU0}, s{sHK}, 7
s_add_u32 s{sWoffK}, s{sWoff}, s{sU0}
s_lshl_b32 s{sU0}, s{sHV}, 7
s_add_u32 s{sWoffV}, s{sWoff}, s{sU0}
s_lshl_b32 s{sU0}, s{sHQ}, 7
s_add_u32 s{sWoff}, s{sWoff}, s{sU0}
s_mov_b32 s{SRD_XB+2}, 2097152
s_mov_b32 s{SRD_XB+3}, 0x00020000
s_mov_b32 s{SRD_WB+2}, 1572864
s_mov_b32 s{SRD_WB+3}, 0x00020000
s_waitcnt lgkmcnt(0)
s_mov_b32 s{SRD_XB}, s10
s_mov_b32 s{SRD_XB+1}, s11
s_mov_b32 s{SRD_WB}, s12
s_mov_b32 s{SRD_WB+1}, s13""")

def issue_stage(s):
    if OPT.get('nodma') and s>=2: return
    slot=s%4
    X,W=(SRD_XB,SRD_WB) if s<8 else (SRD_XA,SRD_WA)
    A(f"""s_add_u32 s{sU0}, s{sSG}, {s}
    s_and_b32 s{sU0}, s{sU0}, 7
    s_mul_i32 s{sU1}, s{sU0}, 196608
    s_lshl_b32 s{sU0}, s{sU0}, 7
    s_add_u32 m0, s{sM0}, {LX+slot*8192}
    s_add_u32 s{sU0}, s{sU0}, s{sXoff}""")
    A.vmem(f"buffer_load_dwordx4 v{vx}, {sr(X,4)}, s{sU0} offen lds", s)
    for p in (1,2,0):
        A(f"s_add_u32 m0, s{sM0}, {LW+slot*24576+p*7168}")
        A(f"s_add_u32 s{sU2}, s{sU1}, s{(sWoff,sWoffK,sWoffV)[p]}")
        A.vmem(f"buffer_load_dwordx4 v{vw}, {sr(W,4)}, s{sU2} offen offset:{p*1024} lds", s)

class Cap:
    def __enter__(self): self.n=len(A.lines); return self
    def __exit__(self,*a): self.l=A.lines[self.n:]; del A.lines[self.n:]
sF0=sA0+30; sF1=sA0+31; sF2=sA0+32
def att_setup1():
    srd(SRD_XA,4,2097152); srd(SRD_WA,6,1572864); srd(SRD_DBG,18,256)
    A(f"""s_lshr_b32 s{sE}, s{sW}, 1
    s_and_b32 s{sKH}, s{sW}, 1
    s_lshl_b32 s{sF1}, s{sHQ}, 2
    s_add_u32 s{sF1}, s{sF1}, s{sE}
    s_lshl_b32 s{sKVb}, s{sF1}, 17
    s_lshl_b32 s{sF0}, s{sKH}, 11
    s_add_u32 s{sKVb}, s{sKVb}, s{sF0}
    s_lshl_b32 s{sF1}, s{sHQ}, 5
    s_add_u32 s{sF1}, s{sF1}, s{sRB}
    s_lshl_b32 s{sF1}, s{sF1}, 7
    s_add_u32 s{sFKVw}, s{sF1}, {WS_FKV}
    s_lshl_b32 s{sF1}, s{sE}, 17
    s_add_u32 s{sF0}, s{sF0}, s{sF1}
    s_lshl_b32 s{sF2}, s{sRB}, 12
    s_add_u32 s{sF0}, s{sF0}, s{sF2}
    s_lshl_b32 s{sF1}, s{sHK}, 19
    s_add_u32 s{sOwn}, s{sF0}, s{sF1}
    s_lshl_b32 s{sF1}, s{sHV}, 19
    s_add_u32 s{sOwnV}, s{sF0}, s{sF1}
    s_mov_b32 s{sVM}, 0x0000ffff
    s_mov_b32 s{sVM+1}, 0x0000ffff
    v_lshlrev_b32 v{vL16}, 4, v0
    v_and_b32 v{vt0}, 15, v0
    v_lshlrev_b32 v{vt0}, 4, v{vt0}
    v_lshrrev_b32 v{vt1}, 5, v0
    v_lshl_add_u32 v{vVo}, v{vt1}, 8, v{vt0}
    v_mov_b32 v{vIdx}, 0xdddddddd
    v_mov_b32 v{vZ}, 0
    s_add_u32 s{sF1}, s{sM0}, {EX}
    v_add_u32 v{vEQ0}, s{sF1}, v{vL16}
    s_lshl_b32 s{sF1}, s{sW}, 11
    s_add_u32 s{sF1}, s{sF1}, {EX+8192}
    v_add_u32 v{vEK}, s{sF1}, v{vL16}""")
def att_setup2():
    A(f"""s_and_b32 s{sF2}, s{sHQ}, 4
    s_sub_u32 s{sF0}, s{sHQ}, {OPT.get('rk',1)}
    s_and_b32 s{sF0}, s{sF0}, 3
    s_or_b32 s{sF0}, s{sF0}, s{sF2}
    s_lshl_b32 s{sF0}, s{sF0}, 12
    s_sub_u32 s{sF1}, s{sHQ}, {OPT.get('rv',2)}
    s_and_b32 s{sF1}, s{sF1}, 3
    s_or_b32 s{sF1}, s{sF1}, s{sF2}
    s_lshl_b32 s{sF1}, s{sF1}, 12
    v_mov_b32 v{vt0}, s{sF0}
    v_mov_b32 v{vt1}, s{sF1}
    v_cmp_gt_u32 vcc, 32, v0
    v_and_b32 v{vFl}, 31, v0
    s_mov_b32 s{sFKVr}, {WS_FKV}
    v_cndmask_b32 v{vt2}, v{vt1}, v{vt0}, vcc
    v_lshl_add_u32 v{vFl}, v{vFl}, 7, v{vt2}
    v_cmp_gt_u32 vcc, 8, v0
    v_and_b32 v{vFl1}, 7, v0
    s_andn2_b32 s{sRB8}, s{sRB}, 7
    v_cndmask_b32 v{vt2}, v{vt1}, v{vt0}, vcc
    v_add_u32 v{vFl1}, s{sRB8}, v{vFl1}
    v_lshl_add_u32 v{vFl1}, v{vFl1}, 7, v{vt2}
    v_mov_b32 v{vLF}, {LF}""")
    A(f"""v_and_b32 v{vt0}, 27, v0
    v_cmp_eq_u32 vcc, 16, v{vt0}
    v_mov_b32 v{vt1}, 0x3f803f80
    s_nop 0
    v_cndmask_b32 v{vt1}, 0, v{vt1}, vcc""")
    for d in range(ND):
        for i in range(8): A(f"v_mov_b32 v{Vf[d]+i}, v{vt1}")
def att_setup3():
    for d in range(2):
        for i in range(16): A(f"v_mov_b32 v{Oa[d]+i}, 0")
    A(f"""s_lshl_b32 s{sF0}, s{sRB}, 1
    s_add_u32 s{sF0}, s{sF0}, s{sKH}
    s_lshl_b32 s{sOst}, s{sF0}, 5
    s_lshl_b32 s{sF1}, s{sHQ}, 1
    s_add_u32 s{sOst}, s{sOst}, s{sF1}
    s_lshr_b32 s{sF1}, s{sE}, 1
    s_add_u32 s{sOst}, s{sOst}, s{sF1}
    s_lshl_b32 s{sOst}, s{sOst}, 10
    s_add_u32 s{sOst}, s{sOst}, {WS_OFB}
    s_lshl_b32 s{sFOr}, s{sRB}, 10
    s_add_u32 s{sFOr}, s{sFOr}, {WS_FOB}
    s_lshl_b32 s{sFOw}, s{sHQ}, 7
    s_add_u32 s{sFOw}, s{sFOw}, s{sFOr}
    s_and_b32 s{sF0}, s{sW}, 3
    s_lshl_b32 s{sF1}, s{sRB}, 2
    s_add_u32 s{sF1}, s{sF1}, s{sF0}
    s_lshr_b32 s{sF2}, s{sW}, 2
    s_lshl_b32 s{sOld}, s{sF1}, 1
    s_add_u32 s{sOld}, s{sOld}, s{sF2}
    s_lshl_b32 s{sOld}, s{sOld}, 13
    s_add_u32 s{sOld}, s{sOld}, {WS_OFB}
    s_lshl_b32 s{sOut}, s{sF1}, 15
    s_lshl_b32 s{sF0}, s{sHQ}, 7
    s_add_u32 s{sOut}, s{sOut}, s{sF0}
    s_lshl_b32 s{sF0}, s{sF2}, 6
    s_add_u32 s{sOut}, s{sOut}, s{sF0}
    s_add_u32 s{sOut}, s{sOut}, 1024
    s_mov_b32 s{sLo}, {f2u(2.0**-64):#x}
    s_mov_b32 s{sHi}, {f2u(2.0**64):#x}""")
    srd(SRD_OUT,16,4194304)
with Cap() as c1: att_setup1()
with Cap() as c2: att_setup2()
with Cap() as c3: att_setup3()
FILL1=c1.l
FILL2=c2.l+c3.l
def fill(q,n):
    k=min(n,len(q))
    while k<len(q) and any(x.startswith('v_cmp') for x in q[max(0,k-3):k]): k+=1
    for l in q[:k]: A(l)
    del q[:k]
def att_read_ex():
    A.lds(f"ds_read_b128 {vr(Sb[0],4)}, v{vEK}",'k0')
    A.lds(f"ds_read_b128 {vr(Sb[0]+4,4)}, v{vEK} offset:1024",'v0')
    A.wait_lg('k0')
    A.vmem(f"buffer_store_dwordx4 {vr(Sb[0],4)}, v{vL16}, {sr(SRD_WS,4)}, s{sOwn} offen sc1",'kvst')
    A.wait_lg('v0')
    A.vmem(f"buffer_store_dwordx4 {vr(Sb[0]+4,4)}, v{vL16}, {sr(SRD_WS,4)}, s{sOwnV} offen offset:1024 sc1",'kvst')
sG8=sA0+27
def kv_load(i):
    if OPT.get('nokv'): return
    d=i%ND
    if i%8==0:
        A(f"""s_add_u32 s{sG8}, s{sRB8}, {i}
        s_and_b32 s{sG8}, s{sG8}, 31
        s_lshl_b32 s{sG8}, s{sG8}, 12
        s_add_u32 s{sG8}, s{sG8}, s{sKVb}""")
    A(f"""s_add_u32 s{sBlk}, s{sRB}, {i}
    s_and_b32 s{sBlk}, s{sBlk}, 7
    s_lshl_b32 s{sBlk}, s{sBlk}, 12
    s_add_u32 s{sOff}, s{sBlk}, s{sG8}""")
    A.vmem(f"buffer_load_dwordx4 {vr(Kf[d],4)}, v{vL16}, {sr(SRD_WS,4)}, s{sOff} offen sc1",('kv',i))
    if OPT.get('konly'): return
    A(f"s_mov_b64 exec, {sr(sVM,2)}")
    A.vmem(f"buffer_load_dwordx4 {vr(Vf[d],4)}, v{vVo}, {sr(SRD_WS,4)}, s{sOff} offen offset:1024 sc1",('kv',i))
    A.vmem(f"buffer_load_dwordx4 {vr(Vf[d]+4,4)}, v{vVo}, {sr(SRD_WS,4)}, s{sOff} offen offset:1536 sc1",('kv',i))
    A("s_mov_b64 exec, -1")
def QK(u): A(f"v_mfma_f32_32x32x16_bf16 {vr(Sb[u%2],16)}, {vr(Kf[(u//2)%ND],4)}, {vr(Qf[u%2],4)}, 0")
def PV(u,t): A(f"v_smfmac_f32_32x32x32_bf16 {vr(Oa[u%2],16)}, {vr(Vf[(u//2)%ND]+4*t,4)}, {vr(Sb[u%2]+8*t,8)}, v{vIdx}")
NU=64
if OPT.get('pm',1)==0: PRIO0=2; PRIO={28:1,56:0}
else: PRIO0=3; PRIO={OPT.get('q1',20):2,OPT.get('q2',40):1,OPT.get('q3',58):0}
CK=OPT.get('ck',12)
SCHED={}
nxt=2
for u_ in range(64):
    lim=u_//2-1+ND if u_>=2 else ND-1
    if u_<CK and not OPT.get('nock'): lim=min(lim,7)
    k=0
    while nxt<=min(lim,31) and k<(2 if u_>=CK else 1):
        SCHED.setdefault(u_,[]).append(nxt); nxt+=1; k+=1
def unit(u, noqk=False):
    S=Sb[u%2]
    E=lambda r: A(f"v_exp_f32 v{S+r}, v{S+r}")
    E(0);E(1)
    if u>0: PV(u-1,1)
    E(2);E(3);E(4)
    if u==CK-3 and not OPT.get('nock'): poll_issue(vP,vFl,sFKVr)
    if u==CK and not OPT.get('nock'): poll_check(vP,vFl,sFKVr,sCnt,sNon)
    for i in SCHED.get(u,[]): kv_load(i)
    if u in PRIO: A(f"s_setprio {PRIO[u]}")
    if u+1<NU and not noqk:
        if (u+1)%2==0: A.wait_vm(('kv',(u+1)//2))
        QK(u+1)
    for r in range(5,10): E(r)
    PV(u,0)
    for r in range(10,16): E(r)
    if u in (3,5,9,17,33): stamp(18+(3,5,9,17,33).index(u), 1 if u in (5,33) else 2)
issue_stage(0); issue_stage(1)
srd(SRD_WS,20,WS_BYTES)
stamp(0)
issue_stage(2)
for s in range(8):
    A.wait_vm(s)
    A("s_barrier")
    stamp(1+s, 1 if s in (0,4) else 2)
    if s<7: issue_stage(s+3)
    fill(FILL1, 9)
    if s==4: A.vmem(f"buffer_load_dwordx2 {vr(vN,2)}, v{vZ}, {sr(SRD_DBG,4)}, 0 offen sc1",'non')
    if not FILL1: fill(FILL2, 12 if s<7 else 40)
assert not FILL1
A.wait_vm('non')
nonce_check(vN,vZ,sNon,sCnt,sU0)
A("s_barrier")
stamp(30)
att_read_ex()
issue_stage(10)
FS=OPT.get('fs',9)
for s in range(8,13):
    A.wait_vm(s)
    if s==FS: A.wait_vm('kvst')
    A("s_barrier")
    stamp(1+s,2)
    issue_stage(s+3)
    if s==8:
        A.lds(f"ds_read_b128 {vr(Qf[0],4)}, v{vEQ0}")
        A(f"v_xor_b32 v{vEQ0}, 1024, v{vEQ0}")
        A.lds(f"ds_read_b128 {vr(Qf[1],4)}, v{vEQ0}")
        A.wait_lg_all()
    fill(FILL2, 20 if s<12 else 999)
if OPT.get('all1'): poll_issue(vP,vFl,sFKVr)
else: poll_issue(vP,vFl1,sFKVr,0xffff)
A.wait_vm(13)
A("s_barrier")
stamp(14,2)
if OPT.get('all1'): poll_check(vP,vFl,sFKVr,sCnt,sNon)
else: poll_check(vP,vFl1,sFKVr,sCnt,sNon,0xffff)
stamp(16,2)
for i in range(2): kv_load(i)
A("s_barrier")
stamp(17)
A(f"s_setprio {PRIO0}")
A.wait_vm(('kv',0))
QK(0)
A("s_nop 11")
for u in range(NU):
    unit(u)
    if u==OPT.get('b15',1): A("s_barrier")
A("s_nop 1")
PV(NU-1,1)
stamp(23)
A("s_setprio 3")
vR=Sb[0]; vRa=Sb[1]
A(f"""s_mul_i32 s{sU0}, s{sW}, 2304
s_add_u32 s{sU0}, s{sU0}, {RED}
v_add_u32 v{vRa}, s{sU0}, v{vL16}
v_lshlrev_b32 v{vRa+1}, 2, v0
v_add_u32 v{vRa+1}, s{sU0}, v{vRa+1}
s_xor_b32 s{sU1}, s{sW}, 1
s_mul_i32 s{sU1}, s{sU1}, 2304
s_add_u32 s{sU1}, s{sU1}, {RED}
v_add_u32 v{vEK}, s{sU1}, v{vL16}
v_lshlrev_b32 v{vRa+3}, 2, v0
v_add_u32 v{vRa+3}, s{sU1}, v{vRa+3}""")
A.lds(f"ds_write_b128 v{vRa}, {vr(Oa[1],4)}")
A.lds(f"ds_write_b128 v{vRa}, {vr(Oa[1]+4,4)} offset:1024")
A.lds(f"ds_write_b32 v{vRa+1}, v{Oa[1]+8} offset:2048")
A(f"""v_bfe_u32 v{vRa+4}, v0, 4, 1
v_lshlrev_b32 v{vRa+4}, 14, v{vRa+4}
v_add_u32 v{vRa+4}, v{vRa+4}, v{vVo}
s_and_b32 s{sU0}, s{sE}, 1
s_lshl_b32 s{sU0}, s{sU0}, 9
v_add_u32 v{vRa+4}, s{sU0}, v{vRa+4}""")
A.wait_lg_all()
A("s_barrier")
stamp(24)
A.lds(f"ds_read_b32 v{vR+8}, v{vRa+3} offset:2048",'r2')
A.lds(f"ds_read_b128 {vr(vR,4)}, v{vEK}",'r0')
A.lds(f"ds_read_b128 {vr(vR+4,4)}, v{vEK} offset:1024",'r1')
A.wait_lg('r2')
A(f"""v_add_f32 v{Oa[0]+8}, v{Oa[0]+8}, v{vR+8}
v_cmp_nle_f32 vcc, s{sLo}, v{Oa[0]+8}
v_cmp_nge_f32 {sr(sX0,2)}, s{sHi}, v{Oa[0]+8}""")
A.wait_lg('r0')
for i in range(4): A(f"v_add_f32 v{Oa[0]+i}, v{Oa[0]+i}, v{vR+i}")
A.wait_lg('r1')
for i in range(4,8): A(f"v_add_f32 v{Oa[0]+i}, v{Oa[0]+i}, v{vR+i}")
A(f"""s_or_b64 vcc, vcc, {sr(sX0,2)}
s_cmp_lg_u64 vcc, 0
s_cbranch_scc1 L_fallback""")
A.label("L_norm")
A(f"v_rcp_f32 v{vR+9}, v{Oa[0]+8}\ns_nop 0")
for i in range(8): A(f"v_mul_f32 v{Oa[0]+i}, v{Oa[0]+i}, v{vR+9}")
for i in range(4): A(f"v_cvt_pk_bf16_f32 v{vR+i}, v{Oa[0]+2*i}, v{Oa[0]+2*i+1}")
A.vmem(f"buffer_store_dwordx4 {vr(vR,4)}, v{vRa+4}, {sr(SRD_WS,4)}, s{sOst} offen sc1")
stamp(28,2)
VB=Alloc(vBig,168)
Of=[VB.take(4,4) for _ in range(8)]
Wf=[[VB.take(4,4) for _ in range(4)] for _ in range(6)]
Ac=[VB.take(4,4) for _ in range(4)]
vWA=[vx,vw,vt2,vt3]; vOo=vEQ0; vXw=vEK; vXr=vEV
wo_tr_addr(vx,vt0,vt1)
A(f"""s_lshr_b32 s{sU2}, s{sW}, 2
s_lshl_b32 s{sU0}, s{sU2}, 15
s_lshl_b32 s{sU1}, s{sU2}, 6
v_add_u32 v{vx}, s{sU0}, v{vx}
v_xor_b32 v{vx}, s{sU1}, v{vx}
v_xor_b32 v{vw}, 32, v{vx}
v_xor_b32 v{vt2}, 64, v{vx}
v_xor_b32 v{vt3}, 96, v{vx}""")
assert WOB==0
def wo_read(hp_, slotset):
    for c in range(4):
        A.lds(f"ds_read_b64_tr_b16 {vr(Wf[slotset][c],2)}, v{vWA[c]} offset:{hp_*4096}",('wo',hp_))
        A.lds(f"ds_read_b64_tr_b16 {vr(Wf[slotset][c]+2,2)}, v{vWA[c]} offset:{hp_*4096+1024}",('wo',hp_))
wo_read(0,0)
A(f"""v_and_b32 v{vFl}, 15, v0
v_lshlrev_b32 v{vOo}, 11, v{vFl}
v_lshlrev_b32 v{vFl}, 7, v{vFl}
v_lshrrev_b32 v{vt0}, 4, v0
v_lshl_add_u32 v{vOo}, v{vt0}, 3, v{vOo}
s_xor_b32 s{sU1}, s{sW}, 5
s_mul_i32 s{sU1}, s{sU1}, 2304
s_add_u32 s{sU1}, s{sU1}, {RED}
v_add_u32 v{vXr}, s{sU1}, v{vL16}""")
A.wait_lg_all(); wo_read(1,1)
A(f"v_mov_b32 v{vt0}, {LF}\nv_mov_b32 v{vt1}, 1")
A.wait_vm_all()
A("s_mov_b64 exec, 1")
A.lds(f"ds_add_rtn_u32 v{vP}, v{vt0}, v{vt1} offset:40",'cnt')
A("s_mov_b64 exec, -1")
A.wait_lg('cnt')
A(f"""v_readfirstlane_b32 s{sU0}, v{vP}
s_cmp_lg_u32 s{sU0}, 7
s_cbranch_scc1 L_nl1""")
flag_store(vN,vZ,sFOw)
poll_issue(vP,vFl,sFOr,0xff)
A.label("L_nl1")
stamp(25)
for i in range(2,6):
    A.wait_lg_all(); wo_read(i,i)
A.wait_lg_all()
A(f"s_cmp_lg_u32 s{sU0}, 7\ns_cbranch_scc1 L_nl2")
poll_check(vP,vFl,sFOr,sCnt,sNon,0xff)
A(f"ds_write_b32 v{vt0}, v{vt1} offset:36\ns_branch L_nl3")
A.label("L_nl2")
lds_word_spin(vP,vt0,36,sCnt,sU1)
A.label("L_nl3")
A.vm=[]
stamp(26)
for i in range(8):
    if i==4: A(f"s_add_u32 s{sOld}, s{sOld}, 4096")
    A.vmem(f"buffer_load_dwordx4 {vr(Of[i],4)}, v{vL16}, {sr(SRD_WS,4)}, s{sOld} offen offset:{(i%4)*1024} sc1",('of',i))
A.wait_lg_all()
for i in range(8):
    A.wait_vm(('of',i))
    if i>=6: A.wait_lg(('wo',i))
    for c in range(4):
        A(f"v_mfma_f32_16x16x32_bf16 {vr(Ac[c],4)}, {vr(Wf[i%6][c],4)}, {vr(Of[i],4)}, {'0' if i==0 else vr(Ac[c],4)}")
    if i<2:
        A.wait_lg_all(); wo_read(6+i,i)
A("s_nop 7")
A.lds(f"ds_write_b128 v{vXw}, {vr(Ac[2],4)}")
A.lds(f"ds_write_b128 v{vXw}, {vr(Ac[3],4)} offset:1024")
A.wait_lg_all()
A("s_barrier")
A.lds(f"ds_read_b128 {vr(Ac[2],4)}, v{vXr}",'x0')
A.lds(f"ds_read_b128 {vr(Ac[3],4)}, v{vXr} offset:1024",'x1')
for c in range(2):
    A.wait_lg(f'x{c}')
    for i in range(4): A(f"v_add_f32 v{Ac[c]+i}, v{Ac[c]+i}, v{Ac[2+c]+i}")
    A(f"v_cvt_pk_bf16_f32 v{Ac[c]}, v{Ac[c]}, v{Ac[c]+1}\nv_cvt_pk_bf16_f32 v{Ac[c]+1}, v{Ac[c]+2}, v{Ac[c]+3}")
    A.vmem(f"buffer_store_dwordx2 {vr(Ac[c],2)}, v{vOo}, {sr(SRD_OUT,4)}, s{sOut} offen offset:{c*32}")
stamp(27)
stamp_out(vt0)
if OPT.get('dbgst'):
    sel=[0,1,5,30,9,17,19,22,23,24,25,26,27]
    A(f"""s_cmp_lg_u32 s{sW}, 0
    s_cbranch_scc1 L_end
    s_sub_u32 s100, 0, s100
    v_mov_b32 v{vt1}, s100""")
    for j,ix in enumerate(sel):
        A(f"v_readlane_b32 s96, v{vSt}, {ix}\ns_nop 1\nv_writelane_b32 v{vt1}, s96, {j+1}")
    A(f"""v_lshlrev_b32 v{vt0}, 2, v0
    s_mov_b64 exec, 0x3fff
    buffer_atomic_umax v{vt1}, v{vt0}, {sr(SRD_DBG,4)}, 0 offen offset:8 sc1
    s_waitcnt vmcnt(0)""")
A("s_endpgm")

A.label("L_fallback"); A.reset()
fC=Oa[1]; fM=vt0; fT=vt1; fS=Kf[0]
fK=Kf[4]; fV=Vf[0]
A(f"""s_lshl_b32 s{sU0}, s{sKH}, 11
s_sub_u32 s{sU2}, s{sKVb}, s{sU0}
s_mov_b32 s{sOff}, s{sU2}
s_mov_b32 s{sCnt}, 0
v_mov_b32 v{fM}, {NEGBIG:#x}""")
A.label("L_fb1")
A(f"""buffer_load_dwordx4 {vr(fK,4)}, v{vL16}, {sr(SRD_WS,4)}, s{sOff} offen sc1
s_waitcnt vmcnt(0)
v_mfma_f32_32x32x16_bf16 {vr(fS,16)}, {vr(fK,4)}, {vr(Qf[0],4)}, 0
s_add_u32 s{sOff}, s{sOff}, 2048
s_add_u32 s{sCnt}, s{sCnt}, 1
s_nop 11""")
for i in range(8): A(f"v_max3_f32 v{fM}, v{fM}, v{fS+2*i}, v{fS+2*i+1}")
A(f"""s_cmp_lt_u32 s{sCnt}, 64
s_cbranch_scc1 L_fb1
v_mov_b32 v{fT}, v{fM}
s_nop 1
v_permlane32_swap_b32 v{fM}, v{fT}
s_nop 1
v_max_f32 v{fM}, v{fM}, v{fT}""")
for i in range(16): A(f"v_sub_f32 v{fC+i}, 0, v{fM}")
for i in range(16): A(f"v_mov_b32 v{Oa[0]+i}, 0")
A(f"""s_mov_b32 s{sOff}, s{sU2}
s_mov_b32 s{sCnt}, 0""")
A.label("L_fb2")
A(f"""buffer_load_dwordx4 {vr(fK,4)}, v{vL16}, {sr(SRD_WS,4)}, s{sOff} offen sc1
s_mov_b64 exec, {sr(sVM,2)}
buffer_load_dwordx4 {vr(fV,4)}, v{vVo}, {sr(SRD_WS,4)}, s{sOff} offen offset:1024 sc1
buffer_load_dwordx4 {vr(fV+4,4)}, v{vVo}, {sr(SRD_WS,4)}, s{sOff} offen offset:1536 sc1
s_mov_b64 exec, -1
s_waitcnt vmcnt(0)
v_mfma_f32_32x32x16_bf16 {vr(fS,16)}, {vr(fK,4)}, {vr(Qf[0],4)}, {vr(fC,16)}
s_add_u32 s{sOff}, s{sOff}, 2048
s_add_u32 s{sCnt}, s{sCnt}, 1
s_nop 11""")
for i in range(16): A(f"v_exp_f32 v{fS+i}, v{fS+i}")
A(f"""s_nop 1
v_smfmac_f32_32x32x32_bf16 {vr(Oa[0],16)}, {vr(fV,4)}, {vr(fS,8)}, v{vIdx}
v_smfmac_f32_32x32x32_bf16 {vr(Oa[0],16)}, {vr(fV+4,4)}, {vr(fS+8,8)}, v{vIdx}
s_cmp_lt_u32 s{sCnt}, 64
s_cbranch_scc1 L_fb2
s_nop 15
s_branch L_norm""")

A.label("L_aux")
A.reset()
VX=Alloc(2,168)
xt0=VX.take(); xt1=VX.take(); xt2=VX.take(); xZ=VX.take(); xN=VX.take(2,2)
xL16=VX.take(); xVo=VX.take()
xBig=VX.mark()
va=[VX.take() for _ in range(4)]; vwa=[VX.take() for _ in range(2)]
gx=VX.take(); gw=VX.take(); gF=VX.take(); gDum=VX.take(); vKpos=VX.take(); vLK=VX.take(); vLV=VX.take(); vLQ=VX.take(); vV1=VX.take(); xIdx=VX.take(); mt=VX.take()
accQ=VX.take(16,4); accK=VX.take(16,4); accV=VX.take(16,4)
xf=[VX.take(4,4) for _ in range(3)]
wf=[[VX.take(4,4) for _ in range(3)] for _ in range(3)]
Mk=VX.take(24,4)
pQ=VX.take(8,4)
sT=sA0; sC=sA0+1; sV0=sA0+2; sV1=sA0+3; sNx=sA0+4; sCx=sA0+6; sVMx=sA0+8; sRT=sA0+10; sV2=sA0+11; sV3=sA0+12
sXK=sA0+25; sXV=sA0+26; sGq=sA0+27; sGk=sA0+28; sGv=sA0+29; sGX=sA0+19; sGW=sA0+20; sGM=sA0+21; sG0=sA0+22; sG1=sA0+23; sG2=sA0+24
sB0=sA0+13; sB1=sA0+14; sB2=sA0+15; sHa=sA0+16; sHf=sA0+17; sJ=sA0+18
A(f"""s_setprio 3
s_sub_u32 s{sT}, s{sW}, 8
s_and_b32 s{sRT}, s{sT}, 1
s_lshr_b32 s{sJ}, s{sT}, 1
v_mov_b32 v{xZ}, 0
s_waitcnt lgkmcnt(0)""")
srd(SRD_WS,20,WS_BYTES); srd(SRD_DBG,18,256)
A(f"""s_add_u32 s{sV0}, s2, s{sT}
s_cmp_lg_u32 s{sV0}, 0
s_cbranch_scc1 L_nonon
s_mov_b32 s{sV0}, {WS_EPOCH}
s_mov_b64 exec, 1
buffer_load_dwordx2 {vr(xN,2)}, v{xZ}, {sr(SRD_WS,4)}, s{sV0} offen sc1
s_waitcnt vmcnt(0)
v_add_u32 v{xN}, 2, v{xN}
v_or_b32 v{xN}, 1, v{xN}
v_or_b32 v{xN+1}, 0x80000000, v{xN+1}
buffer_store_dwordx2 {vr(xN,2)}, v{xZ}, {sr(SRD_DBG,4)}, 0 offen sc1
buffer_store_dwordx2 {vr(xN,2)}, v{xZ}, {sr(SRD_WS,4)}, s{sV0} offen sc1
s_mov_b64 exec, -1""")
A.label("L_nonon")
stamp(0)
A(f"""v_mov_b32 v{xt0}, {LF}
v_lshl_add_u32 v{xt0}, v0, 2, v{xt0}
ds_write_b32 v{xt0}, v{xZ}
v_and_b32 v{xt0}, 31, v0
v_lshrrev_b32 v{xt1}, 5, v0
v_bfe_u32 v{xt2}, v0, 1, 3
v_xor_b32 v{xt2}, v{xt2}, v{xt1}
v_lshlrev_b32 v{xt2}, 4, v{xt2}
v_lshl_add_u32 v{xt2}, v{xt0}, 7, v{xt2}
s_lshl_b32 s{sV0}, s{sRT}, 12
s_add_u32 s{sV0}, s{sV0}, {LX}
v_add_u32 v{va[0]}, s{sV0}, v{xt2}""")
for s in range(1,4): A(f"v_xor_b32 v{va[s]}, {32*s}, v{va[0]}")
A(f"""v_bfe_u32 v{xt2}, v0, 2, 2
v_lshl_add_u32 v{xt2}, v{xt1}, 3, v{xt2}
v_lshlrev_b32 v{xt2}, 7, v{xt2}
v_bfe_u32 v{vV1}, v0, 4, 1
v_lshl_add_u32 v{xt2}, v{vV1}, 5, v{xt2}
v_and_b32 v{vwa[0]}, 3, v0
v_lshl_add_u32 v{xt2}, v{vwa[0]}, 3, v{xt2}
v_bfe_u32 v{vwa[0]}, v0, 3, 1
v_lshl_add_u32 v{xt2}, v{vwa[0]}, 6, v{xt2}
s_lshl_b32 s{sV0}, s{sJ}, 6
v_xor_b32 v{vwa[0]}, s{sV0}, v{xt2}
v_add_u32 v{vwa[1]}, 49152, v{vwa[0]}
v_and_b32 v{vKpos}, 0x33, v0
v_bfe_u32 v{xt2}, v0, 2, 1
v_lshl_add_u32 v{vKpos}, v{xt2}, 3, v{vKpos}
v_bfe_u32 v{xt2}, v0, 3, 1
v_lshl_add_u32 v{vKpos}, v{xt2}, 2, v{vKpos}
v_lshlrev_b32 v{vKpos}, 4, v{vKpos}
v_and_b32 v{xt2}, 15, v0
v_lshlrev_b32 v{xt2}, 4, v{xt2}
v_lshl_add_u32 v{xVo}, v{xt1}, 8, v{xt2}
v_lshl_add_u32 v{vLV}, v{vV1}, 12, v{xVo}
s_lshl_b32 s{sV0}, s{sJ}, 13
s_lshl_b32 s{sV1}, s{sRT}, 11
s_add_u32 s{sV0}, s{sV0}, s{sV1}
s_add_u32 s{sV1}, s{sV0}, {EX+8192}
v_add_u32 v{vLV}, s{sV1}, v{vLV}
v_add_u32 v{vLK}, s{sV1}, v{vKpos}
s_lshr_b32 s{sV0}, s{sV0}, 1
s_add_u32 s{sV0}, s{sV0}, {EX}
v_lshlrev_b32 v{xL16}, 4, v0
v_add_u32 v{vLQ}, s{sV0}, v{xL16}
s_mov_b32 s{sC}, {f2u(CSCALE):#x}
s_mov_b32 s{sVMx}, 0x0000ffff
s_mov_b32 s{sVMx+1}, 0x0000ffff""")
assert LW==0
A(f"""s_and_b32 s{sV1}, s{sHQ}, 4
s_add_u32 s{sXK}, s{sHQ}, {OPT.get('rk',1)}
s_and_b32 s{sXK}, s{sXK}, 3
s_or_b32 s{sXK}, s{sXK}, s{sV1}
s_add_u32 s{sXV}, s{sHQ}, {OPT.get('rv',2)}
s_and_b32 s{sXV}, s{sXV}, 3
s_or_b32 s{sXV}, s{sXV}, s{sV1}
s_lshl_b32 s{sV0}, s{sT}, 2
s_add_u32 s{sV0}, s{sV0}, {LF}
v_mov_b32 v{gF}, s{sV0}
s_lshl_b32 s{sGX}, s{sHQ}, 5
s_add_u32 s{sGX}, s{sGX}, s{sRB}
s_lshl_b32 s{sGX}, s{sGX}, 7
s_add_u32 s{sGX}, s{sGX}, {WS_FKV}""")
def a_next(): pass
A(f"""v_lshlrev_b32 v{xt1}, 3, v{xt1}
v_sub_u32 v{xt0}, v{xt0}, v{xt1}
s_add_u32 s{sV0}, s{sRB}, s{sRT}
s_cmp_eq_u32 s{sV0}, 0
s_cselect_b32 s{sV0}, 1016, 16
v_add_u32 v{xt1}, s{sV0}, v{xt0}
v_mov_b32 v{xt2}, {NEGBIG:#x}
s_mov_b32 s{sV1}, 0xfffffff1""")
for r in range(24):
    src,c=(xt0,16*(r//8)+r%8) if r<16 else (xt1,r-16)
    A(f"v_subrev_u32 v{Mk+r}, {c}, v{src}")
    A(f"v_and_b32 v{Mk+r}, s{sV1}, v{Mk+r}")
for r in range(0,24,2):
    A(f"v_cmp_eq_u32 vcc, 0, v{Mk+r}")
    A(f"v_cmp_eq_u32 {sr(sNx,2)}, 0, v{Mk+r+1}")
    A("s_nop 0")
    A(f"v_cndmask_b32 v{Mk+r}, v{xt2}, 0, vcc")
    A(f"v_cndmask_b32 v{Mk+r+1}, v{xt2}, 0, {sr(sNx,2)}")
if OPT['pfc']:
    A(f"s_getpc_b64 {sr(sNx,2)}")
    A.label("L_pc")
    A(f"""s_sub_u32 s{sNx}, s{sNx}, L_pc-{NAME}
    s_subb_u32 s{sNx+1}, s{sNx+1}, 0
    s_lshl_b32 s{sV0}, s{sT}, 13
    s_mov_b32 s{sV1}, L_codeend-{NAME}-4
    v_lshlrev_b32 v{xt2}, 7, v0
    v_add_u32 v{xt2}, s{sV0}, v{xt2}
    v_min_u32 v{xt2}, s{sV1}, v{xt2}""")

def g_rd(n, part, force=False):
    if OPT.get('nord') or n>=64 or (n in (32,33) and not force): return
    s,ks=divmod(n,4); slot=s%4; b=n%3
    if part==0: A.lds(f"ds_read_b128 {vr(xf[b],4)}, v{va[ks]} offset:{slot*8192}", ('x',n))
    p=(1,2,0)[part]
    o=(slot%2)*24576+p*8192+ks*2048
    A.lds(f"ds_read_b64_tr_b16 {vr(wf[b][p],2)}, v{vwa[slot//2]} offset:{o}", ('w',n,p))
    A.lds(f"ds_read_b64_tr_b16 {vr(wf[b][p]+2,2)}, v{vwa[slot//2]} offset:{o+512}", ('w',n,p))
SLOW=OPT.get('slow',14)
def aux_flag():
    A(f"s_cmp_lg_u32 s{sT}, 0\ns_cbranch_scc1 L_nf1")
    flag_store(xN,xZ,sGX)
    A.label("L_nf1")
def g_step(n):
    s,ks=divmod(n,4); b=n%3; first=(n%32==0)
    C=lambda acc: "0" if first else vr(acc,16)
    M=[lambda: A(f"v_mfma_f32_32x32x16_bf16 {vr(accK,16)}, {vr(wf[b][1],4)}, {vr(xf[b],4)}, {C(accK)}"),
       lambda: A(f"v_mfma_f32_32x32x16_bf16 {vr(accV,16)}, {vr(xf[b],4)}, {vr(wf[b][2],4)}, {C(accV)}"),
       lambda: A(f"v_mfma_f32_32x32x16_bf16 {vr(accQ,16)}, {vr(wf[b][0],4)}, {vr(xf[b],4)}, {C(accQ)}")]
    if ks==2:
        A.wait_lg_all()
        if s!=7 and s<15: A("s_barrier")
        if s+1==FS and s!=7: aux_flag()
    else: A.wait_lg(('w',n,1))
    M[0](); a_next()
    g_rd(n+2,0)
    A.wait_lg(('w',n,2))
    M[1](); a_next()
    g_rd(n+2,1)
    A.wait_lg(('w',n,0))
    M[2](); a_next()
    g_rd(n+2,2)
    if n==20: A.vmem(f"buffer_load_dwordx2 {vr(xN,2)}, v{xZ}, {sr(SRD_DBG,4)}, 0 offen sc1",'non')
    if n==9 and OPT['pfc']: A.vmem(f"global_load_dword v{gDum}, v{xt2}, {sr(sNx,2)}")
def pack16(dst, acc, scale=False):
    if scale:
        for i in range(16): A(f"v_mul_f32 v{acc+i}, s{sC}, v{acc+i}")
    for i in range(8): A(f"v_cvt_pk_bf16_f32 v{dst+i}, v{acc+2*i}, v{acc+2*i+1}")
A.wait_lg_all()
A("s_barrier")
for n in range(2):
    for p in range(3): g_rd(n,p)
for n in range(32): g_step(n)
A("s_nop 9")
pack16(accK,accK)
A.lds(f"ds_write_b128 v{vLK}, {vr(accK,4)}",'e')
A.lds(f"ds_write_b128 v{vLK}, {vr(accK+4,4)} offset:4096",'e')
pack16(accV,accV)
A.lds(f"ds_write_b128 v{vLV}, {vr(accV,4)} offset:1024",'e')
A.lds(f"ds_write_b128 v{vLV}, {vr(accV+4,4)} offset:1536",'e')
for i in range(16): A(f"v_mul_f32 v{accQ+i}, s{sC}, v{accQ+i}")
A.wait_lg_all()
A("s_barrier")
pack16(accQ,accQ)
A.lds(f"ds_write_b128 v{vLQ}, {vr(accQ,4)}",'e')
A.lds(f"ds_write_b128 v{vLQ}, {vr(accQ+4,4)} offset:2048",'e')
gOne=vLQ; gLF=vLV; gFL=pQ
A.wait_lg_all()
A(f"v_mov_b32 v{gOne}, 1\nv_mov_b32 v{gLF}, {LF}")
A.wait_vm('non')
nonce_check(xN,xZ,sNx,sCx,sV1)
stamp(9)
A("s_barrier")
if FS==8: aux_flag()
for n in (32,33):
    for p in range(3): g_rd(n,p,True)
for n in range(32,64): g_step(n)
A("s_nop 9")
stamp(17)
if OPT.get('gonly'):
    stamp_out(xt0); A("s_endpgm")
A.lds(f"ds_write_b32 v{gF}, v{gOne}")
if OPT.get('noaux'): A("s_endpgm")
pack16(accK,accK)
A(f"""s_lshl_b32 s{sV2}, s{sRB}, 1
s_add_u32 s{sV2}, s{sV2}, s{sRT}
s_lshl_b32 s{sB0}, s{sV2}, 11
s_lshl_b32 s{sV0}, s{sJ}, 18
s_add_u32 s{sB0}, s{sB0}, s{sV0}
s_add_u32 s{sB0}, s{sB0}, {WS_KVA}
s_lshl_b32 s{sV0}, s{sXK}, 19
s_add_u32 s{sV0}, s{sV0}, s{sB0}
s_add_u32 s{sV1}, s{sV0}, 131072""")
A.vmem(f"buffer_store_dwordx4 {vr(accK,4)}, v{vKpos}, {sr(SRD_WS,4)}, s{sV0} offen sc1")
A.vmem(f"buffer_store_dwordx4 {vr(accK+4,4)}, v{vKpos}, {sr(SRD_WS,4)}, s{sV1} offen sc1")
pack16(accV,accV)
A(f"""v_lshl_add_u32 v{xt0}, v{vV1}, 17, v{xVo}
s_lshl_b32 s{sV0}, s{sXV}, 19
s_add_u32 s{sV0}, s{sV0}, s{sB0}""")
A.vmem(f"buffer_store_dwordx4 {vr(accV,4)}, v{xt0}, {sr(SRD_WS,4)}, s{sV0} offen offset:1024 sc1")
A.vmem(f"buffer_store_dwordx4 {vr(accV+4,4)}, v{xt0}, {sr(SRD_WS,4)}, s{sV0} offen offset:1536 sc1")
pack16(pQ+0 if False else Mk+24,accQ,True)
assert pQ==Mk+24
Sc=accK; Sp=accV; FL=va[0]
assert wf[0][0]==xf[0]+12 and va[0]%2==0
KK=[xf[0]+4*i for i in range(4)]
VV=[wf[0][1],wf[0][1]+12]
assert VV[1]+12<=Mk
Oc=accQ
vOf=vLK; mx=vLV; vFk=vKpos
A(f"""v_and_b32 v{xt0}, 27, v0
v_cmp_eq_u32 vcc, 16, v{xt0}
v_mov_b32 v{xt1}, 0x3f803f80
v_lshl_add_u32 v{vOf}, v{vV1}, 14, v{xVo}
v_cndmask_b32 v{xt1}, 0, v{xt1}, vcc
v_mov_b32 v{xIdx}, 0xdddddddd
s_lshl_b32 s{sV0}, s{sRB}, 2
s_add_u32 s{sV0}, s{sV0}, s{sT}
s_lshl_b32 s{sHf}, s{sHQ}, 7
s_add_u32 s{sHf}, s{sHf}, s{sV0}
s_lshl_b32 s{sHf}, s{sHf}, 7
s_add_u32 s{sHf}, s{sHf}, {WS_FKA}
s_cmp_eq_u32 s{sRT}, 1
s_cselect_b32 s{sV1}, 1, 3
s_cmp_eq_u32 s{sV2}, 0
s_cselect_b32 s{sV1}, 0, s{sV1}
s_cselect_b32 s{sHa}, 0, 2048
s_sub_u32 s{sV1}, s{sV0}, s{sV1}
s_and_b32 s{sB1}, s{sHQ}, 4
s_sub_u32 s{sB2}, s{sHQ}, {OPT.get('rk',1)}
s_and_b32 s{sB2}, s{sB2}, 3
s_or_b32 s{sB2}, s{sB2}, s{sB1}
s_lshl_b32 s{sB2}, s{sB2}, 7
s_add_u32 s{sG0}, s{sB2}, s{sV0}
s_lshl_b32 s{sG0}, s{sG0}, 7
v_writelane_b32 v{vLQ}, s{sG0}, 0
s_add_u32 s{sG0}, s{sB2}, s{sV1}
s_lshl_b32 s{sG0}, s{sG0}, 7
v_writelane_b32 v{vLQ}, s{sG0}, 1
s_sub_u32 s{sB2}, s{sHQ}, {OPT.get('rv',2)}
s_and_b32 s{sB2}, s{sB2}, 3
s_or_b32 s{sB2}, s{sB2}, s{sB1}
s_lshl_b32 s{sB2}, s{sB2}, 7
s_add_u32 s{sG0}, s{sB2}, s{sV0}
s_lshl_b32 s{sG0}, s{sG0}, 7
v_writelane_b32 v{vLQ}, s{sG0}, 2
s_add_u32 s{sG0}, s{sB2}, s{sV1}
s_lshl_b32 s{sG0}, s{sG0}, 7
v_writelane_b32 v{vLQ}, s{sG0}, 3
s_mov_b32 s{sG1}, {WS_FKA}
s_lshl_b32 s{sV0}, s{sHQ}, 19
s_add_u32 s{sB0}, s{sB0}, s{sV0}
s_sub_u32 s{sB1}, s{sB0}, s{sHa}
s_lshl_b32 s{sV3}, s{sV2}, 5
s_lshl_b32 s{sB2}, s{sHQ}, 1
s_add_u32 s{sB2}, s{sB2}, s{sJ}
s_add_u32 s{sV3}, s{sV3}, s{sB2}
s_lshl_b32 s{sV3}, s{sV3}, 10
s_add_u32 s{sV3}, s{sV3}, {WS_OFA}""")
for i in range(24): A(f"v_mov_b32 v{VV[0]+i}, v{xt1}")
A.wait_vm_all()
flag_store(xN,xZ,sHf)
poll_issue(FL,vLQ,sG1,0xf)
poll_check(FL,vLQ,sG1,sCx,sNx,0xf,sleep=OPT.get('slp',2))
for e in range(2):
    if e: A(f"s_add_u32 s{sB0}, s{sB0}, 131072\ns_add_u32 s{sB1}, s{sB1}, 131072")
    A.vmem(f"buffer_load_dwordx4 {vr(KK[2*e],4)}, v{xL16}, {sr(SRD_WS,4)}, s{sB0} offen sc1",('lk',e))
    A.vmem(f"buffer_load_dwordx4 {vr(KK[2*e+1],4)}, v{xL16}, {sr(SRD_WS,4)}, s{sB1} offen sc1",('lk',e))
    A(f"s_mov_b64 exec, {sr(sVMx,2)}")
    A.vmem(f"buffer_load_dwordx4 {vr(VV[e],4)}, v{xVo}, {sr(SRD_WS,4)}, s{sB0} offen offset:1024 sc1",('lv',e))
    A.vmem(f"buffer_load_dwordx4 {vr(VV[e]+4,4)}, v{xVo}, {sr(SRD_WS,4)}, s{sB0} offen offset:1536 sc1",('lv',e))
    A.vmem(f"buffer_load_dwordx4 {vr(VV[e]+8,4)}, v{xVo}, {sr(SRD_WS,4)}, s{sB1} offen offset:1536 sc1",('lv',e))
    A("s_mov_b64 exec, -1")
stamp(18)
for e in range(2 if not OPT.get('noloc') else 0):
    Vc=VV[e]; Vp=VV[e]+8
    A.wait_vm(('lk',e))
    A(f"v_mfma_f32_32x32x16_bf16 {vr(Sc,16)}, {vr(KK[2*e],4)}, {vr(pQ+4*e,4)}, {vr(Mk,16)}")
    A(f"v_mfma_f32_32x32x16_bf16 {vr(Sp,16)}, {vr(KK[2*e+1],4)}, {vr(pQ+4*e,4)}, {vr(Mk+8,16)}")
    for i in range(9): A(f"v_mov_b32 v{Oc+i}, 0")
    A("s_nop 1")
    A(f"v_max_f32 v{mx}, v{Sc}, v{Sc+1}")
    for i in range(1,8): A(f"v_max3_f32 v{mx}, v{mx}, v{Sc+2*i}, v{Sc+2*i+1}")
    for i in range(4,8): A(f"v_max3_f32 v{mx}, v{mx}, v{Sp+2*i}, v{Sp+2*i+1}")
    A(f"""v_mov_b32 v{mt}, v{mx}
    s_nop 1
    v_permlane32_swap_b32 v{mx}, v{mt}
    s_nop 1
    v_max_f32 v{mx}, v{mx}, v{mt}""")
    regs=[Sp+8+i for i in range(8)]+[Sc+i for i in range(16)]
    for r in regs: A(f"v_sub_f32 v{r}, v{r}, v{mx}")
    A.wait_vm(('lv',e))
    for j,r in enumerate(regs):
        A(f"v_exp_f32 v{r}, v{r}")
        if j==9: A(f"v_smfmac_f32_32x32x32_bf16 {vr(Oc,16)}, {vr(Vp,4)}, {vr(Sp+8,8)}, v{xIdx}")
        if j==17: A(f"v_smfmac_f32_32x32x32_bf16 {vr(Oc,16)}, {vr(Vc,4)}, {vr(Sc,8)}, v{xIdx}")
    A("s_nop 1")
    A(f"v_smfmac_f32_32x32x32_bf16 {vr(Oc,16)}, {vr(Vc+4,4)}, {vr(Sc+8,8)}, v{xIdx}")
    A("s_nop 11")
    A(f"v_rcp_f32 v{mt}, v{Oc+8}\ns_nop 0")
    for i in range(8): A(f"v_mul_f32 v{Oc+i}, v{Oc+i}, v{mt}")
    dst=wf[2][1+e]
    for i in range(4): A(f"v_cvt_pk_bf16_f32 v{dst+i}, v{Oc+2*i}, v{Oc+2*i+1}")
    A.vmem(f"buffer_store_dwordx4 {vr(dst,4)}, v{vOf}, {sr(SRD_WS,4)}, s{sV3} offen offset:{e*512} sc1",'oa')
stamp(19)
A(f"""s_lshl_b32 s{sV1}, s{sV2}, 4
s_add_u32 s{sV1}, s{sV1}, s{sB2}
s_lshl_b32 s{sV1}, s{sV1}, 7
s_add_u32 s{sV1}, s{sV1}, {WS_FOA}
s_lshl_b32 s{sV0}, s{sRB}, 1
s_add_u32 s{sV0}, s{sV0}, s{sJ}
s_lshl_b32 s{sV0}, s{sV0}, 11
s_add_u32 s{sV0}, s{sV0}, {WS_FOA}
v_mov_b32 v{xt2}, {LF}""")
lds_flags_spin(KK[0],xt2,sCx,sB0)
A.wait_vm_all()
flag_store(xN,xZ,sV1)
srd(SRD_M,14,524288); srd(SRD_XA,8,524288); srd(SRD_OUT,16,4194304)
A(f"""v_lshrrev_b32 v{xt0}, 3, v0
v_and_b32 v{xt1}, 6, v{xt0}
v_xor_b32 v{xt1}, v{xt1}, v0
v_and_b32 v{xt1}, 7, v{xt1}
v_lshlrev_b32 v{xt0}, 10, v{xt0}
v_lshl_add_u32 v{xt0}, v{xt1}, 4, v{xt0}
s_lshl_b32 s{sB0}, s{sT}, 17
s_lshl_b32 s{sB1}, s{sHQ}, 7
s_add_u32 s{sB1}, s{sB1}, s{sB0}
s_lshl_b32 s{sB2}, s{sT}, 14""")
for j in range(16 if not OPT.get('nowo') else 0):
    A(f"s_add_u32 m0, s{sB2}, {WOB+j*1024}")
    if j: A(f"s_add_u32 s{sB1}, s{sB1}, 8192")
    else: A("s_nop 0")
    A.vmem(f"buffer_load_dwordx4 v{xt0}, {sr(SRD_M,4)}, s{sB1} offen lds")
    A(f"s_add_u32 m0, s{sB2}, {WOA+j*1024}\ns_nop 0")
    A.vmem(f"buffer_load_dwordx4 v{xt0}, {sr(SRD_XA,4)}, s{sB1} offen lds")
    if OPT['pace']<60: A(f"s_waitcnt vmcnt({OPT['pace']})"); A.vm=A.vm[-OPT['pace']:]
VY=Alloc(xBig,168)
yFl=VY.take(); yP=VY.take(2,2); yWA=[VY.take() for _ in range(4)]; yOo=VY.take()
yO=[VY.take(4,4) for _ in range(16)]
yW=[[VY.take(4,4) for _ in range(4)] for _ in range(3)]
yA=[VY.take(4,4) for _ in range(4)]
A(f"""v_and_b32 v{yFl}, 15, v0
v_lshlrev_b32 v{yOo}, 11, v{yFl}
v_lshlrev_b32 v{yFl}, 7, v{yFl}
v_lshrrev_b32 v{xt0}, 4, v0
v_lshl_add_u32 v{yOo}, v{xt0}, 3, v{yOo}""")
poll_issue(yP,yFl,sV0,0xffff)
poll_check(yP,yFl,sV0,sCx,sNx,0xffff,sleep=OPT.get('slp',2))
stamp(20)
A(f"""s_lshl_b32 s{sV2}, s{sRB}, 2
s_add_u32 s{sV2}, s{sV2}, s{sT}
s_lshl_b32 s{sB0}, s{sV2}, 14
s_add_u32 s{sB0}, s{sB0}, {WS_OFA}""")
for i in range(16 if not OPT.get('nowo') else 0):
    if i and i%4==0: A(f"s_add_u32 s{sB0}, s{sB0}, 4096")
    A.vmem(f"buffer_load_dwordx4 {vr(yO[i],4)}, v{xL16}, {sr(SRD_WS,4)}, s{sB0} offen offset:{(i%4)*1024} sc1")
    if OPT['pace']<60 and i%2==1 and len(A.vm)>OPT['pace']: A(f"s_waitcnt vmcnt({OPT['pace']})"); A.vm=A.vm[-OPT['pace']:]
wo_tr_addr(yWA[0],xt0,xt1)
A(f"""v_add_u32 v{yWA[0]}, {WOA}, v{yWA[0]}
v_xor_b32 v{yWA[1]}, 32, v{yWA[0]}
v_xor_b32 v{yWA[2]}, 64, v{yWA[0]}
v_xor_b32 v{yWA[3]}, 96, v{yWA[0]}
s_lshl_b32 s{sB0}, s{sV2}, 15
s_lshl_b32 s{sB1}, s{sHQ}, 7
s_add_u32 s{sB0}, s{sB0}, s{sB1}""")
A.wait_vm_all()
stamp(21)
A("s_setprio 0")
A("s_barrier")
def woa_read(hp_,c):
    if hp_>=16: return
    b=hp_%3
    A.lds(f"ds_read_b64_tr_b16 {vr(yW[b][c],2)}, v{yWA[c]} offset:{hp_*4096}",('wa',hp_,c))
    A.lds(f"ds_read_b64_tr_b16 {vr(yW[b][c]+2,2)}, v{yWA[c]} offset:{hp_*4096+1024}",('wa',hp_,c))
for c in range(4): woa_read(0,c)
for c in range(2): woa_read(1,c)
for i in range(16):
    for c in range(4):
        A.wait_lg(('wa',i,c))
        A(f"v_mfma_f32_16x16x32_bf16 {vr(yA[c],4)}, {vr(yW[i%3][c],4)}, {vr(yO[i],4)}, {'0' if i==0 else vr(yA[c],4)}")
        woa_read(i+1+(c+2)//4,(c+2)%4)
A("s_nop 7")
for c in range(4):
    acc=yA[c]
    A(f"v_cvt_pk_bf16_f32 v{acc}, v{acc}, v{acc+1}\nv_cvt_pk_bf16_f32 v{acc+1}, v{acc+2}, v{acc+3}")
    A.vmem(f"buffer_store_dwordx2 {vr(acc,2)}, v{yOo}, {sr(SRD_OUT,4)}, s{sB0} offen offset:{c*32}")
stamp(22)
stamp_out(yFl)
A.label("L_end")
A("s_endpgm")
A.label("L_codeend")

errs=check(A.lines)
for e in errs[:25]: print("CHECK:",e, file=sys.stderr)
hdr=open('concat_heads__sliding_local_dilated__softmax_full_mha__prompt.s.ref').read().split('; Override')[0]
nv=168
out=hdr+f"""; @launch grid=(256,1,1) block=(768,1,1) lds={LDS_BYTES}
.amdgcn_target "amdgcn-amd-amdhsa--gfx950"
.text
.globl {NAME}
.p2align 8
.type {NAME},@function
"""+A.text()+f""".section .rodata,"a"
.p2align 6
.amdhsa_kernel {NAME}
  .amdhsa_next_free_vgpr {nv}
  .amdhsa_next_free_sgpr 102
  .amdhsa_accum_offset {nv}
  .amdhsa_group_segment_fixed_size 0
  .amdhsa_kernarg_size 72
  .amdhsa_user_sgpr_count 2
  .amdhsa_user_sgpr_kernarg_segment_ptr 1
  .amdhsa_system_sgpr_workgroup_id_x 1
.end_amdhsa_kernel
"""
open(sys.argv[1],'w').write(out)
print("vgpr att",VA.hi,VB.hi,"aux",VX.hi,VY.hi,"lines",len(A.lines),"errs",len(errs))
```

```python
import sys, math, struct
from asmlib import *
NAME="concat_heads__sliding_local_dilated__softmax_full_mha__prompt_kernel"
OPT=dict(pace=2, stamp=0, pfc=1, m=2, rel=6, slp=2)
for a in sys.argv[2:]:
    k,v=a.split('='); OPT[k]=int(v) if v.lstrip('-').isdigit() else v

SL=40960; LXO=24576; EAQ=0; EAK=81920-8192; RED=131072; LF=155648
WOB=0; WOA=65536
LDS_BYTES=163840
WS_KV=0; WS_OFB=4<<20; WS_OFA=6<<20; WS_Q=10<<20; WS_HA=12<<20
WS_FG=8<<20; WS_FOB=(8<<20)+32768; WS_EPOCH=(8<<20)+65536; WS_FOA=(8<<20)+131072; WS_FH=(8<<20)+163840
WS_STAMP=30<<20
WS_BYTES=32<<20
CSCALE=0.25*math.log2(math.e)
def f2u(x): return struct.unpack('<I',struct.pack('<f',x))[0]
NEGBIG=f2u(-1e30)
SPIN=30000

A=Asm()
sW=22; sHQ=23; sRB=24; sSG=25; sBR=26; sR2=27
SRD_X=28; SRD_W=32; SRD_XA=36; sHK=40; sHV=41; sT0=42; sT1=43; SRD_WS=44; SRD_DBG=48; SRD_M=52; SRD_OUT=56
sA0=60

def srd(base, ptr, nbytes):
    A(f"""s_mov_b32 s{base}, s{ptr}
    s_mov_b32 s{base+1}, s{ptr+1}
    s_mov_b32 s{base+2}, {nbytes}
    s_mov_b32 s{base+3}, 0x00020000""")
vSt=1
def stamp(idx, lvl=1):
    if OPT['stamp']<lvl: return
    if 'only' in OPT and idx not in [int(x) for x in str(OPT['only']).split(',')]: return
    A(f"""s_memrealtime s[96:97]
    s_memtime s[98:99]
    s_waitcnt lgkmcnt(0)
    v_writelane_b32 v{vSt}, s96, {idx}
    v_writelane_b32 v{vSt}, s98, {idx+32}""")
    A.lg=[]
def stamp_out(vtmp):
    if not OPT['stamp']: return
    A(f"""v_writelane_b32 v{vSt}, s100, 31
    s_mul_i32 s96, s2, 12
    s_add_u32 s96, s96, s{sW}
    s_lshl_b32 s96, s96, 8
    s_add_u32 s96, s96, {WS_STAMP}
    v_lshlrev_b32 v{vtmp}, 2, v0
    buffer_store_dword v{vSt}, v{vtmp}, {sr(SRD_WS,4)}, s96 offen""")
def poll_issue(vdst, voff, soff, mask=-1):
    if mask!=-1: A(f"s_mov_b64 exec, {mask:#x}")
    A.vmem(f"buffer_load_dwordx2 {vr(vdst,2)}, v{voff}, {sr(SRD_WS,4)}, s{soff} offen sc1",'poll')
    if mask!=-1: A("s_mov_b64 exec, -1")
def poll_check(vdst, voff, soff, scnt, snon, mask=-1, sleep=0, keep=0):
    L=A.newlabel('L_poll'); Ld=A.newlabel('L_polld'); Lc=A.newlabel('L_pollc')
    A(f"s_mov_b32 s{scnt}, 0")
    if mask!=-1: A(f"s_mov_b64 exec, {mask:#x}")
    A.wait_vm('poll')
    A(f"s_branch {Lc}")
    A.label(L)
    if sleep: A(f"s_sleep {sleep}")
    A(f"""buffer_load_dwordx2 {vr(vdst,2)}, v{voff}, {sr(SRD_WS,4)}, s{soff} offen sc1
    s_waitcnt vmcnt(0)""")
    A.label(Lc)
    A(f"""v_cmp_eq_u64 vcc, {sr(snon,2)}, {vr(vdst,2)}
    s_add_u32 s{scnt}, s{scnt}, 1
    s_cmp_eq_u64 vcc, exec
    s_cbranch_scc1 {Ld}
    s_cmp_le_u32 s{scnt}, {SPIN}
    s_cbranch_scc1 {L}""")
    A.label(Ld)
    if mask!=-1: A("s_mov_b64 exec, -1")
def lds_word_spin(vF, vAddr, off, scnt, stmp):
    L=A.newlabel('L_ws'); Ld=A.newlabel('L_wsd')
    A(f"s_mov_b32 s{scnt}, 0")
    A.label(L)
    A(f"""ds_read_b32 v{vF}, v{vAddr} offset:{off}
    s_add_u32 s{scnt}, s{scnt}, 1
    s_waitcnt lgkmcnt(0)
    v_readfirstlane_b32 s{stmp}, v{vF}
    s_cmp_gt_u32 s{scnt}, {SPIN*8}
    s_cbranch_scc1 {Ld}
    s_cmp_eq_u32 s{stmp}, 0
    s_cbranch_scc1 {L}""")
    A.label(Ld)
    A.lg=[]
def nonce_check(vN, vZ, snon, scnt, stmp):
    L=A.newlabel('L_non'); Ld=A.newlabel('L_nond')
    A(f"s_mov_b32 s{scnt}, 0")
    A.label(L)
    A(f"""v_readfirstlane_b32 s{snon}, v{vN}
    v_readfirstlane_b32 s{snon+1}, v{vN+1}
    s_add_u32 s{scnt}, s{scnt}, 1
    s_cmp_gt_u32 s{scnt}, {SPIN}
    s_cbranch_scc1 {Ld}
    s_cmp_eq_u32 s{snon}, 0
    s_cselect_b32 s{stmp}, 0, s{snon+1}
    s_cmp_lg_u32 s{stmp}, 0
    s_cbranch_scc1 {Ld}
    buffer_load_dwordx2 {vr(vN,2)}, v{vZ}, {sr(SRD_DBG,4)}, 0 offen sc1
    s_waitcnt vmcnt(0)
    s_branch {L}""")
    A.label(Ld)
def flag_store(vN, vZ, soff):
    A("s_mov_b64 exec, 1")
    A.vmem(f"buffer_store_dwordx2 {vr(vN,2)}, v{vZ}, {sr(SRD_WS,4)}, s{soff} offen sc1",'flag')
    A("s_mov_b64 exec, -1")
def lds_flags_spin(vF, vAddr, scnt, stmp, issued=False):
    L=A.newlabel('L_xs'); Ld=A.newlabel('L_xsd'); Lc=A.newlabel('L_xsc')
    A(f"s_mov_b32 s{scnt}, 0")
    if issued: A(f"s_branch {Lc}")
    A.label(L)
    A(f"ds_read_b128 {vr(vF,4)}, v{vAddr}")
    A.label(Lc)
    A(f"""s_add_u32 s{scnt}, s{scnt}, 1
    s_waitcnt lgkmcnt(0)
    v_and_b32 v{vF}, v{vF}, v{vF+1}
    v_and_b32 v{vF+2}, v{vF+2}, v{vF+3}
    v_and_b32 v{vF}, v{vF}, v{vF+2}
    s_cmp_gt_u32 s{scnt}, {SPIN*4}
    v_readfirstlane_b32 s{stmp}, v{vF}
    s_cbranch_scc1 {Ld}
    s_cmp_eq_u32 s{stmp}, 0
    s_cbranch_scc1 {L}""")
    A.label(Ld)
    A.lg=[]
def wo_tr_addr(dst, t0, t1):
    A(f"""v_lshrrev_b32 v{t0}, 2, v0
    v_and_b32 v{t0}, 7, v{t0}
    v_lshrrev_b32 v{t1}, 5, v0
    v_lshl_add_u32 v{t1}, v{t1}, 4, v{t0}
    v_lshlrev_b32 v{t1}, 7, v{t1}
    v_and_b32 v{t0}, 6, v{t0}
    v_bfe_u32 v{dst}, v0, 1, 1
    v_xor_b32 v{t0}, v{t0}, v{dst}
    v_lshl_add_u32 v{t1}, v{t0}, 4, v{t1}
    v_and_b32 v{t0}, 1, v0
    v_lshl_add_u32 v{dst}, v{t0}, 3, v{t1}""")

A.label(NAME)
if OPT['stamp']: A("s_memrealtime s[100:101]")
A(f"""s_cmp_ge_u32 s2, 256
s_cbranch_scc1 L_end
s_load_dwordx16 s[4:19], s[0:1], 0
s_load_dwordx2 s[20:21], s[0:1], 64
v_lshrrev_b32 v1, 6, v0
v_and_b32 v0, 63, v0
s_lshr_b32 s{sT1}, s2, 3
v_readfirstlane_b32 s{sW}, v1
s_and_b32 s{sHQ}, s2, 1
s_lshl_b32 s{sHQ}, s{sHQ}, 2
s_and_b32 s{sT0}, s{sT1}, 3
s_add_u32 s{sHQ}, s{sHQ}, s{sT0}
s_and_b32 s{sRB}, s2, 6
s_lshl_b32 s{sRB}, s{sRB}, 2
s_lshr_b32 s{sT0}, s{sT1}, 2
s_add_u32 s{sRB}, s{sRB}, s{sT0}""")
if OPT['m']==2: A(f"s_lshr_b32 s{sBR}, s{sRB}, 4\ns_and_b32 s{sR2}, s{sRB}, 15")
else: A(f"s_and_b32 s{sBR}, s{sRB}, 1\ns_lshr_b32 s{sR2}, s{sRB}, 1")
A({1:f"s_lshl_b32 s{sSG}, s{sHQ}, 1\ns_add_u32 s{sSG}, s{sSG}, s{sR2}", 2:f"s_mov_b32 s{sSG}, s{sR2}", 3:f"s_and_b32 s{sSG}, s{sR2}, 3",
   4:f"s_and_b32 s{sSG}, s{sR2}, 1\ns_lshl_b32 s{sSG}, s{sSG}, 2", 5:f"s_and_b32 s{sSG}, s{sR2}, 3\ns_lshl_b32 s{sSG}, s{sSG}, 1", 6:f"s_and_b32 s{sSG}, s{sR2}, 1"}[OPT.get('rot',1)])
A(f"""s_and_b32 s{sT0}, s{sHQ}, 4
s_cmp_eq_u32 s{sBR}, 0
s_cselect_b32 s{sHK}, 1, 0
s_cselect_b32 s{sHV}, 2, 0
s_add_u32 s{sHK}, s{sHK}, s{sHQ}
s_and_b32 s{sHK}, s{sHK}, 3
s_or_b32 s{sHK}, s{sHK}, s{sT0}
s_add_u32 s{sHV}, s{sHV}, s{sHQ}
s_and_b32 s{sHV}, s{sHV}, 3
s_or_b32 s{sHV}, s{sHV}, s{sT0}
s_cmp_ge_u32 s{sW}, 8
s_cbranch_scc1 L_aux""")

VA=Alloc(2,168)
vx=VA.take(); vw=VA.take(); vt0=VA.take(); vt1=VA.take(); vt2=VA.take(); vt3=VA.take()
vL16=VA.take(); vVo=VA.take(); vIdx=VA.take(); vFl=VA.take(); vP=VA.take(2,2); vN=VA.take(2,2); vZ=VA.take()
vEQ0=VA.take(); vEK=VA.take(); vEV=VA.take(); vx1=vEQ0; vLF=vt3
ND=6
vBig=VA.mark()
Qf=[VA.take(4,4) for _ in range(2)]
Sb=[VA.take(16,4) for _ in range(2)]
Oa=[VA.take(16,4) for _ in range(2)]
Kf=[VA.take(4,4) for _ in range(ND)]
Vf=[VA.take(8,4) for _ in range(ND)]
sXoff=sA0; sM0=sA0+1; sWoff=sA0+2; sFOr=sA0+3; sOld=sA0+4; sOut=sA0+5; sOst=sA0+6; sFOw=sA0+7
sU0=sA0+8; sU1=sA0+9; sU2=sA0+10
sE=sA0+11; sKH=sA0+12; sM2=sA0+13; sKVb=sA0+14; sOff=sA0+15; sNon=sA0+16; sVM=sA0+18; sCnt=sA0+20; sBlk=sA0+21
sFGr=sA0+22; sQ0=sA0+23; sQ1=sA0+24; sLo=sA0+25; sHi=sA0+26; sX0=sA0+28
sF0=sA0+30; sF1=sA0+31; sF2=sA0+32; sWoffK=sA0+33; sWoffV=sA0+34
A(f"""v_lshrrev_b32 v{vt0}, 3, v0
v_mul_u32_u24 v{vw}, 3072, v{vt0}
v_lshlrev_b32 v{vt0}, 10, v{vt0}
v_lshrrev_b32 v{vt1}, 2, v0
v_and_b32 v{vt1}, 4, v{vt1}
v_xor_b32 v{vt1}, v{vt1}, v0
v_and_b32 v{vt1}, 7, v{vt1}
v_lshl_add_u32 v{vw}, v{vt1}, 4, v{vw}
v_lshrrev_b32 v{vt1}, 4, v0
v_xor_b32 v{vt1}, v{vt1}, v0
v_and_b32 v{vt1}, 7, v{vt1}
v_lshl_add_u32 v{vx}, v{vt1}, 4, v{vt0}
v_xor_b32 v{vx1}, 64, v{vx}
v_add_u32 v{vx1}, 8192, v{vx1}
s_lshl_b32 s{sXoff}, s{sR2}, 17
s_lshl_b32 s{sU0}, s{sW}, 14
s_add_u32 s{sXoff}, s{sXoff}, s{sU0}
s_lshl_b32 s{sM0}, s{sW}, 10
s_lshl_b32 s{sM2}, s{sW}, 11
s_mul_i32 s{sWoff}, s{sW}, 24576
s_lshl_b32 s{sU0}, s{sHK}, 7
s_add_u32 s{sWoffK}, s{sWoff}, s{sU0}
s_lshl_b32 s{sU0}, s{sHV}, 7
s_add_u32 s{sWoffV}, s{sWoff}, s{sU0}
s_lshl_b32 s{sU0}, s{sHQ}, 7
s_add_u32 s{sWoff}, s{sWoff}, s{sU0}
s_mov_b32 s{SRD_X+2}, 2097152
s_mov_b32 s{SRD_X+3}, 0x00020000
s_mov_b32 s{SRD_W+2}, 1572864
s_mov_b32 s{SRD_W+3}, 0x00020000
s_cmp_eq_u32 s{sBR}, 0
s_waitcnt lgkmcnt(0)
s_cselect_b32 s{SRD_X}, s10, s4
s_cselect_b32 s{SRD_X+1}, s11, s5
s_cselect_b32 s{SRD_W}, s12, s6
s_cselect_b32 s{SRD_W+1}, s13, s7""")
def issue_stage(s):
    slot=s%3
    A(f"""s_add_u32 s{sU0}, s{sSG}, {s}
    s_and_b32 s{sU0}, s{sU0}, 7
    s_mul_i32 s{sU1}, s{sU0}, 196608
    s_lshl_b32 s{sU0}, s{sU0}, 7
    s_add_u32 m0, s{sM2}, {slot*SL+LXO}
    s_add_u32 s{sU0}, s{sU0}, s{sXoff}""")
    A.vmem(f"buffer_load_dwordx4 v{vx}, {sr(SRD_X,4)}, s{sU0} offen lds", s)
    for p in (1,2,0):
        A(f"s_add_u32 m0, s{sM0}, {slot*SL+p*7168}")
        A(f"s_add_u32 s{sU2}, s{sU1}, s{(sWoff,sWoffK,sWoffV)[p]}")
        A.vmem(f"buffer_load_dwordx4 v{vw}, {sr(SRD_W,4)}, s{sU2} offen offset:{p*1024} lds", s)
        if p==1:
            A(f"s_add_u32 m0, s{sM2}, {slot*SL+LXO+1024}\ns_nop 0")
            A.vmem(f"buffer_load_dwordx4 v{vx1}, {sr(SRD_X,4)}, s{sU0} offen lds", s)
class Cap:
    def __enter__(self): self.n=len(A.lines); return self
    def __exit__(self,*a): self.l=A.lines[self.n:]; del A.lines[self.n:]
def att_setup():
    srd(SRD_DBG,18,256)
    A(f"""v_mov_b32 v{vZ}, 0
    s_lshr_b32 s{sE}, s{sW}, 1
    s_and_b32 s{sKH}, s{sW}, 1
    s_lshl_b32 s{sF1}, s{sHQ}, 2
    s_add_u32 s{sF1}, s{sF1}, s{sE}
    s_lshl_b32 s{sKVb}, s{sF1}, 17
    s_lshl_b32 s{sF0}, s{sKH}, 11
    s_add_u32 s{sKVb}, s{sKVb}, s{sF0}
    s_lshl_b32 s{sQ0}, s{sF1}, 6
    s_lshl_b32 s{sF0}, s{sRB}, 1
    s_add_u32 s{sQ0}, s{sQ0}, s{sF0}
    s_add_u32 s{sQ0}, s{sQ0}, s{sKH}
    s_lshl_b32 s{sQ0}, s{sQ0}, 10
    s_add_u32 s{sQ0}, s{sQ0}, {WS_Q}
    s_xor_b32 s{sQ1}, s{sQ0}, 1024
    s_mov_b32 s{sVM}, 0x0000ffff
    s_mov_b32 s{sVM+1}, 0x0000ffff
    v_lshlrev_b32 v{vL16}, 4, v0
    v_and_b32 v{vt0}, 15, v0
    v_lshlrev_b32 v{vt1}, 4, v{vt0}
    v_lshrrev_b32 v{vt2}, 5, v0
    v_lshl_add_u32 v{vVo}, v{vt2}, 8, v{vt1}
    v_mov_b32 v{vIdx}, 0xdddddddd
    s_and_b32 s{sF2}, s{sHQ}, 4
    s_sub_u32 s{sF0}, s{sHQ}, 1
    s_and_b32 s{sF0}, s{sF0}, 3
    s_or_b32 s{sF0}, s{sF0}, s{sF2}
    s_lshl_b32 s{sF0}, s{sF0}, 11
    s_sub_u32 s{sF1}, s{sHQ}, 2
    s_and_b32 s{sF1}, s{sF1}, 3
    s_or_b32 s{sF1}, s{sF1}, s{sF2}
    s_lshl_b32 s{sF1}, s{sF1}, 11
    v_mov_b32 v{vt1}, s{sF0}
    v_mov_b32 v{vt2}, s{sF1}
    v_cmp_gt_u32 vcc, 16, v0
    s_lshl_b32 s{sF0}, s{sHQ}, 4
    s_lshr_b32 s{sF1}, s{sRB}, 1
    v_cndmask_b32 v{vt1}, v{vt2}, v{vt1}, vcc
    v_lshl_add_u32 v{vFl}, v{vt0}, 7, v{vt1}
    s_add_u32 s{sF0}, s{sF0}, s{sF1}
    s_lshl_b32 s{sF0}, s{sF0}, 7
    s_mov_b32 s{sFGr}, {WS_FG}
    v_writelane_b32 v{vFl}, s{sF0}, 32
    v_mov_b32 v{vLF}, {LF}
    v_and_b32 v{vt0}, 27, v0
    v_cmp_eq_u32 vcc, 16, v{vt0}
    v_mov_b32 v{vt1}, 0x3f803f80
    s_nop 0
    v_cndmask_b32 v{vt1}, 0, v{vt1}, vcc""")
    for d in range(ND):
        for i in range(8): A(f"v_mov_b32 v{Vf[d]+i}, v{vt1}")
    for d in range(2):
        for i in range(16): A(f"v_mov_b32 v{Oa[d]+i}, 0")
    A(f"""s_lshl_b32 s{sF0}, s{sRB}, 1
    s_add_u32 s{sF0}, s{sF0}, s{sKH}
    s_lshl_b32 s{sOst}, s{sF0}, 5
    s_lshl_b32 s{sF1}, s{sHQ}, 1
    s_add_u32 s{sOst}, s{sOst}, s{sF1}
    s_lshr_b32 s{sF1}, s{sE}, 1
    s_add_u32 s{sOst}, s{sOst}, s{sF1}
    s_lshl_b32 s{sOst}, s{sOst}, 10
    s_add_u32 s{sOst}, s{sOst}, {WS_OFB}
    s_lshl_b32 s{sFOr}, s{sRB}, 10
    s_add_u32 s{sFOr}, s{sFOr}, {WS_FOB}
    s_lshl_b32 s{sFOw}, s{sHQ}, 7
    s_add_u32 s{sFOw}, s{sFOw}, s{sFOr}
    s_and_b32 s{sF0}, s{sW}, 3
    s_lshl_b32 s{sF1}, s{sRB}, 2
    s_add_u32 s{sF1}, s{sF1}, s{sF0}
    s_lshr_b32 s{sF2}, s{sW}, 2
    s_lshl_b32 s{sOld}, s{sF1}, 1
    s_add_u32 s{sOld}, s{sOld}, s{sF2}
    s_lshl_b32 s{sOld}, s{sOld}, 13
    s_add_u32 s{sOld}, s{sOld}, {WS_OFB}
    s_lshl_b32 s{sOut}, s{sF1}, 15
    s_lshl_b32 s{sF0}, s{sHQ}, 7
    s_add_u32 s{sOut}, s{sOut}, s{sF0}
    s_lshl_b32 s{sF0}, s{sF2}, 6
    s_add_u32 s{sOut}, s{sOut}, s{sF0}
    s_add_u32 s{sOut}, s{sOut}, 1024
    s_mov_b32 s{sLo}, {f2u(2.0**-64):#x}
    s_mov_b32 s{sHi}, {f2u(2.0**64):#x}""")
    srd(SRD_OUT,16,4194304)
with Cap() as c1: att_setup()
FILL=c1.l
def fill(q,n):
    k=min(n,len(q))
    while k<len(q) and any(x.startswith('v_cmp') for x in q[max(0,k-3):k]): k+=1
    for l in q[:k]: A(l)
    del q[:k]
def kv_load(i):
    if OPT.get('nokv'): return
    d=i%ND
    A(f"""s_add_u32 s{sBlk}, s{sRB}, {i}
    s_and_b32 s{sBlk}, s{sBlk}, 31
    s_lshl_b32 s{sBlk}, s{sBlk}, 12
    s_add_u32 s{sOff}, s{sBlk}, s{sKVb}""")
    A.vmem(f"buffer_load_dwordx4 {vr(Kf[d],4)}, v{vL16}, {sr(SRD_WS,4)}, s{sOff} offen sc1",('kv',i))
    A(f"s_mov_b64 exec, {sr(sVM,2)}")
    A.vmem(f"buffer_load_dwordx4 {vr(Vf[d],4)}, v{vVo}, {sr(SRD_WS,4)}, s{sOff} offen offset:1024 sc1",('kv',i))
    A.vmem(f"buffer_load_dwordx4 {vr(Vf[d]+4,4)}, v{vVo}, {sr(SRD_WS,4)}, s{sOff} offen offset:1536 sc1",('kv',i))
    A("s_mov_b64 exec, -1")
def QK(u): A(f"v_mfma_f32_32x32x16_bf16 {vr(Sb[u%2],16)}, {vr(Kf[(u//2)%ND],4)}, {vr(Qf[u%2],4)}, 0")
def PV(u,t): A(f"v_smfmac_f32_32x32x32_bf16 {vr(Oa[u%2],16)}, {vr(Vf[(u//2)%ND]+4*t,4)}, {vr(Sb[u%2]+8*t,8)}, v{vIdx}")
NU=64
PRIO0=2; PRIO={28:1,56:0}
SCHED={}
nxt=2
for u_ in range(64):
    lim=u_//2-1+ND if u_>=2 else ND-1
    if nxt<=min(lim,31): SCHED.setdefault(u_,[]).append(nxt); nxt+=1
def unit(u):
    S=Sb[u%2]
    E=lambda r: A(f"v_exp_f32 v{S+r}, v{S+r}")
    E(0);E(1)
    if u>0: PV(u-1,1)
    E(2);E(3);E(4)
    for i in SCHED.get(u,[]): kv_load(i)
    if u in PRIO: A(f"s_setprio {PRIO[u]}")
    if u==OPT['rel']: A.lds(f"ds_write_b32 v{vLF}, v{vIdx} offset:44")
    if u+1<NU:
        if (u+1)%2==0: A.wait_vm(('kv',(u+1)//2))
        QK(u+1)
    for r in range(5,10): E(r)
    PV(u,0)
    for r in range(10,16): E(r)
    if u in (3,5,9,17,33): stamp(18+(3,5,9,17,33).index(u), 1 if u in (5,33) else 2)
UP=OPT.get('up',2)
issue_stage(0)
if UP>=2: issue_stage(1)
srd(SRD_WS,20,WS_BYTES)
stamp(0)
if UP>=3: issue_stage(2)
for s in range(8):
    A.wait_vm(s)
    A("s_barrier")
    stamp(1+s, 1 if s in (0,4) else 2)
    if s==0:
        for k in range(UP,3): issue_stage(k)
    if 1<=s<=5: issue_stage(s+2)
    fill(FILL, 24 if s<7 else 999)
    if s==5: A.vmem(f"buffer_load_dwordx2 {vr(vN,2)}, v{vZ}, {sr(SRD_DBG,4)}, 0 offen sc1",'non')
A.wait_vm('non')
nonce_check(vN,vZ,sNon,sCnt,sU0)
A("s_barrier")
stamp(30)
PM=(1<<33)-1
A(f"s_mov_b32 s{sX0}, -1\ns_mov_b32 s{sX0+1}, 1")
A(f"s_cmp_lg_u32 s{sW}, 0\ns_cbranch_scc1 L_nf2")
A(f"s_mov_b64 exec, {sr(sX0,2)}")
poll_issue(vP,vFl,sFGr)
poll_check(vP,vFl,sFGr,sCnt,sNon)
A(f"s_mov_b64 exec, -1\nds_write_b32 v{vLF}, v{vIdx} offset:32\ns_branch L_nf3")
A.label("L_nf2")
lds_word_spin(vt0,vLF,32,sCnt,sU0)
A.label("L_nf3")
A.vm=[]
stamp(16,2)
A.vmem(f"buffer_load_dwordx4 {vr(Qf[0],4)}, v{vL16}, {sr(SRD_WS,4)}, s{sQ0} offen sc1")
kv_load(0)
A.vmem(f"buffer_load_dwordx4 {vr(Qf[1],4)}, v{vL16}, {sr(SRD_WS,4)}, s{sQ1} offen sc1",'q1')
kv_load(1)
stamp(17)
A(f"s_setprio {PRIO0}")
A.wait_vm('q1')
QK(0)
A("s_nop 11")
for u in range(NU): unit(u)
A("s_nop 1")
PV(NU-1,1)
stamp(23)
A("s_setprio 3")
vR=Sb[0]; vRa=Sb[1]
A(f"""s_mul_i32 s{sU0}, s{sW}, 2304
s_add_u32 s{sU0}, s{sU0}, {RED}
v_add_u32 v{vRa}, s{sU0}, v{vL16}
v_lshlrev_b32 v{vRa+1}, 2, v0
v_add_u32 v{vRa+1}, s{sU0}, v{vRa+1}
s_xor_b32 s{sU1}, s{sW}, 1
s_mul_i32 s{sU1}, s{sU1}, 2304
s_add_u32 s{sU1}, s{sU1}, {RED}
v_add_u32 v{vEK}, s{sU1}, v{vL16}
v_lshlrev_b32 v{vRa+3}, 2, v0
v_add_u32 v{vRa+3}, s{sU1}, v{vRa+3}""")
A.lds(f"ds_write_b128 v{vRa}, {vr(Oa[1],4)}")
A.lds(f"ds_write_b128 v{vRa}, {vr(Oa[1]+4,4)} offset:1024")
A.lds(f"ds_write_b32 v{vRa+1}, v{Oa[1]+8} offset:2048")
A(f"""v_bfe_u32 v{vRa+4}, v0, 4, 1
v_lshlrev_b32 v{vRa+4}, 14, v{vRa+4}
v_add_u32 v{vRa+4}, v{vRa+4}, v{vVo}
s_and_b32 s{sU0}, s{sE}, 1
s_lshl_b32 s{sU0}, s{sU0}, 9
v_add_u32 v{vRa+4}, s{sU0}, v{vRa+4}""")
A.wait_lg_all()
A("s_barrier")
stamp(24)
A.lds(f"ds_read_b32 v{vR+8}, v{vRa+3} offset:2048",'r2')
A.lds(f"ds_read_b128 {vr(vR,4)}, v{vEK}",'r0')
A.lds(f"ds_read_b128 {vr(vR+4,4)}, v{vEK} offset:1024",'r1')
A.wait_lg('r2')
A(f"""v_add_f32 v{Oa[0]+8}, v{Oa[0]+8}, v{vR+8}
v_cmp_nle_f32 vcc, s{sLo}, v{Oa[0]+8}
v_cmp_nge_f32 {sr(sX0,2)}, s{sHi}, v{Oa[0]+8}""")
A.wait_lg('r0')
for i in range(4): A(f"v_add_f32 v{Oa[0]+i}, v{Oa[0]+i}, v{vR+i}")
A.wait_lg('r1')
for i in range(4,8): A(f"v_add_f32 v{Oa[0]+i}, v{Oa[0]+i}, v{vR+i}")
A(f"""s_or_b64 vcc, vcc, {sr(sX0,2)}
s_cmp_lg_u64 vcc, 0
s_cbranch_scc1 L_fallback""")
A.label("L_norm")
A(f"v_rcp_f32 v{vR+9}, v{Oa[0]+8}\ns_nop 0")
for i in range(8): A(f"v_mul_f32 v{Oa[0]+i}, v{Oa[0]+i}, v{vR+9}")
for i in range(4): A(f"v_cvt_pk_bf16_f32 v{vR+i}, v{Oa[0]+2*i}, v{Oa[0]+2*i+1}")
A.vmem(f"buffer_store_dwordx4 {vr(vR,4)}, v{vRa+4}, {sr(SRD_WS,4)}, s{sOst} offen sc1")
stamp(28,2)
VB=Alloc(vBig,168)
Of=[VB.take(4,4) for _ in range(8)]
Wf=[[VB.take(4,4) for _ in range(4)] for _ in range(6)]
Ac=[VB.take(4,4) for _ in range(4)]
vWA=[vx,vw,vt2,vt3]; vOo=vEQ0; vXw=vEK; vXr=vEV
wo_tr_addr(vx,vt0,vt1)
A(f"""s_lshr_b32 s{sU2}, s{sW}, 2
s_lshl_b32 s{sU0}, s{sU2}, 15
s_lshl_b32 s{sU1}, s{sU2}, 6
v_add_u32 v{vx}, s{sU0}, v{vx}
v_xor_b32 v{vx}, s{sU1}, v{vx}
v_xor_b32 v{vw}, 32, v{vx}
v_xor_b32 v{vt2}, 64, v{vx}
v_xor_b32 v{vt3}, 96, v{vx}""")
assert WOB==0
def wo_read(hp_, slotset):
    for c in range(4):
        A.lds(f"ds_read_b64_tr_b16 {vr(Wf[slotset][c],2)}, v{vWA[c]} offset:{hp_*4096}",('wo',hp_))
        A.lds(f"ds_read_b64_tr_b16 {vr(Wf[slotset][c]+2,2)}, v{vWA[c]} offset:{hp_*4096+1024}",('wo',hp_))
wo_read(0,0)
A(f"""v_and_b32 v{vFl}, 15, v0
v_lshlrev_b32 v{vOo}, 11, v{vFl}
v_lshlrev_b32 v{vFl}, 7, v{vFl}
v_lshrrev_b32 v{vt0}, 4, v0
v_lshl_add_u32 v{vOo}, v{vt0}, 3, v{vOo}
s_xor_b32 s{sU1}, s{sW}, 5
s_mul_i32 s{sU1}, s{sU1}, 2304
s_add_u32 s{sU1}, s{sU1}, {RED}
v_add_u32 v{vXr}, s{sU1}, v{vL16}""")
A.wait_lg_all(); wo_read(1,1)
A(f"v_mov_b32 v{vt0}, {LF}\nv_mov_b32 v{vt1}, 1")
A.wait_vm_all()
A("s_mov_b64 exec, 1")
A.lds(f"ds_add_rtn_u32 v{vP}, v{vt0}, v{vt1} offset:40",'cnt')
A("s_mov_b64 exec, -1")
A.wait_lg('cnt')
A(f"""v_readfirstlane_b32 s{sU0}, v{vP}
s_cmp_lg_u32 s{sU0}, 7
s_cbranch_scc1 L_nl1""")
flag_store(vN,vZ,sFOw)
poll_issue(vP,vFl,sFOr,0xff)
A.label("L_nl1")
stamp(25)
for i in range(2,6):
    A.wait_lg_all(); wo_read(i,i)
A.wait_lg_all()
A(f"s_cmp_lg_u32 s{sU0}, 7\ns_cbranch_scc1 L_nl2")
poll_check(vP,vFl,sFOr,sCnt,sNon,0xff)
A(f"ds_write_b32 v{vt0}, v{vt1} offset:36\ns_branch L_nl3")
A.label("L_nl2")
lds_word_spin(vP,vt0,36,sCnt,sU1)
A.label("L_nl3")
A.vm=[]
stamp(26)
for i in range(8):
    if i==4: A(f"s_add_u32 s{sOld}, s{sOld}, 4096")
    A.vmem(f"buffer_load_dwordx4 {vr(Of[i],4)}, v{vL16}, {sr(SRD_WS,4)}, s{sOld} offen offset:{(i%4)*1024} sc1",('of',i))
A.wait_lg_all()
for i in range(8):
    A.wait_vm(('of',i))
    if i>=6: A.wait_lg(('wo',i))
    for c in range(4):
        A(f"v_mfma_f32_16x16x32_bf16 {vr(Ac[c],4)}, {vr(Wf[i%6][c],4)}, {vr(Of[i],4)}, {'0' if i==0 else vr(Ac[c],4)}")
    if i<2:
        A.wait_lg_all(); wo_read(6+i,i)
A("s_nop 7")
A.lds(f"ds_write_b128 v{vXw}, {vr(Ac[2],4)}")
A.lds(f"ds_write_b128 v{vXw}, {vr(Ac[3],4)} offset:1024")
A.wait_lg_all()
A("s_barrier")
A.lds(f"ds_read_b128 {vr(Ac[2],4)}, v{vXr}",'x0')
A.lds(f"ds_read_b128 {vr(Ac[3],4)}, v{vXr} offset:1024",'x1')
for c in range(2):
    A.wait_lg(f'x{c}')
    for i in range(4): A(f"v_add_f32 v{Ac[c]+i}, v{Ac[c]+i}, v{Ac[2+c]+i}")
    A(f"v_cvt_pk_bf16_f32 v{Ac[c]}, v{Ac[c]}, v{Ac[c]+1}\nv_cvt_pk_bf16_f32 v{Ac[c]+1}, v{Ac[c]+2}, v{Ac[c]+3}")
    A.vmem(f"buffer_store_dwordx2 {vr(Ac[c],2)}, v{vOo}, {sr(SRD_OUT,4)}, s{sOut} offen offset:{c*32}")
stamp(27)
stamp_out(vt0)
A("s_endpgm")

A.label("L_fallback"); A.reset()
fC=Oa[1]; fM=vt0; fT=vt1; fS=Kf[0]
fK=Kf[4]; fV=Vf[0]
A(f"""s_lshl_b32 s{sU0}, s{sKH}, 11
s_sub_u32 s{sU2}, s{sKVb}, s{sU0}
s_mov_b32 s{sOff}, s{sU2}
s_mov_b32 s{sCnt}, 0
v_mov_b32 v{fM}, {NEGBIG:#x}""")
A.label("L_fb1")
A(f"""buffer_load_dwordx4 {vr(fK,4)}, v{vL16}, {sr(SRD_WS,4)}, s{sOff} offen sc1
s_waitcnt vmcnt(0)
v_mfma_f32_32x32x16_bf16 {vr(fS,16)}, {vr(fK,4)}, {vr(Qf[0],4)}, 0
s_add_u32 s{sOff}, s{sOff}, 2048
s_add_u32 s{sCnt}, s{sCnt}, 1
s_nop 11""")
for i in range(8): A(f"v_max3_f32 v{fM}, v{fM}, v{fS+2*i}, v{fS+2*i+1}")
A(f"""s_cmp_lt_u32 s{sCnt}, 64
s_cbranch_scc1 L_fb1
v_mov_b32 v{fT}, v{fM}
s_nop 1
v_permlane32_swap_b32 v{fM}, v{fT}
s_nop 1
v_max_f32 v{fM}, v{fM}, v{fT}""")
for i in range(16): A(f"v_sub_f32 v{fC+i}, 0, v{fM}")
for i in range(16): A(f"v_mov_b32 v{Oa[0]+i}, 0")
A(f"""s_mov_b32 s{sOff}, s{sU2}
s_mov_b32 s{sCnt}, 0""")
A.label("L_fb2")
A(f"""buffer_load_dwordx4 {vr(fK,4)}, v{vL16}, {sr(SRD_WS,4)}, s{sOff} offen sc1
s_mov_b64 exec, {sr(sVM,2)}
buffer_load_dwordx4 {vr(fV,4)}, v{vVo}, {sr(SRD_WS,4)}, s{sOff} offen offset:1024 sc1
buffer_load_dwordx4 {vr(fV+4,4)}, v{vVo}, {sr(SRD_WS,4)}, s{sOff} offen offset:1536 sc1
s_mov_b64 exec, -1
s_waitcnt vmcnt(0)
v_mfma_f32_32x32x16_bf16 {vr(fS,16)}, {vr(fK,4)}, {vr(Qf[0],4)}, {vr(fC,16)}
s_add_u32 s{sOff}, s{sOff}, 2048
s_add_u32 s{sCnt}, s{sCnt}, 1
s_nop 11""")
for i in range(16): A(f"v_exp_f32 v{fS+i}, v{fS+i}")
A(f"""s_nop 1
v_smfmac_f32_32x32x32_bf16 {vr(Oa[0],16)}, {vr(fV,4)}, {vr(fS,8)}, v{vIdx}
v_smfmac_f32_32x32x32_bf16 {vr(Oa[0],16)}, {vr(fV+4,4)}, {vr(fS+8,8)}, v{vIdx}
s_cmp_lt_u32 s{sCnt}, 64
s_cbranch_scc1 L_fb2
s_nop 15
s_branch L_norm""")

A.label("L_aux")
A.reset()
VX=Alloc(2,168)
xt0=VX.take(); xt1=VX.take(); xt2=VX.take(); xZ=VX.take(); xN=VX.take(2,2)
xL16=VX.take(); xVo=VX.take()
xBig=VX.mark()
va=[[VX.take() for _ in range(4)] for _ in range(2)]; vwa=[VX.take() for _ in range(2)]
vKpos=VX.take(); vV1=VX.take(); gDum=VX.take(); gLF=VX.take()
acc=[VX.take(16,4) for _ in range(6)]
xf=[[VX.take(4,4) for _ in range(2)] for _ in range(2)]
wf=[VX.take(4,4) for _ in range(4)]
sT=sA0; sC=sA0+1; sV0=sA0+2; sV1=sA0+3; sNx=sA0+4; sCx=sA0+6; sVMx=sA0+8; sV2=sA0+11; sV3=sA0+12
sB0=sA0+13; sB1=sA0+14; sB2=sA0+15; sHa=sA0+16; sHf=sA0+17; sTT=sA0+18; sRP=sA0+22; sJ=sA0+23; sG0=sA0+19; sG1=sA0+20
A(f"""s_setprio 3
s_sub_u32 s{sT}, s{sW}, 8
s_and_b32 s{sRP}, s{sT}, 1
s_lshr_b32 s{sJ}, s{sT}, 1
v_mov_b32 v{xZ}, 0
s_waitcnt lgkmcnt(0)""")
srd(SRD_WS,20,WS_BYTES); srd(SRD_DBG,18,256)
A(f"""s_add_u32 s{sV0}, s2, s{sT}
s_cmp_lg_u32 s{sV0}, 0
s_cbranch_scc1 L_nonon
s_mov_b32 s{sV0}, {WS_EPOCH}
s_mov_b64 exec, 1
buffer_load_dwordx2 {vr(xN,2)}, v{xZ}, {sr(SRD_WS,4)}, s{sV0} offen sc1
s_waitcnt vmcnt(0)
v_add_u32 v{xN}, 2, v{xN}
v_or_b32 v{xN}, 1, v{xN}
v_or_b32 v{xN+1}, 0x80000000, v{xN+1}
buffer_store_dwordx2 {vr(xN,2)}, v{xZ}, {sr(SRD_DBG,4)}, 0 offen sc1
buffer_store_dwordx2 {vr(xN,2)}, v{xZ}, {sr(SRD_WS,4)}, s{sV0} offen sc1
s_mov_b64 exec, -1""")
A.label("L_nonon")
stamp(0)
if OPT.get('pf',0):
    A(f"""s_cmp_eq_u32 s{sBR}, 0
    s_cselect_b32 s{SRD_X}, s10, s4
    s_cselect_b32 s{SRD_X+1}, s11, s5
    s_cselect_b32 s{SRD_W}, s12, s6
    s_cselect_b32 s{SRD_W+1}, s13, s7
    s_mov_b32 s{SRD_X+2}, 2097152
    s_mov_b32 s{SRD_X+3}, 0x00020000
    s_mov_b32 s{SRD_W+2}, 1572864
    s_mov_b32 s{SRD_W+3}, 0x00020000
    v_lshlrev_b32 v{xt0}, 7, v0
    v_lshrrev_b32 v{xt1}, 2, v0
    v_mul_u32_u24 v{xt1}, 3072, v{xt1}
    v_and_b32 v{xt2}, 3, v0
    v_lshl_add_u32 v{xt1}, v{xt2}, 7, v{xt1}""")
    if OPT['m']==2:
        A(f"""s_and_b32 s{sV0}, s{sR2}, 8
        s_lshl_b32 s{sV0}, s{sV0}, 17
        s_mov_b32 s{sV2}, s{sT1}
        s_mul_i32 s{sV1}, s{sV2}, 49152""")
    else:
        A(f"""s_lshr_b32 s{sV2}, s{sT1}, 3
        s_lshl_b32 s{sV2}, s{sV2}, 2
        s_and_b32 s{sV0}, s{sT1}, 3
        s_add_u32 s{sV2}, s{sV2}, s{sV0}
        s_and_b32 s{sV0}, s2, 6
        s_lshl_b32 s{sV0}, s{sV0}, 18
        s_mul_i32 s{sV1}, s{sV2}, 98304""")
    A(f"""s_lshl_b32 s{sV2}, s{sV2}, 15
    s_add_u32 s{sV0}, s{sV0}, s{sV2}
    s_lshl_b32 s{sV2}, s{sT}, 13
    s_add_u32 s{sV0}, s{sV0}, s{sV2}
    s_and_b32 s{sV2}, s2, 1
    s_lshl_b32 s{sV2}, s{sV2}, 9
    s_add_u32 s{sV1}, s{sV1}, s{sV2}
    s_lshl_b32 s{sV2}, s{sT}, 10
    s_add_u32 s{sV1}, s{sV1}, s{sV2}
    {"s_sleep "+str(OPT['pfd']) if OPT.get('pfd') else ""}
    buffer_load_dword v{gDum}, v{xt0}, {sr(SRD_X,4)}, s{sV0} offen
    s_cmp_eq_u32 s{sT}, 3
    s_cbranch_scc1 L_pfd
    buffer_load_dword v{gDum}, v{xt1}, {sr(SRD_W,4)}, s{sV1} offen""")
    if OPT['m']==1:
        A(f"s_add_u32 s{sV1}, s{sV1}, 49152\nbuffer_load_dword v{gDum}, v{xt1}, {sr(SRD_W,4)}, s{sV1} offen")
    A.label("L_pfd")
A(f"""v_mov_b32 v{gLF}, {LF}
v_lshl_add_u32 v{xt0}, v0, 2, v{gLF}
ds_write_b32 v{xt0}, v{xZ}
v_and_b32 v{xt0}, 31, v0
v_lshrrev_b32 v{xt1}, 5, v0
v_bfe_u32 v{xt2}, v0, 1, 3
v_xor_b32 v{xt2}, v{xt2}, v{xt1}
v_lshlrev_b32 v{xt2}, 4, v{xt2}
v_lshl_add_u32 v{xt2}, v{xt0}, 7, v{xt2}
s_lshl_b32 s{sV0}, s{sRP}, 13
s_add_u32 s{sV0}, s{sV0}, {LXO}
v_add_u32 v{va[0][0]}, s{sV0}, v{xt2}""")
for s in range(1,4): A(f"v_xor_b32 v{va[0][s]}, {32*s}, v{va[0][0]}")
for s in range(4): A(f"v_add_u32 v{va[1][s]}, {2*SL}, v{va[0][s]}")
A(f"""v_bfe_u32 v{xt2}, v0, 2, 2
v_lshl_add_u32 v{xt2}, v{xt1}, 3, v{xt2}
v_lshlrev_b32 v{xt2}, 7, v{xt2}
v_bfe_u32 v{vV1}, v0, 4, 1
v_lshl_add_u32 v{xt2}, v{vV1}, 5, v{xt2}
v_and_b32 v{vwa[0]}, 3, v0
v_lshl_add_u32 v{xt2}, v{vwa[0]}, 3, v{xt2}
v_bfe_u32 v{vwa[0]}, v0, 3, 1
v_lshl_add_u32 v{vwa[0]}, v{vwa[0]}, 6, v{xt2}
s_lshl_b32 s{sV0}, s{sJ}, 6
v_xor_b32 v{vwa[0]}, s{sV0}, v{vwa[0]}
v_add_u32 v{vwa[1]}, {2*SL}, v{vwa[0]}
v_and_b32 v{vKpos}, 0x33, v0
v_bfe_u32 v{xt2}, v0, 2, 1
v_lshl_add_u32 v{vKpos}, v{xt2}, 3, v{vKpos}
v_bfe_u32 v{xt2}, v0, 3, 1
v_lshl_add_u32 v{vKpos}, v{xt2}, 2, v{vKpos}
v_lshlrev_b32 v{vKpos}, 4, v{vKpos}
v_and_b32 v{xt2}, 15, v0
v_lshlrev_b32 v{xt2}, 4, v{xt2}
v_lshl_add_u32 v{xVo}, v{xt1}, 8, v{xt2}
v_lshlrev_b32 v{xL16}, 4, v0
s_mov_b32 s{sC}, {f2u(CSCALE):#x}
s_mov_b32 s{sVMx}, 0x0000ffff
s_mov_b32 s{sVMx+1}, 0x0000ffff
s_lshl_b32 s{sTT}, s{sR2}, 1
s_add_u32 s{sTT}, s{sTT}, s{sRP}
s_lshl_b32 s{sTT}, s{sTT}, 1
s_lshl_b32 s{sHf}, s{sHQ}, 4
s_add_u32 s{sHf}, s{sHf}, s{sR2}""")
if OPT['pfc']:
    A(f"s_getpc_b64 {sr(sNx,2)}")
    A.label("L_pc")
    A(f"""s_sub_u32 s{sNx}, s{sNx}, L_pc-{NAME}
    s_subb_u32 s{sNx+1}, s{sNx+1}, 0
    s_lshl_b32 s{sV0}, s{sT}, 13
    s_mov_b32 s{sV1}, L_codeend-{NAME}-4
    v_lshlrev_b32 v{xt2}, 7, v0
    v_add_u32 v{xt2}, s{sV0}, v{xt2}
    v_min_u32 v{xt2}, s{sV1}, v{xt2}""")
PARTS=(1,2,0)
def rd_x(n,r):
    if n>=32: return
    s,ks=divmod(n,4); slot=s%3
    A.lds(f"ds_read_b128 {vr(xf[n%2][r],4)}, v{va[slot//2][ks]} offset:{(slot%2)*SL+r*4096}", ('x',n,r))
def rd_w(n,c):
    if n>=32: return
    s,ks=divmod(n,4); slot=s%3; p=PARTS[c]
    o=(slot%2)*SL+p*8192+ks*2048
    A.lds(f"ds_read_b64_tr_b16 {vr(wf[c],2)}, v{vwa[slot//2]} offset:{o}", ('w',n,c))
    A.lds(f"ds_read_b64_tr_b16 {vr(wf[c]+2,2)}, v{vwa[slot//2]} offset:{o+512}", ('w',n,c))
def g_step(n):
    s,ks=divmod(n,4)
    if ks==3:
        A.wait_lg_all()
        if s<7: A("s_barrier")
    for c in range(3):
        for r in range(2):
            A.wait_lg([('x',n,r),('w',n,c)])
            a_=acc[2*c+r]; C="0" if n==0 else vr(a_,16)
            if c==1: A(f"v_mfma_f32_32x32x16_bf16 {vr(a_,16)}, {vr(xf[n%2][r],4)}, {vr(wf[c],4)}, {C}")
            else: A(f"v_mfma_f32_32x32x16_bf16 {vr(a_,16)}, {vr(wf[c],4)}, {vr(xf[n%2][r],4)}, {C}")
            if r==0 and c<2: rd_x(n+1,c)
            if r==1: rd_w(n+1,c)
    if n==9 and OPT['pfc']: A.vmem(f"global_load_dword v{gDum}, v{xt2}, {sr(sNx,2)}")
    if n==22: A.vmem(f"buffer_load_dwordx2 {vr(xN,2)}, v{xZ}, {sr(SRD_DBG,4)}, 0 offen sc1",'non')
def pack16(dst, a, scale=False):
    if scale:
        for i in range(16): A(f"v_mul_f32 v{a+i}, s{sC}, v{a+i}")
    for i in range(8): A(f"v_cvt_pk_bf16_f32 v{dst+i}, v{a+2*i}, v{a+2*i+1}")
A.wait_lg_all()
A("s_barrier")
rd_x(0,0); rd_w(0,0); rd_x(0,1); rd_w(0,1); rd_w(0,2)
for n in range(32): g_step(n)
stamp(9)
A(f"""s_cmp_lg_u32 s{sBR}, 0
s_cbranch_scc1 L_epa""")
A(f"""s_lshl_b32 s{sV0}, s{sTT}, 11
s_lshl_b32 s{sV1}, s{sJ}, 18
s_add_u32 s{sV0}, s{sV0}, s{sV1}
s_lshl_b32 s{sV1}, s{sHK}, 19
s_add_u32 s{sB0}, s{sV0}, s{sV1}
s_add_u32 s{sG0}, s{sB0}, 131072
s_lshl_b32 s{sV1}, s{sHV}, 19
s_add_u32 s{sB1}, s{sV0}, s{sV1}
s_lshr_b32 s{sB2}, s{sV0}, 1
s_lshl_b32 s{sV1}, s{sHQ}, 18
s_add_u32 s{sB2}, s{sB2}, s{sV1}
s_add_u32 s{sB2}, s{sB2}, {WS_Q}
s_add_u32 s{sG1}, s{sB2}, 65536
v_lshl_add_u32 v{xt0}, v{vV1}, 17, v{xVo}""")
for r in range(2):
    K=acc[r]; pack16(K,K)
    A.vmem(f"buffer_store_dwordx4 {vr(K,4)}, v{vKpos}, {sr(SRD_WS,4)}, s{sB0} offen offset:{r*2048} sc1")
    A.vmem(f"buffer_store_dwordx4 {vr(K+4,4)}, v{vKpos}, {sr(SRD_WS,4)}, s{sG0} offen offset:{r*2048} sc1")
for r in range(2):
    V=acc[2+r]; pack16(V,V)
    A.vmem(f"buffer_store_dwordx4 {vr(V,4)}, v{xt0}, {sr(SRD_WS,4)}, s{sB1} offen offset:{r*2048+1024} sc1")
    A.vmem(f"buffer_store_dwordx4 {vr(V+4,4)}, v{xt0}, {sr(SRD_WS,4)}, s{sB1} offen offset:{r*2048+1536} sc1")
for r in range(2):
    Q=acc[4+r]; pack16(Q,Q,True)
    A.vmem(f"buffer_store_dwordx4 {vr(Q,4)}, v{xL16}, {sr(SRD_WS,4)}, s{sB2} offen offset:{r*1024} sc1")
    A.vmem(f"buffer_store_dwordx4 {vr(Q+4,4)}, v{xL16}, {sr(SRD_WS,4)}, s{sG1} offen offset:{r*1024} sc1")
A.wait_vm('non')
nonce_check(xN,xZ,sNx,sCx,sV1)
A(f"""s_lshl_b32 s{sHf}, s{sHf}, 7
s_add_u32 s{sHf}, s{sHf}, {WS_FG}""")
A.wait_vm_all()
A("s_barrier")
A(f"s_cmp_lg_u32 s{sT}, 0\ns_cbranch_scc1 L_wo")
flag_store(xN,xZ,sHf)
A("s_branch L_wo")
A.label("L_epa"); A.reset(); A.vm=['non']
A(f"""s_lshl_b32 s{sV0}, s{sRP}, 14
s_lshl_b32 s{sV1}, s{sJ}, 12
s_add_u32 s{sV2}, s{sV0}, s{sV1}
s_add_u32 s{sV0}, s{sV2}, {EAK+8192}
v_add_u32 v{xt1}, s{sV0}, v{vKpos}
v_lshl_add_u32 v{xt0}, v{vV1}, 11, v{xVo}
v_add_u32 v{xt2}, s{sV0}, v{xt0}
s_lshl_b32 s{sHa}, s{sHf}, 13
s_add_u32 s{sHa}, s{sHa}, {WS_HA}
s_add_u32 s{sV1}, s{sV1}, s{sHa}
s_lshl_b32 s{sHf}, s{sHf}, 1
s_add_u32 s{sHf}, s{sHf}, s{sJ}
s_lshl_b32 s{sHf}, s{sHf}, 7
s_add_u32 s{sHf}, s{sHf}, {WS_FH}""")
pack16(acc[1],acc[1]); pack16(acc[3],acc[3])
A(f"""s_cmp_lg_u32 s{sRP}, 1
s_cbranch_scc1 L_noha
buffer_store_dwordx4 {vr(acc[1],4)}, v{vKpos}, {sr(SRD_WS,4)}, s{sV1} offen sc1
buffer_store_dwordx4 {vr(acc[1]+4,4)}, v{vKpos}, {sr(SRD_WS,4)}, s{sV1} offen offset:2048 sc1
buffer_store_dwordx4 {vr(acc[3]+4,4)}, v{xt0}, {sr(SRD_WS,4)}, s{sV1} offen offset:1536 sc1""")
A.label("L_noha")
pack16(acc[0],acc[0]); pack16(acc[2],acc[2])
for r in range(2):
    A.lds(f"ds_write_b128 v{xt1}, {vr(acc[r],4)} offset:{r*8192}")
    A.lds(f"ds_write_b128 v{xt1}, {vr(acc[r]+4,4)} offset:{r*8192+2048}")
    A.lds(f"ds_write_b128 v{xt2}, {vr(acc[2+r],4)} offset:{r*8192+1024}")
    A.lds(f"ds_write_b128 v{xt2}, {vr(acc[2+r]+4,4)} offset:{r*8192+1536}")
A(f"s_lshr_b32 s{sV0}, s{sV2}, 1\ns_add_u32 s{sV0}, s{sV0}, {EAQ}\nv_add_u32 v{xt1}, s{sV0}, v{xL16}")
for r in range(2):
    pack16(acc[4+r],acc[4+r],True)
    for e in range(2): A.lds(f"ds_write_b128 v{xt1}, {vr(acc[4+r]+4*e,4)} offset:{r*4096+e*1024}")
A.wait_lg_all()
A("s_barrier")
Mk=acc[0]; Sc=acc[2]; Sp=acc[3]; Oc=acc[4]; T5=acc[5]
Qh=T5; Kc=T5+4; Kp=T5+8; dstp=T5+12; Vc=xf[0][0]; Vp=xf[1][0]; FL=wf[0]
vAQ=va[0][0]; vAK=va[0][1]; vAV=va[0][2]; vOf=va[0][3]; mx=va[1][0]; mt=va[1][1]; xIdx=va[1][2]; xOne=va[1][3]
A(f"""v_and_b32 v{xt0}, 31, v0
v_lshrrev_b32 v{xt1}, 5, v0
v_lshlrev_b32 v{xt1}, 3, v{xt1}
v_sub_u32 v{xt0}, v{xt0}, v{xt1}
v_add_u32 v{xt1}, 16, v{xt0}
v_mov_b32 v{xt2}, {NEGBIG:#x}
s_mov_b32 s{sV1}, 0xfffffff1""")
for r in range(24):
    src,c=(xt0,16*(r//8)+r%8) if r<16 else (xt1,r-16)
    A(f"v_subrev_u32 v{Mk+r}, {c}, v{src}")
    A(f"v_and_b32 v{Mk+r}, s{sV1}, v{Mk+r}")
for r in range(0,24,2):
    A(f"v_cmp_eq_u32 vcc, 0, v{Mk+r}")
    A(f"v_cmp_eq_u32 {sr(sG0+1,2)}, 0, v{Mk+r+1}")
    A("s_nop 0")
    A(f"v_cndmask_b32 v{Mk+r}, v{xt2}, 0, vcc")
    A(f"v_cndmask_b32 v{Mk+r+1}, v{xt2}, 0, {sr(sG0+1,2)}")
assert (sG0+1)%2==0
A(f"""s_lshl_b32 s{sV0}, s{sT}, 10
s_add_u32 s{sV0}, s{sV0}, {EAQ}
v_add_u32 v{vAQ}, s{sV0}, v{xL16}
s_lshl_b32 s{sV0}, s{sT}, 11
s_add_u32 s{sV1}, s{sV0}, {EAK}
v_add_u32 v{vAK}, s{sV1}, v{xL16}
v_add_u32 v{vAV}, s{sV1}, v{xVo}
v_and_b32 v{xt0}, 27, v0
v_cmp_eq_u32 vcc, 16, v{xt0}
v_mov_b32 v{xt1}, 0x3f803f80
v_lshl_add_u32 v{vOf}, v{vV1}, 14, v{xVo}
v_cndmask_b32 v{xt1}, 0, v{xt1}, vcc
v_mov_b32 v{xIdx}, 0xdddddddd
v_mov_b32 v{xOne}, 1
s_and_b32 s{sV1}, s{sT}, 1
s_lshl_b32 s{sV1}, s{sV1}, 9
v_add_u32 v{vOf}, s{sV1}, v{vOf}
s_lshl_b32 s{sV3}, s{sR2}, 7
s_lshl_b32 s{sV1}, s{sHQ}, 1
s_add_u32 s{sV3}, s{sV3}, s{sV1}
s_lshr_b32 s{sV1}, s{sT}, 1
s_add_u32 s{sV3}, s{sV3}, s{sV1}
s_lshl_b32 s{sV3}, s{sV3}, 10
s_add_u32 s{sV3}, s{sV3}, {WS_OFA}
s_add_u32 s{sHa}, s{sHa}, s{sV0}
s_sub_u32 s{sHa}, s{sHa}, 8192""")
for i in range(12): A(f"v_mov_b32 v{Vc+i}, v{xt1}")
A.wait_vm_all()
nonce_check(xN,xZ,sNx,sCx,sV1)
A(f"s_cmp_lg_u32 s{sRP}, 1\ns_cbranch_scc1 L_noha2")
flag_store(xN,xZ,sHf)
A.label("L_noha2")
A(f"s_sub_u32 s{sHf}, s{sHf}, 256")
stamp(18)
for it,T in enumerate((1,2,3,0)):
    A.lds(f"ds_read_b128 {vr(Qh,4)}, v{vAQ} offset:{T*4096}",'q')
    A.lds(f"ds_read_b128 {vr(Kc,4)}, v{vAK} offset:{(T+1)*8192}",'kc')
    if T: A.lds(f"ds_read_b128 {vr(Kp,4)}, v{vAK} offset:{T*8192}",'kp')
    A(f"s_mov_b64 exec, {sr(sVMx,2)}")
    A.lds(f"ds_read_b128 {vr(Vc,4)}, v{vAV} offset:{(T+1)*8192+1024}",'v')
    A.lds(f"ds_read_b128 {vr(Vc+4,4)}, v{vAV} offset:{(T+1)*8192+1536}",'v')
    if T: A.lds(f"ds_read_b128 {vr(Vp,4)}, v{vAV} offset:{T*8192+1536}",'v')
    A("s_mov_b64 exec, -1")
    if T==0:
        A.wait_lg_all()
        A(f"s_lshl_b32 s{sV0}, s{sT}, 2\nv_add_u32 v{xt0}, s{sV0}, v{gLF}")
        A.lds(f"ds_write_b32 v{xt0}, v{xOne}")
        A(f"s_cmp_eq_u32 s{sR2}, 0\ns_cbranch_scc1 L_first")
        poll_issue(FL,xZ,sHf,1)
        poll_check(FL,xZ,sHf,sCx,sNx,1,sleep=OPT['slp'])
        A(f"""buffer_load_dwordx4 {vr(Kp,4)}, v{xL16}, {sr(SRD_WS,4)}, s{sHa} offen sc1
        s_mov_b64 exec, {sr(sVMx,2)}
        buffer_load_dwordx4 {vr(Vp,4)}, v{xVo}, {sr(SRD_WS,4)}, s{sHa} offen offset:1536 sc1
        s_mov_b64 exec, -1
        s_waitcnt vmcnt(0)
        s_branch L_first2""")
        A.label("L_first")
        for i in range(8): A(f"v_mov_b32 v{Mk+16+i}, v{xt2}")
        A("s_nop 1")
        A.label("L_first2")
        A.vm=[]
    A.wait_lg('kc')
    A(f"v_mfma_f32_32x32x16_bf16 {vr(Sc,16)}, {vr(Kc,4)}, {vr(Qh,4)}, {vr(Mk,16)}")
    A.wait_lg('kp')
    A(f"v_mfma_f32_32x32x16_bf16 {vr(Sp,16)}, {vr(Kp,4)}, {vr(Qh,4)}, {vr(Mk+8,16)}")
    for i in range(9): A(f"v_mov_b32 v{Oc+i}, 0")
    A("s_nop 1")
    A(f"v_max_f32 v{mx}, v{Sc}, v{Sc+1}")
    for i in range(1,8): A(f"v_max3_f32 v{mx}, v{mx}, v{Sc+2*i}, v{Sc+2*i+1}")
    for i in range(4,8): A(f"v_max3_f32 v{mx}, v{mx}, v{Sp+2*i}, v{Sp+2*i+1}")
    A(f"""v_mov_b32 v{mt}, v{mx}
    s_nop 1
    v_permlane32_swap_b32 v{mx}, v{mt}
    s_nop 1
    v_max_f32 v{mx}, v{mx}, v{mt}""")
    regs=[Sp+8+i for i in range(8)]+[Sc+i for i in range(16)]
    for r in regs: A(f"v_sub_f32 v{r}, v{r}, v{mx}")
    A.wait_lg('v')
    for j,r in enumerate(regs):
        A(f"v_exp_f32 v{r}, v{r}")
        if j==9: A(f"v_smfmac_f32_32x32x32_bf16 {vr(Oc,16)}, {vr(Vp,4)}, {vr(Sp+8,8)}, v{xIdx}")
        if j==17: A(f"v_smfmac_f32_32x32x32_bf16 {vr(Oc,16)}, {vr(Vc,4)}, {vr(Sc,8)}, v{xIdx}")
    A("s_nop 1")
    A(f"v_smfmac_f32_32x32x32_bf16 {vr(Oc,16)}, {vr(Vc+4,4)}, {vr(Sc+8,8)}, v{xIdx}")
    A(f"s_add_u32 s{sV1}, s{sV3}, {T*32768}\ns_nop 10")
    A(f"v_rcp_f32 v{mt}, v{Oc+8}\ns_nop 0")
    for i in range(8): A(f"v_mul_f32 v{Oc+i}, v{Oc+i}, v{mt}")
    dst=dstp if it%2==0 else wf[3]
    for i in range(4): A(f"v_cvt_pk_bf16_f32 v{dst+i}, v{Oc+2*i}, v{Oc+2*i+1}")
    A.vmem(f"buffer_store_dwordx4 {vr(dst,4)}, v{vOf}, {sr(SRD_WS,4)}, s{sV1} offen sc1",'oa')
stamp(19)
A(f"""s_lshl_b32 s{sV1}, s{sR2}, 3
s_add_u32 s{sV1}, s{sV1}, s{sHQ}
s_lshl_b32 s{sV1}, s{sV1}, 7
s_add_u32 s{sV1}, s{sV1}, {WS_FOA}""")
A.wait_vm_all()
A("s_mov_b64 exec, 1")
A.lds(f"ds_add_rtn_u32 v{FL}, v{gLF}, v{xOne} offset:48")
A("s_mov_b64 exec, -1")
A.wait_lg_all()
A(f"v_readfirstlane_b32 s{sV0}, v{FL}\ns_cmp_lg_u32 s{sV0}, 3\ns_cbranch_scc1 L_nofa")
flag_store(xN,xZ,sV1)
A.label("L_nofa")
lds_flags_spin(FL,gLF,sCx,sV0)
A.label("L_wo"); A.reset(); A.vm=['x']
lds_word_spin(xt0,gLF,44,sCx,sV0)
A(f"""s_lshr_b32 s{sV0}, s{sRB}, 1
s_lshl_b32 s{sV0}, s{sV0}, 10
s_add_u32 s{sV0}, s{sV0}, {WS_FOA}""")
srd(SRD_M,14,524288); srd(SRD_XA,8,524288); srd(SRD_OUT,16,4194304)
A(f"""v_lshrrev_b32 v{xt0}, 3, v0
v_and_b32 v{xt1}, 6, v{xt0}
v_xor_b32 v{xt1}, v{xt1}, v0
v_and_b32 v{xt1}, 7, v{xt1}
v_lshlrev_b32 v{xt0}, 10, v{xt0}
v_lshl_add_u32 v{xt0}, v{xt1}, 4, v{xt0}
s_lshl_b32 s{sB0}, s{sT}, 17
s_lshl_b32 s{sB1}, s{sHQ}, 7
s_add_u32 s{sB1}, s{sB1}, s{sB0}
s_lshl_b32 s{sB2}, s{sT}, 14""")
for j in range(16 if not OPT.get('nowo') else 0):
    A(f"s_add_u32 m0, s{sB2}, {WOB+j*1024}")
    if j: A(f"s_add_u32 s{sB1}, s{sB1}, 8192")
    else: A("s_nop 0")
    A.vmem(f"buffer_load_dwordx4 v{xt0}, {sr(SRD_M,4)}, s{sB1} offen lds")
    A(f"s_add_u32 m0, s{sB2}, {WOA+j*1024}\ns_nop 0")
    A.vmem(f"buffer_load_dwordx4 v{xt0}, {sr(SRD_XA,4)}, s{sB1} offen lds")
    if OPT['pace']<60: A(f"s_waitcnt vmcnt({OPT['pace']})"); A.vm=A.vm[-OPT['pace']:]
VY=Alloc(xBig,168)
yFl=VY.take(); yP=VY.take(2,2); yWA=[VY.take() for _ in range(4)]; yOo=VY.take()
yO=[VY.take(4,4) for _ in range(16)]
yW=[[VY.take(4,4) for _ in range(4)] for _ in range(3)]
yA=[VY.take(4,4) for _ in range(4)]
A(f"""v_and_b32 v{yFl}, 15, v0
v_lshlrev_b32 v{yOo}, 11, v{yFl}
v_lshlrev_b32 v{yFl}, 7, v{yFl}
v_lshrrev_b32 v{xt0}, 4, v0
v_lshl_add_u32 v{yOo}, v{xt0}, 3, v{yOo}""")
poll_issue(yP,yFl,sV0,0xff)
poll_check(yP,yFl,sV0,sCx,sNx,0xff,sleep=OPT['slp'])
stamp(20)
A(f"""s_lshl_b32 s{sV2}, s{sRB}, 2
s_add_u32 s{sV2}, s{sV2}, s{sT}
s_lshl_b32 s{sB0}, s{sV2}, 14
s_add_u32 s{sB0}, s{sB0}, {WS_OFA}""")
for i in range(16 if not OPT.get('nowo') else 0):
    if i and i%4==0: A(f"s_add_u32 s{sB0}, s{sB0}, 4096")
    A.vmem(f"buffer_load_dwordx4 {vr(yO[i],4)}, v{xL16}, {sr(SRD_WS,4)}, s{sB0} offen offset:{(i%4)*1024} sc1")
    if OPT['pace']<60 and i%2==1 and len(A.vm)>OPT['pace']: A(f"s_waitcnt vmcnt({OPT['pace']})"); A.vm=A.vm[-OPT['pace']:]
wo_tr_addr(yWA[0],xt0,xt1)
A(f"""v_add_u32 v{yWA[0]}, {WOA}, v{yWA[0]}
v_xor_b32 v{yWA[1]}, 32, v{yWA[0]}
v_xor_b32 v{yWA[2]}, 64, v{yWA[0]}
v_xor_b32 v{yWA[3]}, 96, v{yWA[0]}
s_lshl_b32 s{sB0}, s{sV2}, 15
s_lshl_b32 s{sB1}, s{sHQ}, 7
s_add_u32 s{sB0}, s{sB0}, s{sB1}""")
A.wait_vm_all()
stamp(21)
A("s_setprio 0")
A("s_barrier")
def woa_read(hp_,c):
    if hp_>=16: return
    b=hp_%3
    A.lds(f"ds_read_b64_tr_b16 {vr(yW[b][c],2)}, v{yWA[c]} offset:{hp_*4096}",('wa',hp_,c))
    A.lds(f"ds_read_b64_tr_b16 {vr(yW[b][c]+2,2)}, v{yWA[c]} offset:{hp_*4096+1024}",('wa',hp_,c))
for c in range(4): woa_read(0,c)
for c in range(2): woa_read(1,c)
for i in range(16):
    for c in range(4):
        A.wait_lg(('wa',i,c))
        A(f"v_mfma_f32_16x16x32_bf16 {vr(yA[c],4)}, {vr(yW[i%3][c],4)}, {vr(yO[i],4)}, {'0' if i==0 else vr(yA[c],4)}")
        woa_read(i+1+(c+2)//4,(c+2)%4)
A("s_nop 7")
for c in range(4):
    acc=yA[c]
    A(f"v_cvt_pk_bf16_f32 v{acc}, v{acc}, v{acc+1}\nv_cvt_pk_bf16_f32 v{acc+1}, v{acc+2}, v{acc+3}")
    A.vmem(f"buffer_store_dwordx2 {vr(acc,2)}, v{yOo}, {sr(SRD_OUT,4)}, s{sB0} offen offset:{c*32}")
stamp(22)
stamp_out(yFl)
A.label("L_end")
A("s_endpgm")
A.label("L_codeend")

errs=check(A.lines)
for e in errs[:25]: print("CHECK:",e, file=sys.stderr)
hdr=open('concat_heads__sliding_local_dilated__softmax_full_mha__prompt.s.ref').read().split('; Override')[0]
nv=168
out=hdr+f"""; @launch grid=(256,1,1) block=(768,1,1) lds={LDS_BYTES}
.amdgcn_target "amdgcn-amd-amdhsa--gfx950"
.text
.globl {NAME}
.p2align 8
.type {NAME},@function
"""+A.text()+f""".section .rodata,"a"
.p2align 6
.amdhsa_kernel {NAME}
  .amdhsa_next_free_vgpr {nv}
  .amdhsa_next_free_sgpr 102
  .amdhsa_accum_offset {nv}
  .amdhsa_group_segment_fixed_size 0
  .amdhsa_kernarg_size 72
  .amdhsa_user_sgpr_count 2
  .amdhsa_user_sgpr_kernarg_segment_ptr 1
  .amdhsa_system_sgpr_workgroup_id_x 1
.end_amdhsa_kernel
"""
open(sys.argv[1],'w').write(out)
print("vgpr att",VA.hi,VB.hi,"aux",VX.hi,VY.hi,"lines",len(A.lines),"errs",len(errs))
```

```python
import sys, math, struct
from asmlib import *
NAME="concat_heads__sliding_local_dilated__softmax_full_mha__prompt_kernel"
OPT=dict(pace=2, stamp=0, pfc=1, m=2, rel=6, slp=2)
for a in sys.argv[2:]:
    k,v=a.split('='); OPT[k]=int(v) if v.lstrip('-').isdigit() else v

SL=40960; LXO=24576; EAQ=0; EAK=81920-8192; RED=131072; LF=155648
WOB=0; WOA=65536
LDS_BYTES=163840
WS_KV=0; WS_OFB=4<<20; WS_OFA=6<<20; WS_Q=10<<20; WS_HA=12<<20
WS_FG=8<<20; WS_FOB=(8<<20)+32768; WS_EPOCH=(8<<20)+65536; WS_FOA=(8<<20)+131072; WS_FH=(8<<20)+163840
WS_STAMP=30<<20
WS_BYTES=32<<20
CSCALE=0.25*math.log2(math.e)
def f2u(x): return struct.unpack('<I',struct.pack('<f',x))[0]
NEGBIG=f2u(-1e30)
SPIN=30000

A=Asm()
sW=22; sHQ=23; sRB=24; sSG=25; sBR=26; sR2=27
SRD_X=28; SRD_W=32; SRD_XA=36; sHK=40; sHV=41; sT0=42; sT1=43; SRD_WS=44; SRD_DBG=48; SRD_M=52; SRD_OUT=56
sA0=60

def srd(base, ptr, nbytes):
    A(f"""s_mov_b32 s{base}, s{ptr}
    s_mov_b32 s{base+1}, s{ptr+1}
    s_mov_b32 s{base+2}, {nbytes}
    s_mov_b32 s{base+3}, 0x00020000""")
vSt=1
def stamp(idx, lvl=1):
    if OPT['stamp']<lvl: return
    if 'only' in OPT and idx not in [int(x) for x in str(OPT['only']).split(',')]: return
    A(f"""s_memrealtime s[96:97]
    s_memtime s[98:99]
    s_waitcnt lgkmcnt(0)
    v_writelane_b32 v{vSt}, s96, {idx}
    v_writelane_b32 v{vSt}, s98, {idx+32}""")
    A.lg=[]
def stamp_out(vtmp):
    if not OPT['stamp']: return
    A(f"""v_writelane_b32 v{vSt}, s100, 31
    s_mul_i32 s96, s2, 12
    s_add_u32 s96, s96, s{sW}
    s_lshl_b32 s96, s96, 8
    s_add_u32 s96, s96, {WS_STAMP}
    v_lshlrev_b32 v{vtmp}, 2, v0
    buffer_store_dword v{vSt}, v{vtmp}, {sr(SRD_WS,4)}, s96 offen""")
def poll_issue(vdst, voff, soff, mask=-1):
    if mask!=-1: A(f"s_mov_b64 exec, {mask:#x}")
    A.vmem(f"buffer_load_dwordx2 {vr(vdst,2)}, v{voff}, {sr(SRD_WS,4)}, s{soff} offen sc1",'poll')
    if mask!=-1: A("s_mov_b64 exec, -1")
def poll_check(vdst, voff, soff, scnt, snon, mask=-1, sleep=0, keep=0):
    L=A.newlabel('L_poll'); Ld=A.newlabel('L_polld'); Lc=A.newlabel('L_pollc')
    A(f"s_mov_b32 s{scnt}, 0")
    if mask!=-1: A(f"s_mov_b64 exec, {mask:#x}")
    A.wait_vm('poll')
    A(f"s_branch {Lc}")
    A.label(L)
    if sleep: A(f"s_sleep {sleep}")
    A(f"""buffer_load_dwordx2 {vr(vdst,2)}, v{voff}, {sr(SRD_WS,4)}, s{soff} offen sc1
    s_waitcnt vmcnt(0)""")
    A.label(Lc)
    A(f"""v_cmp_eq_u64 vcc, {sr(snon,2)}, {vr(vdst,2)}
    s_add_u32 s{scnt}, s{scnt}, 1
    s_cmp_eq_u64 vcc, exec
    s_cbranch_scc1 {Ld}
    s_cmp_le_u32 s{scnt}, {SPIN}
    s_cbranch_scc1 {L}""")
    A.label(Ld)
    if mask!=-1: A("s_mov_b64 exec, -1")
def lds_word_spin(vF, vAddr, off, scnt, stmp):
    L=A.newlabel('L_ws'); Ld=A.newlabel('L_wsd')
    A(f"s_mov_b32 s{scnt}, 0")
    A.label(L)
    A(f"""ds_read_b32 v{vF}, v{vAddr} offset:{off}
    s_add_u32 s{scnt}, s{scnt}, 1
    s_waitcnt lgkmcnt(0)
    v_readfirstlane_b32 s{stmp}, v{vF}
    s_cmp_gt_u32 s{scnt}, {SPIN*8}
    s_cbranch_scc1 {Ld}
    s_cmp_eq_u32 s{stmp}, 0
    s_cbranch_scc1 {L}""")
    A.label(Ld)
    A.lg=[]
def nonce_check(vN, vZ, snon, scnt, stmp):
    L=A.newlabel('L_non'); Ld=A.newlabel('L_nond')
    A(f"s_mov_b32 s{scnt}, 0")
    A.label(L)
    A(f"""v_readfirstlane_b32 s{snon}, v{vN}
    v_readfirstlane_b32 s{snon+1}, v{vN+1}
    s_add_u32 s{scnt}, s{scnt}, 1
    s_cmp_gt_u32 s{scnt}, {SPIN}
    s_cbranch_scc1 {Ld}
    s_cmp_eq_u32 s{snon}, 0
    s_cselect_b32 s{stmp}, 0, s{snon+1}
    s_cmp_lg_u32 s{stmp}, 0
    s_cbranch_scc1 {Ld}
    buffer_load_dwordx2 {vr(vN,2)}, v{vZ}, {sr(SRD_DBG,4)}, 0 offen sc1
    s_waitcnt vmcnt(0)
    s_branch {L}""")
    A.label(Ld)
def flag_store(vN, vZ, soff):
    A("s_mov_b64 exec, 1")
    A.vmem(f"buffer_store_dwordx2 {vr(vN,2)}, v{vZ}, {sr(SRD_WS,4)}, s{soff} offen sc1",'flag')
    A("s_mov_b64 exec, -1")
def lds_flags_spin(vF, vAddr, scnt, stmp, issued=False):
    L=A.newlabel('L_xs'); Ld=A.newlabel('L_xsd'); Lc=A.newlabel('L_xsc')
    A(f"s_mov_b32 s{scnt}, 0")
    if issued: A(f"s_branch {Lc}")
    A.label(L)
    A(f"ds_read_b128 {vr(vF,4)}, v{vAddr}")
    A.label(Lc)
    A(f"""s_add_u32 s{scnt}, s{scnt}, 1
    s_waitcnt lgkmcnt(0)
    v_and_b32 v{vF}, v{vF}, v{vF+1}
    v_and_b32 v{vF+2}, v{vF+2}, v{vF+3}
    v_and_b32 v{vF}, v{vF}, v{vF+2}
    s_cmp_gt_u32 s{scnt}, {SPIN*4}
    v_readfirstlane_b32 s{stmp}, v{vF}
    s_cbranch_scc1 {Ld}
    s_cmp_eq_u32 s{stmp}, 0
    s_cbranch_scc1 {L}""")
    A.label(Ld)
    A.lg=[]
def wo_tr_addr(dst, t0, t1):
    A(f"""v_lshrrev_b32 v{t0}, 2, v0
    v_and_b32 v{t0}, 7, v{t0}
    v_lshrrev_b32 v{t1}, 5, v0
    v_lshl_add_u32 v{t1}, v{t1}, 4, v{t0}
    v_lshlrev_b32 v{t1}, 7, v{t1}
    v_and_b32 v{t0}, 6, v{t0}
    v_bfe_u32 v{dst}, v0, 1, 1
    v_xor_b32 v{t0}, v{t0}, v{dst}
    v_lshl_add_u32 v{t1}, v{t0}, 4, v{t1}
    v_and_b32 v{t0}, 1, v0
    v_lshl_add_u32 v{dst}, v{t0}, 3, v{t1}""")

A.label(NAME)
if OPT['stamp']: A("s_memrealtime s[100:101]")
A(f"""s_cmp_ge_u32 s2, 256
s_cbranch_scc1 L_end
s_load_dwordx16 s[4:19], s[0:1], 0
s_load_dwordx2 s[20:21], s[0:1], 64
v_lshrrev_b32 v1, 6, v0
v_and_b32 v0, 63, v0
s_lshr_b32 s{sT1}, s2, 3
v_readfirstlane_b32 s{sW}, v1
s_and_b32 s{sHQ}, s2, 1
s_lshl_b32 s{sHQ}, s{sHQ}, 2
s_and_b32 s{sT0}, s{sT1}, 3
s_add_u32 s{sHQ}, s{sHQ}, s{sT0}
s_and_b32 s{sRB}, s2, 6
s_lshl_b32 s{sRB}, s{sRB}, 2
s_lshr_b32 s{sT0}, s{sT1}, 2
s_add_u32 s{sRB}, s{sRB}, s{sT0}""")
if OPT['m']==2: A(f"s_lshr_b32 s{sBR}, s{sRB}, 4\ns_and_b32 s{sR2}, s{sRB}, 15")
else: A(f"s_and_b32 s{sBR}, s{sRB}, 1\ns_lshr_b32 s{sR2}, s{sRB}, 1")
A({1:f"s_lshl_b32 s{sSG}, s{sHQ}, 1\ns_add_u32 s{sSG}, s{sSG}, s{sR2}", 2:f"s_mov_b32 s{sSG}, s{sR2}", 3:f"s_and_b32 s{sSG}, s{sR2}, 3",
   4:f"s_and_b32 s{sSG}, s{sR2}, 1\ns_lshl_b32 s{sSG}, s{sSG}, 2", 5:f"s_and_b32 s{sSG}, s{sR2}, 3\ns_lshl_b32 s{sSG}, s{sSG}, 1", 6:f"s_and_b32 s{sSG}, s{sR2}, 1"}[OPT.get('rot',1)])
A(f"""s_and_b32 s{sT0}, s{sHQ}, 4
s_cmp_eq_u32 s{sBR}, 0
s_cselect_b32 s{sHK}, 1, 0
s_cselect_b32 s{sHV}, 2, 0
s_add_u32 s{sHK}, s{sHK}, s{sHQ}
s_and_b32 s{sHK}, s{sHK}, 3
s_or_b32 s{sHK}, s{sHK}, s{sT0}
s_add_u32 s{sHV}, s{sHV}, s{sHQ}
s_and_b32 s{sHV}, s{sHV}, 3
s_or_b32 s{sHV}, s{sHV}, s{sT0}
s_cmp_ge_u32 s{sW}, 8
s_cbranch_scc1 L_aux""")

VA=Alloc(2,168)
vx=VA.take(); vw=VA.take(); vt0=VA.take(); vt1=VA.take(); vt2=VA.take(); vt3=VA.take()
vL16=VA.take(); vVo=VA.take(); vIdx=VA.take(); vFl=VA.take(); vP=VA.take(2,2); vN=VA.take(2,2); vZ=VA.take()
vEQ0=VA.take(); vEK=VA.take(); vEV=VA.take(); vx1=vEQ0; vLF=vt3
ND=6
vBig=VA.mark()
Qf=[VA.take(4,4) for _ in range(2)]
Sb=[VA.take(16,4) for _ in range(2)]
Oa=[VA.take(16,4) for _ in range(2)]
Kf=[VA.take(4,4) for _ in range(ND)]
Vf=[VA.take(8,4) for _ in range(ND)]
sXoff=sA0; sM0=sA0+1; sWoff=sA0+2; sFOr=sA0+3; sOld=sA0+4; sOut=sA0+5; sOst=sA0+6; sFOw=sA0+7
sU0=sA0+8; sU1=sA0+9; sU2=sA0+10
sE=sA0+11; sKH=sA0+12; sM2=sA0+13; sKVb=sA0+14; sOff=sA0+15; sNon=sA0+16; sVM=sA0+18; sCnt=sA0+20; sBlk=sA0+21
sFGr=sA0+22; sQ0=sA0+23; sQ1=sA0+24; sLo=sA0+25; sHi=sA0+26; sX0=sA0+28
sF0=sA0+30; sF1=sA0+31; sF2=sA0+32; sWoffK=sA0+33; sWoffV=sA0+34
A(f"""v_lshrrev_b32 v{vt0}, 3, v0
v_mul_u32_u24 v{vw}, 3072, v{vt0}
v_lshlrev_b32 v{vt0}, 10, v{vt0}
v_lshrrev_b32 v{vt1}, 2, v0
v_and_b32 v{vt1}, 4, v{vt1}
v_xor_b32 v{vt1}, v{vt1}, v0
v_and_b32 v{vt1}, 7, v{vt1}
v_lshl_add_u32 v{vw}, v{vt1}, 4, v{vw}
v_lshrrev_b32 v{vt1}, 4, v0
v_xor_b32 v{vt1}, v{vt1}, v0
v_and_b32 v{vt1}, 7, v{vt1}
v_lshl_add_u32 v{vx}, v{vt1}, 4, v{vt0}
v_xor_b32 v{vx1}, 64, v{vx}
v_add_u32 v{vx1}, 8192, v{vx1}
s_lshl_b32 s{sXoff}, s{sR2}, 17
s_lshl_b32 s{sU0}, s{sW}, 14
s_add_u32 s{sXoff}, s{sXoff}, s{sU0}
s_lshl_b32 s{sM0}, s{sW}, 10
s_lshl_b32 s{sM2}, s{sW}, 11
s_mul_i32 s{sWoff}, s{sW}, 24576
s_lshl_b32 s{sU0}, s{sHK}, 7
s_add_u32 s{sWoffK}, s{sWoff}, s{sU0}
s_lshl_b32 s{sU0}, s{sHV}, 7
s_add_u32 s{sWoffV}, s{sWoff}, s{sU0}
s_lshl_b32 s{sU0}, s{sHQ}, 7
s_add_u32 s{sWoff}, s{sWoff}, s{sU0}
s_mov_b32 s{SRD_X+2}, 2097152
s_mov_b32 s{SRD_X+3}, 0x00020000
s_mov_b32 s{SRD_W+2}, 1572864
s_mov_b32 s{SRD_W+3}, 0x00020000
s_cmp_eq_u32 s{sBR}, 0
s_waitcnt lgkmcnt(0)
s_cselect_b32 s{SRD_X}, s10, s4
s_cselect_b32 s{SRD_X+1}, s11, s5
s_cselect_b32 s{SRD_W}, s12, s6
s_cselect_b32 s{SRD_W+1}, s13, s7""")
def issue_stage(s):
    slot=s%3
    A(f"""s_add_u32 s{sU0}, s{sSG}, {s}
    s_and_b32 s{sU0}, s{sU0}, 7
    s_mul_i32 s{sU1}, s{sU0}, 196608
    s_lshl_b32 s{sU0}, s{sU0}, 7
    s_add_u32 m0, s{sM2}, {slot*SL+LXO}
    s_add_u32 s{sU0}, s{sU0}, s{sXoff}""")
    A.vmem(f"buffer_load_dwordx4 v{vx}, {sr(SRD_X,4)}, s{sU0} offen lds", s)
    for p in (1,2,0):
        A(f"s_add_u32 m0, s{sM0}, {slot*SL+p*7168}")
        A(f"s_add_u32 s{sU2}, s{sU1}, s{(sWoff,sWoffK,sWoffV)[p]}")
        A.vmem(f"buffer_load_dwordx4 v{vw}, {sr(SRD_W,4)}, s{sU2} offen offset:{p*1024} lds", s)
        if p==1:
            A(f"s_add_u32 m0, s{sM2}, {slot*SL+LXO+1024}\ns_nop 0")
            A.vmem(f"buffer_load_dwordx4 v{vx1}, {sr(SRD_X,4)}, s{sU0} offen lds", s)
class Cap:
    def __enter__(self): self.n=len(A.lines); return self
    def __exit__(self,*a): self.l=A.lines[self.n:]; del A.lines[self.n:]
def att_setup():
    srd(SRD_DBG,18,256)
    A(f"""v_mov_b32 v{vZ}, 0
    s_lshr_b32 s{sE}, s{sW}, 1
    s_and_b32 s{sKH}, s{sW}, 1
    s_lshl_b32 s{sF1}, s{sHQ}, 2
    s_add_u32 s{sF1}, s{sF1}, s{sE}
    s_lshl_b32 s{sKVb}, s{sF1}, 17
    s_lshl_b32 s{sF0}, s{sKH}, 11
    s_add_u32 s{sKVb}, s{sKVb}, s{sF0}
    s_lshl_b32 s{sQ0}, s{sF1}, 6
    s_lshl_b32 s{sF0}, s{sRB}, 1
    s_add_u32 s{sQ0}, s{sQ0}, s{sF0}
    s_add_u32 s{sQ0}, s{sQ0}, s{sKH}
    s_lshl_b32 s{sQ0}, s{sQ0}, 10
    s_add_u32 s{sQ0}, s{sQ0}, {WS_Q}
    s_xor_b32 s{sQ1}, s{sQ0}, 1024
    s_mov_b32 s{sVM}, 0x0000ffff
    s_mov_b32 s{sVM+1}, 0x0000ffff
    v_lshlrev_b32 v{vL16}, 4, v0
    v_and_b32 v{vt0}, 15, v0
    v_lshlrev_b32 v{vt1}, 4, v{vt0}
    v_lshrrev_b32 v{vt2}, 5, v0
    v_lshl_add_u32 v{vVo}, v{vt2}, 8, v{vt1}
    v_mov_b32 v{vIdx}, 0xdddddddd
    s_and_b32 s{sF2}, s{sHQ}, 4
    s_sub_u32 s{sF0}, s{sHQ}, 1
    s_and_b32 s{sF0}, s{sF0}, 3
    s_or_b32 s{sF0}, s{sF0}, s{sF2}
    s_lshl_b32 s{sF0}, s{sF0}, 11
    s_sub_u32 s{sF1}, s{sHQ}, 2
    s_and_b32 s{sF1}, s{sF1}, 3
    s_or_b32 s{sF1}, s{sF1}, s{sF2}
    s_lshl_b32 s{sF1}, s{sF1}, 11
    v_mov_b32 v{vt1}, s{sF0}
    v_mov_b32 v{vt2}, s{sF1}
    v_cmp_gt_u32 vcc, 16, v0
    s_lshl_b32 s{sF0}, s{sHQ}, 4
    s_lshr_b32 s{sF1}, s{sRB}, 1
    v_cndmask_b32 v{vt1}, v{vt2}, v{vt1}, vcc
    v_lshl_add_u32 v{vFl}, v{vt0}, 7, v{vt1}
    s_add_u32 s{sF0}, s{sF0}, s{sF1}
    s_lshl_b32 s{sF0}, s{sF0}, 7
    s_mov_b32 s{sFGr}, {WS_FG}
    v_writelane_b32 v{vFl}, s{sF0}, 32
    v_mov_b32 v{vLF}, {LF}
    v_and_b32 v{vt0}, 27, v0
    v_cmp_eq_u32 vcc, 16, v{vt0}
    v_mov_b32 v{vt1}, 0x3f803f80
    s_nop 0
    v_cndmask_b32 v{vt1}, 0, v{vt1}, vcc""")
    for d in range(ND):
        for i in range(8): A(f"v_mov_b32 v{Vf[d]+i}, v{vt1}")
    for d in range(2):
        for i in range(16): A(f"v_mov_b32 v{Oa[d]+i}, 0")
    A(f"""s_lshl_b32 s{sF0}, s{sRB}, 1
    s_add_u32 s{sF0}, s{sF0}, s{sKH}
    s_lshl_b32 s{sOst}, s{sF0}, 5
    s_lshl_b32 s{sF1}, s{sHQ}, 1
    s_add_u32 s{sOst}, s{sOst}, s{sF1}
    s_lshr_b32 s{sF1}, s{sE}, 1
    s_add_u32 s{sOst}, s{sOst}, s{sF1}
    s_lshl_b32 s{sOst}, s{sOst}, 10
    s_add_u32 s{sOst}, s{sOst}, {WS_OFB}
    s_lshl_b32 s{sFOr}, s{sRB}, 10
    s_add_u32 s{sFOr}, s{sFOr}, {WS_FOB}
    s_lshl_b32 s{sFOw}, s{sHQ}, 7
    s_add_u32 s{sFOw}, s{sFOw}, s{sFOr}
    s_and_b32 s{sF0}, s{sW}, 3
    s_lshl_b32 s{sF1}, s{sRB}, 2
    s_add_u32 s{sF1}, s{sF1}, s{sF0}
    s_lshr_b32 s{sF2}, s{sW}, 2
    s_lshl_b32 s{sOld}, s{sF1}, 1
    s_add_u32 s{sOld}, s{sOld}, s{sF2}
    s_lshl_b32 s{sOld}, s{sOld}, 13
    s_add_u32 s{sOld}, s{sOld}, {WS_OFB}
    s_lshl_b32 s{sOut}, s{sF1}, 15
    s_lshl_b32 s{sF0}, s{sHQ}, 7
    s_add_u32 s{sOut}, s{sOut}, s{sF0}
    s_lshl_b32 s{sF0}, s{sF2}, 6
    s_add_u32 s{sOut}, s{sOut}, s{sF0}
    s_add_u32 s{sOut}, s{sOut}, 1024
    s_mov_b32 s{sLo}, {f2u(2.0**-64):#x}
    s_mov_b32 s{sHi}, {f2u(2.0**64):#x}""")
    srd(SRD_OUT,16,4194304)
with Cap() as c1: att_setup()
FILL=c1.l
def fill(q,n):
    k=min(n,len(q))
    while k<len(q) and any(x.startswith('v_cmp') for x in q[max(0,k-3):k]): k+=1
    for l in q[:k]: A(l)
    del q[:k]
def kv_load(i):
    if OPT.get('nokv'): return
    d=i%ND
    A(f"""s_add_u32 s{sBlk}, s{sRB}, {i}
    s_and_b32 s{sBlk}, s{sBlk}, 31
    s_lshl_b32 s{sBlk}, s{sBlk}, 12
    s_add_u32 s{sOff}, s{sBlk}, s{sKVb}""")
    A.vmem(f"buffer_load_dwordx4 {vr(Kf[d],4)}, v{vL16}, {sr(SRD_WS,4)}, s{sOff} offen sc1",('kv',i))
    A(f"s_mov_b64 exec, {sr(sVM,2)}")
    A.vmem(f"buffer_load_dwordx4 {vr(Vf[d],4)}, v{vVo}, {sr(SRD_WS,4)}, s{sOff} offen offset:1024 sc1",('kv',i))
    A.vmem(f"buffer_load_dwordx4 {vr(Vf[d]+4,4)}, v{vVo}, {sr(SRD_WS,4)}, s{sOff} offen offset:1536 sc1",('kv',i))
    A("s_mov_b64 exec, -1")
def QK(u): A(f"v_mfma_f32_32x32x16_bf16 {vr(Sb[u%2],16)}, {vr(Kf[(u//2)%ND],4)}, {vr(Qf[u%2],4)}, 0")
def PV(u,t): A(f"v_smfmac_f32_32x32x32_bf16 {vr(Oa[u%2],16)}, {vr(Vf[(u//2)%ND]+4*t,4)}, {vr(Sb[u%2]+8*t,8)}, v{vIdx}")
NU=64
PRIO0=2; PRIO={28:1,56:0}
SCHED={}
nxt=2
for u_ in range(64):
    lim=u_//2-1+ND if u_>=2 else ND-1
    if nxt<=min(lim,31): SCHED.setdefault(u_,[]).append(nxt); nxt+=1
def unit(u):
    S=Sb[u%2]
    E=lambda r: A(f"v_exp_f32 v{S+r}, v{S+r}")
    E(0);E(1)
    if u>0: PV(u-1,1)
    E(2);E(3);E(4)
    for i in SCHED.get(u,[]): kv_load(i)
    if u in PRIO: A(f"s_setprio {PRIO[u]}")
    if u==OPT['rel']: A.lds(f"ds_write_b32 v{vLF}, v{vIdx} offset:44")
    if u+1<NU:
        if (u+1)%2==0: A.wait_vm(('kv',(u+1)//2))
        QK(u+1)
    for r in range(5,10): E(r)
    PV(u,0)
    for r in range(10,16): E(r)
    if u in (3,5,9,17,33): stamp(18+(3,5,9,17,33).index(u), 1 if u in (5,33) else 2)
UP=OPT.get('up',2)
issue_stage(0)
if UP>=2: issue_stage(1)
srd(SRD_WS,20,WS_BYTES)
stamp(0)
if UP>=3: issue_stage(2)
for s in range(8):
    A.wait_vm(s)
    A("s_barrier")
    stamp(1+s, 1 if s in (0,4) else 2)
    if s==0:
        for k in range(UP,3): issue_stage(k)
    if 1<=s<=5: issue_stage(s+2)
    fill(FILL, 24 if s<7 else 999)
    if s==5: A.vmem(f"buffer_load_dwordx2 {vr(vN,2)}, v{vZ}, {sr(SRD_DBG,4)}, 0 offen sc1",'non')
A.wait_vm('non')
nonce_check(vN,vZ,sNon,sCnt,sU0)
A("s_barrier")
stamp(30)
PM=(1<<33)-1
A(f"s_mov_b32 s{sX0}, -1\ns_mov_b32 s{sX0+1}, 1")
A(f"s_cmp_lg_u32 s{sW}, 0\ns_cbranch_scc1 L_nf2")
A(f"s_mov_b64 exec, {sr(sX0,2)}")
poll_issue(vP,vFl,sFGr)
poll_check(vP,vFl,sFGr,sCnt,sNon)
A(f"s_mov_b64 exec, -1\nds_write_b32 v{vLF}, v{vIdx} offset:32\ns_branch L_nf3")
A.label("L_nf2")
lds_word_spin(vt0,vLF,32,sCnt,sU0)
A.label("L_nf3")
A.vm=[]
stamp(16,2)
if OPT.get('rep'):
    A(f"s_mov_b32 s{sF2}, {OPT['rep']}")
    A.label("L_rep")
    A("s_nop 15")
    for d in range(2):
        for i in range(16): A(f"v_mov_b32 v{Oa[d]+i}, 0")
A.vmem(f"buffer_load_dwordx4 {vr(Qf[0],4)}, v{vL16}, {sr(SRD_WS,4)}, s{sQ0} offen sc1")
kv_load(0)
A.vmem(f"buffer_load_dwordx4 {vr(Qf[1],4)}, v{vL16}, {sr(SRD_WS,4)}, s{sQ1} offen sc1",'q1')
kv_load(1)
stamp(17)
A(f"s_setprio {PRIO0}")
A.wait_vm('q1')
QK(0)
A("s_nop 11")
for u in range(NU): unit(u)
A("s_nop 1")
PV(NU-1,1)
if OPT.get('rep'):
    A(f"s_sub_u32 s{sF2}, s{sF2}, 1\ns_cmp_lg_u32 s{sF2}, 0\ns_cbranch_scc1 L_rep")
if OPT.get('spin'):
    A(f"s_mov_b32 s{sF2}, {OPT['spin']}")
    A.label("L_spin")
    A(f"s_sub_u32 s{sF2}, s{sF2}, 1\ns_cmp_lg_u32 s{sF2}, 0\ns_cbranch_scc1 L_spin")
stamp(23)
A("s_setprio 3")
vR=Sb[0]; vRa=Sb[1]
A(f"""s_mul_i32 s{sU0}, s{sW}, 2304
s_add_u32 s{sU0}, s{sU0}, {RED}
v_add_u32 v{vRa}, s{sU0}, v{vL16}
v_lshlrev_b32 v{vRa+1}, 2, v0
v_add_u32 v{vRa+1}, s{sU0}, v{vRa+1}
s_xor_b32 s{sU1}, s{sW}, 1
s_mul_i32 s{sU1}, s{sU1}, 2304
s_add_u32 s{sU1}, s{sU1}, {RED}
v_add_u32 v{vEK}, s{sU1}, v{vL16}
v_lshlrev_b32 v{vRa+3}, 2, v0
v_add_u32 v{vRa+3}, s{sU1}, v{vRa+3}""")
A.lds(f"ds_write_b128 v{vRa}, {vr(Oa[1],4)}")
A.lds(f"ds_write_b128 v{vRa}, {vr(Oa[1]+4,4)} offset:1024")
A.lds(f"ds_write_b32 v{vRa+1}, v{Oa[1]+8} offset:2048")
A(f"""v_bfe_u32 v{vRa+4}, v0, 4, 1
v_lshlrev_b32 v{vRa+4}, 14, v{vRa+4}
v_add_u32 v{vRa+4}, v{vRa+4}, v{vVo}
s_and_b32 s{sU0}, s{sE}, 1
s_lshl_b32 s{sU0}, s{sU0}, 9
v_add_u32 v{vRa+4}, s{sU0}, v{vRa+4}""")
A.wait_lg_all()
A("s_barrier")
stamp(24)
A.lds(f"ds_read_b32 v{vR+8}, v{vRa+3} offset:2048",'r2')
A.lds(f"ds_read_b128 {vr(vR,4)}, v{vEK}",'r0')
A.lds(f"ds_read_b128 {vr(vR+4,4)}, v{vEK} offset:1024",'r1')
A.wait_lg('r2')
A(f"""v_add_f32 v{Oa[0]+8}, v{Oa[0]+8}, v{vR+8}
v_cmp_nle_f32 vcc, s{sLo}, v{Oa[0]+8}
v_cmp_nge_f32 {sr(sX0,2)}, s{sHi}, v{Oa[0]+8}""")
A.wait_lg('r0')
for i in range(4): A(f"v_add_f32 v{Oa[0]+i}, v{Oa[0]+i}, v{vR+i}")
A.wait_lg('r1')
for i in range(4,8): A(f"v_add_f32 v{Oa[0]+i}, v{Oa[0]+i}, v{vR+i}")
A(f"""s_or_b64 vcc, vcc, {sr(sX0,2)}
s_cmp_lg_u64 vcc, 0
s_cbranch_scc1 L_fallback""")
A.label("L_norm")
A(f"v_rcp_f32 v{vR+9}, v{Oa[0]+8}\ns_nop 0")
for i in range(8): A(f"v_mul_f32 v{Oa[0]+i}, v{Oa[0]+i}, v{vR+9}")
for i in range(4): A(f"v_cvt_pk_bf16_f32 v{vR+i}, v{Oa[0]+2*i}, v{Oa[0]+2*i+1}")
A.vmem(f"buffer_store_dwordx4 {vr(vR,4)}, v{vRa+4}, {sr(SRD_WS,4)}, s{sOst} offen sc1")
stamp(28,2)
VB=Alloc(vBig,168)
Of=[VB.take(4,4) for _ in range(8)]
Wf=[[VB.take(4,4) for _ in range(4)] for _ in range(6)]
Ac=[VB.take(4,4) for _ in range(4)]
vWA=[vx,vw,vt2,vt3]; vOo=vEQ0; vXw=vEK; vXr=vEV
wo_tr_addr(vx,vt0,vt1)
A(f"""s_lshr_b32 s{sU2}, s{sW}, 2
s_lshl_b32 s{sU0}, s{sU2}, 15
s_lshl_b32 s{sU1}, s{sU2}, 6
v_add_u32 v{vx}, s{sU0}, v{vx}
v_xor_b32 v{vx}, s{sU1}, v{vx}
v_xor_b32 v{vw}, 32, v{vx}
v_xor_b32 v{vt2}, 64, v{vx}
v_xor_b32 v{vt3}, 96, v{vx}""")
assert WOB==0
def wo_read(hp_, slotset):
    for c in range(4):
        A.lds(f"ds_read_b64_tr_b16 {vr(Wf[slotset][c],2)}, v{vWA[c]} offset:{hp_*4096}",('wo',hp_))
        A.lds(f"ds_read_b64_tr_b16 {vr(Wf[slotset][c]+2,2)}, v{vWA[c]} offset:{hp_*4096+1024}",('wo',hp_))
wo_read(0,0)
A(f"""v_and_b32 v{vFl}, 15, v0
v_lshlrev_b32 v{vOo}, 11, v{vFl}
v_lshlrev_b32 v{vFl}, 7, v{vFl}
v_lshrrev_b32 v{vt0}, 4, v0
v_lshl_add_u32 v{vOo}, v{vt0}, 3, v{vOo}
s_xor_b32 s{sU1}, s{sW}, 5
s_mul_i32 s{sU1}, s{sU1}, 2304
s_add_u32 s{sU1}, s{sU1}, {RED}
v_add_u32 v{vXr}, s{sU1}, v{vL16}""")
A.wait_lg_all(); wo_read(1,1)
A(f"v_mov_b32 v{vt0}, {LF}\nv_mov_b32 v{vt1}, 1")
A.wait_vm_all()
A("s_mov_b64 exec, 1")
A.lds(f"ds_add_rtn_u32 v{vP}, v{vt0}, v{vt1} offset:40",'cnt')
A("s_mov_b64 exec, -1")
A.wait_lg('cnt')
A(f"""v_readfirstlane_b32 s{sU0}, v{vP}
s_cmp_lg_u32 s{sU0}, 7
s_cbranch_scc1 L_nl1""")
flag_store(vN,vZ,sFOw)
poll_issue(vP,vFl,sFOr,0xff)
A.label("L_nl1")
stamp(25)
for i in range(2,6):
    A.wait_lg_all(); wo_read(i,i)
A.wait_lg_all()
A(f"s_cmp_lg_u32 s{sU0}, 7\ns_cbranch_scc1 L_nl2")
poll_check(vP,vFl,sFOr,sCnt,sNon,0xff)
A(f"ds_write_b32 v{vt0}, v{vt1} offset:36\ns_branch L_nl3")
A.label("L_nl2")
lds_word_spin(vP,vt0,36,sCnt,sU1)
A.label("L_nl3")
A.vm=[]
stamp(26)
for i in range(8):
    if i==4: A(f"s_add_u32 s{sOld}, s{sOld}, 4096")
    A.vmem(f"buffer_load_dwordx4 {vr(Of[i],4)}, v{vL16}, {sr(SRD_WS,4)}, s{sOld} offen offset:{(i%4)*1024} sc1",('of',i))
A.wait_lg_all()
for i in range(8):
    A.wait_vm(('of',i))
    if i>=6: A.wait_lg(('wo',i))
    for c in range(4):
        A(f"v_mfma_f32_16x16x32_bf16 {vr(Ac[c],4)}, {vr(Wf[i%6][c],4)}, {vr(Of[i],4)}, {'0' if i==0 else vr(Ac[c],4)}")
    if i<2:
        A.wait_lg_all(); wo_read(6+i,i)
A("s_nop 7")
A.lds(f"ds_write_b128 v{vXw}, {vr(Ac[2],4)}")
A.lds(f"ds_write_b128 v{vXw}, {vr(Ac[3],4)} offset:1024")
A.wait_lg_all()
A("s_barrier")
A.lds(f"ds_read_b128 {vr(Ac[2],4)}, v{vXr}",'x0')
A.lds(f"ds_read_b128 {vr(Ac[3],4)}, v{vXr} offset:1024",'x1')
for c in range(2):
    A.wait_lg(f'x{c}')
    for i in range(4): A(f"v_add_f32 v{Ac[c]+i}, v{Ac[c]+i}, v{Ac[2+c]+i}")
    A(f"v_cvt_pk_bf16_f32 v{Ac[c]}, v{Ac[c]}, v{Ac[c]+1}\nv_cvt_pk_bf16_f32 v{Ac[c]+1}, v{Ac[c]+2}, v{Ac[c]+3}")
    A.vmem(f"buffer_store_dwordx2 {vr(Ac[c],2)}, v{vOo}, {sr(SRD_OUT,4)}, s{sOut} offen offset:{c*32}")
stamp(27)
stamp_out(vt0)
A("s_endpgm")

A.label("L_fallback"); A.reset()
fC=Oa[1]; fM=vt0; fT=vt1; fS=Kf[0]
fK=Kf[4]; fV=Vf[0]
A(f"""s_lshl_b32 s{sU0}, s{sKH}, 11
s_sub_u32 s{sU2}, s{sKVb}, s{sU0}
s_mov_b32 s{sOff}, s{sU2}
s_mov_b32 s{sCnt}, 0
v_mov_b32 v{fM}, {NEGBIG:#x}""")
A.label("L_fb1")
A(f"""buffer_load_dwordx4 {vr(fK,4)}, v{vL16}, {sr(SRD_WS,4)}, s{sOff} offen sc1
s_waitcnt vmcnt(0)
v_mfma_f32_32x32x16_bf16 {vr(fS,16)}, {vr(fK,4)}, {vr(Qf[0],4)}, 0
s_add_u32 s{sOff}, s{sOff}, 2048
s_add_u32 s{sCnt}, s{sCnt}, 1
s_nop 11""")
for i in range(8): A(f"v_max3_f32 v{fM}, v{fM}, v{fS+2*i}, v{fS+2*i+1}")
A(f"""s_cmp_lt_u32 s{sCnt}, 64
s_cbranch_scc1 L_fb1
v_mov_b32 v{fT}, v{fM}
s_nop 1
v_permlane32_swap_b32 v{fM}, v{fT}
s_nop 1
v_max_f32 v{fM}, v{fM}, v{fT}""")
for i in range(16): A(f"v_sub_f32 v{fC+i}, 0, v{fM}")
for i in range(16): A(f"v_mov_b32 v{Oa[0]+i}, 0")
A(f"""s_mov_b32 s{sOff}, s{sU2}
s_mov_b32 s{sCnt}, 0""")
A.label("L_fb2")
A(f"""buffer_load_dwordx4 {vr(fK,4)}, v{vL16}, {sr(SRD_WS,4)}, s{sOff} offen sc1
s_mov_b64 exec, {sr(sVM,2)}
buffer_load_dwordx4 {vr(fV,4)}, v{vVo}, {sr(SRD_WS,4)}, s{sOff} offen offset:1024 sc1
buffer_load_dwordx4 {vr(fV+4,4)}, v{vVo}, {sr(SRD_WS,4)}, s{sOff} offen offset:1536 sc1
s_mov_b64 exec, -1
s_waitcnt vmcnt(0)
v_mfma_f32_32x32x16_bf16 {vr(fS,16)}, {vr(fK,4)}, {vr(Qf[0],4)}, {vr(fC,16)}
s_add_u32 s{sOff}, s{sOff}, 2048
s_add_u32 s{sCnt}, s{sCnt}, 1
s_nop 11""")
for i in range(16): A(f"v_exp_f32 v{fS+i}, v{fS+i}")
A(f"""s_nop 1
v_smfmac_f32_32x32x32_bf16 {vr(Oa[0],16)}, {vr(fV,4)}, {vr(fS,8)}, v{vIdx}
v_smfmac_f32_32x32x32_bf16 {vr(Oa[0],16)}, {vr(fV+4,4)}, {vr(fS+8,8)}, v{vIdx}
s_cmp_lt_u32 s{sCnt}, 64
s_cbranch_scc1 L_fb2
s_nop 15
s_branch L_norm""")

A.label("L_aux")
A.reset()
VX=Alloc(2,168)
xt0=VX.take(); xt1=VX.take(); xt2=VX.take(); xZ=VX.take(); xN=VX.take(2,2)
xL16=VX.take(); xVo=VX.take()
xBig=VX.mark()
va=[[VX.take() for _ in range(4)] for _ in range(2)]; vwa=[VX.take() for _ in range(2)]
vKpos=VX.take(); vV1=VX.take(); gDum=VX.take(); gLF=VX.take()
acc=[VX.take(16,4) for _ in range(6)]
xf=[[VX.take(4,4) for _ in range(2)] for _ in range(2)]
wf=[VX.take(4,4) for _ in range(4)]
sT=sA0; sC=sA0+1; sV0=sA0+2; sV1=sA0+3; sNx=sA0+4; sCx=sA0+6; sVMx=sA0+8; sV2=sA0+11; sV3=sA0+12
sB0=sA0+13; sB1=sA0+14; sB2=sA0+15; sHa=sA0+16; sHf=sA0+17; sTT=sA0+18; sRP=sA0+22; sJ=sA0+23; sG0=sA0+19; sG1=sA0+20
A(f"""s_setprio 3
s_sub_u32 s{sT}, s{sW}, 8
s_and_b32 s{sRP}, s{sT}, 1
s_lshr_b32 s{sJ}, s{sT}, 1
v_mov_b32 v{xZ}, 0
s_waitcnt lgkmcnt(0)""")
srd(SRD_WS,20,WS_BYTES); srd(SRD_DBG,18,256)
A(f"""s_add_u32 s{sV0}, s2, s{sT}
s_cmp_lg_u32 s{sV0}, 0
s_cbranch_scc1 L_nonon
s_mov_b32 s{sV0}, {WS_EPOCH}
s_mov_b64 exec, 1
buffer_load_dwordx2 {vr(xN,2)}, v{xZ}, {sr(SRD_WS,4)}, s{sV0} offen sc1
s_waitcnt vmcnt(0)
v_add_u32 v{xN}, 2, v{xN}
v_or_b32 v{xN}, 1, v{xN}
v_or_b32 v{xN+1}, 0x80000000, v{xN+1}
buffer_store_dwordx2 {vr(xN,2)}, v{xZ}, {sr(SRD_DBG,4)}, 0 offen sc1
buffer_store_dwordx2 {vr(xN,2)}, v{xZ}, {sr(SRD_WS,4)}, s{sV0} offen sc1
s_mov_b64 exec, -1""")
A.label("L_nonon")
stamp(0)
if OPT.get('pf',0):
    A(f"""s_cmp_eq_u32 s{sBR}, 0
    s_cselect_b32 s{SRD_X}, s10, s4
    s_cselect_b32 s{SRD_X+1}, s11, s5
    s_cselect_b32 s{SRD_W}, s12, s6
    s_cselect_b32 s{SRD_W+1}, s13, s7
    s_mov_b32 s{SRD_X+2}, 2097152
    s_mov_b32 s{SRD_X+3}, 0x00020000
    s_mov_b32 s{SRD_W+2}, 1572864
    s_mov_b32 s{SRD_W+3}, 0x00020000
    v_lshlrev_b32 v{xt0}, 7, v0
    v_lshrrev_b32 v{xt1}, 2, v0
    v_mul_u32_u24 v{xt1}, 3072, v{xt1}
    v_and_b32 v{xt2}, 3, v0
    v_lshl_add_u32 v{xt1}, v{xt2}, 7, v{xt1}""")
    if OPT['m']==2:
        A(f"""s_and_b32 s{sV0}, s{sR2}, 8
        s_lshl_b32 s{sV0}, s{sV0}, 17
        s_mov_b32 s{sV2}, s{sT1}
        s_mul_i32 s{sV1}, s{sV2}, 49152""")
    else:
        A(f"""s_lshr_b32 s{sV2}, s{sT1}, 3
        s_lshl_b32 s{sV2}, s{sV2}, 2
        s_and_b32 s{sV0}, s{sT1}, 3
        s_add_u32 s{sV2}, s{sV2}, s{sV0}
        s_and_b32 s{sV0}, s2, 6
        s_lshl_b32 s{sV0}, s{sV0}, 18
        s_mul_i32 s{sV1}, s{sV2}, 98304""")
    A(f"""s_lshl_b32 s{sV2}, s{sV2}, 15
    s_add_u32 s{sV0}, s{sV0}, s{sV2}
    s_lshl_b32 s{sV2}, s{sT}, 13
    s_add_u32 s{sV0}, s{sV0}, s{sV2}
    s_and_b32 s{sV2}, s2, 1
    s_lshl_b32 s{sV2}, s{sV2}, 9
    s_add_u32 s{sV1}, s{sV1}, s{sV2}
    s_lshl_b32 s{sV2}, s{sT}, 10
    s_add_u32 s{sV1}, s{sV1}, s{sV2}
    {"s_sleep "+str(OPT['pfd']) if OPT.get('pfd') else ""}
    buffer_load_dword v{gDum}, v{xt0}, {sr(SRD_X,4)}, s{sV0} offen
    s_cmp_eq_u32 s{sT}, 3
    s_cbranch_scc1 L_pfd
    buffer_load_dword v{gDum}, v{xt1}, {sr(SRD_W,4)}, s{sV1} offen""")
    if OPT['m']==1:
        A(f"s_add_u32 s{sV1}, s{sV1}, 49152\nbuffer_load_dword v{gDum}, v{xt1}, {sr(SRD_W,4)}, s{sV1} offen")
    A.label("L_pfd")
A(f"""v_mov_b32 v{gLF}, {LF}
v_lshl_add_u32 v{xt0}, v0, 2, v{gLF}
ds_write_b32 v{xt0}, v{xZ}
v_and_b32 v{xt0}, 31, v0
v_lshrrev_b32 v{xt1}, 5, v0
v_bfe_u32 v{xt2}, v0, 1, 3
v_xor_b32 v{xt2}, v{xt2}, v{xt1}
v_lshlrev_b32 v{xt2}, 4, v{xt2}
v_lshl_add_u32 v{xt2}, v{xt0}, 7, v{xt2}
s_lshl_b32 s{sV0}, s{sRP}, 13
s_add_u32 s{sV0}, s{sV0}, {LXO}
v_add_u32 v{va[0][0]}, s{sV0}, v{xt2}""")
for s in range(1,4): A(f"v_xor_b32 v{va[0][s]}, {32*s}, v{va[0][0]}")
for s in range(4): A(f"v_add_u32 v{va[1][s]}, {2*SL}, v{va[0][s]}")
A(f"""v_bfe_u32 v{xt2}, v0, 2, 2
v_lshl_add_u32 v{xt2}, v{xt1}, 3, v{xt2}
v_lshlrev_b32 v{xt2}, 7, v{xt2}
v_bfe_u32 v{vV1}, v0, 4, 1
v_lshl_add_u32 v{xt2}, v{vV1}, 5, v{xt2}
v_and_b32 v{vwa[0]}, 3, v0
v_lshl_add_u32 v{xt2}, v{vwa[0]}, 3, v{xt2}
v_bfe_u32 v{vwa[0]}, v0, 3, 1
v_lshl_add_u32 v{vwa[0]}, v{vwa[0]}, 6, v{xt2}
s_lshl_b32 s{sV0}, s{sJ}, 6
v_xor_b32 v{vwa[0]}, s{sV0}, v{vwa[0]}
v_add_u32 v{vwa[1]}, {2*SL}, v{vwa[0]}
v_and_b32 v{vKpos}, 0x33, v0
v_bfe_u32 v{xt2}, v0, 2, 1
v_lshl_add_u32 v{vKpos}, v{xt2}, 3, v{vKpos}
v_bfe_u32 v{xt2}, v0, 3, 1
v_lshl_add_u32 v{vKpos}, v{xt2}, 2, v{vKpos}
v_lshlrev_b32 v{vKpos}, 4, v{vKpos}
v_and_b32 v{xt2}, 15, v0
v_lshlrev_b32 v{xt2}, 4, v{xt2}
v_lshl_add_u32 v{xVo}, v{xt1}, 8, v{xt2}
v_lshlrev_b32 v{xL16}, 4, v0
s_mov_b32 s{sC}, {f2u(CSCALE):#x}
s_mov_b32 s{sVMx}, 0x0000ffff
s_mov_b32 s{sVMx+1}, 0x0000ffff
s_lshl_b32 s{sTT}, s{sR2}, 1
s_add_u32 s{sTT}, s{sTT}, s{sRP}
s_lshl_b32 s{sTT}, s{sTT}, 1
s_lshl_b32 s{sHf}, s{sHQ}, 4
s_add_u32 s{sHf}, s{sHf}, s{sR2}""")
if OPT['pfc']:
    A(f"s_getpc_b64 {sr(sNx,2)}")
    A.label("L_pc")
    A(f"""s_sub_u32 s{sNx}, s{sNx}, L_pc-{NAME}
    s_subb_u32 s{sNx+1}, s{sNx+1}, 0
    s_lshl_b32 s{sV0}, s{sT}, 13
    s_mov_b32 s{sV1}, L_codeend-{NAME}-4
    v_lshlrev_b32 v{xt2}, 7, v0
    v_add_u32 v{xt2}, s{sV0}, v{xt2}
    v_min_u32 v{xt2}, s{sV1}, v{xt2}""")
PARTS=(1,2,0)
def rd_x(n,r):
    if n>=32: return
    s,ks=divmod(n,4); slot=s%3
    A.lds(f"ds_read_b128 {vr(xf[n%2][r],4)}, v{va[slot//2][ks]} offset:{(slot%2)*SL+r*4096}", ('x',n,r))
def rd_w(n,c):
    if n>=32: return
    s,ks=divmod(n,4); slot=s%3; p=PARTS[c]
    o=(slot%2)*SL+p*8192+ks*2048
    A.lds(f"ds_read_b64_tr_b16 {vr(wf[c],2)}, v{vwa[slot//2]} offset:{o}", ('w',n,c))
    A.lds(f"ds_read_b64_tr_b16 {vr(wf[c]+2,2)}, v{vwa[slot//2]} offset:{o+512}", ('w',n,c))
def g_step(n):
    s,ks=divmod(n,4)
    if ks==3:
        A.wait_lg_all()
        if s<7: A("s_barrier")
    for c in range(3):
        for r in range(2):
            A.wait_lg([('x',n,r),('w',n,c)])
            a_=acc[2*c+r]; C="0" if n==0 else vr(a_,16)
            if c==1: A(f"v_mfma_f32_32x32x16_bf16 {vr(a_,16)}, {vr(xf[n%2][r],4)}, {vr(wf[c],4)}, {C}")
            else: A(f"v_mfma_f32_32x32x16_bf16 {vr(a_,16)}, {vr(wf[c],4)}, {vr(xf[n%2][r],4)}, {C}")
            if r==0 and c<2: rd_x(n+1,c)
            if r==1: rd_w(n+1,c)
    if n==9 and OPT['pfc']: A.vmem(f"global_load_dword v{gDum}, v{xt2}, {sr(sNx,2)}")
    if n==22: A.vmem(f"buffer_load_dwordx2 {vr(xN,2)}, v{xZ}, {sr(SRD_DBG,4)}, 0 offen sc1",'non')
def pack16(dst, a, scale=False):
    if scale:
        for i in range(16): A(f"v_mul_f32 v{a+i}, s{sC}, v{a+i}")
    for i in range(8): A(f"v_cvt_pk_bf16_f32 v{dst+i}, v{a+2*i}, v{a+2*i+1}")
A.wait_lg_all()
A("s_barrier")
rd_x(0,0); rd_w(0,0); rd_x(0,1); rd_w(0,1); rd_w(0,2)
for n in range(32): g_step(n)
stamp(9)
A(f"""s_cmp_lg_u32 s{sBR}, 0
s_cbranch_scc1 L_epa""")
A(f"""s_lshl_b32 s{sV0}, s{sTT}, 11
s_lshl_b32 s{sV1}, s{sJ}, 18
s_add_u32 s{sV0}, s{sV0}, s{sV1}
s_lshl_b32 s{sV1}, s{sHK}, 19
s_add_u32 s{sB0}, s{sV0}, s{sV1}
s_add_u32 s{sG0}, s{sB0}, 131072
s_lshl_b32 s{sV1}, s{sHV}, 19
s_add_u32 s{sB1}, s{sV0}, s{sV1}
s_lshr_b32 s{sB2}, s{sV0}, 1
s_lshl_b32 s{sV1}, s{sHQ}, 18
s_add_u32 s{sB2}, s{sB2}, s{sV1}
s_add_u32 s{sB2}, s{sB2}, {WS_Q}
s_add_u32 s{sG1}, s{sB2}, 65536
v_lshl_add_u32 v{xt0}, v{vV1}, 17, v{xVo}""")
for r in range(2):
    K=acc[r]; pack16(K,K)
    A.vmem(f"buffer_store_dwordx4 {vr(K,4)}, v{vKpos}, {sr(SRD_WS,4)}, s{sB0} offen offset:{r*2048} sc1")
    A.vmem(f"buffer_store_dwordx4 {vr(K+4,4)}, v{vKpos}, {sr(SRD_WS,4)}, s{sG0} offen offset:{r*2048} sc1")
for r in range(2):
    V=acc[2+r]; pack16(V,V)
    A.vmem(f"buffer_store_dwordx4 {vr(V,4)}, v{xt0}, {sr(SRD_WS,4)}, s{sB1} offen offset:{r*2048+1024} sc1")
    A.vmem(f"buffer_store_dwordx4 {vr(V+4,4)}, v{xt0}, {sr(SRD_WS,4)}, s{sB1} offen offset:{r*2048+1536} sc1")
for r in range(2):
    Q=acc[4+r]; pack16(Q,Q,True)
    A.vmem(f"buffer_store_dwordx4 {vr(Q,4)}, v{xL16}, {sr(SRD_WS,4)}, s{sB2} offen offset:{r*1024} sc1")
    A.vmem(f"buffer_store_dwordx4 {vr(Q+4,4)}, v{xL16}, {sr(SRD_WS,4)}, s{sG1} offen offset:{r*1024} sc1")
A.wait_vm('non')
nonce_check(xN,xZ,sNx,sCx,sV1)
A(f"""s_lshl_b32 s{sHf}, s{sHf}, 7
s_add_u32 s{sHf}, s{sHf}, {WS_FG}""")
A.wait_vm_all()
A("s_barrier")
A(f"s_cmp_lg_u32 s{sT}, 0\ns_cbranch_scc1 L_wo")
flag_store(xN,xZ,sHf)
A("s_branch L_wo")
A.label("L_epa"); A.reset(); A.vm=['non']
A(f"""s_lshl_b32 s{sV0}, s{sRP}, 14
s_lshl_b32 s{sV1}, s{sJ}, 12
s_add_u32 s{sV2}, s{sV0}, s{sV1}
s_add_u32 s{sV0}, s{sV2}, {EAK+8192}
v_add_u32 v{xt1}, s{sV0}, v{vKpos}
v_lshl_add_u32 v{xt0}, v{vV1}, 11, v{xVo}
v_add_u32 v{xt2}, s{sV0}, v{xt0}
s_lshl_b32 s{sHa}, s{sHf}, 13
s_add_u32 s{sHa}, s{sHa}, {WS_HA}
s_add_u32 s{sV1}, s{sV1}, s{sHa}
s_lshl_b32 s{sHf}, s{sHf}, 1
s_add_u32 s{sHf}, s{sHf}, s{sJ}
s_lshl_b32 s{sHf}, s{sHf}, 7
s_add_u32 s{sHf}, s{sHf}, {WS_FH}""")
pack16(acc[1],acc[1]); pack16(acc[3],acc[3])
A(f"""s_cmp_lg_u32 s{sRP}, 1
s_cbranch_scc1 L_noha
buffer_store_dwordx4 {vr(acc[1],4)}, v{vKpos}, {sr(SRD_WS,4)}, s{sV1} offen sc1
buffer_store_dwordx4 {vr(acc[1]+4,4)}, v{vKpos}, {sr(SRD_WS,4)}, s{sV1} offen offset:2048 sc1
buffer_store_dwordx4 {vr(acc[3]+4,4)}, v{xt0}, {sr(SRD_WS,4)}, s{sV1} offen offset:1536 sc1""")
A.label("L_noha")
pack16(acc[0],acc[0]); pack16(acc[2],acc[2])
for r in range(2):
    A.lds(f"ds_write_b128 v{xt1}, {vr(acc[r],4)} offset:{r*8192}")
    A.lds(f"ds_write_b128 v{xt1}, {vr(acc[r]+4,4)} offset:{r*8192+2048}")
    A.lds(f"ds_write_b128 v{xt2}, {vr(acc[2+r],4)} offset:{r*8192+1024}")
    A.lds(f"ds_write_b128 v{xt2}, {vr(acc[2+r]+4,4)} offset:{r*8192+1536}")
A(f"s_lshr_b32 s{sV0}, s{sV2}, 1\ns_add_u32 s{sV0}, s{sV0}, {EAQ}\nv_add_u32 v{xt1}, s{sV0}, v{xL16}")
for r in range(2):
    pack16(acc[4+r],acc[4+r],True)
    for e in range(2): A.lds(f"ds_write_b128 v{xt1}, {vr(acc[4+r]+4*e,4)} offset:{r*4096+e*1024}")
A.wait_lg_all()
A("s_barrier")
Mk=acc[0]; Sc=acc[2]; Sp=acc[3]; Oc=acc[4]; T5=acc[5]
Qh=T5; Kc=T5+4; Kp=T5+8; dstp=T5+12; Vc=xf[0][0]; Vp=xf[1][0]; FL=wf[0]
vAQ=va[0][0]; vAK=va[0][1]; vAV=va[0][2]; vOf=va[0][3]; mx=va[1][0]; mt=va[1][1]; xIdx=va[1][2]; xOne=va[1][3]
A(f"""v_and_b32 v{xt0}, 31, v0
v_lshrrev_b32 v{xt1}, 5, v0
v_lshlrev_b32 v{xt1}, 3, v{xt1}
v_sub_u32 v{xt0}, v{xt0}, v{xt1}
v_add_u32 v{xt1}, 16, v{xt0}
v_mov_b32 v{xt2}, {NEGBIG:#x}
s_mov_b32 s{sV1}, 0xfffffff1""")
for r in range(24):
    src,c=(xt0,16*(r//8)+r%8) if r<16 else (xt1,r-16)
    A(f"v_subrev_u32 v{Mk+r}, {c}, v{src}")
    A(f"v_and_b32 v{Mk+r}, s{sV1}, v{Mk+r}")
for r in range(0,24,2):
    A(f"v_cmp_eq_u32 vcc, 0, v{Mk+r}")
    A(f"v_cmp_eq_u32 {sr(sG0+1,2)}, 0, v{Mk+r+1}")
    A("s_nop 0")
    A(f"v_cndmask_b32 v{Mk+r}, v{xt2}, 0, vcc")
    A(f"v_cndmask_b32 v{Mk+r+1}, v{xt2}, 0, {sr(sG0+1,2)}")
assert (sG0+1)%2==0
A(f"""s_lshl_b32 s{sV0}, s{sT}, 10
s_add_u32 s{sV0}, s{sV0}, {EAQ}
v_add_u32 v{vAQ}, s{sV0}, v{xL16}
s_lshl_b32 s{sV0}, s{sT}, 11
s_add_u32 s{sV1}, s{sV0}, {EAK}
v_add_u32 v{vAK}, s{sV1}, v{xL16}
v_add_u32 v{vAV}, s{sV1}, v{xVo}
v_and_b32 v{xt0}, 27, v0
v_cmp_eq_u32 vcc, 16, v{xt0}
v_mov_b32 v{xt1}, 0x3f803f80
v_lshl_add_u32 v{vOf}, v{vV1}, 14, v{xVo}
v_cndmask_b32 v{xt1}, 0, v{xt1}, vcc
v_mov_b32 v{xIdx}, 0xdddddddd
v_mov_b32 v{xOne}, 1
s_and_b32 s{sV1}, s{sT}, 1
s_lshl_b32 s{sV1}, s{sV1}, 9
v_add_u32 v{vOf}, s{sV1}, v{vOf}
s_lshl_b32 s{sV3}, s{sR2}, 7
s_lshl_b32 s{sV1}, s{sHQ}, 1
s_add_u32 s{sV3}, s{sV3}, s{sV1}
s_lshr_b32 s{sV1}, s{sT}, 1
s_add_u32 s{sV3}, s{sV3}, s{sV1}
s_lshl_b32 s{sV3}, s{sV3}, 10
s_add_u32 s{sV3}, s{sV3}, {WS_OFA}
s_add_u32 s{sHa}, s{sHa}, s{sV0}
s_sub_u32 s{sHa}, s{sHa}, 8192""")
for i in range(12): A(f"v_mov_b32 v{Vc+i}, v{xt1}")
A.wait_vm_all()
nonce_check(xN,xZ,sNx,sCx,sV1)
A(f"s_cmp_lg_u32 s{sRP}, 1\ns_cbranch_scc1 L_noha2")
flag_store(xN,xZ,sHf)
A.label("L_noha2")
A(f"s_sub_u32 s{sHf}, s{sHf}, 256")
stamp(18)
for it,T in enumerate((1,2,3,0)):
    A.lds(f"ds_read_b128 {vr(Qh,4)}, v{vAQ} offset:{T*4096}",'q')
    A.lds(f"ds_read_b128 {vr(Kc,4)}, v{vAK} offset:{(T+1)*8192}",'kc')
    if T: A.lds(f"ds_read_b128 {vr(Kp,4)}, v{vAK} offset:{T*8192}",'kp')
    A(f"s_mov_b64 exec, {sr(sVMx,2)}")
    A.lds(f"ds_read_b128 {vr(Vc,4)}, v{vAV} offset:{(T+1)*8192+1024}",'v')
    A.lds(f"ds_read_b128 {vr(Vc+4,4)}, v{vAV} offset:{(T+1)*8192+1536}",'v')
    if T: A.lds(f"ds_read_b128 {vr(Vp,4)}, v{vAV} offset:{T*8192+1536}",'v')
    A("s_mov_b64 exec, -1")
    if T==0:
        A.wait_lg_all()
        A(f"s_lshl_b32 s{sV0}, s{sT}, 2\nv_add_u32 v{xt0}, s{sV0}, v{gLF}")
        A.lds(f"ds_write_b32 v{xt0}, v{xOne}")
        A(f"s_cmp_eq_u32 s{sR2}, 0\ns_cbranch_scc1 L_first")
        poll_issue(FL,xZ,sHf,1)
        poll_check(FL,xZ,sHf,sCx,sNx,1,sleep=OPT['slp'])
        A(f"""buffer_load_dwordx4 {vr(Kp,4)}, v{xL16}, {sr(SRD_WS,4)}, s{sHa} offen sc1
        s_mov_b64 exec, {sr(sVMx,2)}
        buffer_load_dwordx4 {vr(Vp,4)}, v{xVo}, {sr(SRD_WS,4)}, s{sHa} offen offset:1536 sc1
        s_mov_b64 exec, -1
        s_waitcnt vmcnt(0)
        s_branch L_first2""")
        A.label("L_first")
        for i in range(8): A(f"v_mov_b32 v{Mk+16+i}, v{xt2}")
        A("s_nop 1")
        A.label("L_first2")
        A.vm=[]
    A.wait_lg('kc')
    A(f"v_mfma_f32_32x32x16_bf16 {vr(Sc,16)}, {vr(Kc,4)}, {vr(Qh,4)}, {vr(Mk,16)}")
    A.wait_lg('kp')
    A(f"v_mfma_f32_32x32x16_bf16 {vr(Sp,16)}, {vr(Kp,4)}, {vr(Qh,4)}, {vr(Mk+8,16)}")
    for i in range(9): A(f"v_mov_b32 v{Oc+i}, 0")
    A("s_nop 1")
    A(f"v_max_f32 v{mx}, v{Sc}, v{Sc+1}")
    for i in range(1,8): A(f"v_max3_f32 v{mx}, v{mx}, v{Sc+2*i}, v{Sc+2*i+1}")
    for i in range(4,8): A(f"v_max3_f32 v{mx}, v{mx}, v{Sp+2*i}, v{Sp+2*i+1}")
    A(f"""v_mov_b32 v{mt}, v{mx}
    s_nop 1
    v_permlane32_swap_b32 v{mx}, v{mt}
    s_nop 1
    v_max_f32 v{mx}, v{mx}, v{mt}""")
    regs=[Sp+8+i for i in range(8)]+[Sc+i for i in range(16)]
    for r in regs: A(f"v_sub_f32 v{r}, v{r}, v{mx}")
    A.wait_lg('v')
    for j,r in enumerate(regs):
        A(f"v_exp_f32 v{r}, v{r}")
        if j==9: A(f"v_smfmac_f32_32x32x32_bf16 {vr(Oc,16)}, {vr(Vp,4)}, {vr(Sp+8,8)}, v{xIdx}")
        if j==17: A(f"v_smfmac_f32_32x32x32_bf16 {vr(Oc,16)}, {vr(Vc,4)}, {vr(Sc,8)}, v{xIdx}")
    A("s_nop 1")
    A(f"v_smfmac_f32_32x32x32_bf16 {vr(Oc,16)}, {vr(Vc+4,4)}, {vr(Sc+8,8)}, v{xIdx}")
    A(f"s_add_u32 s{sV1}, s{sV3}, {T*32768}\ns_nop 10")
    A(f"v_rcp_f32 v{mt}, v{Oc+8}\ns_nop 0")
    for i in range(8): A(f"v_mul_f32 v{Oc+i}, v{Oc+i}, v{mt}")
    dst=dstp if it%2==0 else wf[3]
    for i in range(4): A(f"v_cvt_pk_bf16_f32 v{dst+i}, v{Oc+2*i}, v{Oc+2*i+1}")
    A.vmem(f"buffer_store_dwordx4 {vr(dst,4)}, v{vOf}, {sr(SRD_WS,4)}, s{sV1} offen sc1",'oa')
stamp(19)
A(f"""s_lshl_b32 s{sV1}, s{sR2}, 3
s_add_u32 s{sV1}, s{sV1}, s{sHQ}
s_lshl_b32 s{sV1}, s{sV1}, 7
s_add_u32 s{sV1}, s{sV1}, {WS_FOA}""")
A.wait_vm_all()
A("s_mov_b64 exec, 1")
A.lds(f"ds_add_rtn_u32 v{FL}, v{gLF}, v{xOne} offset:48")
A("s_mov_b64 exec, -1")
A.wait_lg_all()
A(f"v_readfirstlane_b32 s{sV0}, v{FL}\ns_cmp_lg_u32 s{sV0}, 3\ns_cbranch_scc1 L_nofa")
flag_store(xN,xZ,sV1)
A.label("L_nofa")
lds_flags_spin(FL,gLF,sCx,sV0)
A.label("L_wo"); A.reset(); A.vm=['x']
lds_word_spin(xt0,gLF,44,sCx,sV0)
A(f"""s_lshr_b32 s{sV0}, s{sRB}, 1
s_lshl_b32 s{sV0}, s{sV0}, 10
s_add_u32 s{sV0}, s{sV0}, {WS_FOA}""")
srd(SRD_M,14,524288); srd(SRD_XA,8,524288); srd(SRD_OUT,16,4194304)
A(f"""v_lshrrev_b32 v{xt0}, 3, v0
v_and_b32 v{xt1}, 6, v{xt0}
v_xor_b32 v{xt1}, v{xt1}, v0
v_and_b32 v{xt1}, 7, v{xt1}
v_lshlrev_b32 v{xt0}, 10, v{xt0}
v_lshl_add_u32 v{xt0}, v{xt1}, 4, v{xt0}
s_lshl_b32 s{sB0}, s{sT}, 17
s_lshl_b32 s{sB1}, s{sHQ}, 7
s_add_u32 s{sB1}, s{sB1}, s{sB0}
s_lshl_b32 s{sB2}, s{sT}, 14""")
for j in range(16 if not OPT.get('nowo') else 0):
    A(f"s_add_u32 m0, s{sB2}, {WOB+j*1024}")
    if j: A(f"s_add_u32 s{sB1}, s{sB1}, 8192")
    else: A("s_nop 0")
    A.vmem(f"buffer_load_dwordx4 v{xt0}, {sr(SRD_M,4)}, s{sB1} offen lds")
    A(f"s_add_u32 m0, s{sB2}, {WOA+j*1024}\ns_nop 0")
    A.vmem(f"buffer_load_dwordx4 v{xt0}, {sr(SRD_XA,4)}, s{sB1} offen lds")
    if OPT['pace']<60: A(f"s_waitcnt vmcnt({OPT['pace']})"); A.vm=A.vm[-OPT['pace']:]
VY=Alloc(xBig,168)
yFl=VY.take(); yP=VY.take(2,2); yWA=[VY.take() for _ in range(4)]; yOo=VY.take()
yO=[VY.take(4,4) for _ in range(16)]
yW=[[VY.take(4,4) for _ in range(4)] for _ in range(3)]
yA=[VY.take(4,4) for _ in range(4)]
A(f"""v_and_b32 v{yFl}, 15, v0
v_lshlrev_b32 v{yOo}, 11, v{yFl}
v_lshlrev_b32 v{yFl}, 7, v{yFl}
v_lshrrev_b32 v{xt0}, 4, v0
v_lshl_add_u32 v{yOo}, v{xt0}, 3, v{yOo}""")
poll_issue(yP,yFl,sV0,0xff)
poll_check(yP,yFl,sV0,sCx,sNx,0xff,sleep=OPT['slp'])
stamp(20)
A(f"""s_lshl_b32 s{sV2}, s{sRB}, 2
s_add_u32 s{sV2}, s{sV2}, s{sT}
s_lshl_b32 s{sB0}, s{sV2}, 14
s_add_u32 s{sB0}, s{sB0}, {WS_OFA}""")
for i in range(16 if not OPT.get('nowo') else 0):
    if i and i%4==0: A(f"s_add_u32 s{sB0}, s{sB0}, 4096")
    A.vmem(f"buffer_load_dwordx4 {vr(yO[i],4)}, v{xL16}, {sr(SRD_WS,4)}, s{sB0} offen offset:{(i%4)*1024} sc1")
    if OPT['pace']<60 and i%2==1 and len(A.vm)>OPT['pace']: A(f"s_waitcnt vmcnt({OPT['pace']})"); A.vm=A.vm[-OPT['pace']:]
wo_tr_addr(yWA[0],xt0,xt1)
A(f"""v_add_u32 v{yWA[0]}, {WOA}, v{yWA[0]}
v_xor_b32 v{yWA[1]}, 32, v{yWA[0]}
v_xor_b32 v{yWA[2]}, 64, v{yWA[0]}
v_xor_b32 v{yWA[3]}, 96, v{yWA[0]}
s_lshl_b32 s{sB0}, s{sV2}, 15
s_lshl_b32 s{sB1}, s{sHQ}, 7
s_add_u32 s{sB0}, s{sB0}, s{sB1}""")
A.wait_vm_all()
stamp(21)
A("s_setprio 0")
A("s_barrier")
def woa_read(hp_,c):
    if hp_>=16: return
    b=hp_%3
    A.lds(f"ds_read_b64_tr_b16 {vr(yW[b][c],2)}, v{yWA[c]} offset:{hp_*4096}",('wa',hp_,c))
    A.lds(f"ds_read_b64_tr_b16 {vr(yW[b][c]+2,2)}, v{yWA[c]} offset:{hp_*4096+1024}",('wa',hp_,c))
for c in range(4): woa_read(0,c)
for c in range(2): woa_read(1,c)
for i in range(16):
    for c in range(4):
        A.wait_lg(('wa',i,c))
        A(f"v_mfma_f32_16x16x32_bf16 {vr(yA[c],4)}, {vr(yW[i%3][c],4)}, {vr(yO[i],4)}, {'0' if i==0 else vr(yA[c],4)}")
        woa_read(i+1+(c+2)//4,(c+2)%4)
A("s_nop 7")
for c in range(4):
    acc=yA[c]
    A(f"v_cvt_pk_bf16_f32 v{acc}, v{acc}, v{acc+1}\nv_cvt_pk_bf16_f32 v{acc+1}, v{acc+2}, v{acc+3}")
    A.vmem(f"buffer_store_dwordx2 {vr(acc,2)}, v{yOo}, {sr(SRD_OUT,4)}, s{sB0} offen offset:{c*32}")
stamp(22)
stamp_out(yFl)
A.label("L_end")
A("s_endpgm")
A.label("L_codeend")

errs=check(A.lines)
for e in errs[:25]: print("CHECK:",e, file=sys.stderr)
hdr=open('concat_heads__sliding_local_dilated__softmax_full_mha__prompt.s.ref').read().split('; Override')[0]
nv=168
out=hdr+f"""; @launch grid=(256,1,1) block=(768,1,1) lds={LDS_BYTES}
.amdgcn_target "amdgcn-amd-amdhsa--gfx950"
.text
.globl {NAME}
.p2align 8
.type {NAME},@function
"""+A.text()+f""".section .rodata,"a"
.p2align 6
.amdhsa_kernel {NAME}
  .amdhsa_next_free_vgpr {nv}
  .amdhsa_next_free_sgpr 102
  .amdhsa_accum_offset {nv}
  .amdhsa_group_segment_fixed_size 0
  .amdhsa_kernarg_size 72
  .amdhsa_user_sgpr_count 2
  .amdhsa_user_sgpr_kernarg_segment_ptr 1
  .amdhsa_system_sgpr_workgroup_id_x 1
.end_amdhsa_kernel
"""
open(sys.argv[1],'w').write(out)
print("vgpr att",VA.hi,VB.hi,"aux",VX.hi,VY.hi,"lines",len(A.lines),"errs",len(errs))
```

```python
import sys, math, struct
from asmlib import *
NAME="concat_heads__sliding_local_dilated__softmax_full_mha__prompt_kernel"
OPT=dict(pace=1, stamp=0, pfc=0, ewo=1, pp=1, m=2, rel=6, slp=2)
for a in sys.argv[2:]:
    k,v=a.split('='); OPT[k]=int(v) if v.lstrip('-').isdigit() else v

SL=40960; LXO=24576; EAQ=65536; EAK=81920-8192; RED=131072; LF=155648
WOB=0; WOA=65536
LDS_BYTES=163840
WS_KV=0; WS_OFB=4<<20; WS_OFA=6<<20; WS_Q=10<<20; WS_HA=12<<20
FGS=OPT.get('fgs',7); WS_FG=(8<<20)+OPT.get('fgo',0); WS_FOB=(8<<20)+262144+OPT.get('fbo',0); WS_EPOCH=(8<<20)+65536; WS_FOA=(8<<20)+131072; WS_FH=(8<<20)+163840
WS_STAMP=30<<20
WS_BYTES=32<<20
CSCALE=0.25*math.log2(math.e)
def f2u(x): return struct.unpack('<I',struct.pack('<f',x))[0]
NEGBIG=f2u(-1e30)
SPIN=30000

A=Asm()
sW=22; sHQ=23; sRB=24; sSG=25; sBR=26; sR2=27
SRD_X=28; SRD_W=32; SRD_XA=36; sHK=40; sHV=41; sT0=42; sT1=43; SRD_WS=44; SRD_DBG=48; SRD_M=52; SRD_OUT=56
sA0=60

def srd(base, ptr, nbytes):
    A(f"""s_mov_b32 s{base}, s{ptr}
    s_mov_b32 s{base+1}, s{ptr+1}
    s_mov_b32 s{base+2}, {nbytes}
    s_mov_b32 s{base+3}, 0x00020000""")
vSt=1
def stamp(idx, lvl=1):
    if OPT['stamp']<lvl: return
    if 'only' in OPT and idx not in [int(x) for x in str(OPT['only']).split(',')]: return
    A(f"""s_memrealtime s[96:97]
    s_memtime s[98:99]
    s_waitcnt lgkmcnt(0)
    v_writelane_b32 v{vSt}, s96, {idx}
    v_writelane_b32 v{vSt}, s98, {idx+32}""")
    A.lg=[]
def stamp_out(vtmp):
    if not OPT['stamp']: return
    A(f"""v_writelane_b32 v{vSt}, s100, 31
    s_mul_i32 s96, s2, 12
    s_add_u32 s96, s96, s{sW}
    s_lshl_b32 s96, s96, 8
    s_add_u32 s96, s96, {WS_STAMP}
    v_lshlrev_b32 v{vtmp}, 2, v0
    buffer_store_dword v{vSt}, v{vtmp}, {sr(SRD_WS,4)}, s96 offen""")
def poll_issue(vdst, voff, soff, mask=-1):
    if mask!=-1: A(f"s_mov_b64 exec, {mask:#x}")
    A.vmem(f"buffer_load_dwordx2 {vr(vdst,2)}, v{voff}, {sr(SRD_WS,4)}, s{soff} offen sc1",'poll')
    if mask!=-1: A("s_mov_b64 exec, -1")
def poll_check(vdst, voff, soff, scnt, snon, mask=-1, sleep=0, keep=0):
    L=A.newlabel('L_poll'); Ld=A.newlabel('L_polld'); Lc=A.newlabel('L_pollc')
    A(f"s_mov_b32 s{scnt}, 0")
    if mask!=-1: A(f"s_mov_b64 exec, {mask:#x}")
    A.wait_vm('poll')
    A(f"s_branch {Lc}")
    A.label(L)
    if sleep: A(f"s_sleep {sleep}")
    A(f"""buffer_load_dwordx2 {vr(vdst,2)}, v{voff}, {sr(SRD_WS,4)}, s{soff} offen sc1
    s_waitcnt vmcnt(0)""")
    A.label(Lc)
    A(f"""v_cmp_eq_u64 vcc, {sr(snon,2)}, {vr(vdst,2)}
    s_add_u32 s{scnt}, s{scnt}, 1
    s_cmp_eq_u64 vcc, exec
    s_cbranch_scc1 {Ld}
    s_cmp_le_u32 s{scnt}, {SPIN}
    s_cbranch_scc1 {L}""")
    A.label(Ld)
    if mask!=-1: A("s_mov_b64 exec, -1")
def poll_pipe(vd, voff, soff, scnt, snon, gap=2):
    L=A.newlabel('L_pp'); Ld=A.newlabel('L_ppd')
    ld=lambda k: A(f"buffer_load_dwordx2 {vr(vd+2*k,2)}, v{voff}, {sr(SRD_WS,4)}, s{soff} offen sc1")
    A(f"s_mov_b32 s{scnt}, 0")
    for k in range(3):
        ld(k)
        if k<2: A(f"s_sleep {gap}")
    A.label(L)
    for k in range(3):
        A(f"""s_waitcnt vmcnt(2)
        v_cmp_eq_u64 vcc, {sr(snon,2)}, {vr(vd+2*k,2)}
        s_cmp_eq_u64 vcc, exec
        s_cbranch_scc1 {Ld}""")
        ld(k)
    A(f"""s_add_u32 s{scnt}, s{scnt}, 1
    s_cmp_le_u32 s{scnt}, {SPIN}
    s_cbranch_scc1 {L}""")
    A.label(Ld)
def lds_word_spin(vF, vAddr, off, scnt, stmp):
    L=A.newlabel('L_ws'); Ld=A.newlabel('L_wsd')
    A(f"s_mov_b32 s{scnt}, 0")
    A.label(L)
    A(f"""ds_read_b32 v{vF}, v{vAddr} offset:{off}
    s_add_u32 s{scnt}, s{scnt}, 1
    s_waitcnt lgkmcnt(0)
    v_readfirstlane_b32 s{stmp}, v{vF}
    s_cmp_gt_u32 s{scnt}, {SPIN*8}
    s_cbranch_scc1 {Ld}
    s_cmp_eq_u32 s{stmp}, 0
    s_cbranch_scc1 {L}""")
    A.label(Ld)
    A.lg=[]
def nonce_check(vN, vZ, snon, scnt, stmp):
    L=A.newlabel('L_non'); Ld=A.newlabel('L_nond')
    A(f"s_mov_b32 s{scnt}, 0")
    A.label(L)
    A(f"""v_readfirstlane_b32 s{snon}, v{vN}
    v_readfirstlane_b32 s{snon+1}, v{vN+1}
    s_add_u32 s{scnt}, s{scnt}, 1
    s_cmp_gt_u32 s{scnt}, {SPIN}
    s_cbranch_scc1 {Ld}
    s_cmp_eq_u32 s{snon}, 0
    s_cselect_b32 s{stmp}, 0, s{snon+1}
    s_cmp_lg_u32 s{stmp}, 0
    s_cbranch_scc1 {Ld}
    buffer_load_dwordx2 {vr(vN,2)}, v{vZ}, {sr(SRD_DBG,4)}, 0 offen sc1
    s_waitcnt vmcnt(0)
    s_branch {L}""")
    A.label(Ld)
def flag_store(vN, vZ, soff):
    A("s_mov_b64 exec, 1")
    A.vmem(f"buffer_store_dwordx2 {vr(vN,2)}, v{vZ}, {sr(SRD_WS,4)}, s{soff} offen sc1",'flag')
    A("s_mov_b64 exec, -1")
def lds_flags_spin(vF, vAddr, scnt, stmp, issued=False):
    L=A.newlabel('L_xs'); Ld=A.newlabel('L_xsd'); Lc=A.newlabel('L_xsc')
    A(f"s_mov_b32 s{scnt}, 0")
    if issued: A(f"s_branch {Lc}")
    A.label(L)
    A(f"ds_read_b128 {vr(vF,4)}, v{vAddr}")
    A.label(Lc)
    A(f"""s_add_u32 s{scnt}, s{scnt}, 1
    s_waitcnt lgkmcnt(0)
    v_and_b32 v{vF}, v{vF}, v{vF+1}
    v_and_b32 v{vF+2}, v{vF+2}, v{vF+3}
    v_and_b32 v{vF}, v{vF}, v{vF+2}
    s_cmp_gt_u32 s{scnt}, {SPIN*4}
    v_readfirstlane_b32 s{stmp}, v{vF}
    s_cbranch_scc1 {Ld}
    s_cmp_eq_u32 s{stmp}, 0
    s_cbranch_scc1 {L}""")
    A.label(Ld)
    A.lg=[]
def wo_tr_addr(dst, t0, t1):
    A(f"""v_lshrrev_b32 v{t0}, 2, v0
    v_and_b32 v{t0}, 7, v{t0}
    v_lshrrev_b32 v{t1}, 5, v0
    v_lshl_add_u32 v{t1}, v{t1}, 4, v{t0}
    v_lshlrev_b32 v{t1}, 7, v{t1}
    v_and_b32 v{t0}, 6, v{t0}
    v_bfe_u32 v{dst}, v0, 1, 1
    v_xor_b32 v{t0}, v{t0}, v{dst}
    v_lshl_add_u32 v{t1}, v{t0}, 4, v{t1}
    v_and_b32 v{t0}, 1, v0
    v_lshl_add_u32 v{dst}, v{t0}, 3, v{t1}""")

A.label(NAME)
if OPT['stamp']: A("s_memrealtime s[100:101]")
A(f"""s_cmp_ge_u32 s2, 256
s_cbranch_scc1 L_end
s_load_dwordx16 s[4:19], s[0:1], 0
s_load_dwordx2 s[20:21], s[0:1], 64
v_lshrrev_b32 v1, 6, v0
v_and_b32 v0, 63, v0
s_lshr_b32 s{sT1}, s2, 3
v_readfirstlane_b32 s{sW}, v1
s_and_b32 s{sHQ}, s2, 1
s_lshl_b32 s{sHQ}, s{sHQ}, 2
s_and_b32 s{sT0}, s{sT1}, 3
s_add_u32 s{sHQ}, s{sHQ}, s{sT0}
s_and_b32 s{sRB}, s2, 6
s_lshl_b32 s{sRB}, s{sRB}, 2
s_lshr_b32 s{sT0}, s{sT1}, 2
s_add_u32 s{sRB}, s{sRB}, s{sT0}""")
if OPT['m']==2: A(f"s_lshr_b32 s{sBR}, s{sRB}, 4\ns_and_b32 s{sR2}, s{sRB}, 15")
else: A(f"s_and_b32 s{sBR}, s{sRB}, 1\ns_lshr_b32 s{sR2}, s{sRB}, 1")
A({1:f"s_lshl_b32 s{sSG}, s{sHQ}, 1\ns_add_u32 s{sSG}, s{sSG}, s{sR2}", 2:f"s_mov_b32 s{sSG}, s{sR2}", 3:f"s_and_b32 s{sSG}, s{sR2}, 3",
   4:f"s_and_b32 s{sSG}, s{sR2}, 1\ns_lshl_b32 s{sSG}, s{sSG}, 2", 5:f"s_and_b32 s{sSG}, s{sR2}, 3\ns_lshl_b32 s{sSG}, s{sSG}, 1", 6:f"s_and_b32 s{sSG}, s{sR2}, 1"}[OPT.get('rot',1)])
A(f"""s_and_b32 s{sT0}, s{sHQ}, 4
s_cmp_eq_u32 s{sBR}, 0
s_cselect_b32 s{sHK}, 1, 0
s_cselect_b32 s{sHV}, 2, 0
s_add_u32 s{sHK}, s{sHK}, s{sHQ}
s_and_b32 s{sHK}, s{sHK}, 3
s_or_b32 s{sHK}, s{sHK}, s{sT0}
s_add_u32 s{sHV}, s{sHV}, s{sHQ}
s_and_b32 s{sHV}, s{sHV}, 3
s_or_b32 s{sHV}, s{sHV}, s{sT0}
s_cmp_lg_u32 s{sHQ}, 3
s_cselect_b32 s{sT0}, s{sBR}, 0
s_cmp_ge_u32 s{sW}, 8
s_cbranch_scc1 L_aux""")

VA=Alloc(2,168)
vx=VA.take(); vw=VA.take(); vt0=VA.take(); vt1=VA.take(); vt2=VA.take(); vt3=VA.take()
vL16=VA.take(); vVo=VA.take(); vIdx=VA.take(); vFl=VA.take(); vP=VA.take(2,2); vN=VA.take(2,2); vZ=VA.take()
vEQ0=VA.take(); vEK=VA.take(); vEV=VA.take(); vx1=vEQ0; vLF=vt3
ND=6
vBig=VA.mark()
Qf=[VA.take(4,4) for _ in range(2)]
Sb=[VA.take(16,4) for _ in range(2)]
Oa=[VA.take(16,4) for _ in range(2)]
Kf=[VA.take(4,4) for _ in range(ND)]
Vf=[VA.take(8,4) for _ in range(ND)]
sXoff=sA0; sM0=sA0+1; sWoff=sA0+2; sFOr=sA0+3; sOld=sA0+4; sOut=sA0+5; sOst=sA0+6; sFOw=sA0+7
sU0=sA0+8; sU1=sA0+9; sU2=sA0+10
sE=sA0+11; sKH=sA0+12; sM2=sA0+13; sKVb=sA0+14; sOff=sA0+15; sNon=sA0+16; sVM=sA0+18; sCnt=sA0+20; sBlk=sA0+21
sFGr=sA0+22; sQ0=sA0+23; sQ1=sA0+24; sLo=sA0+25; sHi=sA0+26; sX0=sA0+28
sF0=sA0+30; sF1=sA0+31; sF2=sA0+32; sWoffK=sA0+33; sWoffV=sA0+34
A(f"""v_lshrrev_b32 v{vt0}, 3, v0
v_mul_u32_u24 v{vw}, 3072, v{vt0}
v_lshlrev_b32 v{vt0}, 10, v{vt0}
v_lshrrev_b32 v{vt1}, 2, v0
v_and_b32 v{vt1}, 4, v{vt1}
v_xor_b32 v{vt1}, v{vt1}, v0
v_and_b32 v{vt1}, 7, v{vt1}
v_lshl_add_u32 v{vw}, v{vt1}, 4, v{vw}
v_lshrrev_b32 v{vt1}, 4, v0
v_xor_b32 v{vt1}, v{vt1}, v0
v_and_b32 v{vt1}, 7, v{vt1}
v_lshl_add_u32 v{vx}, v{vt1}, 4, v{vt0}
v_xor_b32 v{vx1}, 64, v{vx}
v_add_u32 v{vx1}, 8192, v{vx1}
s_lshl_b32 s{sXoff}, s{sR2}, 17
s_lshl_b32 s{sU0}, s{sW}, 14
s_add_u32 s{sXoff}, s{sXoff}, s{sU0}
s_lshl_b32 s{sM0}, s{sW}, 10
s_lshl_b32 s{sM2}, s{sW}, 11
s_mul_i32 s{sWoff}, s{sW}, 24576
s_lshl_b32 s{sU0}, s{sHK}, 7
s_add_u32 s{sWoffK}, s{sWoff}, s{sU0}
s_lshl_b32 s{sU0}, s{sHV}, 7
s_add_u32 s{sWoffV}, s{sWoff}, s{sU0}
s_lshl_b32 s{sU0}, s{sHQ}, 7
s_add_u32 s{sWoff}, s{sWoff}, s{sU0}
s_mov_b32 s{SRD_X+2}, 2097152
s_mov_b32 s{SRD_X+3}, 0x00020000
s_mov_b32 s{SRD_W+2}, 1572864
s_mov_b32 s{SRD_W+3}, 0x00020000
s_cmp_eq_u32 s{sBR}, 0
s_waitcnt lgkmcnt(0)
s_cselect_b32 s{SRD_X}, s10, s4
s_cselect_b32 s{SRD_X+1}, s11, s5
s_cselect_b32 s{SRD_W}, s12, s6
s_cselect_b32 s{SRD_W+1}, s13, s7""")
def issue_stage(s):
    slot=(s+1)%3
    A(f"""s_add_u32 s{sU0}, s{sSG}, {s}
    s_and_b32 s{sU0}, s{sU0}, 7
    s_mul_i32 s{sU1}, s{sU0}, 196608
    s_lshl_b32 s{sU0}, s{sU0}, 7
    s_add_u32 m0, s{sM2}, {slot*SL+LXO}
    s_add_u32 s{sU0}, s{sU0}, s{sXoff}""")
    A.vmem(f"buffer_load_dwordx4 v{vx}, {sr(SRD_X,4)}, s{sU0} offen lds", s)
    for p in (1,2,0):
        A(f"s_add_u32 m0, s{sM0}, {slot*SL+p*7168}")
        A(f"s_add_u32 s{sU2}, s{sU1}, s{(sWoff,sWoffK,sWoffV)[p]}")
        A.vmem(f"buffer_load_dwordx4 v{vw}, {sr(SRD_W,4)}, s{sU2} offen offset:{p*1024} lds", s)
        if p==1:
            A(f"s_add_u32 m0, s{sM2}, {slot*SL+LXO+1024}\ns_nop 0")
            A.vmem(f"buffer_load_dwordx4 v{vx1}, {sr(SRD_X,4)}, s{sU0} offen lds", s)
class Cap:
    def __enter__(self): self.n=len(A.lines); return self
    def __exit__(self,*a): self.l=A.lines[self.n:]; del A.lines[self.n:]
def att_setup():
    srd(SRD_DBG,18,256)
    A(f"""v_mov_b32 v{vZ}, 0
    s_lshr_b32 s{sE}, s{sW}, 1
    s_and_b32 s{sKH}, s{sW}, 1
    s_lshl_b32 s{sF1}, s{sHQ}, 2
    s_add_u32 s{sF1}, s{sF1}, s{sE}
    s_lshl_b32 s{sKVb}, s{sF1}, 17
    s_lshl_b32 s{sF0}, s{sKH}, 11
    s_add_u32 s{sKVb}, s{sKVb}, s{sF0}
    s_lshl_b32 s{sQ0}, s{sF1}, 6
    s_lshl_b32 s{sF0}, s{sRB}, 1
    s_add_u32 s{sQ0}, s{sQ0}, s{sF0}
    s_add_u32 s{sQ0}, s{sQ0}, s{sKH}
    s_lshl_b32 s{sQ0}, s{sQ0}, 10
    s_add_u32 s{sQ0}, s{sQ0}, {WS_Q}
    s_xor_b32 s{sQ1}, s{sQ0}, 1024
    s_mov_b32 s{sVM}, 0x0000ffff
    s_mov_b32 s{sVM+1}, 0x0000ffff
    v_lshlrev_b32 v{vL16}, 4, v0
    v_and_b32 v{vt0}, 15, v0
    v_lshlrev_b32 v{vt1}, 4, v{vt0}
    v_lshrrev_b32 v{vt2}, 5, v0
    v_lshl_add_u32 v{vVo}, v{vt2}, 8, v{vt1}
    v_mov_b32 v{vIdx}, 0xdddddddd
    s_and_b32 s{sF2}, s{sHQ}, 4
    s_sub_u32 s{sF0}, s{sHQ}, 1
    s_and_b32 s{sF0}, s{sF0}, 3
    s_or_b32 s{sF0}, s{sF0}, s{sF2}
    s_lshl_b32 s{sF0}, s{sF0}, 11
    s_sub_u32 s{sF1}, s{sHQ}, 2
    s_and_b32 s{sF1}, s{sF1}, 3
    s_or_b32 s{sF1}, s{sF1}, s{sF2}
    s_lshl_b32 s{sF1}, s{sF1}, 11
    v_mov_b32 v{vt1}, s{sF0}
    v_mov_b32 v{vt2}, s{sF1}
    v_cmp_gt_u32 vcc, 16, v0
    s_lshl_b32 s{sF0}, s{sHQ}, 4
    s_lshr_b32 s{sF1}, s{sRB}, 1
    v_cndmask_b32 v{vt1}, v{vt2}, v{vt1}, vcc
    v_lshl_add_u32 v{vFl}, v{vt0}, 7, v{vt1}
    s_add_u32 s{sF0}, s{sF0}, s{sF1}
    s_lshl_b32 s{sF0}, s{sF0}, 7
    s_mov_b32 s{sFGr}, {WS_FG}
    v_writelane_b32 v{vFl}, s{sF0}, 32
    v_mov_b32 v{vLF}, {LF}
    v_and_b32 v{vt0}, 27, v0
    v_cmp_eq_u32 vcc, 16, v{vt0}
    v_mov_b32 v{vt1}, 0x3f803f80
    s_nop 0
    v_cndmask_b32 v{vt1}, 0, v{vt1}, vcc""")
    for d in range(ND):
        for i in range(8): A(f"v_mov_b32 v{Vf[d]+i}, v{vt1}")
    for d in range(2):
        for i in range(16): A(f"v_mov_b32 v{Oa[d]+i}, 0")
    A(f"""s_lshl_b32 s{sF0}, s{sRB}, 1
    s_add_u32 s{sF0}, s{sF0}, s{sKH}
    s_lshl_b32 s{sOst}, s{sF0}, 5
    s_lshl_b32 s{sF1}, s{sHQ}, 1
    s_add_u32 s{sOst}, s{sOst}, s{sF1}
    s_lshr_b32 s{sF1}, s{sE}, 1
    s_add_u32 s{sOst}, s{sOst}, s{sF1}
    s_lshl_b32 s{sOst}, s{sOst}, 10
    s_add_u32 s{sOst}, s{sOst}, {WS_OFB}
    s_lshl_b32 s{sFOr}, s{sRB}, 10
    s_add_u32 s{sFOr}, s{sFOr}, {WS_FOB}
    s_lshl_b32 s{sFOw}, s{sHQ}, 7
    s_add_u32 s{sFOw}, s{sFOw}, s{sFOr}
    s_and_b32 s{sF0}, s{sW}, 3
    s_lshl_b32 s{sF1}, s{sRB}, 2
    s_add_u32 s{sF1}, s{sF1}, s{sF0}
    s_lshr_b32 s{sF2}, s{sW}, 2
    s_lshl_b32 s{sOld}, s{sF1}, 1
    s_add_u32 s{sOld}, s{sOld}, s{sF2}
    s_lshl_b32 s{sOld}, s{sOld}, 13
    s_add_u32 s{sOld}, s{sOld}, {WS_OFB}
    s_lshl_b32 s{sOut}, s{sF1}, 15
    s_lshl_b32 s{sF0}, s{sHQ}, 7
    s_add_u32 s{sOut}, s{sOut}, s{sF0}
    s_lshl_b32 s{sF0}, s{sF2}, 6
    s_add_u32 s{sOut}, s{sOut}, s{sF0}
    s_add_u32 s{sOut}, s{sOut}, 1024
    s_mov_b32 s{sLo}, {f2u(2.0**-64):#x}
    s_mov_b32 s{sHi}, {f2u(2.0**64):#x}""")
    srd(SRD_OUT,16,4194304)
with Cap() as c1: att_setup()
FILL=c1.l
def fill(q,n):
    k=min(n,len(q))
    while k<len(q) and any(x.startswith('v_cmp') for x in q[max(0,k-3):k]): k+=1
    for l in q[:k]: A(l)
    del q[:k]
def kv_load(i):
    if OPT.get('nokv'): return
    d=i%ND
    A(f"""s_add_u32 s{sBlk}, s{sRB}, {i}
    s_and_b32 s{sBlk}, s{sBlk}, 31
    s_lshl_b32 s{sBlk}, s{sBlk}, 12
    s_add_u32 s{sOff}, s{sBlk}, s{sKVb}""")
    A.vmem(f"buffer_load_dwordx4 {vr(Kf[d],4)}, v{vL16}, {sr(SRD_WS,4)}, s{sOff} offen sc1",('kv',i))
    A(f"s_mov_b64 exec, {sr(sVM,2)}")
    A.vmem(f"buffer_load_dwordx4 {vr(Vf[d],4)}, v{vVo}, {sr(SRD_WS,4)}, s{sOff} offen offset:1024 sc1",('kv',i))
    A.vmem(f"buffer_load_dwordx4 {vr(Vf[d]+4,4)}, v{vVo}, {sr(SRD_WS,4)}, s{sOff} offen offset:1536 sc1",('kv',i))
    A("s_mov_b64 exec, -1")
def QK(u): A(f"v_mfma_f32_32x32x16_bf16 {vr(Sb[u%2],16)}, {vr(Kf[(u//2)%ND],4)}, {vr(Qf[u%2],4)}, 0")
def PV(u,t): A(f"v_smfmac_f32_32x32x32_bf16 {vr(Oa[u%2],16)}, {vr(Vf[(u//2)%ND]+4*t,4)}, {vr(Sb[u%2]+8*t,8)}, v{vIdx}")
NU=64
PRIO0=2; PRIO={28:1,56:0}
SCHED={}
nxt=2
for u_ in range(64):
    lim=u_//2-1+ND if u_>=2 else ND-1
    if nxt<=min(lim,31): SCHED.setdefault(u_,[]).append(nxt); nxt+=1
def unit(u):
    S=Sb[u%2]
    E=lambda r: A(f"v_exp_f32 v{S+r}, v{S+r}")
    E(0);E(1)
    if u>0: PV(u-1,1)
    E(2);E(3);E(4)
    for i in SCHED.get(u,[]): kv_load(i)
    if u in PRIO: A(f"s_setprio {PRIO[u]}")
    if u==OPT['rel']: A.lds(f"ds_write_b32 v{vLF}, v{vIdx} offset:44")
    if u+1<NU:
        if (u+1)%2==0: A.wait_vm(('kv',(u+1)//2))
        QK(u+1)
    for r in range(5,10): E(r)
    PV(u,0)
    for r in range(10,16): E(r)
    if u in (3,5,9,17,33): stamp(18+(3,5,9,17,33).index(u), 1 if u in (5,33) else 2)
UP=OPT.get('up',2)
issue_stage(0)
if UP>=2: issue_stage(1)
srd(SRD_WS,20,WS_BYTES)
stamp(0)
if UP>=3: issue_stage(2)
for s in range(8):
    A.wait_vm(s)
    A("s_barrier")
    stamp(1+s, 1 if s in (0,4) else 2)
    if s==0:
        for k in range(UP,3): issue_stage(k)
    if 1<=s<=5: issue_stage(s+2)
    if s==7:
        A.wait_vm('non')
    fill(FILL, 24 if s<7 else 999)
    if s==5: A.vmem(f"buffer_load_dwordx2 {vr(vN,2)}, v{vZ}, {sr(SRD_DBG,4)}, 0 offen sc1",'non')
A.wait_vm('non')
nonce_check(vN,vZ,sNon,sCnt,sU0)
A("s_barrier")
if OPT['ewo']:
    A(f"s_cmp_eq_u32 s{sT0}, 0\ns_cbranch_scc1 L_noewo")
    srd(SRD_M,14,524288)
    A(f"""v_lshrrev_b32 v{vx}, 3, v0
    v_and_b32 v{vw}, 6, v{vx}
    v_xor_b32 v{vw}, v{vw}, v0
    v_and_b32 v{vw}, 7, v{vw}
    v_lshlrev_b32 v{vx}, 10, v{vx}
    v_lshl_add_u32 v{vx}, v{vw}, 4, v{vx}
    s_lshl_b32 s{sU0}, s{sW}, 16
    s_lshl_b32 s{sU1}, s{sHQ}, 7
    s_add_u32 s{sU0}, s{sU0}, s{sU1}
    s_lshl_b32 s{sU1}, s{sW}, 13""")
    for j in range(8):
        A(f"s_add_u32 m0, s{sU1}, {WOB+j*1024}")
        A(f"s_add_u32 s{sU0}, s{sU0}, 8192" if j else "s_nop 0")
        A.vmem(f"buffer_load_dwordx4 v{vx}, {sr(SRD_M,4)}, s{sU0} offen lds",'wob')
    A.label("L_noewo")
A("s_barrier")
stamp(30)
PM=(1<<33)-1
A(f"s_mov_b32 s{sX0}, -1\ns_mov_b32 s{sX0+1}, 1")
A(f"s_cmp_lg_u32 s{sW}, 0\ns_cbranch_scc1 L_nf2")
A(f"s_mov_b64 exec, {sr(sX0,2)}")
if OPT['pp']: poll_pipe(Sb[1],vFl,sFGr,sCnt,sNon)
else:
    poll_issue(vP,vFl,sFGr)
    poll_check(vP,vFl,sFGr,sCnt,sNon)
A(f"s_mov_b64 exec, -1\nds_write_b32 v{vLF}, v{vIdx} offset:32\ns_branch L_nf3")
A.label("L_nf2")
lds_word_spin(vt0,vLF,32,sCnt,sU0)
A.label("L_nf3")
A.vm=[]
stamp(16,2)
if OPT.get('rep'):
    A(f"s_mov_b32 s{sF2}, {OPT['rep']}")
    A.label("L_rep")
    A("s_nop 15")
    for d in range(2):
        for i in range(16): A(f"v_mov_b32 v{Oa[d]+i}, 0")
A.vmem(f"buffer_load_dwordx4 {vr(Qf[0],4)}, v{vL16}, {sr(SRD_WS,4)}, s{sQ0} offen sc1")
kv_load(0)
A.vmem(f"buffer_load_dwordx4 {vr(Qf[1],4)}, v{vL16}, {sr(SRD_WS,4)}, s{sQ1} offen sc1",'q1')
kv_load(1)
stamp(17)
A(f"s_setprio {PRIO0}")
A.wait_vm('q1')
QK(0)
A("s_nop 11")
for u in range(NU): unit(u)
A("s_nop 1")
PV(NU-1,1)
if OPT.get('rep'):
    A(f"s_sub_u32 s{sF2}, s{sF2}, 1\ns_cmp_lg_u32 s{sF2}, 0\ns_cbranch_scc1 L_rep")
if OPT.get('spin'):
    A(f"s_mov_b32 s{sF2}, {OPT['spin']}")
    A.label("L_spin")
    A(f"s_sub_u32 s{sF2}, s{sF2}, 1\ns_cmp_lg_u32 s{sF2}, 0\ns_cbranch_scc1 L_spin")
stamp(23)
A("s_setprio 3")
vR=Sb[0]; vRa=Sb[1]
A(f"""s_mul_i32 s{sU0}, s{sW}, 2304
s_add_u32 s{sU0}, s{sU0}, {RED}
v_add_u32 v{vRa}, s{sU0}, v{vL16}
v_lshlrev_b32 v{vRa+1}, 2, v0
v_add_u32 v{vRa+1}, s{sU0}, v{vRa+1}
s_xor_b32 s{sU1}, s{sW}, 1
s_mul_i32 s{sU1}, s{sU1}, 2304
s_add_u32 s{sU1}, s{sU1}, {RED}
v_add_u32 v{vEK}, s{sU1}, v{vL16}
v_lshlrev_b32 v{vRa+3}, 2, v0
v_add_u32 v{vRa+3}, s{sU1}, v{vRa+3}""")
A.lds(f"ds_write_b128 v{vRa}, {vr(Oa[1],4)}")
A.lds(f"ds_write_b128 v{vRa}, {vr(Oa[1]+4,4)} offset:1024")
A.lds(f"ds_write_b32 v{vRa+1}, v{Oa[1]+8} offset:2048")
A(f"""v_bfe_u32 v{vRa+4}, v0, 4, 1
v_lshlrev_b32 v{vRa+4}, 14, v{vRa+4}
v_add_u32 v{vRa+4}, v{vRa+4}, v{vVo}
s_and_b32 s{sU0}, s{sE}, 1
s_lshl_b32 s{sU0}, s{sU0}, 9
v_add_u32 v{vRa+4}, s{sU0}, v{vRa+4}""")
A.wait_lg_all()
A("s_barrier")
stamp(24)
A.lds(f"ds_read_b32 v{vR+8}, v{vRa+3} offset:2048",'r2')
A.lds(f"ds_read_b128 {vr(vR,4)}, v{vEK}",'r0')
A.lds(f"ds_read_b128 {vr(vR+4,4)}, v{vEK} offset:1024",'r1')
A.wait_lg('r2')
A(f"""v_add_f32 v{Oa[0]+8}, v{Oa[0]+8}, v{vR+8}
v_cmp_nle_f32 vcc, s{sLo}, v{Oa[0]+8}
v_cmp_nge_f32 {sr(sX0,2)}, s{sHi}, v{Oa[0]+8}""")
A.wait_lg('r0')
for i in range(4): A(f"v_add_f32 v{Oa[0]+i}, v{Oa[0]+i}, v{vR+i}")
A.wait_lg('r1')
for i in range(4,8): A(f"v_add_f32 v{Oa[0]+i}, v{Oa[0]+i}, v{vR+i}")
A(f"""s_or_b64 vcc, vcc, {sr(sX0,2)}
s_cmp_lg_u64 vcc, 0
s_cbranch_scc1 L_fallback""")
A.label("L_norm")
A(f"v_rcp_f32 v{vR+9}, v{Oa[0]+8}\ns_nop 0")
for i in range(8): A(f"v_mul_f32 v{Oa[0]+i}, v{Oa[0]+i}, v{vR+9}")
for i in range(4): A(f"v_cvt_pk_bf16_f32 v{vR+i}, v{Oa[0]+2*i}, v{Oa[0]+2*i+1}")
A.vmem(f"buffer_store_dwordx4 {vr(vR,4)}, v{vRa+4}, {sr(SRD_WS,4)}, s{sOst} offen sc1")
stamp(28,2)
VB=Alloc(vBig,168)
Of=[VB.take(4,4) for _ in range(8)]
Wf=[[VB.take(4,4) for _ in range(4)] for _ in range(6)]
Ac=[VB.take(4,4) for _ in range(4)]
vWA=[vx,vw,vt2,vt3]; vOo=vEQ0; vXw=vEK; vXr=vEV
wo_tr_addr(vx,vt0,vt1)
A(f"""s_lshr_b32 s{sU2}, s{sW}, 2
s_lshl_b32 s{sU0}, s{sU2}, 15
s_lshl_b32 s{sU1}, s{sU2}, 6
v_add_u32 v{vx}, s{sU0}, v{vx}
v_xor_b32 v{vx}, s{sU1}, v{vx}
v_xor_b32 v{vw}, 32, v{vx}
v_xor_b32 v{vt2}, 64, v{vx}
v_xor_b32 v{vt3}, 96, v{vx}""")
assert WOB==0
def wo_read(hp_, slotset):
    for c in range(4):
        A.lds(f"ds_read_b64_tr_b16 {vr(Wf[slotset][c],2)}, v{vWA[c]} offset:{hp_*4096}",('wo',hp_))
        A.lds(f"ds_read_b64_tr_b16 {vr(Wf[slotset][c]+2,2)}, v{vWA[c]} offset:{hp_*4096+1024}",('wo',hp_))
wo_read(0,0)
A(f"""v_and_b32 v{vFl}, 15, v0
v_lshlrev_b32 v{vOo}, 11, v{vFl}
v_lshlrev_b32 v{vFl}, 7, v{vFl}
v_lshrrev_b32 v{vt0}, 4, v0
v_lshl_add_u32 v{vOo}, v{vt0}, 3, v{vOo}
s_xor_b32 s{sU1}, s{sW}, 5
s_mul_i32 s{sU1}, s{sU1}, 2304
s_add_u32 s{sU1}, s{sU1}, {RED}
v_add_u32 v{vXr}, s{sU1}, v{vL16}""")
A.wait_lg_all(); wo_read(1,1)
A(f"v_mov_b32 v{vt0}, {LF}\nv_mov_b32 v{vt1}, 1")
A.wait_vm_all()
A("s_mov_b64 exec, 1")
A.lds(f"ds_add_rtn_u32 v{vP}, v{vt0}, v{vt1} offset:40",'cnt')
A("s_mov_b64 exec, -1")
A.wait_lg('cnt')
A(f"""v_readfirstlane_b32 s{sU0}, v{vP}
s_cmp_lg_u32 s{sU0}, 7
s_cbranch_scc1 L_nl1""")
flag_store(vN,vZ,sFOw)
if not OPT['pp']: poll_issue(vP,vFl,sFOr,0xff)
A.label("L_nl1")
stamp(25)
for i in range(2,6):
    A.wait_lg_all(); wo_read(i,i)
A.wait_lg_all()
A(f"s_cmp_lg_u32 s{sU0}, 7\ns_cbranch_scc1 L_nl2")
if OPT['pp']:
    A("s_mov_b64 exec, 0xff"); poll_pipe(Ac[0],vFl,sFOr,sCnt,sNon); A("s_mov_b64 exec, -1")
else: poll_check(vP,vFl,sFOr,sCnt,sNon,0xff)
A(f"ds_write_b32 v{vt0}, v{vt1} offset:36\ns_branch L_nl3")
A.label("L_nl2")
lds_word_spin(vP,vt0,36,sCnt,sU1)
A.label("L_nl3")
A.vm=[]
stamp(26)
for i in range(8):
    if i==4: A(f"s_add_u32 s{sOld}, s{sOld}, 4096")
    A.vmem(f"buffer_load_dwordx4 {vr(Of[i],4)}, v{vL16}, {sr(SRD_WS,4)}, s{sOld} offen offset:{(i%4)*1024} sc1",('of',i))
A.wait_lg_all()
for i in range(8):
    A.wait_vm(('of',i))
    if i>=6: A.wait_lg(('wo',i))
    for c in range(4):
        A(f"v_mfma_f32_16x16x32_bf16 {vr(Ac[c],4)}, {vr(Wf[i%6][c],4)}, {vr(Of[i],4)}, {'0' if i==0 else vr(Ac[c],4)}")
    if i<2:
        A.wait_lg_all(); wo_read(6+i,i)
A("s_nop 7")
A.lds(f"ds_write_b128 v{vXw}, {vr(Ac[2],4)}")
A.lds(f"ds_write_b128 v{vXw}, {vr(Ac[3],4)} offset:1024")
A.wait_lg_all()
A("s_barrier")
A.lds(f"ds_read_b128 {vr(Ac[2],4)}, v{vXr}",'x0')
A.lds(f"ds_read_b128 {vr(Ac[3],4)}, v{vXr} offset:1024",'x1')
for c in range(2):
    A.wait_lg(f'x{c}')
    for i in range(4): A(f"v_add_f32 v{Ac[c]+i}, v{Ac[c]+i}, v{Ac[2+c]+i}")
    A(f"v_cvt_pk_bf16_f32 v{Ac[c]}, v{Ac[c]}, v{Ac[c]+1}\nv_cvt_pk_bf16_f32 v{Ac[c]+1}, v{Ac[c]+2}, v{Ac[c]+3}")
    A.vmem(f"buffer_store_dwordx2 {vr(Ac[c],2)}, v{vOo}, {sr(SRD_OUT,4)}, s{sOut} offen offset:{c*32}")
stamp(27)
stamp_out(vt0)
A("s_endpgm")

A.label("L_fallback"); A.reset()
fC=Oa[1]; fM=vt0; fT=vt1; fS=Kf[0]
fK=Kf[4]; fV=Vf[0]
A(f"""s_lshl_b32 s{sU0}, s{sKH}, 11
s_sub_u32 s{sU2}, s{sKVb}, s{sU0}
s_mov_b32 s{sOff}, s{sU2}
s_mov_b32 s{sCnt}, 0
v_mov_b32 v{fM}, {NEGBIG:#x}""")
A.label("L_fb1")
A(f"""buffer_load_dwordx4 {vr(fK,4)}, v{vL16}, {sr(SRD_WS,4)}, s{sOff} offen sc1
s_waitcnt vmcnt(0)
v_mfma_f32_32x32x16_bf16 {vr(fS,16)}, {vr(fK,4)}, {vr(Qf[0],4)}, 0
s_add_u32 s{sOff}, s{sOff}, 2048
s_add_u32 s{sCnt}, s{sCnt}, 1
s_nop 11""")
for i in range(8): A(f"v_max3_f32 v{fM}, v{fM}, v{fS+2*i}, v{fS+2*i+1}")
A(f"""s_cmp_lt_u32 s{sCnt}, 64
s_cbranch_scc1 L_fb1
v_mov_b32 v{fT}, v{fM}
s_nop 1
v_permlane32_swap_b32 v{fM}, v{fT}
s_nop 1
v_max_f32 v{fM}, v{fM}, v{fT}""")
for i in range(16): A(f"v_sub_f32 v{fC+i}, 0, v{fM}")
for i in range(16): A(f"v_mov_b32 v{Oa[0]+i}, 0")
A(f"""s_mov_b32 s{sOff}, s{sU2}
s_mov_b32 s{sCnt}, 0""")
A.label("L_fb2")
A(f"""buffer_load_dwordx4 {vr(fK,4)}, v{vL16}, {sr(SRD_WS,4)}, s{sOff} offen sc1
s_mov_b64 exec, {sr(sVM,2)}
buffer_load_dwordx4 {vr(fV,4)}, v{vVo}, {sr(SRD_WS,4)}, s{sOff} offen offset:1024 sc1
buffer_load_dwordx4 {vr(fV+4,4)}, v{vVo}, {sr(SRD_WS,4)}, s{sOff} offen offset:1536 sc1
s_mov_b64 exec, -1
s_waitcnt vmcnt(0)
v_mfma_f32_32x32x16_bf16 {vr(fS,16)}, {vr(fK,4)}, {vr(Qf[0],4)}, {vr(fC,16)}
s_add_u32 s{sOff}, s{sOff}, 2048
s_add_u32 s{sCnt}, s{sCnt}, 1
s_nop 11""")
for i in range(16): A(f"v_exp_f32 v{fS+i}, v{fS+i}")
A(f"""s_nop 1
v_smfmac_f32_32x32x32_bf16 {vr(Oa[0],16)}, {vr(fV,4)}, {vr(fS,8)}, v{vIdx}
v_smfmac_f32_32x32x32_bf16 {vr(Oa[0],16)}, {vr(fV+4,4)}, {vr(fS+8,8)}, v{vIdx}
s_cmp_lt_u32 s{sCnt}, 64
s_cbranch_scc1 L_fb2
s_nop 15
s_branch L_norm""")

A.label("L_aux")
A.reset()
VX=Alloc(2,168)
xt0=VX.take(); xt1=VX.take(); xt2=VX.take(); xZ=VX.take(); xN=VX.take(2,2)
xL16=VX.take(); xVo=VX.take()
xBig=VX.mark()
va=[[VX.take() for _ in range(4)] for _ in range(2)]; vwa=[VX.take() for _ in range(2)]
vKpos=VX.take(); vV1=VX.take(); gDum=VX.take(); gLF=VX.take()
acc=[VX.take(16,4) for _ in range(6)]
xf=[[VX.take(4,4) for _ in range(2)] for _ in range(2)]
wf=[VX.take(4,4) for _ in range(4)]
xf.append([VX.take(4,4) for _ in range(2)])
sT=sA0; sC=sA0+1; sV0=sA0+2; sV1=sA0+3; sNx=sA0+4; sCx=sA0+6; sVMx=sA0+8; sV2=sA0+11; sV3=sA0+12
sB0=sA0+13; sB1=sA0+14; sB2=sA0+15; sHa=sA0+16; sHf=sA0+17; sTT=sA0+18; sRP=sA0+22; sJ=sA0+23; sG0=sA0+19; sG1=sA0+20
A(f"""s_setprio 3
s_sub_u32 s{sT}, s{sW}, 8
s_and_b32 s{sRP}, s{sT}, 1
s_lshr_b32 s{sJ}, s{sT}, 1
v_mov_b32 v{xZ}, 0
s_waitcnt lgkmcnt(0)""")
srd(SRD_WS,20,WS_BYTES); srd(SRD_DBG,18,256)
A(f"""s_add_u32 s{sV0}, s2, s{sT}
s_cmp_lg_u32 s{sV0}, 0
s_cbranch_scc1 L_nonon
s_mov_b32 s{sV0}, {WS_EPOCH}
s_mov_b64 exec, 1
buffer_load_dwordx2 {vr(xN,2)}, v{xZ}, {sr(SRD_WS,4)}, s{sV0} offen sc1
s_waitcnt vmcnt(0)
v_add_u32 v{xN}, 2, v{xN}
v_or_b32 v{xN}, 1, v{xN}
v_or_b32 v{xN+1}, 0x80000000, v{xN+1}
buffer_store_dwordx2 {vr(xN,2)}, v{xZ}, {sr(SRD_DBG,4)}, 0 offen sc1
buffer_store_dwordx2 {vr(xN,2)}, v{xZ}, {sr(SRD_WS,4)}, s{sV0} offen sc1
s_mov_b64 exec, -1""")
A.label("L_nonon")
stamp(0)
if OPT.get('pw',1):
    srd(SRD_M,14,524288); srd(SRD_XA,8,524288)
    A(f"""s_and_b32 s{sV0}, s2, 1
    s_add_u32 s{sV0}, s{sV0}, s{sT}
    s_cmp_lg_u32 s{sV0}, 0
    s_cbranch_scc1 L_npw
    s_lshl_b32 s{sV0}, s{sT1}, 14
    s_add_u32 s{sV0}, s{sV0}, 384
    v_lshlrev_b32 v{xt0}, 10, v0
    s_mov_b64 exec, 0xffff
    buffer_load_dword v{gDum}, v{xt0}, {sr(SRD_M,4)}, s{sV0} offen
    buffer_load_dword v{gDum}, v{xt0}, {sr(SRD_XA,4)}, s{sV0} offen
    s_mov_b64 exec, -1""")
    A.label("L_npw")
if OPT.get('pf',0):
    A(f"""s_cmp_eq_u32 s{sBR}, 0
    s_cselect_b32 s{SRD_X}, s10, s4
    s_cselect_b32 s{SRD_X+1}, s11, s5
    s_cselect_b32 s{SRD_W}, s12, s6
    s_cselect_b32 s{SRD_W+1}, s13, s7
    s_mov_b32 s{SRD_X+2}, 2097152
    s_mov_b32 s{SRD_X+3}, 0x00020000
    s_mov_b32 s{SRD_W+2}, 1572864
    s_mov_b32 s{SRD_W+3}, 0x00020000
    v_lshlrev_b32 v{xt0}, 7, v0
    v_lshrrev_b32 v{xt1}, 2, v0
    v_mul_u32_u24 v{xt1}, 3072, v{xt1}
    v_and_b32 v{xt2}, 3, v0
    v_lshl_add_u32 v{xt1}, v{xt2}, 7, v{xt1}""")
    if OPT['m']==2:
        A(f"""s_and_b32 s{sV0}, s{sR2}, 8
        s_lshl_b32 s{sV0}, s{sV0}, 17
        s_mov_b32 s{sV2}, s{sT1}
        s_mul_i32 s{sV1}, s{sV2}, 49152""")
    else:
        A(f"""s_lshr_b32 s{sV2}, s{sT1}, 3
        s_lshl_b32 s{sV2}, s{sV2}, 2
        s_and_b32 s{sV0}, s{sT1}, 3
        s_add_u32 s{sV2}, s{sV2}, s{sV0}
        s_and_b32 s{sV0}, s2, 6
        s_lshl_b32 s{sV0}, s{sV0}, 18
        s_mul_i32 s{sV1}, s{sV2}, 98304""")
    A(f"""s_lshl_b32 s{sV2}, s{sV2}, 15
    s_add_u32 s{sV0}, s{sV0}, s{sV2}
    s_lshl_b32 s{sV2}, s{sT}, 13
    s_add_u32 s{sV0}, s{sV0}, s{sV2}
    s_and_b32 s{sV2}, s2, 1
    s_lshl_b32 s{sV2}, s{sV2}, 9
    s_add_u32 s{sV1}, s{sV1}, s{sV2}
    s_lshl_b32 s{sV2}, s{sT}, 10
    s_add_u32 s{sV1}, s{sV1}, s{sV2}
    {"s_sleep "+str(OPT['pfd']) if OPT.get('pfd') else ""}
    buffer_load_dword v{gDum}, v{xt0}, {sr(SRD_X,4)}, s{sV0} offen
    s_cmp_eq_u32 s{sT}, 3
    s_cbranch_scc1 L_pfd
    buffer_load_dword v{gDum}, v{xt1}, {sr(SRD_W,4)}, s{sV1} offen""")
    if OPT['m']==1:
        A(f"s_add_u32 s{sV1}, s{sV1}, 49152\nbuffer_load_dword v{gDum}, v{xt1}, {sr(SRD_W,4)}, s{sV1} offen")
    A.label("L_pfd")
A(f"""v_mov_b32 v{gLF}, {LF}
v_lshl_add_u32 v{xt0}, v0, 2, v{gLF}
ds_write_b32 v{xt0}, v{xZ}
v_and_b32 v{xt0}, 31, v0
v_lshrrev_b32 v{xt1}, 5, v0
v_bfe_u32 v{xt2}, v0, 1, 3
v_xor_b32 v{xt2}, v{xt2}, v{xt1}
v_lshlrev_b32 v{xt2}, 4, v{xt2}
v_lshl_add_u32 v{xt2}, v{xt0}, 7, v{xt2}
s_lshl_b32 s{sV0}, s{sRP}, 13
s_add_u32 s{sV0}, s{sV0}, {LXO}
v_add_u32 v{va[0][0]}, s{sV0}, v{xt2}""")
for s in range(1,4): A(f"v_xor_b32 v{va[0][s]}, {32*s}, v{va[0][0]}")
for s in range(4): A(f"v_add_u32 v{va[1][s]}, {2*SL}, v{va[0][s]}")
A(f"""v_bfe_u32 v{xt2}, v0, 2, 2
v_lshl_add_u32 v{xt2}, v{xt1}, 3, v{xt2}
v_lshlrev_b32 v{xt2}, 7, v{xt2}
v_bfe_u32 v{vV1}, v0, 4, 1
v_lshl_add_u32 v{xt2}, v{vV1}, 5, v{xt2}
v_and_b32 v{vwa[0]}, 3, v0
v_lshl_add_u32 v{xt2}, v{vwa[0]}, 3, v{xt2}
v_bfe_u32 v{vwa[0]}, v0, 3, 1
v_lshl_add_u32 v{vwa[0]}, v{vwa[0]}, 6, v{xt2}
s_lshl_b32 s{sV0}, s{sJ}, 6
v_xor_b32 v{vwa[0]}, s{sV0}, v{vwa[0]}
v_add_u32 v{vwa[1]}, {2*SL}, v{vwa[0]}
v_and_b32 v{vKpos}, 0x33, v0
v_bfe_u32 v{xt2}, v0, 2, 1
v_lshl_add_u32 v{vKpos}, v{xt2}, 3, v{vKpos}
v_bfe_u32 v{xt2}, v0, 3, 1
v_lshl_add_u32 v{vKpos}, v{xt2}, 2, v{vKpos}
v_lshlrev_b32 v{vKpos}, 4, v{vKpos}
v_and_b32 v{xt2}, 15, v0
v_lshlrev_b32 v{xt2}, 4, v{xt2}
v_lshl_add_u32 v{xVo}, v{xt1}, 8, v{xt2}
v_lshlrev_b32 v{xL16}, 4, v0
s_mov_b32 s{sC}, {f2u(CSCALE):#x}
s_mov_b32 s{sVMx}, 0x0000ffff
s_mov_b32 s{sVMx+1}, 0x0000ffff
s_lshl_b32 s{sTT}, s{sR2}, 1
s_add_u32 s{sTT}, s{sTT}, s{sRP}
s_lshl_b32 s{sTT}, s{sTT}, 1
s_lshl_b32 s{sHf}, s{sHQ}, 4
s_add_u32 s{sHf}, s{sHf}, s{sR2}""")
if OPT['pfc']:
    A(f"s_getpc_b64 {sr(sNx,2)}")
    A.label("L_pc")
    A(f"""s_sub_u32 s{sNx}, s{sNx}, L_pc-{NAME}
    s_subb_u32 s{sNx+1}, s{sNx+1}, 0
    s_lshl_b32 s{sV0}, s{sT}, 13
    s_mov_b32 s{sV1}, L_codeend-{NAME}-4
    v_lshlrev_b32 v{xt2}, 7, v0
    v_add_u32 v{xt2}, s{sV0}, v{xt2}
    v_min_u32 v{xt2}, s{sV1}, v{xt2}""")
PARTS=(1,2,0)
def rd_x(n,r):
    if n>=32: return
    s,ks=divmod(n,4); slot=(s+1)%3
    A.lds(f"ds_read_b128 {vr(xf[n%2][r],4)}, v{va[slot//2][ks]} offset:{(slot%2)*SL+r*4096}", ('x',n,r))
def rd_w(n,c):
    if n>=32: return
    s,ks=divmod(n,4); slot=(s+1)%3; p=PARTS[c]
    o=(slot%2)*SL+p*8192+ks*2048
    A.lds(f"ds_read_b64_tr_b16 {vr(wf[c],2)}, v{vwa[slot//2]} offset:{o}", ('w',n,c))
    A.lds(f"ds_read_b64_tr_b16 {vr(wf[c]+2,2)}, v{vwa[slot//2]} offset:{o+512}", ('w',n,c))
QD=OPT.get('qd',20)
def g_step(n):
    s,ks=divmod(n,4)
    if ks==3 and s<7:
        A.wait_lg_all()
        A("s_barrier")
    for c in range(3 if n<QD else 2):
        for r in range(2):
            A.wait_lg([('x',n,r),('w',n,c)])
            a_=acc[2*c+r]; C="0" if n==0 else vr(a_,16)
            if c==1: A(f"v_mfma_f32_32x32x16_bf16 {vr(a_,16)}, {vr(xf[n%2][r],4)}, {vr(wf[c],4)}, {C}")
            else: A(f"v_mfma_f32_32x32x16_bf16 {vr(a_,16)}, {vr(wf[c],4)}, {vr(xf[n%2][r],4)}, {C}")
            if r==0 and c<2: rd_x(n+1,c)
            if r==1 and not (c==2 and n+1>=QD): rd_w(n+1,c)
    if n==22: A.vmem(f"buffer_load_dwordx2 {vr(xN,2)}, v{xZ}, {sr(SRD_DBG,4)}, 0 offen sc1",'non')
def q_rd(m):
    if m>=32: return
    s,ks=divmod(m,4); slot=(s+1)%3; b=(m+1)%3
    o=(slot%2)*SL+ks*2048
    W=(wf[2],wf[3],wf[0])[b]
    for r in range(2): A.lds(f"ds_read_b128 {vr(xf[(2,0,1)[b]][r],4)}, v{va[slot//2][ks]} offset:{(slot%2)*SL+r*4096}", ('qx',m,r))
    A.lds(f"ds_read_b64_tr_b16 {vr(W,2)}, v{vwa[slot//2]} offset:{o}", ('qw',m))
    A.lds(f"ds_read_b64_tr_b16 {vr(W+2,2)}, v{vwa[slot//2]} offset:{o+512}", ('qw',m))
def q_phase(fillers):
    q_rd(QD+1)
    per=4
    for m in range(QD,32):
        b=(m+1)%3; W=(wf[2],wf[3],wf[0])[b]
        A.wait_lg(('qw',m))
        for r in range(2):
            A(f"v_mfma_f32_32x32x16_bf16 {vr(acc[4+r],16)}, {vr(W,4)}, {vr(xf[(2,0,1)[b]][r],4)}, {vr(acc[4+r],16)}")
            if r==0: q_rd(m+2)
            for _ in range(per):
                if fillers: fillers.pop(0)()
    while fillers: fillers.pop(0)()
    A.wait_lg_all()
    A("s_barrier")
def I(l): return lambda: A(l)
def Vm(l): return lambda: A.vmem(l)
def packf(a): return [I(f"v_cvt_pk_bf16_f32 v{a+i}, v{a+2*i}, v{a+2*i+1}") for i in range(8)]
def pack16(dst, a, scale=False):
    if scale:
        for i in range(16): A(f"v_mul_f32 v{a+i}, s{sC}, v{a+i}")
    for i in range(8): A(f"v_cvt_pk_bf16_f32 v{dst+i}, v{a+2*i}, v{a+2*i+1}")
A.wait_lg_all()
A("s_barrier")
rd_x(0,0); rd_w(0,0); rd_x(0,1); rd_w(0,1); rd_w(0,2)
assert (QD+1)%3==0
for n in range(32):
    g_step(n)
    if n==30: q_rd(QD)
stamp(9)
SVL=list(A.lg); SVV=list(A.vm)
A(f"""s_cmp_lg_u32 s{sBR}, 0
s_cbranch_scc1 L_epa""")
A(f"""s_lshl_b32 s{sV0}, s{sTT}, 11
s_lshl_b32 s{sV1}, s{sJ}, 18
s_add_u32 s{sV0}, s{sV0}, s{sV1}
s_lshl_b32 s{sV1}, s{sHK}, 19
s_add_u32 s{sB0}, s{sV0}, s{sV1}
s_add_u32 s{sG0}, s{sB0}, 131072
s_lshl_b32 s{sV1}, s{sHV}, 19
s_add_u32 s{sB1}, s{sV0}, s{sV1}
s_lshr_b32 s{sB2}, s{sV0}, 1
s_lshl_b32 s{sV1}, s{sHQ}, 18
s_add_u32 s{sB2}, s{sB2}, s{sV1}
s_add_u32 s{sB2}, s{sB2}, {WS_Q}
s_add_u32 s{sG1}, s{sB2}, 65536
v_lshl_add_u32 v{xt0}, v{vV1}, 17, v{xVo}""")
F=[]
for r in range(2):
    K=acc[r]; F+=packf(K)
    F.append(Vm(f"buffer_store_dwordx4 {vr(K,4)}, v{vKpos}, {sr(SRD_WS,4)}, s{sB0} offen offset:{r*2048} sc1"))
    F.append(Vm(f"buffer_store_dwordx4 {vr(K+4,4)}, v{vKpos}, {sr(SRD_WS,4)}, s{sG0} offen offset:{r*2048} sc1"))
for r in range(2):
    V=acc[2+r]; F+=packf(V)
    F.append(Vm(f"buffer_store_dwordx4 {vr(V,4)}, v{xt0}, {sr(SRD_WS,4)}, s{sB1} offen offset:{r*2048+1024} sc1"))
    F.append(Vm(f"buffer_store_dwordx4 {vr(V+4,4)}, v{xt0}, {sr(SRD_WS,4)}, s{sB1} offen offset:{r*2048+1536} sc1"))
q_phase(F)
A("s_nop 9")
for r in range(2):
    Q=acc[4+r]; pack16(Q,Q,True)
    A.vmem(f"buffer_store_dwordx4 {vr(Q,4)}, v{xL16}, {sr(SRD_WS,4)}, s{sB2} offen offset:{r*1024} sc1")
    A.vmem(f"buffer_store_dwordx4 {vr(Q+4,4)}, v{xL16}, {sr(SRD_WS,4)}, s{sG1} offen offset:{r*1024} sc1")
stamp(10,2)
A.wait_vm('non')
nonce_check(xN,xZ,sNx,sCx,sV1)
A(f"""s_lshl_b32 s{sHf}, s{sHf}, 7
s_add_u32 s{sHf}, s{sHf}, {WS_FG}""")
A.wait_vm_all()
stamp(11,2)
A("s_barrier")
A(f"s_cmp_lg_u32 s{sT}, 0\ns_cbranch_scc1 L_wo")
flag_store(xN,xZ,sHf)
A("s_branch L_wo")
A.label("L_epa"); A.reset(); A.vm=list(SVV); A.lg=list(SVL)
A(f"""s_lshl_b32 s{sV0}, s{sRP}, 14
s_lshl_b32 s{sV1}, s{sJ}, 12
s_add_u32 s{sV2}, s{sV0}, s{sV1}
s_add_u32 s{sV0}, s{sV2}, {EAK+8192}
v_add_u32 v{xt1}, s{sV0}, v{vKpos}
v_lshl_add_u32 v{xt0}, v{vV1}, 11, v{xVo}
v_add_u32 v{xt2}, s{sV0}, v{xt0}
s_lshl_b32 s{sHa}, s{sHf}, 13
s_add_u32 s{sHa}, s{sHa}, {WS_HA}
s_add_u32 s{sV1}, s{sV1}, s{sHa}
s_lshl_b32 s{sHf}, s{sHf}, 1
s_add_u32 s{sHf}, s{sHf}, s{sJ}
s_lshl_b32 s{sHf}, s{sHf}, 7
s_add_u32 s{sHf}, s{sHf}, {WS_FH}""")
F=packf(acc[1])+packf(acc[3])
F.append(I(f"""s_cmp_lg_u32 s{sRP}, 1
s_cbranch_scc1 L_noha
buffer_store_dwordx4 {vr(acc[1],4)}, v{vKpos}, {sr(SRD_WS,4)}, s{sV1} offen sc1
buffer_store_dwordx4 {vr(acc[1]+4,4)}, v{vKpos}, {sr(SRD_WS,4)}, s{sV1} offen offset:2048 sc1
buffer_store_dwordx4 {vr(acc[3]+4,4)}, v{xt0}, {sr(SRD_WS,4)}, s{sV1} offen offset:1536 sc1
L_noha:"""))
F+=packf(acc[0])+packf(acc[2])
q_phase(F)
for r in range(2):
    A.lds(f"ds_write_b128 v{xt1}, {vr(acc[r],4)} offset:{r*8192}")
    A.lds(f"ds_write_b128 v{xt1}, {vr(acc[r]+4,4)} offset:{r*8192+2048}")
    A.lds(f"ds_write_b128 v{xt2}, {vr(acc[2+r],4)} offset:{r*8192+1024}")
    A.lds(f"ds_write_b128 v{xt2}, {vr(acc[2+r]+4,4)} offset:{r*8192+1536}")
A(f"s_lshr_b32 s{sV0}, s{sV2}, 1\ns_add_u32 s{sV0}, s{sV0}, {EAQ}\nv_add_u32 v{xt1}, s{sV0}, v{xL16}")
for r in range(2):
    pack16(acc[4+r],acc[4+r],True)
    for e in range(2): A.lds(f"ds_write_b128 v{xt1}, {vr(acc[4+r]+4*e,4)} offset:{r*4096+e*1024}")
A.wait_lg_all()
A("s_barrier")
Mk=acc[0]; Sc=acc[2]; Sp=acc[3]; Oc=acc[4]; T5=acc[5]
Qh=T5; Kc=T5+4; Kp=T5+8; dstp=T5+12; Vc=xf[0][0]; Vp=xf[1][0]; FL=wf[0]
vAQ=va[0][0]; vAK=va[0][1]; vAV=va[0][2]; vOf=va[0][3]; mx=va[1][0]; mt=va[1][1]; xIdx=va[1][2]; xOne=va[1][3]
A(f"""v_and_b32 v{xt0}, 31, v0
v_lshrrev_b32 v{xt1}, 5, v0
v_lshlrev_b32 v{xt1}, 3, v{xt1}
v_sub_u32 v{xt0}, v{xt0}, v{xt1}
v_add_u32 v{xt1}, 16, v{xt0}
v_mov_b32 v{xt2}, {NEGBIG:#x}
s_mov_b32 s{sV1}, 0xfffffff1""")
for r in range(24):
    src,c=(xt0,16*(r//8)+r%8) if r<16 else (xt1,r-16)
    A(f"v_subrev_u32 v{Mk+r}, {c}, v{src}")
    A(f"v_and_b32 v{Mk+r}, s{sV1}, v{Mk+r}")
for r in range(0,24,2):
    A(f"v_cmp_eq_u32 vcc, 0, v{Mk+r}")
    A(f"v_cmp_eq_u32 {sr(sG0+1,2)}, 0, v{Mk+r+1}")
    A("s_nop 0")
    A(f"v_cndmask_b32 v{Mk+r}, v{xt2}, 0, vcc")
    A(f"v_cndmask_b32 v{Mk+r+1}, v{xt2}, 0, {sr(sG0+1,2)}")
assert (sG0+1)%2==0
A(f"""s_lshl_b32 s{sV0}, s{sT}, 10
s_add_u32 s{sV0}, s{sV0}, {EAQ}
v_add_u32 v{vAQ}, s{sV0}, v{xL16}
s_lshl_b32 s{sV0}, s{sT}, 11
s_add_u32 s{sV1}, s{sV0}, {EAK}
v_add_u32 v{vAK}, s{sV1}, v{xL16}
v_add_u32 v{vAV}, s{sV1}, v{xVo}
v_and_b32 v{xt0}, 27, v0
v_cmp_eq_u32 vcc, 16, v{xt0}
v_mov_b32 v{xt1}, 0x3f803f80
v_lshl_add_u32 v{vOf}, v{vV1}, 14, v{xVo}
v_cndmask_b32 v{xt1}, 0, v{xt1}, vcc
v_mov_b32 v{xIdx}, 0xdddddddd
v_mov_b32 v{xOne}, 1
s_and_b32 s{sV1}, s{sT}, 1
s_lshl_b32 s{sV1}, s{sV1}, 9
v_add_u32 v{vOf}, s{sV1}, v{vOf}
s_lshl_b32 s{sV3}, s{sR2}, 7
s_lshl_b32 s{sV1}, s{sHQ}, 1
s_add_u32 s{sV3}, s{sV3}, s{sV1}
s_lshr_b32 s{sV1}, s{sT}, 1
s_add_u32 s{sV3}, s{sV3}, s{sV1}
s_lshl_b32 s{sV3}, s{sV3}, 10
s_add_u32 s{sV3}, s{sV3}, {WS_OFA}
s_add_u32 s{sHa}, s{sHa}, s{sV0}
s_sub_u32 s{sHa}, s{sHa}, 8192""")
for i in range(12): A(f"v_mov_b32 v{Vc+i}, v{xt1}")
A.wait_vm_all()
nonce_check(xN,xZ,sNx,sCx,sV1)
A(f"s_cmp_lg_u32 s{sRP}, 1\ns_cbranch_scc1 L_noha2")
flag_store(xN,xZ,sHf)
A.label("L_noha2")
A(f"s_sub_u32 s{sHf}, s{sHf}, 256")
stamp(18)
for it,T in enumerate((1,2,3,0)):
    A.lds(f"ds_read_b128 {vr(Qh,4)}, v{vAQ} offset:{T*4096}",'q')
    A.lds(f"ds_read_b128 {vr(Kc,4)}, v{vAK} offset:{(T+1)*8192}",'kc')
    if T: A.lds(f"ds_read_b128 {vr(Kp,4)}, v{vAK} offset:{T*8192}",'kp')
    A(f"s_mov_b64 exec, {sr(sVMx,2)}")
    A.lds(f"ds_read_b128 {vr(Vc,4)}, v{vAV} offset:{(T+1)*8192+1024}",'v')
    A.lds(f"ds_read_b128 {vr(Vc+4,4)}, v{vAV} offset:{(T+1)*8192+1536}",'v')
    if T: A.lds(f"ds_read_b128 {vr(Vp,4)}, v{vAV} offset:{T*8192+1536}",'v')
    A("s_mov_b64 exec, -1")
    if T==0:
        A.wait_lg_all()
        A(f"s_lshl_b32 s{sV0}, s{sT}, 2\nv_add_u32 v{xt0}, s{sV0}, v{gLF}")
        A.lds(f"ds_write_b32 v{xt0}, v{xOne}")
        A(f"s_cmp_eq_u32 s{sR2}, 0\ns_cbranch_scc1 L_first")
        poll_issue(FL,xZ,sHf,1)
        poll_check(FL,xZ,sHf,sCx,sNx,1,sleep=OPT['slp'])
        A(f"""buffer_load_dwordx4 {vr(Kp,4)}, v{xL16}, {sr(SRD_WS,4)}, s{sHa} offen sc1
        s_mov_b64 exec, {sr(sVMx,2)}
        buffer_load_dwordx4 {vr(Vp,4)}, v{xVo}, {sr(SRD_WS,4)}, s{sHa} offen offset:1536 sc1
        s_mov_b64 exec, -1
        s_waitcnt vmcnt(0)
        s_branch L_first2""")
        A.label("L_first")
        for i in range(8): A(f"v_mov_b32 v{Mk+16+i}, v{xt2}")
        A("s_nop 1")
        A.label("L_first2")
        A.vm=[]
    A.wait_lg('kc')
    A(f"v_mfma_f32_32x32x16_bf16 {vr(Sc,16)}, {vr(Kc,4)}, {vr(Qh,4)}, {vr(Mk,16)}")
    A.wait_lg('kp')
    A(f"v_mfma_f32_32x32x16_bf16 {vr(Sp,16)}, {vr(Kp,4)}, {vr(Qh,4)}, {vr(Mk+8,16)}")
    for i in range(9): A(f"v_mov_b32 v{Oc+i}, 0")
    A("s_nop 1")
    A(f"v_max_f32 v{mx}, v{Sc}, v{Sc+1}")
    for i in range(1,8): A(f"v_max3_f32 v{mx}, v{mx}, v{Sc+2*i}, v{Sc+2*i+1}")
    for i in range(4,8): A(f"v_max3_f32 v{mx}, v{mx}, v{Sp+2*i}, v{Sp+2*i+1}")
    A(f"""v_mov_b32 v{mt}, v{mx}
    s_nop 1
    v_permlane32_swap_b32 v{mx}, v{mt}
    s_nop 1
    v_max_f32 v{mx}, v{mx}, v{mt}""")
    regs=[Sp+8+i for i in range(8)]+[Sc+i for i in range(16)]
    for r in regs: A(f"v_sub_f32 v{r}, v{r}, v{mx}")
    A.wait_lg('v')
    for j,r in enumerate(regs):
        A(f"v_exp_f32 v{r}, v{r}")
        if j==9: A(f"v_smfmac_f32_32x32x32_bf16 {vr(Oc,16)}, {vr(Vp,4)}, {vr(Sp+8,8)}, v{xIdx}")
        if j==17: A(f"v_smfmac_f32_32x32x32_bf16 {vr(Oc,16)}, {vr(Vc,4)}, {vr(Sc,8)}, v{xIdx}")
    A("s_nop 1")
    A(f"v_smfmac_f32_32x32x32_bf16 {vr(Oc,16)}, {vr(Vc+4,4)}, {vr(Sc+8,8)}, v{xIdx}")
    A(f"s_add_u32 s{sV1}, s{sV3}, {T*32768}\ns_nop 10")
    A(f"v_rcp_f32 v{mt}, v{Oc+8}\ns_nop 0")
    for i in range(8): A(f"v_mul_f32 v{Oc+i}, v{Oc+i}, v{mt}")
    dst=dstp if it%2==0 else wf[3]
    for i in range(4): A(f"v_cvt_pk_bf16_f32 v{dst+i}, v{Oc+2*i}, v{Oc+2*i+1}")
    A.vmem(f"buffer_store_dwordx4 {vr(dst,4)}, v{vOf}, {sr(SRD_WS,4)}, s{sV1} offen sc1",'oa')
stamp(19)
A(f"""s_lshl_b32 s{sV1}, s{sR2}, 3
s_add_u32 s{sV1}, s{sV1}, s{sHQ}
s_lshl_b32 s{sV1}, s{sV1}, 7
s_add_u32 s{sV1}, s{sV1}, {WS_FOA}""")
A.wait_vm_all()
A("s_mov_b64 exec, 1")
A.lds(f"ds_add_rtn_u32 v{FL}, v{gLF}, v{xOne} offset:48")
A("s_mov_b64 exec, -1")
A.wait_lg_all()
A(f"v_readfirstlane_b32 s{sV0}, v{FL}\ns_cmp_lg_u32 s{sV0}, 3\ns_cbranch_scc1 L_nofa")
flag_store(xN,xZ,sV1)
A.label("L_nofa")
lds_flags_spin(FL,gLF,sCx,sV0)
A.label("L_wo"); A.reset(); A.vm=['x']
lds_word_spin(xt0,gLF,44,sCx,sV0)
A(f"""s_lshr_b32 s{sV0}, s{sRB}, 1
s_lshl_b32 s{sV0}, s{sV0}, 10
s_add_u32 s{sV0}, s{sV0}, {WS_FOA}""")
srd(SRD_M,14,524288); srd(SRD_XA,8,524288); srd(SRD_OUT,16,4194304)
A(f"""v_lshrrev_b32 v{xt0}, 3, v0
v_and_b32 v{xt1}, 6, v{xt0}
v_xor_b32 v{xt1}, v{xt1}, v0
v_and_b32 v{xt1}, 7, v{xt1}
v_lshlrev_b32 v{xt0}, 10, v{xt0}
v_lshl_add_u32 v{xt0}, v{xt1}, 4, v{xt0}
s_lshl_b32 s{sB0}, s{sT}, 17
s_lshl_b32 s{sB1}, s{sHQ}, 7
s_add_u32 s{sB1}, s{sB1}, s{sB0}
s_lshl_b32 s{sB2}, s{sT}, 14""")
def wo_dma(base, srd_):
    for j in range(16):
        A(f"s_add_u32 m0, s{sB2}, {base+j*1024}")
        A(f"s_add_u32 s{sG0}, s{sB1}, {j*8192}")
        A.vmem(f"buffer_load_dwordx4 v{xt0}, {sr(srd_,4)}, s{sG0} offen lds")
        if j%OPT.get('pg',2)==OPT.get('pg',2)-1 and len(A.vm)>OPT['pace']: A(f"s_waitcnt vmcnt({OPT['pace']})"); A.vm=A.vm[len(A.vm)-OPT['pace']:]
if OPT['ewo']: A(f"s_cmp_lg_u32 s{sT0}, 0\ns_cbranch_scc1 L_woa")
wo_dma(WOB,SRD_M)
A.label("L_woa")
wo_dma(WOA,SRD_XA)
VY=Alloc(xBig,168)
yFl=VY.take(); yP=VY.take(2,2); yWA=[VY.take() for _ in range(4)]; yOo=VY.take()
yO=[VY.take(4,4) for _ in range(16)]
yW=[[VY.take(4,4) for _ in range(4)] for _ in range(3)]
yA=[VY.take(4,4) for _ in range(4)]
A(f"""v_and_b32 v{yFl}, 15, v0
v_lshlrev_b32 v{yOo}, 11, v{yFl}
v_lshlrev_b32 v{yFl}, 7, v{yFl}
v_lshrrev_b32 v{xt0}, 4, v0
v_lshl_add_u32 v{yOo}, v{xt0}, 3, v{yOo}""")
poll_issue(yP,yFl,sV0,0xff)
poll_check(yP,yFl,sV0,sCx,sNx,0xff,sleep=OPT['slp'])
stamp(20)
A(f"""s_lshl_b32 s{sV2}, s{sRB}, 2
s_add_u32 s{sV2}, s{sV2}, s{sT}
s_lshl_b32 s{sB0}, s{sV2}, 14
s_add_u32 s{sB0}, s{sB0}, {WS_OFA}""")
for i in range(16 if not OPT.get('nowo') else 0):
    if i and i%4==0: A(f"s_add_u32 s{sB0}, s{sB0}, 4096")
    A.vmem(f"buffer_load_dwordx4 {vr(yO[i],4)}, v{xL16}, {sr(SRD_WS,4)}, s{sB0} offen offset:{(i%4)*1024} sc1")
    if OPT['pace']<60 and i%2==1 and len(A.vm)>OPT['pace']: A(f"s_waitcnt vmcnt({OPT['pace']})"); A.vm=A.vm[-OPT['pace']:]
wo_tr_addr(yWA[0],xt0,xt1)
A(f"""v_add_u32 v{yWA[0]}, {WOA}, v{yWA[0]}
v_xor_b32 v{yWA[1]}, 32, v{yWA[0]}
v_xor_b32 v{yWA[2]}, 64, v{yWA[0]}
v_xor_b32 v{yWA[3]}, 96, v{yWA[0]}
s_lshl_b32 s{sB0}, s{sV2}, 15
s_lshl_b32 s{sB1}, s{sHQ}, 7
s_add_u32 s{sB0}, s{sB0}, s{sB1}""")
A.wait_vm_all()
stamp(21)
A("s_setprio 0")
A("s_barrier")
def woa_read(hp_,c):
    if hp_>=16: return
    b=hp_%3
    A.lds(f"ds_read_b64_tr_b16 {vr(yW[b][c],2)}, v{yWA[c]} offset:{hp_*4096}",('wa',hp_,c))
    A.lds(f"ds_read_b64_tr_b16 {vr(yW[b][c]+2,2)}, v{yWA[c]} offset:{hp_*4096+1024}",('wa',hp_,c))
for c in range(4): woa_read(0,c)
for c in range(2): woa_read(1,c)
for i in range(16):
    for c in range(4):
        A.wait_lg(('wa',i,c))
        A(f"v_mfma_f32_16x16x32_bf16 {vr(yA[c],4)}, {vr(yW[i%3][c],4)}, {vr(yO[i],4)}, {'0' if i==0 else vr(yA[c],4)}")
        woa_read(i+1+(c+2)//4,(c+2)%4)
A("s_nop 7")
for c in range(4):
    acc=yA[c]
    A(f"v_cvt_pk_bf16_f32 v{acc}, v{acc}, v{acc+1}\nv_cvt_pk_bf16_f32 v{acc+1}, v{acc+2}, v{acc+3}")
    A.vmem(f"buffer_store_dwordx2 {vr(acc,2)}, v{yOo}, {sr(SRD_OUT,4)}, s{sB0} offen offset:{c*32}")
stamp(22)
stamp_out(yFl)
A.label("L_end")
A("s_endpgm")
A.label("L_codeend")

errs=check(A.lines)
for e in errs[:25]: print("CHECK:",e, file=sys.stderr)
hdr=open('concat_heads__sliding_local_dilated__softmax_full_mha__prompt.s.ref').read().split('; Override')[0]
nv=168
out=hdr+f"""; @launch grid=(256,1,1) block=(768,1,1) lds={LDS_BYTES}
.amdgcn_target "amdgcn-amd-amdhsa--gfx950"
.text
.globl {NAME}
.p2align 8
.type {NAME},@function
"""+A.text()+f""".section .rodata,"a"
.p2align 6
.amdhsa_kernel {NAME}
  .amdhsa_next_free_vgpr {nv}
  .amdhsa_next_free_sgpr 102
  .amdhsa_accum_offset {nv}
  .amdhsa_group_segment_fixed_size 0
  .amdhsa_kernarg_size 72
  .amdhsa_user_sgpr_count 2
  .amdhsa_user_sgpr_kernarg_segment_ptr 1
  .amdhsa_system_sgpr_workgroup_id_x 1
.end_amdhsa_kernel
"""
open(sys.argv[1],'w').write(out)
print("vgpr att",VA.hi,VB.hi,"aux",VX.hi,VY.hi,"lines",len(A.lines),"errs",len(errs))
```

```python
import sys, math, struct
from asmlib import *
NAME="concat_heads__sliding_local_dilated__softmax_full_mha__prompt_kernel"
OPT=dict(pace=1, stamp=0, pfc=0, ewo=1, pp=1, m=2, rel=6, slp=2)
for a in sys.argv[2:]:
    k,v=a.split('='); OPT[k]=int(v) if v.lstrip('-').isdigit() else v

SL=40960; LXO=24576; EAQ=65536; EAK=81920-8192; RED=131072; LF=155648
WOB=0; WOA=65536
LDS_BYTES=163840
WS_KV=0; WS_OFB=4<<20; WS_OFA=6<<20; WS_Q=10<<20; WS_HA=12<<20
FGS=OPT.get('fgs',7); WS_FG=(8<<20)+OPT.get('fgo',0); WS_FOB=(8<<20)+262144+OPT.get('fbo',0); WS_EPOCH=(8<<20)+65536; WS_FOA=(8<<20)+131072; WS_FH=(8<<20)+163840
WS_STAMP=30<<20
WS_BYTES=32<<20
CSCALE=0.25*math.log2(math.e)
def f2u(x): return struct.unpack('<I',struct.pack('<f',x))[0]
NEGBIG=f2u(-1e30)
SPIN=30000

A=Asm()
sW=22; sHQ=23; sRB=24; sSG=25; sBR=26; sR2=27
SRD_X=28; SRD_W=32; SRD_XA=36; sHK=40; sHV=41; sT0=42; sT1=43; SRD_WS=44; SRD_DBG=48; SRD_M=52; SRD_OUT=56
sA0=60

def srd(base, ptr, nbytes):
    A(f"""s_mov_b32 s{base}, s{ptr}
    s_mov_b32 s{base+1}, s{ptr+1}
    s_mov_b32 s{base+2}, {nbytes}
    s_mov_b32 s{base+3}, 0x00020000""")
vSt=1
def stamp(idx, lvl=1):
    if OPT.get('amp')==idx:
        A("s_memrealtime s[94:95]\ns_waitcnt lgkmcnt(0)"); A.lg=[]
    if OPT['stamp']<lvl: return
    if 'only' in OPT and idx not in [int(x) for x in str(OPT['only']).split(',')]: return
    A(f"""s_memrealtime s[96:97]
    s_memtime s[98:99]
    s_waitcnt lgkmcnt(0)
    v_writelane_b32 v{vSt}, s96, {idx}
    v_writelane_b32 v{vSt}, s98, {idx+32}""")
    A.lg=[]
def stamp_out(vtmp):
    if not OPT['stamp']: return
    A(f"""v_writelane_b32 v{vSt}, s100, 31
    s_mul_i32 s96, s2, 12
    s_add_u32 s96, s96, s{sW}
    s_lshl_b32 s96, s96, 8
    s_add_u32 s96, s96, {WS_STAMP}
    v_lshlrev_b32 v{vtmp}, 2, v0
    buffer_store_dword v{vSt}, v{vtmp}, {sr(SRD_WS,4)}, s96 offen""")
def poll_issue(vdst, voff, soff, mask=-1):
    if mask!=-1: A(f"s_mov_b64 exec, {mask:#x}")
    A.vmem(f"buffer_load_dwordx2 {vr(vdst,2)}, v{voff}, {sr(SRD_WS,4)}, s{soff} offen sc1",'poll')
    if mask!=-1: A("s_mov_b64 exec, -1")
def poll_check(vdst, voff, soff, scnt, snon, mask=-1, sleep=0, keep=0):
    L=A.newlabel('L_poll'); Ld=A.newlabel('L_polld'); Lc=A.newlabel('L_pollc')
    A(f"s_mov_b32 s{scnt}, 0")
    if mask!=-1: A(f"s_mov_b64 exec, {mask:#x}")
    A.wait_vm('poll')
    A(f"s_branch {Lc}")
    A.label(L)
    if sleep: A(f"s_sleep {sleep}")
    A(f"""buffer_load_dwordx2 {vr(vdst,2)}, v{voff}, {sr(SRD_WS,4)}, s{soff} offen sc1
    s_waitcnt vmcnt(0)""")
    A.label(Lc)
    A(f"""v_cmp_eq_u64 vcc, {sr(snon,2)}, {vr(vdst,2)}
    s_add_u32 s{scnt}, s{scnt}, 1
    s_cmp_eq_u64 vcc, exec
    s_cbranch_scc1 {Ld}
    s_cmp_le_u32 s{scnt}, {SPIN}
    s_cbranch_scc1 {L}""")
    A.label(Ld)
    if mask!=-1: A("s_mov_b64 exec, -1")
def poll_pipe(vd, voff, soff, scnt, snon, gap=2):
    L=A.newlabel('L_pp'); Ld=A.newlabel('L_ppd')
    ld=lambda k: A(f"buffer_load_dwordx2 {vr(vd+2*k,2)}, v{voff}, {sr(SRD_WS,4)}, s{soff} offen sc1")
    A(f"s_mov_b32 s{scnt}, 0")
    for k in range(3):
        ld(k)
        if k<2: A(f"s_sleep {gap}")
    A.label(L)
    for k in range(3):
        A(f"""s_waitcnt vmcnt(2)
        v_cmp_eq_u64 vcc, {sr(snon,2)}, {vr(vd+2*k,2)}
        s_cmp_eq_u64 vcc, exec
        s_cbranch_scc1 {Ld}""")
        ld(k)
    A(f"""s_add_u32 s{scnt}, s{scnt}, 1
    s_cmp_le_u32 s{scnt}, {SPIN}
    s_cbranch_scc1 {L}""")
    A.label(Ld)
def lds_word_spin(vF, vAddr, off, scnt, stmp):
    L=A.newlabel('L_ws'); Ld=A.newlabel('L_wsd')
    A(f"s_mov_b32 s{scnt}, 0")
    A.label(L)
    A(f"""ds_read_b32 v{vF}, v{vAddr} offset:{off}
    s_add_u32 s{scnt}, s{scnt}, 1
    s_waitcnt lgkmcnt(0)
    v_readfirstlane_b32 s{stmp}, v{vF}
    s_cmp_gt_u32 s{scnt}, {SPIN*8}
    s_cbranch_scc1 {Ld}
    s_cmp_eq_u32 s{stmp}, 0
    s_cbranch_scc1 {L}""")
    A.label(Ld)
    A.lg=[]
def nonce_check(vN, vZ, snon, scnt, stmp):
    L=A.newlabel('L_non'); Ld=A.newlabel('L_nond')
    A(f"s_mov_b32 s{scnt}, 0")
    A.label(L)
    A(f"""v_readfirstlane_b32 s{snon}, v{vN}
    v_readfirstlane_b32 s{snon+1}, v{vN+1}
    s_add_u32 s{scnt}, s{scnt}, 1
    s_cmp_gt_u32 s{scnt}, {SPIN}
    s_cbranch_scc1 {Ld}
    s_cmp_eq_u32 s{snon}, 0
    s_cselect_b32 s{stmp}, 0, s{snon+1}
    s_cmp_lg_u32 s{stmp}, 0
    s_cbranch_scc1 {Ld}
    buffer_load_dwordx2 {vr(vN,2)}, v{vZ}, {sr(SRD_DBG,4)}, 0 offen sc1
    s_waitcnt vmcnt(0)
    s_branch {L}""")
    A.label(Ld)
def flag_store(vN, vZ, soff):
    A("s_mov_b64 exec, 1")
    A.vmem(f"buffer_store_dwordx2 {vr(vN,2)}, v{vZ}, {sr(SRD_WS,4)}, s{soff} offen sc1",'flag')
    A("s_mov_b64 exec, -1")
def lds_flags_spin(vF, vAddr, scnt, stmp, issued=False):
    L=A.newlabel('L_xs'); Ld=A.newlabel('L_xsd'); Lc=A.newlabel('L_xsc')
    A(f"s_mov_b32 s{scnt}, 0")
    if issued: A(f"s_branch {Lc}")
    A.label(L)
    A(f"ds_read_b128 {vr(vF,4)}, v{vAddr}")
    A.label(Lc)
    A(f"""s_add_u32 s{scnt}, s{scnt}, 1
    s_waitcnt lgkmcnt(0)
    v_and_b32 v{vF}, v{vF}, v{vF+1}
    v_and_b32 v{vF+2}, v{vF+2}, v{vF+3}
    v_and_b32 v{vF}, v{vF}, v{vF+2}
    s_cmp_gt_u32 s{scnt}, {SPIN*4}
    v_readfirstlane_b32 s{stmp}, v{vF}
    s_cbranch_scc1 {Ld}
    s_cmp_eq_u32 s{stmp}, 0
    s_cbranch_scc1 {L}""")
    A.label(Ld)
    A.lg=[]
def wo_tr_addr(dst, t0, t1):
    A(f"""v_lshrrev_b32 v{t0}, 2, v0
    v_and_b32 v{t0}, 7, v{t0}
    v_lshrrev_b32 v{t1}, 5, v0
    v_lshl_add_u32 v{t1}, v{t1}, 4, v{t0}
    v_lshlrev_b32 v{t1}, 7, v{t1}
    v_and_b32 v{t0}, 6, v{t0}
    v_bfe_u32 v{dst}, v0, 1, 1
    v_xor_b32 v{t0}, v{t0}, v{dst}
    v_lshl_add_u32 v{t1}, v{t0}, 4, v{t1}
    v_and_b32 v{t0}, 1, v0
    v_lshl_add_u32 v{dst}, v{t0}, 3, v{t1}""")

A.label(NAME)
if OPT['stamp'] or 'amp' in OPT: A("s_memrealtime s[100:101]")
A(f"""s_cmp_ge_u32 s2, 256
s_cbranch_scc1 L_end
s_load_dwordx16 s[4:19], s[0:1], 0
s_load_dwordx2 s[20:21], s[0:1], 64
v_lshrrev_b32 v1, 6, v0
v_and_b32 v0, 63, v0
s_lshr_b32 s{sT1}, s2, 3
v_readfirstlane_b32 s{sW}, v1
s_and_b32 s{sHQ}, s2, 1
s_lshl_b32 s{sHQ}, s{sHQ}, 2
s_and_b32 s{sT0}, s{sT1}, 3
s_add_u32 s{sHQ}, s{sHQ}, s{sT0}
s_and_b32 s{sRB}, s2, 6
s_lshl_b32 s{sRB}, s{sRB}, 2
s_lshr_b32 s{sT0}, s{sT1}, 2
s_add_u32 s{sRB}, s{sRB}, s{sT0}""")
if OPT['m']==2: A(f"s_lshr_b32 s{sBR}, s{sRB}, 4\ns_and_b32 s{sR2}, s{sRB}, 15")
else: A(f"s_and_b32 s{sBR}, s{sRB}, 1\ns_lshr_b32 s{sR2}, s{sRB}, 1")
A({1:f"s_lshl_b32 s{sSG}, s{sHQ}, 1\ns_add_u32 s{sSG}, s{sSG}, s{sR2}", 2:f"s_mov_b32 s{sSG}, s{sR2}", 3:f"s_and_b32 s{sSG}, s{sR2}, 3",
   4:f"s_and_b32 s{sSG}, s{sR2}, 1\ns_lshl_b32 s{sSG}, s{sSG}, 2", 5:f"s_and_b32 s{sSG}, s{sR2}, 3\ns_lshl_b32 s{sSG}, s{sSG}, 1", 6:f"s_and_b32 s{sSG}, s{sR2}, 1"}[OPT.get('rot',1)])
A(f"""s_and_b32 s{sT0}, s{sHQ}, 4
s_cmp_eq_u32 s{sBR}, 0
s_cselect_b32 s{sHK}, 1, 0
s_cselect_b32 s{sHV}, 2, 0
s_add_u32 s{sHK}, s{sHK}, s{sHQ}
s_and_b32 s{sHK}, s{sHK}, 3
s_or_b32 s{sHK}, s{sHK}, s{sT0}
s_add_u32 s{sHV}, s{sHV}, s{sHQ}
s_and_b32 s{sHV}, s{sHV}, 3
s_or_b32 s{sHV}, s{sHV}, s{sT0}
s_cmp_lg_u32 s{sHQ}, 3
s_cselect_b32 s{sT0}, s{sBR}, 0
s_cmp_ge_u32 s{sW}, 8
s_cbranch_scc1 L_aux""")

VA=Alloc(2,168)
vx=VA.take(); vw=VA.take(); vt0=VA.take(); vt1=VA.take(); vt2=VA.take(); vt3=VA.take()
vL16=VA.take(); vVo=VA.take(); vIdx=VA.take(); vFl=VA.take(); vP=VA.take(2,2); vN=VA.take(2,2); vZ=VA.take()
vEQ0=VA.take(); vEK=VA.take(); vEV=VA.take(); vx1=vEQ0; vLF=vt3
ND=6
vBig=VA.mark()
Qf=[VA.take(4,4) for _ in range(2)]
Sb=[VA.take(16,4) for _ in range(2)]
Oa=[VA.take(16,4) for _ in range(2)]
Kf=[VA.take(4,4) for _ in range(ND)]
Vf=[VA.take(8,4) for _ in range(ND)]
sXoff=sA0; sM0=sA0+1; sWoff=sA0+2; sFOr=sA0+3; sOld=sA0+4; sOut=sA0+5; sOst=sA0+6; sFOw=sA0+7
sU0=sA0+8; sU1=sA0+9; sU2=sA0+10
sE=sA0+11; sKH=sA0+12; sM2=sA0+13; sKVb=sA0+14; sOff=sA0+15; sNon=sA0+16; sVM=sA0+18; sCnt=sA0+20; sBlk=sA0+21
sFGr=sA0+22; sQ0=sA0+23; sQ1=sA0+24; sLo=sA0+25; sHi=sA0+26; sX0=sA0+28
sF0=sA0+30; sF1=sA0+31; sF2=sA0+32; sWoffK=sA0+33; sWoffV=sA0+34
A(f"""v_lshrrev_b32 v{vt0}, 3, v0
v_mul_u32_u24 v{vw}, 3072, v{vt0}
v_lshlrev_b32 v{vt0}, 10, v{vt0}
v_lshrrev_b32 v{vt1}, 2, v0
v_and_b32 v{vt1}, 4, v{vt1}
v_xor_b32 v{vt1}, v{vt1}, v0
v_and_b32 v{vt1}, 7, v{vt1}
v_lshl_add_u32 v{vw}, v{vt1}, 4, v{vw}
v_lshrrev_b32 v{vt1}, 4, v0
v_xor_b32 v{vt1}, v{vt1}, v0
v_and_b32 v{vt1}, 7, v{vt1}
v_lshl_add_u32 v{vx}, v{vt1}, 4, v{vt0}
v_xor_b32 v{vx1}, 64, v{vx}
v_add_u32 v{vx1}, 8192, v{vx1}
s_lshl_b32 s{sXoff}, s{sR2}, 17
s_lshl_b32 s{sU0}, s{sW}, 14
s_add_u32 s{sXoff}, s{sXoff}, s{sU0}
s_lshl_b32 s{sM0}, s{sW}, 10
s_lshl_b32 s{sM2}, s{sW}, 11
s_mul_i32 s{sWoff}, s{sW}, 24576
s_lshl_b32 s{sU0}, s{sHK}, 7
s_add_u32 s{sWoffK}, s{sWoff}, s{sU0}
s_lshl_b32 s{sU0}, s{sHV}, 7
s_add_u32 s{sWoffV}, s{sWoff}, s{sU0}
s_lshl_b32 s{sU0}, s{sHQ}, 7
s_add_u32 s{sWoff}, s{sWoff}, s{sU0}
s_mov_b32 s{SRD_X+2}, 2097152
s_mov_b32 s{SRD_X+3}, 0x00020000
s_mov_b32 s{SRD_W+2}, 1572864
s_mov_b32 s{SRD_W+3}, 0x00020000
s_cmp_eq_u32 s{sBR}, 0
s_waitcnt lgkmcnt(0)
s_cselect_b32 s{SRD_X}, s10, s4
s_cselect_b32 s{SRD_X+1}, s11, s5
s_cselect_b32 s{SRD_W}, s12, s6
s_cselect_b32 s{SRD_W+1}, s13, s7""")
def issue_stage(s):
    slot=(s+1)%3
    A(f"""s_add_u32 s{sU0}, s{sSG}, {s}
    s_and_b32 s{sU0}, s{sU0}, 7
    s_mul_i32 s{sU1}, s{sU0}, 196608
    s_lshl_b32 s{sU0}, s{sU0}, 7
    s_add_u32 m0, s{sM2}, {slot*SL+LXO}
    s_add_u32 s{sU0}, s{sU0}, s{sXoff}""")
    A.vmem(f"buffer_load_dwordx4 v{vx}, {sr(SRD_X,4)}, s{sU0} offen lds", s)
    for p in (1,2,0):
        A(f"s_add_u32 m0, s{sM0}, {slot*SL+p*7168}")
        A(f"s_add_u32 s{sU2}, s{sU1}, s{(sWoff,sWoffK,sWoffV)[p]}")
        A.vmem(f"buffer_load_dwordx4 v{vw}, {sr(SRD_W,4)}, s{sU2} offen offset:{p*1024} lds", s)
        if p==1:
            A(f"s_add_u32 m0, s{sM2}, {slot*SL+LXO+1024}\ns_nop 0")
            A.vmem(f"buffer_load_dwordx4 v{vx1}, {sr(SRD_X,4)}, s{sU0} offen lds", s)
class Cap:
    def __enter__(self): self.n=len(A.lines); return self
    def __exit__(self,*a): self.l=A.lines[self.n:]; del A.lines[self.n:]
def att_setup():
    srd(SRD_DBG,18,256)
    A(f"""v_mov_b32 v{vZ}, 0
    s_lshr_b32 s{sE}, s{sW}, 1
    s_and_b32 s{sKH}, s{sW}, 1
    s_lshl_b32 s{sF1}, s{sHQ}, 2
    s_add_u32 s{sF1}, s{sF1}, s{sE}
    s_lshl_b32 s{sKVb}, s{sF1}, 17
    s_lshl_b32 s{sF0}, s{sKH}, 11
    s_add_u32 s{sKVb}, s{sKVb}, s{sF0}
    s_lshl_b32 s{sQ0}, s{sF1}, 6
    s_lshl_b32 s{sF0}, s{sRB}, 1
    s_add_u32 s{sQ0}, s{sQ0}, s{sF0}
    s_add_u32 s{sQ0}, s{sQ0}, s{sKH}
    s_lshl_b32 s{sQ0}, s{sQ0}, 10
    s_add_u32 s{sQ0}, s{sQ0}, {WS_Q}
    s_xor_b32 s{sQ1}, s{sQ0}, 1024
    s_mov_b32 s{sVM}, 0x0000ffff
    s_mov_b32 s{sVM+1}, 0x0000ffff
    v_lshlrev_b32 v{vL16}, 4, v0
    v_and_b32 v{vt0}, 15, v0
    v_lshlrev_b32 v{vt1}, 4, v{vt0}
    v_lshrrev_b32 v{vt2}, 5, v0
    v_lshl_add_u32 v{vVo}, v{vt2}, 8, v{vt1}
    v_mov_b32 v{vIdx}, 0xdddddddd
    s_and_b32 s{sF2}, s{sHQ}, 4
    s_sub_u32 s{sF0}, s{sHQ}, 1
    s_and_b32 s{sF0}, s{sF0}, 3
    s_or_b32 s{sF0}, s{sF0}, s{sF2}
    s_lshl_b32 s{sF0}, s{sF0}, 11
    s_sub_u32 s{sF1}, s{sHQ}, 2
    s_and_b32 s{sF1}, s{sF1}, 3
    s_or_b32 s{sF1}, s{sF1}, s{sF2}
    s_lshl_b32 s{sF1}, s{sF1}, 11
    v_mov_b32 v{vt1}, s{sF0}
    v_mov_b32 v{vt2}, s{sF1}
    v_cmp_gt_u32 vcc, 16, v0
    s_lshl_b32 s{sF0}, s{sHQ}, 4
    s_lshr_b32 s{sF1}, s{sRB}, 1
    v_cndmask_b32 v{vt1}, v{vt2}, v{vt1}, vcc
    v_lshl_add_u32 v{vFl}, v{vt0}, 7, v{vt1}
    s_add_u32 s{sF0}, s{sF0}, s{sF1}
    s_lshl_b32 s{sF0}, s{sF0}, 7
    s_mov_b32 s{sFGr}, {WS_FG}
    v_writelane_b32 v{vFl}, s{sF0}, 32
    v_mov_b32 v{vLF}, {LF}
    v_and_b32 v{vt0}, 27, v0
    v_cmp_eq_u32 vcc, 16, v{vt0}
    v_mov_b32 v{vt1}, 0x3f803f80
    s_nop 0
    v_cndmask_b32 v{vt1}, 0, v{vt1}, vcc""")
    for d in range(ND):
        for i in range(8): A(f"v_mov_b32 v{Vf[d]+i}, v{vt1}")
    for d in range(2):
        for i in range(16): A(f"v_mov_b32 v{Oa[d]+i}, 0")
    A(f"""s_lshl_b32 s{sF0}, s{sRB}, 1
    s_add_u32 s{sF0}, s{sF0}, s{sKH}
    s_lshl_b32 s{sOst}, s{sF0}, 5
    s_lshl_b32 s{sF1}, s{sHQ}, 1
    s_add_u32 s{sOst}, s{sOst}, s{sF1}
    s_lshr_b32 s{sF1}, s{sE}, 1
    s_add_u32 s{sOst}, s{sOst}, s{sF1}
    s_lshl_b32 s{sOst}, s{sOst}, 10
    s_add_u32 s{sOst}, s{sOst}, {WS_OFB}
    s_lshl_b32 s{sFOr}, s{sRB}, 10
    s_add_u32 s{sFOr}, s{sFOr}, {WS_FOB}
    s_lshl_b32 s{sFOw}, s{sHQ}, 7
    s_add_u32 s{sFOw}, s{sFOw}, s{sFOr}
    s_and_b32 s{sF0}, s{sW}, 3
    s_lshl_b32 s{sF1}, s{sRB}, 2
    s_add_u32 s{sF1}, s{sF1}, s{sF0}
    s_lshr_b32 s{sF2}, s{sW}, 2
    s_lshl_b32 s{sOld}, s{sF1}, 1
    s_add_u32 s{sOld}, s{sOld}, s{sF2}
    s_lshl_b32 s{sOld}, s{sOld}, 13
    s_add_u32 s{sOld}, s{sOld}, {WS_OFB}
    s_lshl_b32 s{sOut}, s{sF1}, 15
    s_lshl_b32 s{sF0}, s{sHQ}, 7
    s_add_u32 s{sOut}, s{sOut}, s{sF0}
    s_lshl_b32 s{sF0}, s{sF2}, 6
    s_add_u32 s{sOut}, s{sOut}, s{sF0}
    s_add_u32 s{sOut}, s{sOut}, 1024
    s_mov_b32 s{sLo}, {f2u(2.0**-64):#x}
    s_mov_b32 s{sHi}, {f2u(2.0**64):#x}""")
    srd(SRD_OUT,16,4194304)
with Cap() as c1: att_setup()
FILL=c1.l
def fill(q,n):
    k=min(n,len(q))
    while k<len(q) and any(x.startswith('v_cmp') for x in q[max(0,k-3):k]): k+=1
    for l in q[:k]: A(l)
    del q[:k]
def kv_load(i):
    if OPT.get('nokv'): return
    d=i%ND
    A(f"""s_add_u32 s{sBlk}, s{sRB}, {i}
    s_and_b32 s{sBlk}, s{sBlk}, 31
    s_lshl_b32 s{sBlk}, s{sBlk}, 12
    s_add_u32 s{sOff}, s{sBlk}, s{sKVb}""")
    A.vmem(f"buffer_load_dwordx4 {vr(Kf[d],4)}, v{vL16}, {sr(SRD_WS,4)}, s{sOff} offen sc1",('kv',i))
    A(f"s_mov_b64 exec, {sr(sVM,2)}")
    A.vmem(f"buffer_load_dwordx4 {vr(Vf[d],4)}, v{vVo}, {sr(SRD_WS,4)}, s{sOff} offen offset:1024 sc1",('kv',i))
    A.vmem(f"buffer_load_dwordx4 {vr(Vf[d]+4,4)}, v{vVo}, {sr(SRD_WS,4)}, s{sOff} offen offset:1536 sc1",('kv',i))
    A("s_mov_b64 exec, -1")
def QK(u): A(f"v_mfma_f32_32x32x16_bf16 {vr(Sb[u%2],16)}, {vr(Kf[(u//2)%ND],4)}, {vr(Qf[u%2],4)}, 0")
def PV(u,t): A(f"v_smfmac_f32_32x32x32_bf16 {vr(Oa[u%2],16)}, {vr(Vf[(u//2)%ND]+4*t,4)}, {vr(Sb[u%2]+8*t,8)}, v{vIdx}")
NU=64
PRIO0=2; PRIO={28:1,56:0}
SCHED={}
nxt=2
for u_ in range(64):
    lim=u_//2-1+ND if u_>=2 else ND-1
    if nxt<=min(lim,31): SCHED.setdefault(u_,[]).append(nxt); nxt+=1
def unit(u):
    S=Sb[u%2]
    E=lambda r: A(f"v_exp_f32 v{S+r}, v{S+r}")
    E(0);E(1)
    if u>0: PV(u-1,1)
    E(2);E(3);E(4)
    for i in SCHED.get(u,[]): kv_load(i)
    if u in PRIO: A(f"s_setprio {PRIO[u]}")
    if u==OPT['rel']: A.lds(f"ds_write_b32 v{vLF}, v{vIdx} offset:44")
    if u+1<NU:
        if (u+1)%2==0: A.wait_vm(('kv',(u+1)//2))
        QK(u+1)
    for r in range(5,10): E(r)
    PV(u,0)
    for r in range(10,16): E(r)
    if u in (3,5,9,17,33): stamp(18+(3,5,9,17,33).index(u), 1 if u in (5,33) else 2)
UP=OPT.get('up',2)
issue_stage(0)
if UP>=2: issue_stage(1)
srd(SRD_WS,20,WS_BYTES)
stamp(0)
if UP>=3: issue_stage(2)
for s in range(8):
    A.wait_vm(s)
    A("s_barrier")
    stamp(1+s, 1 if s in (0,4) else 2)
    if s==0:
        for k in range(UP,3): issue_stage(k)
    if 1<=s<=5: issue_stage(s+2)
    if s==7:
        A.wait_vm('non')
    fill(FILL, 24 if s<7 else 999)
    if s==5: A.vmem(f"buffer_load_dwordx2 {vr(vN,2)}, v{vZ}, {sr(SRD_DBG,4)}, 0 offen sc1",'non')
A.wait_vm('non')
nonce_check(vN,vZ,sNon,sCnt,sU0)
A("s_barrier")
if OPT['ewo']:
    A(f"s_cmp_eq_u32 s{sT0}, 0\ns_cbranch_scc1 L_noewo")
    srd(SRD_M,14,524288)
    A(f"""v_lshrrev_b32 v{vx}, 3, v0
    v_and_b32 v{vw}, 6, v{vx}
    v_xor_b32 v{vw}, v{vw}, v0
    v_and_b32 v{vw}, 7, v{vw}
    v_lshlrev_b32 v{vx}, 10, v{vx}
    v_lshl_add_u32 v{vx}, v{vw}, 4, v{vx}
    s_lshl_b32 s{sU0}, s{sW}, 16
    s_lshl_b32 s{sU1}, s{sHQ}, 7
    s_add_u32 s{sU0}, s{sU0}, s{sU1}
    s_lshl_b32 s{sU1}, s{sW}, 13""")
    for j in range(8):
        A(f"s_add_u32 m0, s{sU1}, {WOB+j*1024}")
        A(f"s_add_u32 s{sU0}, s{sU0}, 8192" if j else "s_nop 0")
        A.vmem(f"buffer_load_dwordx4 v{vx}, {sr(SRD_M,4)}, s{sU0} offen lds",'wob')
    A.label("L_noewo")
A("s_barrier")
stamp(30)
PM=(1<<33)-1
A(f"s_mov_b32 s{sX0}, -1\ns_mov_b32 s{sX0+1}, 1")
A(f"s_cmp_lg_u32 s{sW}, 0\ns_cbranch_scc1 L_nf2")
A(f"s_mov_b64 exec, {sr(sX0,2)}")
if OPT['pp']: poll_pipe(Sb[1],vFl,sFGr,sCnt,sNon)
else:
    poll_issue(vP,vFl,sFGr)
    poll_check(vP,vFl,sFGr,sCnt,sNon)
A(f"s_mov_b64 exec, -1\nds_write_b32 v{vLF}, v{vIdx} offset:32\ns_branch L_nf3")
A.label("L_nf2")
lds_word_spin(vt0,vLF,32,sCnt,sU0)
A.label("L_nf3")
A.vm=[]
stamp(16,2)
if OPT.get('rep'):
    A(f"s_mov_b32 s{sF2}, {OPT['rep']}")
    A.label("L_rep")
    A("s_nop 15")
    for d in range(2):
        for i in range(16): A(f"v_mov_b32 v{Oa[d]+i}, 0")
A.vmem(f"buffer_load_dwordx4 {vr(Qf[0],4)}, v{vL16}, {sr(SRD_WS,4)}, s{sQ0} offen sc1")
kv_load(0)
A.vmem(f"buffer_load_dwordx4 {vr(Qf[1],4)}, v{vL16}, {sr(SRD_WS,4)}, s{sQ1} offen sc1",'q1')
kv_load(1)
stamp(17)
A(f"s_setprio {PRIO0}")
A.wait_vm('q1')
QK(0)
A("s_nop 11")
for u in range(NU): unit(u)
A("s_nop 1")
PV(NU-1,1)
if OPT.get('rep'):
    A(f"s_sub_u32 s{sF2}, s{sF2}, 1\ns_cmp_lg_u32 s{sF2}, 0\ns_cbranch_scc1 L_rep")
if OPT.get('spin'):
    A(f"s_mov_b32 s{sF2}, {OPT['spin']}")
    A.label("L_spin")
    A(f"s_sub_u32 s{sF2}, s{sF2}, 1\ns_cmp_lg_u32 s{sF2}, 0\ns_cbranch_scc1 L_spin")
stamp(23)
A("s_setprio 3")
vR=Sb[0]; vRa=Sb[1]
A(f"""s_mul_i32 s{sU0}, s{sW}, 2304
s_add_u32 s{sU0}, s{sU0}, {RED}
v_add_u32 v{vRa}, s{sU0}, v{vL16}
v_lshlrev_b32 v{vRa+1}, 2, v0
v_add_u32 v{vRa+1}, s{sU0}, v{vRa+1}
s_xor_b32 s{sU1}, s{sW}, 1
s_mul_i32 s{sU1}, s{sU1}, 2304
s_add_u32 s{sU1}, s{sU1}, {RED}
v_add_u32 v{vEK}, s{sU1}, v{vL16}
v_lshlrev_b32 v{vRa+3}, 2, v0
v_add_u32 v{vRa+3}, s{sU1}, v{vRa+3}""")
A.lds(f"ds_write_b128 v{vRa}, {vr(Oa[1],4)}")
A.lds(f"ds_write_b128 v{vRa}, {vr(Oa[1]+4,4)} offset:1024")
A.lds(f"ds_write_b32 v{vRa+1}, v{Oa[1]+8} offset:2048")
A(f"""v_bfe_u32 v{vRa+4}, v0, 4, 1
v_lshlrev_b32 v{vRa+4}, 14, v{vRa+4}
v_add_u32 v{vRa+4}, v{vRa+4}, v{vVo}
s_and_b32 s{sU0}, s{sE}, 1
s_lshl_b32 s{sU0}, s{sU0}, 9
v_add_u32 v{vRa+4}, s{sU0}, v{vRa+4}""")
A.wait_lg_all()
A("s_barrier")
stamp(24)
A.lds(f"ds_read_b32 v{vR+8}, v{vRa+3} offset:2048",'r2')
A.lds(f"ds_read_b128 {vr(vR,4)}, v{vEK}",'r0')
A.lds(f"ds_read_b128 {vr(vR+4,4)}, v{vEK} offset:1024",'r1')
A.wait_lg('r2')
A(f"""v_add_f32 v{Oa[0]+8}, v{Oa[0]+8}, v{vR+8}
v_cmp_nle_f32 vcc, s{sLo}, v{Oa[0]+8}
v_cmp_nge_f32 {sr(sX0,2)}, s{sHi}, v{Oa[0]+8}""")
A.wait_lg('r0')
for i in range(4): A(f"v_add_f32 v{Oa[0]+i}, v{Oa[0]+i}, v{vR+i}")
A.wait_lg('r1')
for i in range(4,8): A(f"v_add_f32 v{Oa[0]+i}, v{Oa[0]+i}, v{vR+i}")
A(f"""s_or_b64 vcc, vcc, {sr(sX0,2)}
s_cmp_lg_u64 vcc, 0
s_cbranch_scc1 L_fallback""")
A.label("L_norm")
A(f"v_rcp_f32 v{vR+9}, v{Oa[0]+8}\ns_nop 0")
for i in range(8): A(f"v_mul_f32 v{Oa[0]+i}, v{Oa[0]+i}, v{vR+9}")
for i in range(4): A(f"v_cvt_pk_bf16_f32 v{vR+i}, v{Oa[0]+2*i}, v{Oa[0]+2*i+1}")
A.vmem(f"buffer_store_dwordx4 {vr(vR,4)}, v{vRa+4}, {sr(SRD_WS,4)}, s{sOst} offen sc1")
stamp(28,2)
VB=Alloc(vBig,168)
Of=[VB.take(4,4) for _ in range(8)]
Wf=[[VB.take(4,4) for _ in range(4)] for _ in range(6)]
Ac=[VB.take(4,4) for _ in range(4)]
vWA=[vx,vw,vt2,vt3]; vOo=vEQ0; vXw=vEK; vXr=vEV
wo_tr_addr(vx,vt0,vt1)
A(f"""s_lshr_b32 s{sU2}, s{sW}, 2
s_lshl_b32 s{sU0}, s{sU2}, 15
s_lshl_b32 s{sU1}, s{sU2}, 6
v_add_u32 v{vx}, s{sU0}, v{vx}
v_xor_b32 v{vx}, s{sU1}, v{vx}
v_xor_b32 v{vw}, 32, v{vx}
v_xor_b32 v{vt2}, 64, v{vx}
v_xor_b32 v{vt3}, 96, v{vx}""")
assert WOB==0
def wo_read(hp_, slotset):
    for c in range(4):
        A.lds(f"ds_read_b64_tr_b16 {vr(Wf[slotset][c],2)}, v{vWA[c]} offset:{hp_*4096}",('wo',hp_))
        A.lds(f"ds_read_b64_tr_b16 {vr(Wf[slotset][c]+2,2)}, v{vWA[c]} offset:{hp_*4096+1024}",('wo',hp_))
wo_read(0,0)
A(f"""v_and_b32 v{vFl}, 15, v0
v_lshlrev_b32 v{vOo}, 11, v{vFl}
v_lshlrev_b32 v{vFl}, 7, v{vFl}
v_lshrrev_b32 v{vt0}, 4, v0
v_lshl_add_u32 v{vOo}, v{vt0}, 3, v{vOo}
s_xor_b32 s{sU1}, s{sW}, 5
s_mul_i32 s{sU1}, s{sU1}, 2304
s_add_u32 s{sU1}, s{sU1}, {RED}
v_add_u32 v{vXr}, s{sU1}, v{vL16}""")
A.wait_lg_all(); wo_read(1,1)
A(f"v_mov_b32 v{vt0}, {LF}\nv_mov_b32 v{vt1}, 1")
A.wait_vm_all()
A("s_mov_b64 exec, 1")
A.lds(f"ds_add_rtn_u32 v{vP}, v{vt0}, v{vt1} offset:40",'cnt')
A("s_mov_b64 exec, -1")
A.wait_lg('cnt')
A(f"""v_readfirstlane_b32 s{sU0}, v{vP}
s_cmp_lg_u32 s{sU0}, 7
s_cbranch_scc1 L_nl1""")
flag_store(vN,vZ,sFOw)
if not OPT['pp']: poll_issue(vP,vFl,sFOr,0xff)
A.label("L_nl1")
stamp(25)
for i in range(2,6):
    A.wait_lg_all(); wo_read(i,i)
A.wait_lg_all()
A(f"s_cmp_lg_u32 s{sU0}, 7\ns_cbranch_scc1 L_nl2")
if OPT['pp']:
    A("s_mov_b64 exec, 0xff"); poll_pipe(Ac[0],vFl,sFOr,sCnt,sNon); A("s_mov_b64 exec, -1")
else: poll_check(vP,vFl,sFOr,sCnt,sNon,0xff)
A(f"ds_write_b32 v{vt0}, v{vt1} offset:36\ns_branch L_nl3")
A.label("L_nl2")
lds_word_spin(vP,vt0,36,sCnt,sU1)
A.label("L_nl3")
A.vm=[]
stamp(26)
for i in range(8):
    if i==4: A(f"s_add_u32 s{sOld}, s{sOld}, 4096")
    A.vmem(f"buffer_load_dwordx4 {vr(Of[i],4)}, v{vL16}, {sr(SRD_WS,4)}, s{sOld} offen offset:{(i%4)*1024} sc1",('of',i))
A.wait_lg_all()
for i in range(8):
    A.wait_vm(('of',i))
    if i>=6: A.wait_lg(('wo',i))
    for c in range(4):
        A(f"v_mfma_f32_16x16x32_bf16 {vr(Ac[c],4)}, {vr(Wf[i%6][c],4)}, {vr(Of[i],4)}, {'0' if i==0 else vr(Ac[c],4)}")
    if i<2:
        A.wait_lg_all(); wo_read(6+i,i)
A("s_nop 7")
A.lds(f"ds_write_b128 v{vXw}, {vr(Ac[2],4)}")
A.lds(f"ds_write_b128 v{vXw}, {vr(Ac[3],4)} offset:1024")
A.wait_lg_all()
A("s_barrier")
A.lds(f"ds_read_b128 {vr(Ac[2],4)}, v{vXr}",'x0')
A.lds(f"ds_read_b128 {vr(Ac[3],4)}, v{vXr} offset:1024",'x1')
for c in range(2):
    A.wait_lg(f'x{c}')
    for i in range(4): A(f"v_add_f32 v{Ac[c]+i}, v{Ac[c]+i}, v{Ac[2+c]+i}")
    A(f"v_cvt_pk_bf16_f32 v{Ac[c]}, v{Ac[c]}, v{Ac[c]+1}\nv_cvt_pk_bf16_f32 v{Ac[c]+1}, v{Ac[c]+2}, v{Ac[c]+3}")
    A.vmem(f"buffer_store_dwordx2 {vr(Ac[c],2)}, v{vOo}, {sr(SRD_OUT,4)}, s{sOut} offen offset:{c*32}")
stamp(27)
if 'amp' in OPT:
    A(f"""s_memrealtime s[96:97]
    s_sub_u32 s94, s94, s100
    s_mul_i32 s94, s94, {OPT.get('ampk',3)}
    s_min_u32 s94, s94, 20000
    s_waitcnt lgkmcnt(0)""")
    A.label("L_amp")
    A(f"""s_memrealtime s[98:99]
    s_waitcnt lgkmcnt(0)
    s_sub_u32 s98, s98, s96
    s_cmp_lt_u32 s98, s94
    s_cbranch_scc1 L_amp""")
stamp_out(vt0)
A("s_endpgm")

A.label("L_fallback"); A.reset()
fC=Oa[1]; fM=vt0; fT=vt1; fS=Kf[0]
fK=Kf[4]; fV=Vf[0]
A(f"""s_lshl_b32 s{sU0}, s{sKH}, 11
s_sub_u32 s{sU2}, s{sKVb}, s{sU0}
s_mov_b32 s{sOff}, s{sU2}
s_mov_b32 s{sCnt}, 0
v_mov_b32 v{fM}, {NEGBIG:#x}""")
A.label("L_fb1")
A(f"""buffer_load_dwordx4 {vr(fK,4)}, v{vL16}, {sr(SRD_WS,4)}, s{sOff} offen sc1
s_waitcnt vmcnt(0)
v_mfma_f32_32x32x16_bf16 {vr(fS,16)}, {vr(fK,4)}, {vr(Qf[0],4)}, 0
s_add_u32 s{sOff}, s{sOff}, 2048
s_add_u32 s{sCnt}, s{sCnt}, 1
s_nop 11""")
for i in range(8): A(f"v_max3_f32 v{fM}, v{fM}, v{fS+2*i}, v{fS+2*i+1}")
A(f"""s_cmp_lt_u32 s{sCnt}, 64
s_cbranch_scc1 L_fb1
v_mov_b32 v{fT}, v{fM}
s_nop 1
v_permlane32_swap_b32 v{fM}, v{fT}
s_nop 1
v_max_f32 v{fM}, v{fM}, v{fT}""")
for i in range(16): A(f"v_sub_f32 v{fC+i}, 0, v{fM}")
for i in range(16): A(f"v_mov_b32 v{Oa[0]+i}, 0")
A(f"""s_mov_b32 s{sOff}, s{sU2}
s_mov_b32 s{sCnt}, 0""")
A.label("L_fb2")
A(f"""buffer_load_dwordx4 {vr(fK,4)}, v{vL16}, {sr(SRD_WS,4)}, s{sOff} offen sc1
s_mov_b64 exec, {sr(sVM,2)}
buffer_load_dwordx4 {vr(fV,4)}, v{vVo}, {sr(SRD_WS,4)}, s{sOff} offen offset:1024 sc1
buffer_load_dwordx4 {vr(fV+4,4)}, v{vVo}, {sr(SRD_WS,4)}, s{sOff} offen offset:1536 sc1
s_mov_b64 exec, -1
s_waitcnt vmcnt(0)
v_mfma_f32_32x32x16_bf16 {vr(fS,16)}, {vr(fK,4)}, {vr(Qf[0],4)}, {vr(fC,16)}
s_add_u32 s{sOff}, s{sOff}, 2048
s_add_u32 s{sCnt}, s{sCnt}, 1
s_nop 11""")
for i in range(16): A(f"v_exp_f32 v{fS+i}, v{fS+i}")
A(f"""s_nop 1
v_smfmac_f32_32x32x32_bf16 {vr(Oa[0],16)}, {vr(fV,4)}, {vr(fS,8)}, v{vIdx}
v_smfmac_f32_32x32x32_bf16 {vr(Oa[0],16)}, {vr(fV+4,4)}, {vr(fS+8,8)}, v{vIdx}
s_cmp_lt_u32 s{sCnt}, 64
s_cbranch_scc1 L_fb2
s_nop 15
s_branch L_norm""")

A.label("L_aux")
A.reset()
VX=Alloc(2,168)
xt0=VX.take(); xt1=VX.take(); xt2=VX.take(); xZ=VX.take(); xN=VX.take(2,2)
xL16=VX.take(); xVo=VX.take()
xBig=VX.mark()
va=[[VX.take() for _ in range(4)] for _ in range(2)]; vwa=[VX.take() for _ in range(2)]
vKpos=VX.take(); vV1=VX.take(); gDum=VX.take(); gLF=VX.take()
acc=[VX.take(16,4) for _ in range(6)]
xf=[[VX.take(4,4) for _ in range(2)] for _ in range(2)]
wf=[VX.take(4,4) for _ in range(4)]
xf.append([VX.take(4,4) for _ in range(2)])
sT=sA0; sC=sA0+1; sV0=sA0+2; sV1=sA0+3; sNx=sA0+4; sCx=sA0+6; sVMx=sA0+8; sV2=sA0+11; sV3=sA0+12
sB0=sA0+13; sB1=sA0+14; sB2=sA0+15; sHa=sA0+16; sHf=sA0+17; sTT=sA0+18; sRP=sA0+22; sJ=sA0+23; sG0=sA0+19; sG1=sA0+20
A(f"""s_setprio 3
s_sub_u32 s{sT}, s{sW}, 8
s_and_b32 s{sRP}, s{sT}, 1
s_lshr_b32 s{sJ}, s{sT}, 1
v_mov_b32 v{xZ}, 0
s_waitcnt lgkmcnt(0)""")
srd(SRD_WS,20,WS_BYTES); srd(SRD_DBG,18,256)
A(f"""s_add_u32 s{sV0}, s2, s{sT}
s_cmp_lg_u32 s{sV0}, 0
s_cbranch_scc1 L_nonon
s_mov_b32 s{sV0}, {WS_EPOCH}
s_mov_b64 exec, 1
buffer_load_dwordx2 {vr(xN,2)}, v{xZ}, {sr(SRD_WS,4)}, s{sV0} offen sc1
s_waitcnt vmcnt(0)
v_add_u32 v{xN}, 2, v{xN}
v_or_b32 v{xN}, 1, v{xN}
v_or_b32 v{xN+1}, 0x80000000, v{xN+1}
buffer_store_dwordx2 {vr(xN,2)}, v{xZ}, {sr(SRD_DBG,4)}, 0 offen sc1
buffer_store_dwordx2 {vr(xN,2)}, v{xZ}, {sr(SRD_WS,4)}, s{sV0} offen sc1
s_mov_b64 exec, -1""")
A.label("L_nonon")
stamp(0)
if OPT.get('pw',1):
    srd(SRD_M,14,524288); srd(SRD_XA,8,524288)
    A(f"""s_and_b32 s{sV0}, s2, 1
    s_add_u32 s{sV0}, s{sV0}, s{sT}
    s_cmp_lg_u32 s{sV0}, 0
    s_cbranch_scc1 L_npw
    s_lshl_b32 s{sV0}, s{sT1}, 14
    s_add_u32 s{sV0}, s{sV0}, 384
    v_lshlrev_b32 v{xt0}, 10, v0
    s_mov_b64 exec, 0xffff
    buffer_load_dword v{gDum}, v{xt0}, {sr(SRD_M,4)}, s{sV0} offen
    buffer_load_dword v{gDum}, v{xt0}, {sr(SRD_XA,4)}, s{sV0} offen
    s_mov_b64 exec, -1""")
    A.label("L_npw")
if OPT.get('pf',0):
    A(f"""s_cmp_eq_u32 s{sBR}, 0
    s_cselect_b32 s{SRD_X}, s10, s4
    s_cselect_b32 s{SRD_X+1}, s11, s5
    s_cselect_b32 s{SRD_W}, s12, s6
    s_cselect_b32 s{SRD_W+1}, s13, s7
    s_mov_b32 s{SRD_X+2}, 2097152
    s_mov_b32 s{SRD_X+3}, 0x00020000
    s_mov_b32 s{SRD_W+2}, 1572864
    s_mov_b32 s{SRD_W+3}, 0x00020000
    v_lshlrev_b32 v{xt0}, 7, v0
    v_lshrrev_b32 v{xt1}, 2, v0
    v_mul_u32_u24 v{xt1}, 3072, v{xt1}
    v_and_b32 v{xt2}, 3, v0
    v_lshl_add_u32 v{xt1}, v{xt2}, 7, v{xt1}""")
    if OPT['m']==2:
        A(f"""s_and_b32 s{sV0}, s{sR2}, 8
        s_lshl_b32 s{sV0}, s{sV0}, 17
        s_mov_b32 s{sV2}, s{sT1}
        s_mul_i32 s{sV1}, s{sV2}, 49152""")
    else:
        A(f"""s_lshr_b32 s{sV2}, s{sT1}, 3
        s_lshl_b32 s{sV2}, s{sV2}, 2
        s_and_b32 s{sV0}, s{sT1}, 3
        s_add_u32 s{sV2}, s{sV2}, s{sV0}
        s_and_b32 s{sV0}, s2, 6
        s_lshl_b32 s{sV0}, s{sV0}, 18
        s_mul_i32 s{sV1}, s{sV2}, 98304""")
    A(f"""s_lshl_b32 s{sV2}, s{sV2}, 15
    s_add_u32 s{sV0}, s{sV0}, s{sV2}
    s_lshl_b32 s{sV2}, s{sT}, 13
    s_add_u32 s{sV0}, s{sV0}, s{sV2}
    s_and_b32 s{sV2}, s2, 1
    s_lshl_b32 s{sV2}, s{sV2}, 9
    s_add_u32 s{sV1}, s{sV1}, s{sV2}
    s_lshl_b32 s{sV2}, s{sT}, 10
    s_add_u32 s{sV1}, s{sV1}, s{sV2}
    {"s_sleep "+str(OPT['pfd']) if OPT.get('pfd') else ""}
    buffer_load_dword v{gDum}, v{xt0}, {sr(SRD_X,4)}, s{sV0} offen
    s_cmp_eq_u32 s{sT}, 3
    s_cbranch_scc1 L_pfd
    buffer_load_dword v{gDum}, v{xt1}, {sr(SRD_W,4)}, s{sV1} offen""")
    if OPT['m']==1:
        A(f"s_add_u32 s{sV1}, s{sV1}, 49152\nbuffer_load_dword v{gDum}, v{xt1}, {sr(SRD_W,4)}, s{sV1} offen")
    A.label("L_pfd")
A(f"""v_mov_b32 v{gLF}, {LF}
v_lshl_add_u32 v{xt0}, v0, 2, v{gLF}
ds_write_b32 v{xt0}, v{xZ}
v_and_b32 v{xt0}, 31, v0
v_lshrrev_b32 v{xt1}, 5, v0
v_bfe_u32 v{xt2}, v0, 1, 3
v_xor_b32 v{xt2}, v{xt2}, v{xt1}
v_lshlrev_b32 v{xt2}, 4, v{xt2}
v_lshl_add_u32 v{xt2}, v{xt0}, 7, v{xt2}
s_lshl_b32 s{sV0}, s{sRP}, 13
s_add_u32 s{sV0}, s{sV0}, {LXO}
v_add_u32 v{va[0][0]}, s{sV0}, v{xt2}""")
for s in range(1,4): A(f"v_xor_b32 v{va[0][s]}, {32*s}, v{va[0][0]}")
for s in range(4): A(f"v_add_u32 v{va[1][s]}, {2*SL}, v{va[0][s]}")
A(f"""v_bfe_u32 v{xt2}, v0, 2, 2
v_lshl_add_u32 v{xt2}, v{xt1}, 3, v{xt2}
v_lshlrev_b32 v{xt2}, 7, v{xt2}
v_bfe_u32 v{vV1}, v0, 4, 1
v_lshl_add_u32 v{xt2}, v{vV1}, 5, v{xt2}
v_and_b32 v{vwa[0]}, 3, v0
v_lshl_add_u32 v{xt2}, v{vwa[0]}, 3, v{xt2}
v_bfe_u32 v{vwa[0]}, v0, 3, 1
v_lshl_add_u32 v{vwa[0]}, v{vwa[0]}, 6, v{xt2}
s_lshl_b32 s{sV0}, s{sJ}, 6
v_xor_b32 v{vwa[0]}, s{sV0}, v{vwa[0]}
v_add_u32 v{vwa[1]}, {2*SL}, v{vwa[0]}
v_and_b32 v{vKpos}, 0x33, v0
v_bfe_u32 v{xt2}, v0, 2, 1
v_lshl_add_u32 v{vKpos}, v{xt2}, 3, v{vKpos}
v_bfe_u32 v{xt2}, v0, 3, 1
v_lshl_add_u32 v{vKpos}, v{xt2}, 2, v{vKpos}
v_lshlrev_b32 v{vKpos}, 4, v{vKpos}
v_and_b32 v{xt2}, 15, v0
v_lshlrev_b32 v{xt2}, 4, v{xt2}
v_lshl_add_u32 v{xVo}, v{xt1}, 8, v{xt2}
v_lshlrev_b32 v{xL16}, 4, v0
s_mov_b32 s{sC}, {f2u(CSCALE):#x}
s_mov_b32 s{sVMx}, 0x0000ffff
s_mov_b32 s{sVMx+1}, 0x0000ffff
s_lshl_b32 s{sTT}, s{sR2}, 1
s_add_u32 s{sTT}, s{sTT}, s{sRP}
s_lshl_b32 s{sTT}, s{sTT}, 1
s_lshl_b32 s{sHf}, s{sHQ}, 4
s_add_u32 s{sHf}, s{sHf}, s{sR2}""")
if OPT['pfc']:
    A(f"s_getpc_b64 {sr(sNx,2)}")
    A.label("L_pc")
    A(f"""s_sub_u32 s{sNx}, s{sNx}, L_pc-{NAME}
    s_subb_u32 s{sNx+1}, s{sNx+1}, 0
    s_lshl_b32 s{sV0}, s{sT}, 13
    s_mov_b32 s{sV1}, L_codeend-{NAME}-4
    v_lshlrev_b32 v{xt2}, 7, v0
    v_add_u32 v{xt2}, s{sV0}, v{xt2}
    v_min_u32 v{xt2}, s{sV1}, v{xt2}""")
PARTS=(1,2,0)
def rd_x(n,r):
    if n>=32: return
    s,ks=divmod(n,4); slot=(s+1)%3
    A.lds(f"ds_read_b128 {vr(xf[n%2][r],4)}, v{va[slot//2][ks]} offset:{(slot%2)*SL+r*4096}", ('x',n,r))
def rd_w(n,c):
    if n>=32: return
    s,ks=divmod(n,4); slot=(s+1)%3; p=PARTS[c]
    o=(slot%2)*SL+p*8192+ks*2048
    A.lds(f"ds_read_b64_tr_b16 {vr(wf[c],2)}, v{vwa[slot//2]} offset:{o}", ('w',n,c))
    A.lds(f"ds_read_b64_tr_b16 {vr(wf[c]+2,2)}, v{vwa[slot//2]} offset:{o+512}", ('w',n,c))
QD=OPT.get('qd',20)
def g_step(n):
    s,ks=divmod(n,4)
    if ks==3 and s<7:
        A.wait_lg_all()
        A("s_barrier")
    for c in range(3 if n<QD else 2):
        for r in range(2):
            A.wait_lg([('x',n,r),('w',n,c)])
            a_=acc[2*c+r]; C="0" if n==0 else vr(a_,16)
            if c==1: A(f"v_mfma_f32_32x32x16_bf16 {vr(a_,16)}, {vr(xf[n%2][r],4)}, {vr(wf[c],4)}, {C}")
            else: A(f"v_mfma_f32_32x32x16_bf16 {vr(a_,16)}, {vr(wf[c],4)}, {vr(xf[n%2][r],4)}, {C}")
            if r==0 and c<2: rd_x(n+1,c)
            if r==1 and not (c==2 and n+1>=QD): rd_w(n+1,c)
    if n==22: A.vmem(f"buffer_load_dwordx2 {vr(xN,2)}, v{xZ}, {sr(SRD_DBG,4)}, 0 offen sc1",'non')
def q_rd(m):
    if m>=32: return
    s,ks=divmod(m,4); slot=(s+1)%3; b=(m+1)%3
    o=(slot%2)*SL+ks*2048
    W=(wf[2],wf[3],wf[0])[b]
    for r in range(2): A.lds(f"ds_read_b128 {vr(xf[(2,0,1)[b]][r],4)}, v{va[slot//2][ks]} offset:{(slot%2)*SL+r*4096}", ('qx',m,r))
    A.lds(f"ds_read_b64_tr_b16 {vr(W,2)}, v{vwa[slot//2]} offset:{o}", ('qw',m))
    A.lds(f"ds_read_b64_tr_b16 {vr(W+2,2)}, v{vwa[slot//2]} offset:{o+512}", ('qw',m))
def q_phase(fillers):
    q_rd(QD+1)
    per=4
    for m in range(QD,32):
        b=(m+1)%3; W=(wf[2],wf[3],wf[0])[b]
        A.wait_lg(('qw',m))
        for r in range(2):
            A(f"v_mfma_f32_32x32x16_bf16 {vr(acc[4+r],16)}, {vr(W,4)}, {vr(xf[(2,0,1)[b]][r],4)}, {vr(acc[4+r],16)}")
            if r==0: q_rd(m+2)
            for _ in range(per):
                if fillers: fillers.pop(0)()
    while fillers: fillers.pop(0)()
    A.wait_lg_all()
    A("s_barrier")
def I(l): return lambda: A(l)
def Vm(l): return lambda: A.vmem(l)
def packf(a): return [I(f"v_cvt_pk_bf16_f32 v{a+i}, v{a+2*i}, v{a+2*i+1}") for i in range(8)]
def pack16(dst, a, scale=False):
    if scale:
        for i in range(16): A(f"v_mul_f32 v{a+i}, s{sC}, v{a+i}")
    for i in range(8): A(f"v_cvt_pk_bf16_f32 v{dst+i}, v{a+2*i}, v{a+2*i+1}")
A.wait_lg_all()
A("s_barrier")
rd_x(0,0); rd_w(0,0); rd_x(0,1); rd_w(0,1); rd_w(0,2)
assert (QD+1)%3==0
for n in range(32):
    g_step(n)
    if n==30: q_rd(QD)
stamp(9)
SVL=list(A.lg); SVV=list(A.vm)
A(f"""s_cmp_lg_u32 s{sBR}, 0
s_cbranch_scc1 L_epa""")
A(f"""s_lshl_b32 s{sV0}, s{sTT}, 11
s_lshl_b32 s{sV1}, s{sJ}, 18
s_add_u32 s{sV0}, s{sV0}, s{sV1}
s_lshl_b32 s{sV1}, s{sHK}, 19
s_add_u32 s{sB0}, s{sV0}, s{sV1}
s_add_u32 s{sG0}, s{sB0}, 131072
s_lshl_b32 s{sV1}, s{sHV}, 19
s_add_u32 s{sB1}, s{sV0}, s{sV1}
s_lshr_b32 s{sB2}, s{sV0}, 1
s_lshl_b32 s{sV1}, s{sHQ}, 18
s_add_u32 s{sB2}, s{sB2}, s{sV1}
s_add_u32 s{sB2}, s{sB2}, {WS_Q}
s_add_u32 s{sG1}, s{sB2}, 65536
v_lshl_add_u32 v{xt0}, v{vV1}, 17, v{xVo}""")
F=[]
for r in range(2):
    K=acc[r]; F+=packf(K)
    F.append(Vm(f"buffer_store_dwordx4 {vr(K,4)}, v{vKpos}, {sr(SRD_WS,4)}, s{sB0} offen offset:{r*2048} sc1"))
    F.append(Vm(f"buffer_store_dwordx4 {vr(K+4,4)}, v{vKpos}, {sr(SRD_WS,4)}, s{sG0} offen offset:{r*2048} sc1"))
for r in range(2):
    V=acc[2+r]; F+=packf(V)
    F.append(Vm(f"buffer_store_dwordx4 {vr(V,4)}, v{xt0}, {sr(SRD_WS,4)}, s{sB1} offen offset:{r*2048+1024} sc1"))
    F.append(Vm(f"buffer_store_dwordx4 {vr(V+4,4)}, v{xt0}, {sr(SRD_WS,4)}, s{sB1} offen offset:{r*2048+1536} sc1"))
q_phase(F)
A("s_nop 9")
for r in range(2):
    Q=acc[4+r]; pack16(Q,Q,True)
    A.vmem(f"buffer_store_dwordx4 {vr(Q,4)}, v{xL16}, {sr(SRD_WS,4)}, s{sB2} offen offset:{r*1024} sc1")
    A.vmem(f"buffer_store_dwordx4 {vr(Q+4,4)}, v{xL16}, {sr(SRD_WS,4)}, s{sG1} offen offset:{r*1024} sc1")
stamp(10,2)
A.wait_vm('non')
nonce_check(xN,xZ,sNx,sCx,sV1)
A(f"""s_lshl_b32 s{sHf}, s{sHf}, 7
s_add_u32 s{sHf}, s{sHf}, {WS_FG}""")
A.wait_vm_all()
stamp(11,2)
A("s_barrier")
A(f"s_cmp_lg_u32 s{sT}, 0\ns_cbranch_scc1 L_wo")
flag_store(xN,xZ,sHf)
A("s_branch L_wo")
A.label("L_epa"); A.reset(); A.vm=list(SVV); A.lg=list(SVL)
A(f"""s_lshl_b32 s{sV0}, s{sRP}, 14
s_lshl_b32 s{sV1}, s{sJ}, 12
s_add_u32 s{sV2}, s{sV0}, s{sV1}
s_add_u32 s{sV0}, s{sV2}, {EAK+8192}
v_add_u32 v{xt1}, s{sV0}, v{vKpos}
v_lshl_add_u32 v{xt0}, v{vV1}, 11, v{xVo}
v_add_u32 v{xt2}, s{sV0}, v{xt0}
s_lshl_b32 s{sHa}, s{sHf}, 13
s_add_u32 s{sHa}, s{sHa}, {WS_HA}
s_add_u32 s{sV1}, s{sV1}, s{sHa}
s_lshl_b32 s{sHf}, s{sHf}, 1
s_add_u32 s{sHf}, s{sHf}, s{sJ}
s_lshl_b32 s{sHf}, s{sHf}, 7
s_add_u32 s{sHf}, s{sHf}, {WS_FH}""")
F=packf(acc[1])+packf(acc[3])
F.append(I(f"""s_cmp_lg_u32 s{sRP}, 1
s_cbranch_scc1 L_noha
buffer_store_dwordx4 {vr(acc[1],4)}, v{vKpos}, {sr(SRD_WS,4)}, s{sV1} offen sc1
buffer_store_dwordx4 {vr(acc[1]+4,4)}, v{vKpos}, {sr(SRD_WS,4)}, s{sV1} offen offset:2048 sc1
buffer_store_dwordx4 {vr(acc[3]+4,4)}, v{xt0}, {sr(SRD_WS,4)}, s{sV1} offen offset:1536 sc1
L_noha:"""))
F+=packf(acc[0])+packf(acc[2])
q_phase(F)
for r in range(2):
    A.lds(f"ds_write_b128 v{xt1}, {vr(acc[r],4)} offset:{r*8192}")
    A.lds(f"ds_write_b128 v{xt1}, {vr(acc[r]+4,4)} offset:{r*8192+2048}")
    A.lds(f"ds_write_b128 v{xt2}, {vr(acc[2+r],4)} offset:{r*8192+1024}")
    A.lds(f"ds_write_b128 v{xt2}, {vr(acc[2+r]+4,4)} offset:{r*8192+1536}")
A(f"s_lshr_b32 s{sV0}, s{sV2}, 1\ns_add_u32 s{sV0}, s{sV0}, {EAQ}\nv_add_u32 v{xt1}, s{sV0}, v{xL16}")
for r in range(2):
    pack16(acc[4+r],acc[4+r],True)
    for e in range(2): A.lds(f"ds_write_b128 v{xt1}, {vr(acc[4+r]+4*e,4)} offset:{r*4096+e*1024}")
A.wait_lg_all()
A("s_barrier")
Mk=acc[0]; Sc=acc[2]; Sp=acc[3]; Oc=acc[4]; T5=acc[5]
Qh=T5; Kc=T5+4; Kp=T5+8; dstp=T5+12; Vc=xf[0][0]; Vp=xf[1][0]; FL=wf[0]
vAQ=va[0][0]; vAK=va[0][1]; vAV=va[0][2]; vOf=va[0][3]; mx=va[1][0]; mt=va[1][1]; xIdx=va[1][2]; xOne=va[1][3]
A(f"""v_and_b32 v{xt0}, 31, v0
v_lshrrev_b32 v{xt1}, 5, v0
v_lshlrev_b32 v{xt1}, 3, v{xt1}
v_sub_u32 v{xt0}, v{xt0}, v{xt1}
v_add_u32 v{xt1}, 16, v{xt0}
v_mov_b32 v{xt2}, {NEGBIG:#x}
s_mov_b32 s{sV1}, 0xfffffff1""")
for r in range(24):
    src,c=(xt0,16*(r//8)+r%8) if r<16 else (xt1,r-16)
    A(f"v_subrev_u32 v{Mk+r}, {c}, v{src}")
    A(f"v_and_b32 v{Mk+r}, s{sV1}, v{Mk+r}")
for r in range(0,24,2):
    A(f"v_cmp_eq_u32 vcc, 0, v{Mk+r}")
    A(f"v_cmp_eq_u32 {sr(sG0+1,2)}, 0, v{Mk+r+1}")
    A("s_nop 0")
    A(f"v_cndmask_b32 v{Mk+r}, v{xt2}, 0, vcc")
    A(f"v_cndmask_b32 v{Mk+r+1}, v{xt2}, 0, {sr(sG0+1,2)}")
assert (sG0+1)%2==0
A(f"""s_lshl_b32 s{sV0}, s{sT}, 10
s_add_u32 s{sV0}, s{sV0}, {EAQ}
v_add_u32 v{vAQ}, s{sV0}, v{xL16}
s_lshl_b32 s{sV0}, s{sT}, 11
s_add_u32 s{sV1}, s{sV0}, {EAK}
v_add_u32 v{vAK}, s{sV1}, v{xL16}
v_add_u32 v{vAV}, s{sV1}, v{xVo}
v_and_b32 v{xt0}, 27, v0
v_cmp_eq_u32 vcc, 16, v{xt0}
v_mov_b32 v{xt1}, 0x3f803f80
v_lshl_add_u32 v{vOf}, v{vV1}, 14, v{xVo}
v_cndmask_b32 v{xt1}, 0, v{xt1}, vcc
v_mov_b32 v{xIdx}, 0xdddddddd
v_mov_b32 v{xOne}, 1
s_and_b32 s{sV1}, s{sT}, 1
s_lshl_b32 s{sV1}, s{sV1}, 9
v_add_u32 v{vOf}, s{sV1}, v{vOf}
s_lshl_b32 s{sV3}, s{sR2}, 7
s_lshl_b32 s{sV1}, s{sHQ}, 1
s_add_u32 s{sV3}, s{sV3}, s{sV1}
s_lshr_b32 s{sV1}, s{sT}, 1
s_add_u32 s{sV3}, s{sV3}, s{sV1}
s_lshl_b32 s{sV3}, s{sV3}, 10
s_add_u32 s{sV3}, s{sV3}, {WS_OFA}
s_add_u32 s{sHa}, s{sHa}, s{sV0}
s_sub_u32 s{sHa}, s{sHa}, 8192""")
for i in range(12): A(f"v_mov_b32 v{Vc+i}, v{xt1}")
A.wait_vm_all()
nonce_check(xN,xZ,sNx,sCx,sV1)
A(f"s_cmp_lg_u32 s{sRP}, 1\ns_cbranch_scc1 L_noha2")
flag_store(xN,xZ,sHf)
A.label("L_noha2")
A(f"s_sub_u32 s{sHf}, s{sHf}, 256")
stamp(18)
for it,T in enumerate((1,2,3,0)):
    A.lds(f"ds_read_b128 {vr(Qh,4)}, v{vAQ} offset:{T*4096}",'q')
    A.lds(f"ds_read_b128 {vr(Kc,4)}, v{vAK} offset:{(T+1)*8192}",'kc')
    if T: A.lds(f"ds_read_b128 {vr(Kp,4)}, v{vAK} offset:{T*8192}",'kp')
    A(f"s_mov_b64 exec, {sr(sVMx,2)}")
    A.lds(f"ds_read_b128 {vr(Vc,4)}, v{vAV} offset:{(T+1)*8192+1024}",'v')
    A.lds(f"ds_read_b128 {vr(Vc+4,4)}, v{vAV} offset:{(T+1)*8192+1536}",'v')
    if T: A.lds(f"ds_read_b128 {vr(Vp,4)}, v{vAV} offset:{T*8192+1536}",'v')
    A("s_mov_b64 exec, -1")
    if T==0:
        A.wait_lg_all()
        A(f"s_lshl_b32 s{sV0}, s{sT}, 2\nv_add_u32 v{xt0}, s{sV0}, v{gLF}")
        A.lds(f"ds_write_b32 v{xt0}, v{xOne}")
        A(f"s_cmp_eq_u32 s{sR2}, 0\ns_cbranch_scc1 L_first")
        poll_issue(FL,xZ,sHf,1)
        poll_check(FL,xZ,sHf,sCx,sNx,1,sleep=OPT['slp'])
        A(f"""buffer_load_dwordx4 {vr(Kp,4)}, v{xL16}, {sr(SRD_WS,4)}, s{sHa} offen sc1
        s_mov_b64 exec, {sr(sVMx,2)}
        buffer_load_dwordx4 {vr(Vp,4)}, v{xVo}, {sr(SRD_WS,4)}, s{sHa} offen offset:1536 sc1
        s_mov_b64 exec, -1
        s_waitcnt vmcnt(0)
        s_branch L_first2""")
        A.label("L_first")
        for i in range(8): A(f"v_mov_b32 v{Mk+16+i}, v{xt2}")
        A("s_nop 1")
        A.label("L_first2")
        A.vm=[]
    A.wait_lg('kc')
    A(f"v_mfma_f32_32x32x16_bf16 {vr(Sc,16)}, {vr(Kc,4)}, {vr(Qh,4)}, {vr(Mk,16)}")
    A.wait_lg('kp')
    A(f"v_mfma_f32_32x32x16_bf16 {vr(Sp,16)}, {vr(Kp,4)}, {vr(Qh,4)}, {vr(Mk+8,16)}")
    for i in range(9): A(f"v_mov_b32 v{Oc+i}, 0")
    A("s_nop 1")
    A(f"v_max_f32 v{mx}, v{Sc}, v{Sc+1}")
    for i in range(1,8): A(f"v_max3_f32 v{mx}, v{mx}, v{Sc+2*i}, v{Sc+2*i+1}")
    for i in range(4,8): A(f"v_max3_f32 v{mx}, v{mx}, v{Sp+2*i}, v{Sp+2*i+1}")
    A(f"""v_mov_b32 v{mt}, v{mx}
    s_nop 1
    v_permlane32_swap_b32 v{mx}, v{mt}
    s_nop 1
    v_max_f32 v{mx}, v{mx}, v{mt}""")
    regs=[Sp+8+i for i in range(8)]+[Sc+i for i in range(16)]
    for r in regs: A(f"v_sub_f32 v{r}, v{r}, v{mx}")
    A.wait_lg('v')
    for j,r in enumerate(regs):
        A(f"v_exp_f32 v{r}, v{r}")
        if j==9: A(f"v_smfmac_f32_32x32x32_bf16 {vr(Oc,16)}, {vr(Vp,4)}, {vr(Sp+8,8)}, v{xIdx}")
        if j==17: A(f"v_smfmac_f32_32x32x32_bf16 {vr(Oc,16)}, {vr(Vc,4)}, {vr(Sc,8)}, v{xIdx}")
    A("s_nop 1")
    A(f"v_smfmac_f32_32x32x32_bf16 {vr(Oc,16)}, {vr(Vc+4,4)}, {vr(Sc+8,8)}, v{xIdx}")
    A(f"s_add_u32 s{sV1}, s{sV3}, {T*32768}\ns_nop 10")
    A(f"v_rcp_f32 v{mt}, v{Oc+8}\ns_nop 0")
    for i in range(8): A(f"v_mul_f32 v{Oc+i}, v{Oc+i}, v{mt}")
    dst=dstp if it%2==0 else wf[3]
    for i in range(4): A(f"v_cvt_pk_bf16_f32 v{dst+i}, v{Oc+2*i}, v{Oc+2*i+1}")
    A.vmem(f"buffer_store_dwordx4 {vr(dst,4)}, v{vOf}, {sr(SRD_WS,4)}, s{sV1} offen sc1",'oa')
stamp(19)
A(f"""s_lshl_b32 s{sV1}, s{sR2}, 3
s_add_u32 s{sV1}, s{sV1}, s{sHQ}
s_lshl_b32 s{sV1}, s{sV1}, 7
s_add_u32 s{sV1}, s{sV1}, {WS_FOA}""")
A.wait_vm_all()
A("s_mov_b64 exec, 1")
A.lds(f"ds_add_rtn_u32 v{FL}, v{gLF}, v{xOne} offset:48")
A("s_mov_b64 exec, -1")
A.wait_lg_all()
A(f"v_readfirstlane_b32 s{sV0}, v{FL}\ns_cmp_lg_u32 s{sV0}, 3\ns_cbranch_scc1 L_nofa")
flag_store(xN,xZ,sV1)
A.label("L_nofa")
lds_flags_spin(FL,gLF,sCx,sV0)
A.label("L_wo"); A.reset(); A.vm=['x']
lds_word_spin(xt0,gLF,44,sCx,sV0)
A(f"""s_lshr_b32 s{sV0}, s{sRB}, 1
s_lshl_b32 s{sV0}, s{sV0}, 10
s_add_u32 s{sV0}, s{sV0}, {WS_FOA}""")
srd(SRD_M,14,524288); srd(SRD_XA,8,524288); srd(SRD_OUT,16,4194304)
A(f"""v_lshrrev_b32 v{xt0}, 3, v0
v_and_b32 v{xt1}, 6, v{xt0}
v_xor_b32 v{xt1}, v{xt1}, v0
v_and_b32 v{xt1}, 7, v{xt1}
v_lshlrev_b32 v{xt0}, 10, v{xt0}
v_lshl_add_u32 v{xt0}, v{xt1}, 4, v{xt0}
s_lshl_b32 s{sB0}, s{sT}, 17
s_lshl_b32 s{sB1}, s{sHQ}, 7
s_add_u32 s{sB1}, s{sB1}, s{sB0}
s_lshl_b32 s{sB2}, s{sT}, 14""")
def wo_dma(base, srd_):
    for j in range(16):
        A(f"s_add_u32 m0, s{sB2}, {base+j*1024}")
        A(f"s_add_u32 s{sG0}, s{sB1}, {j*8192}")
        A.vmem(f"buffer_load_dwordx4 v{xt0}, {sr(srd_,4)}, s{sG0} offen lds")
        if j%OPT.get('pg',2)==OPT.get('pg',2)-1 and len(A.vm)>OPT['pace']: A(f"s_waitcnt vmcnt({OPT['pace']})"); A.vm=A.vm[len(A.vm)-OPT['pace']:]
if OPT['ewo']: A(f"s_cmp_lg_u32 s{sT0}, 0\ns_cbranch_scc1 L_woa")
wo_dma(WOB,SRD_M)
A.label("L_woa")
wo_dma(WOA,SRD_XA)
VY=Alloc(xBig,168)
yFl=VY.take(); yP=VY.take(2,2); yWA=[VY.take() for _ in range(4)]; yOo=VY.take()
yO=[VY.take(4,4) for _ in range(16)]
yW=[[VY.take(4,4) for _ in range(4)] for _ in range(3)]
yA=[VY.take(4,4) for _ in range(4)]
A(f"""v_and_b32 v{yFl}, 15, v0
v_lshlrev_b32 v{yOo}, 11, v{yFl}
v_lshlrev_b32 v{yFl}, 7, v{yFl}
v_lshrrev_b32 v{xt0}, 4, v0
v_lshl_add_u32 v{yOo}, v{xt0}, 3, v{yOo}""")
poll_issue(yP,yFl,sV0,0xff)
poll_check(yP,yFl,sV0,sCx,sNx,0xff,sleep=OPT['slp'])
stamp(20)
A(f"""s_lshl_b32 s{sV2}, s{sRB}, 2
s_add_u32 s{sV2}, s{sV2}, s{sT}
s_lshl_b32 s{sB0}, s{sV2}, 14
s_add_u32 s{sB0}, s{sB0}, {WS_OFA}""")
for i in range(16 if not OPT.get('nowo') else 0):
    if i and i%4==0: A(f"s_add_u32 s{sB0}, s{sB0}, 4096")
    A.vmem(f"buffer_load_dwordx4 {vr(yO[i],4)}, v{xL16}, {sr(SRD_WS,4)}, s{sB0} offen offset:{(i%4)*1024} sc1")
    if OPT['pace']<60 and i%2==1 and len(A.vm)>OPT['pace']: A(f"s_waitcnt vmcnt({OPT['pace']})"); A.vm=A.vm[-OPT['pace']:]
wo_tr_addr(yWA[0],xt0,xt1)
A(f"""v_add_u32 v{yWA[0]}, {WOA}, v{yWA[0]}
v_xor_b32 v{yWA[1]}, 32, v{yWA[0]}
v_xor_b32 v{yWA[2]}, 64, v{yWA[0]}
v_xor_b32 v{yWA[3]}, 96, v{yWA[0]}
s_lshl_b32 s{sB0}, s{sV2}, 15
s_lshl_b32 s{sB1}, s{sHQ}, 7
s_add_u32 s{sB0}, s{sB0}, s{sB1}""")
A.wait_vm_all()
stamp(21)
A("s_setprio 0")
A("s_barrier")
def woa_read(hp_,c):
    if hp_>=16: return
    b=hp_%3
    A.lds(f"ds_read_b64_tr_b16 {vr(yW[b][c],2)}, v{yWA[c]} offset:{hp_*4096}",('wa',hp_,c))
    A.lds(f"ds_read_b64_tr_b16 {vr(yW[b][c]+2,2)}, v{yWA[c]} offset:{hp_*4096+1024}",('wa',hp_,c))
for c in range(4): woa_read(0,c)
for c in range(2): woa_read(1,c)
for i in range(16):
    for c in range(4):
        A.wait_lg(('wa',i,c))
        A(f"v_mfma_f32_16x16x32_bf16 {vr(yA[c],4)}, {vr(yW[i%3][c],4)}, {vr(yO[i],4)}, {'0' if i==0 else vr(yA[c],4)}")
        woa_read(i+1+(c+2)//4,(c+2)%4)
A("s_nop 7")
for c in range(4):
    acc=yA[c]
    A(f"v_cvt_pk_bf16_f32 v{acc}, v{acc}, v{acc+1}\nv_cvt_pk_bf16_f32 v{acc+1}, v{acc+2}, v{acc+3}")
    A.vmem(f"buffer_store_dwordx2 {vr(acc,2)}, v{yOo}, {sr(SRD_OUT,4)}, s{sB0} offen offset:{c*32}")
stamp(22)
stamp_out(yFl)
A.label("L_end")
A("s_endpgm")
A.label("L_codeend")

errs=check(A.lines)
for e in errs[:25]: print("CHECK:",e, file=sys.stderr)
hdr=open('concat_heads__sliding_local_dilated__softmax_full_mha__prompt.s.ref').read().split('; Override')[0]
nv=168
out=hdr+f"""; @launch grid=(256,1,1) block=(768,1,1) lds={LDS_BYTES}
.amdgcn_target "amdgcn-amd-amdhsa--gfx950"
.text
.globl {NAME}
.p2align 8
.type {NAME},@function
"""+A.text()+f""".section .rodata,"a"
.p2align 6
.amdhsa_kernel {NAME}
  .amdhsa_next_free_vgpr {nv}
  .amdhsa_next_free_sgpr 102
  .amdhsa_accum_offset {nv}
  .amdhsa_group_segment_fixed_size 0
  .amdhsa_kernarg_size 72
  .amdhsa_user_sgpr_count 2
  .amdhsa_user_sgpr_kernarg_segment_ptr 1
  .amdhsa_system_sgpr_workgroup_id_x 1
.end_amdhsa_kernel
"""
open(sys.argv[1],'w').write(out)
print("vgpr att",VA.hi,VB.hi,"aux",VX.hi,VY.hi,"lines",len(A.lines),"errs",len(errs))
```

```python
import sys, math, struct
from asmlib import *
NAME="concat_heads__sliding_local_dilated__softmax_full_mha__prompt_kernel"
OPT=dict(cm=2, up=3, ib=1, pace=1, stamp=0, pfc=0, ewo=0, pp=1, m=2, rel=8, slp=2)
for a in sys.argv[2:]:
    k,v=a.split('='); OPT[k]=int(v) if v.lstrip('-').isdigit() else v

SL=40960; LXO=24576; EAQ=65536; EAK=81920-8192; RED=131072; LF=155648
WOB=0; WOA=65536
LDS_BYTES=163840
WS_KV=0; WS_OFB=4<<20; WS_OFA=6<<20; WS_Q=10<<20; WS_HA=12<<20
FGS=OPT.get('fgs',7); WS_FG=(8<<20)+OPT.get('fgo',0); WS_FOB=(8<<20)+262144+OPT.get('fbo',0); WS_EPOCH=(8<<20)+65536; WS_FOA=(8<<20)+131072; WS_FH=(8<<20)+163840
WS_STAMP=30<<20
WS_BYTES=32<<20
CSCALE=0.25*math.log2(math.e)
def f2u(x): return struct.unpack('<I',struct.pack('<f',x))[0]
NEGBIG=f2u(-1e30)
SPIN=30000

A=Asm()
sW=22; sHQ=23; sRB=24; sSG=25; sBR=26; sR2=27
SRD_X=28; SRD_W=32; SRD_XA=36; sHG=3; sHK=40; sHV=41; sT0=42; sT1=43; SRD_WS=44; SRD_DBG=48; SRD_M=52; SRD_OUT=56
sA0=60

def srd(base, ptr, nbytes):
    A(f"""s_mov_b32 s{base}, s{ptr}
    s_mov_b32 s{base+1}, s{ptr+1}
    s_mov_b32 s{base+2}, {nbytes}
    s_mov_b32 s{base+3}, 0x00020000""")
vSt=1
def stamp(idx, lvl=1):
    if OPT.get('amp')==idx:
        A("s_memrealtime s[94:95]\ns_waitcnt lgkmcnt(0)"); A.lg=[]
    if OPT['stamp']<lvl: return
    if 'only' in OPT and idx not in [int(x) for x in str(OPT['only']).split(',')]: return
    A(f"""s_memrealtime s[96:97]
    s_memtime s[98:99]
    s_waitcnt lgkmcnt(0)
    v_writelane_b32 v{vSt}, s96, {idx}
    v_writelane_b32 v{vSt}, s98, {idx+32}""")
    A.lg=[]
def stamp_out(vtmp):
    if not OPT['stamp']: return
    A(f"""v_writelane_b32 v{vSt}, s100, 31
    s_mul_i32 s96, s2, 12
    s_add_u32 s96, s96, s{sW}
    s_lshl_b32 s96, s96, 8
    s_add_u32 s96, s96, {WS_STAMP}
    v_lshlrev_b32 v{vtmp}, 2, v0
    buffer_store_dword v{vSt}, v{vtmp}, {sr(SRD_WS,4)}, s96 offen""")
def poll_issue(vdst, voff, soff, mask=-1):
    if mask!=-1: A(f"s_mov_b64 exec, {mask:#x}")
    A.vmem(f"buffer_load_dwordx2 {vr(vdst,2)}, v{voff}, {sr(SRD_WS,4)}, s{soff} offen sc1",'poll')
    if mask!=-1: A("s_mov_b64 exec, -1")
def poll_check(vdst, voff, soff, scnt, snon, mask=-1, sleep=0, keep=0):
    L=A.newlabel('L_poll'); Ld=A.newlabel('L_polld'); Lc=A.newlabel('L_pollc')
    A(f"s_mov_b32 s{scnt}, 0")
    if mask!=-1: A(f"s_mov_b64 exec, {mask:#x}")
    A.wait_vm('poll')
    A(f"s_branch {Lc}")
    A.label(L)
    if sleep: A(f"s_sleep {sleep}")
    A(f"""buffer_load_dwordx2 {vr(vdst,2)}, v{voff}, {sr(SRD_WS,4)}, s{soff} offen sc1
    s_waitcnt vmcnt(0)""")
    A.label(Lc)
    A(f"""v_cmp_eq_u64 vcc, {sr(snon,2)}, {vr(vdst,2)}
    s_add_u32 s{scnt}, s{scnt}, 1
    s_cmp_eq_u64 vcc, exec
    s_cbranch_scc1 {Ld}
    s_cmp_le_u32 s{scnt}, {SPIN}
    s_cbranch_scc1 {L}""")
    A.label(Ld)
    if mask!=-1: A("s_mov_b64 exec, -1")
def poll_pipe(vd, voff, soff, scnt, snon, gap=2):
    L=A.newlabel('L_pp'); Ld=A.newlabel('L_ppd')
    ld=lambda k: A(f"buffer_load_dwordx2 {vr(vd+2*k,2)}, v{voff}, {sr(SRD_WS,4)}, s{soff} offen sc1")
    A(f"s_mov_b32 s{scnt}, 0")
    for k in range(3):
        ld(k)
        if k<2: A(f"s_sleep {gap}")
    A.label(L)
    for k in range(3):
        A(f"""s_waitcnt vmcnt(2)
        v_cmp_eq_u64 vcc, {sr(snon,2)}, {vr(vd+2*k,2)}
        s_cmp_eq_u64 vcc, exec
        s_cbranch_scc1 {Ld}""")
        ld(k)
    A(f"""s_add_u32 s{scnt}, s{scnt}, 1
    s_cmp_le_u32 s{scnt}, {SPIN}
    s_cbranch_scc1 {L}""")
    A.label(Ld)
def lds_word_spin(vF, vAddr, off, scnt, stmp):
    L=A.newlabel('L_ws'); Ld=A.newlabel('L_wsd')
    A(f"s_mov_b32 s{scnt}, 0")
    A.label(L)
    A(f"""ds_read_b32 v{vF}, v{vAddr} offset:{off}
    s_add_u32 s{scnt}, s{scnt}, 1
    s_waitcnt lgkmcnt(0)
    v_readfirstlane_b32 s{stmp}, v{vF}
    s_cmp_gt_u32 s{scnt}, {SPIN*8}
    s_cbranch_scc1 {Ld}
    {"s_sleep 1" if OPT.get('lsl') else ""}
    s_cmp_eq_u32 s{stmp}, 0
    s_cbranch_scc1 {L}""")
    A.label(Ld)
    A.lg=[]
def nonce_check(vN, vZ, snon, scnt, stmp):
    L=A.newlabel('L_non'); Ld=A.newlabel('L_nond')
    A(f"s_mov_b32 s{scnt}, 0")
    A.label(L)
    A(f"""v_readfirstlane_b32 s{snon}, v{vN}
    v_readfirstlane_b32 s{snon+1}, v{vN+1}
    s_add_u32 s{scnt}, s{scnt}, 1
    s_cmp_gt_u32 s{scnt}, {SPIN}
    s_cbranch_scc1 {Ld}
    s_cmp_eq_u32 s{snon}, 0
    s_cselect_b32 s{stmp}, 0, s{snon+1}
    s_cmp_lg_u32 s{stmp}, 0
    s_cbranch_scc1 {Ld}
    buffer_load_dwordx2 {vr(vN,2)}, v{vZ}, {sr(SRD_DBG,4)}, 0 offen sc1
    s_waitcnt vmcnt(0)
    s_branch {L}""")
    A.label(Ld)
def flag_store(vN, vZ, soff):
    A("s_mov_b64 exec, 1")
    A.vmem(f"buffer_store_dwordx2 {vr(vN,2)}, v{vZ}, {sr(SRD_WS,4)}, s{soff} offen sc1",'flag')
    A("s_mov_b64 exec, -1")
def lds_flags_spin(vF, vAddr, scnt, stmp, issued=False):
    L=A.newlabel('L_xs'); Ld=A.newlabel('L_xsd'); Lc=A.newlabel('L_xsc')
    A(f"s_mov_b32 s{scnt}, 0")
    if issued: A(f"s_branch {Lc}")
    A.label(L)
    A(f"ds_read_b128 {vr(vF,4)}, v{vAddr}")
    A.label(Lc)
    A(f"""s_add_u32 s{scnt}, s{scnt}, 1
    s_waitcnt lgkmcnt(0)
    v_and_b32 v{vF}, v{vF}, v{vF+1}
    v_and_b32 v{vF+2}, v{vF+2}, v{vF+3}
    v_and_b32 v{vF}, v{vF}, v{vF+2}
    s_cmp_gt_u32 s{scnt}, {SPIN*4}
    v_readfirstlane_b32 s{stmp}, v{vF}
    s_cbranch_scc1 {Ld}
    s_cmp_eq_u32 s{stmp}, 0
    s_cbranch_scc1 {L}""")
    A.label(Ld)
    A.lg=[]
def wo_tr_addr(dst, t0, t1):
    A(f"""v_lshrrev_b32 v{t0}, 2, v0
    v_and_b32 v{t0}, 7, v{t0}
    v_lshrrev_b32 v{t1}, 5, v0
    v_lshl_add_u32 v{t1}, v{t1}, 4, v{t0}
    v_lshlrev_b32 v{t1}, 7, v{t1}
    v_and_b32 v{t0}, 6, v{t0}
    v_bfe_u32 v{dst}, v0, 1, 1
    v_xor_b32 v{t0}, v{t0}, v{dst}
    v_lshl_add_u32 v{t1}, v{t0}, 4, v{t1}
    v_and_b32 v{t0}, 1, v0
    v_lshl_add_u32 v{dst}, v{t0}, 3, v{t1}""")


def loc_unit(R, pre=None):
    Sc,Sp,Oc,Mk=R['Sc'],R['Sp'],R['Oc'],R['Mk']; mx,mt=R['mx'],R['mt']
    if pre: pre()
    A.wait_lg('kc')
    A(f"v_mfma_f32_32x32x16_bf16 {vr(Sc,16)}, {vr(R['Kc'],4)}, {vr(R['Qh'],4)}, {vr(Mk,16)}")
    A.wait_lg('kp')
    A(f"v_mfma_f32_32x32x16_bf16 {vr(Sp,16)}, {vr(R['Kp'],4)}, {vr(R['Qh'],4)}, {vr(Mk+8,16)}")
    for i in range(9): A(f"v_mov_b32 v{Oc+i}, 0")
    A("s_nop 1")
    A(f"v_max_f32 v{mx}, v{Sc}, v{Sc+1}")
    A(f"v_max3_f32 v{mt}, v{Sc+2}, v{Sc+3}, v{Sc+4}")
    for i in range(5,15,4):
        A(f"v_max3_f32 v{mx}, v{mx}, v{Sc+i}, v{Sc+i+1}")
        if i+3<16: A(f"v_max3_f32 v{mt}, v{mt}, v{Sc+i+2}, v{Sc+i+3}")
    A(f"v_max3_f32 v{mt}, v{mt}, v{Sc+15}, v{Sp+8}")
    A(f"v_max3_f32 v{mx}, v{mx}, v{Sp+9}, v{Sp+10}")
    A(f"v_max3_f32 v{mt}, v{mt}, v{Sp+11}, v{Sp+12}")
    A(f"v_max3_f32 v{mx}, v{mx}, v{Sp+13}, v{Sp+14}")
    A(f"v_max3_f32 v{mx}, v{mx}, v{mt}, v{Sp+15}")
    A(f"""v_mov_b32 v{mt}, v{mx}
    s_nop 1
    v_permlane32_swap_b32 v{mx}, v{mt}
    s_nop 1
    v_max_f32 v{mx}, v{mx}, v{mt}""")
    regs=[Sp+8+i for i in range(8)]+[Sc+i for i in range(16)]
    for r in regs: A(f"v_sub_f32 v{r}, v{r}, v{mx}")
    A.wait_lg('v')
    for j,r in enumerate(regs):
        A(f"v_exp_f32 v{r}, v{r}")
        if j==9: A(f"v_smfmac_f32_32x32x32_bf16 {vr(Oc,16)}, {vr(R['Vp'],4)}, {vr(Sp+8,8)}, v{R['idx']}")
        if j==17: A(f"v_smfmac_f32_32x32x32_bf16 {vr(Oc,16)}, {vr(R['Vc'],4)}, {vr(Sc,8)}, v{R['idx']}")
    A("s_nop 1")
    A(f"v_smfmac_f32_32x32x32_bf16 {vr(Oc,16)}, {vr(R['Vc']+4,4)}, {vr(Sc+8,8)}, v{R['idx']}")
    A("s_nop 11")
    A(f"v_rcp_f32 v{mt}, v{Oc+8}\ns_nop 0")
    for i in range(8): A(f"v_mul_f32 v{Oc+i}, v{Oc+i}, v{mt}")
    for i in range(4): A(f"v_cvt_pk_bf16_f32 v{R['dst']+i}, v{Oc+2*i}, v{Oc+2*i+1}")
MSK=RED
AMAP={4:"",
 2:f"s_and_b32 s{sHQ}, s2, 3\ns_lshl_b32 s{sHQ}, s{sHQ}, 1\ns_and_b32 s{sT0}, s{sT1}, 1\ns_add_u32 s{sHQ}, s{sHQ}, s{sT0}\ns_and_b32 s{sRB}, s2, 4\ns_lshl_b32 s{sRB}, s{sRB}, 2\ns_lshr_b32 s{sT0}, s{sT1}, 1\ns_add_u32 s{sRB}, s{sRB}, s{sT0}",
 1:f"s_and_b32 s{sHQ}, s2, 7\ns_mov_b32 s{sRB}, s{sT1}"}[OPT.get('amap',4)]
A.label(NAME)
if OPT['stamp'] or 'amp' in OPT: A("s_memrealtime s[100:101]")
A(f"""s_cmp_ge_u32 s2, 256
s_cbranch_scc1 L_end
s_load_dwordx16 s[4:19], s[0:1], 0
s_load_dwordx2 s[20:21], s[0:1], 64
v_lshrrev_b32 v1, 6, v0
v_and_b32 v0, 63, v0
s_lshr_b32 s{sT1}, s2, 3
v_readfirstlane_b32 s{sW}, v1
""")
if OPT.get('map8'):
    A(f"""s_and_b32 s{sHQ}, s{sT1}, 7
    s_and_b32 s{sRB}, s2, 7
    s_lshl_b32 s{sRB}, s{sRB}, 2
    s_lshr_b32 s{sT0}, s{sT1}, 3
    s_add_u32 s{sRB}, s{sRB}, s{sT0}""")
else:
    A(f"""s_and_b32 s{sHQ}, s2, 1
s_lshl_b32 s{sHQ}, s{sHQ}, 2
s_and_b32 s{sT0}, s{sT1}, 3
s_add_u32 s{sHQ}, s{sHQ}, s{sT0}
s_and_b32 s{sRB}, s2, 6
s_lshl_b32 s{sRB}, s{sRB}, 2
s_lshr_b32 s{sT0}, s{sT1}, 2
s_add_u32 s{sRB}, s{sRB}, s{sT0}""")
if OPT['m']==2: A(f"s_lshr_b32 s{sBR}, s{sRB}, 4\ns_and_b32 s{sR2}, s{sRB}, 15")
else: A(f"s_and_b32 s{sBR}, s{sRB}, 1\ns_lshr_b32 s{sR2}, s{sRB}, 1")
A({1:f"s_lshl_b32 s{sSG}, s{sHQ}, 1\ns_add_u32 s{sSG}, s{sSG}, s{sR2}", 2:f"s_mov_b32 s{sSG}, s{sR2}", 3:f"s_and_b32 s{sSG}, s{sR2}, 3",
   4:f"s_and_b32 s{sSG}, s{sR2}, 1\ns_lshl_b32 s{sSG}, s{sSG}, 2", 5:f"s_and_b32 s{sSG}, s{sR2}, 3\ns_lshl_b32 s{sSG}, s{sSG}, 1", 6:f"s_and_b32 s{sSG}, s{sR2}, 1"}[OPT.get('rot',1)])
A(f"""s_and_b32 s{sT0}, s{sHQ}, 4
s_cmp_eq_u32 s{sBR}, 0
s_cselect_b32 s{sHK}, 1, 0
s_cselect_b32 s{sHV}, 2, 0
s_add_u32 s{sHK}, s{sHK}, s{sHQ}
s_and_b32 s{sHK}, s{sHK}, 3
s_or_b32 s{sHK}, s{sHK}, s{sT0}
s_add_u32 s{sHV}, s{sHV}, s{sHQ}
s_and_b32 s{sHV}, s{sHV}, 3
s_or_b32 s{sHV}, s{sHV}, s{sT0}
s_mov_b32 s{sHG}, s{sHQ}
{AMAP}
s_cmp_lg_u32 s{sHQ}, 3
s_cselect_b32 s{sT0}, s{sBR}, 0
s_cmp_ge_u32 s{sW}, 8
s_cbranch_scc1 L_aux""")

VA=Alloc(2,168)
vx=VA.take(); vw=VA.take(); vt0=VA.take(); vt1=VA.take(); vt2=VA.take(); vt3=VA.take()
vL16=VA.take(); vVo=VA.take(); vIdx=VA.take(); vFl=VA.take(); vP=VA.take(2,2); vN=VA.take(2,2); vZ=VA.take()
vEQ0=VA.take(); vEK=VA.take(); vEV=VA.take(); vx1=vEQ0; vLF=vt3; vKp=vEV
ND=6
vBig=VA.mark()
Qf=[VA.take(4,4) for _ in range(2)]
Sb=[VA.take(16,4) for _ in range(2)]
Oa=[VA.take(16,4) for _ in range(2)]
Kf=[VA.take(4,4) for _ in range(ND)]
Vf=[VA.take(8,4) for _ in range(ND)]
sXoff=sA0; sM0=sA0+1; sWoff=sA0+2; sFOr=sA0+3; sOld=sA0+4; sOut=sA0+5; sOst=sA0+6; sFOw=sA0+7
sU0=sA0+8; sU1=sA0+9; sU2=sA0+10
sE=sA0+11; sKH=sA0+12; sM2=sA0+13; sKVb=sA0+14; sOff=sA0+15; sNon=sA0+16; sVM=sA0+18; sCnt=sA0+20; sBlk=sA0+21
sFGr=sA0+22; sQ0=sA0+23; sQ1=sA0+24; sLo=sA0+25; sHi=sA0+26; sX0=sA0+28
sF0=sA0+30; sF1=sA0+31; sF2=sA0+32; sWoffK=sA0+33; sWoffV=sA0+34
A(f"""v_lshrrev_b32 v{vt0}, 3, v0
v_mul_u32_u24 v{vw}, 3072, v{vt0}
v_lshlrev_b32 v{vt0}, 10, v{vt0}
v_lshrrev_b32 v{vt1}, 2, v0
v_and_b32 v{vt1}, 4, v{vt1}
v_xor_b32 v{vt1}, v{vt1}, v0
v_and_b32 v{vt1}, 7, v{vt1}
v_lshl_add_u32 v{vw}, v{vt1}, 4, v{vw}
v_lshrrev_b32 v{vt1}, 4, v0
v_xor_b32 v{vt1}, v{vt1}, v0
v_and_b32 v{vt1}, 7, v{vt1}
v_lshl_add_u32 v{vx}, v{vt1}, 4, v{vt0}
v_xor_b32 v{vx1}, 64, v{vx}
v_add_u32 v{vx1}, 8192, v{vx1}
s_lshl_b32 s{sXoff}, s{sR2}, 17
s_lshl_b32 s{sU0}, s{sW}, 14
s_add_u32 s{sXoff}, s{sXoff}, s{sU0}
s_lshl_b32 s{sM0}, s{sW}, 10
s_lshl_b32 s{sM2}, s{sW}, 11
s_mul_i32 s{sWoff}, s{sW}, 24576
s_lshl_b32 s{sU0}, s{sHK}, 7
s_add_u32 s{sWoffK}, s{sWoff}, s{sU0}
s_lshl_b32 s{sU0}, s{sHV}, 7
s_add_u32 s{sWoffV}, s{sWoff}, s{sU0}
s_lshl_b32 s{sU0}, s{sHG}, 7
s_add_u32 s{sWoff}, s{sWoff}, s{sU0}
s_mov_b32 s{SRD_X+2}, 2097152
s_mov_b32 s{SRD_X+3}, 0x00020000
s_mov_b32 s{SRD_W+2}, 1572864
s_mov_b32 s{SRD_W+3}, 0x00020000
s_cmp_eq_u32 s{sBR}, 0
s_waitcnt lgkmcnt(0)
s_cselect_b32 s{SRD_X}, s10, s4
s_cselect_b32 s{SRD_X+1}, s11, s5
s_cselect_b32 s{SRD_W}, s12, s6
s_cselect_b32 s{SRD_W+1}, s13, s7""")
def issue_stage(s):
    slot=(s+1)%3
    CM=OPT.get('cm',0)
    if CM==0: A(f"s_add_u32 s{sU0}, s{sSG}, {s}\ns_and_b32 s{sU0}, s{sU0}, 7")
    elif s<CM: A(f"s_mov_b32 s{sU0}, {OPT.get('c0',0)+s}")
    else:
        if s==CM:
            mg={2:43,1:37,3:52}[CM]; M=8-CM
            A(f"s_mul_i32 s{sU0}, s{sSG}, {mg}\ns_lshr_b32 s{sU0}, s{sU0}, 8\ns_mul_i32 s{sU0}, s{sU0}, {M}\ns_sub_u32 s{sSG}, s{sSG}, s{sU0}")
        else:
            A(f"s_add_u32 s{sSG}, s{sSG}, 1\ns_cmp_eq_u32 s{sSG}, {8-CM}\ns_cselect_b32 s{sSG}, 0, s{sSG}")
        A(f"s_add_u32 s{sU0}, s{sSG}, {CM+OPT.get('c0',0)}\ns_and_b32 s{sU0}, s{sU0}, 7")
    A(f"""s_mul_i32 s{sU1}, s{sU0}, 196608
    s_lshl_b32 s{sU0}, s{sU0}, 7
    s_add_u32 m0, s{sM2}, {slot*SL+LXO}
    s_add_u32 s{sU0}, s{sU0}, s{sXoff}""")
    A.vmem(f"buffer_load_dwordx4 v{vx}, {sr(SRD_X,4)}, s{sU0} offen lds", s)
    for p in (1,2,0):
        A(f"s_add_u32 m0, s{sM0}, {slot*SL+p*7168}")
        A(f"s_add_u32 s{sU2}, s{sU1}, s{(sWoff,sWoffK,sWoffV)[p]}")
        A.vmem(f"buffer_load_dwordx4 v{vw}, {sr(SRD_W,4)}, s{sU2} offen offset:{p*1024} lds", s)
        if p==1:
            A(f"s_add_u32 m0, s{sM2}, {slot*SL+LXO+1024}\ns_nop 0")
            A.vmem(f"buffer_load_dwordx4 v{vx1}, {sr(SRD_X,4)}, s{sU0} offen lds", s)
class Cap:
    def __enter__(self): self.n=len(A.lines); return self
    def __exit__(self,*a): self.l=A.lines[self.n:]; del A.lines[self.n:]
def att_setup():
    srd(SRD_DBG,18,256)
    A(f"""v_mov_b32 v{vZ}, 0
    s_lshr_b32 s{sE}, s{sW}, 1
    s_and_b32 s{sKH}, s{sW}, 1
    s_lshl_b32 s{sF1}, s{sHQ}, 2
    s_add_u32 s{sF1}, s{sF1}, s{sE}
    s_lshl_b32 s{sKVb}, s{sF1}, 17
    s_lshl_b32 s{sF0}, s{sKH}, 11
    s_add_u32 s{sKVb}, s{sKVb}, s{sF0}
    s_lshl_b32 s{sQ0}, s{sF1}, 6
    s_lshl_b32 s{sF0}, s{sRB}, 1
    s_add_u32 s{sQ0}, s{sQ0}, s{sF0}
    s_add_u32 s{sQ0}, s{sQ0}, s{sKH}
    s_lshl_b32 s{sQ0}, s{sQ0}, 10
    s_add_u32 s{sQ0}, s{sQ0}, {WS_Q}
    s_xor_b32 s{sQ1}, s{sQ0}, 1024
    s_mov_b32 s{sVM}, 0x0000ffff
    s_mov_b32 s{sVM+1}, 0x0000ffff
    v_lshlrev_b32 v{vL16}, 4, v0
    v_and_b32 v{vt0}, 15, v0
    v_lshlrev_b32 v{vt1}, 4, v{vt0}
    v_lshrrev_b32 v{vt2}, 5, v0
    v_lshl_add_u32 v{vVo}, v{vt2}, 8, v{vt1}
    v_mov_b32 v{vIdx}, 0xdddddddd
    v_and_b32 v{vKp}, 0x33, v0
    v_bfe_u32 v{vt2}, v0, 2, 1
    v_lshl_add_u32 v{vKp}, v{vt2}, 3, v{vKp}
    v_bfe_u32 v{vt2}, v0, 3, 1
    v_lshl_add_u32 v{vKp}, v{vt2}, 2, v{vKp}
    v_lshlrev_b32 v{vKp}, 4, v{vKp}
    s_and_b32 s{sF2}, s{sHQ}, 4
    s_sub_u32 s{sF0}, s{sHQ}, 1
    s_and_b32 s{sF0}, s{sF0}, 3
    s_or_b32 s{sF0}, s{sF0}, s{sF2}
    s_lshl_b32 s{sF0}, s{sF0}, 11
    s_sub_u32 s{sF1}, s{sHQ}, 2
    s_and_b32 s{sF1}, s{sF1}, 3
    s_or_b32 s{sF1}, s{sF1}, s{sF2}
    s_lshl_b32 s{sF1}, s{sF1}, 11
    v_mov_b32 v{vt1}, s{sF0}
    v_mov_b32 v{vt2}, s{sF1}
    v_cmp_gt_u32 vcc, 16, v0
    s_lshl_b32 s{sF0}, s{sHQ}, 4
    s_lshr_b32 s{sF1}, s{sRB}, 1
    v_cndmask_b32 v{vt1}, v{vt2}, v{vt1}, vcc
    v_lshl_add_u32 v{vFl}, v{vt0}, 7, v{vt1}
    s_add_u32 s{sF0}, s{sF0}, s{sF1}
    s_lshl_b32 s{sF0}, s{sF0}, 7
    s_mov_b32 s{sFGr}, {WS_FG}
    v_writelane_b32 v{vFl}, s{sF0}, 32
    v_mov_b32 v{vLF}, {LF}
    v_and_b32 v{vt0}, 27, v0
    v_cmp_eq_u32 vcc, 16, v{vt0}
    v_mov_b32 v{vt1}, 0x3f803f80
    s_nop 0
    v_cndmask_b32 v{vt1}, 0, v{vt1}, vcc""")
    for d in range(ND):
        for i in range(8): A(f"v_mov_b32 v{Vf[d]+i}, v{vt1}")
    for d in range(2):
        for i in range(16): A(f"v_mov_b32 v{Oa[d]+i}, 0")
    A(f"""s_lshl_b32 s{sF0}, s{sRB}, 1
    s_add_u32 s{sF0}, s{sF0}, s{sKH}
    s_lshl_b32 s{sOst}, s{sF0}, 5
    s_lshl_b32 s{sF1}, s{sHQ}, 1
    s_add_u32 s{sOst}, s{sOst}, s{sF1}
    s_lshr_b32 s{sF1}, s{sE}, 1
    s_add_u32 s{sOst}, s{sOst}, s{sF1}
    s_lshl_b32 s{sOst}, s{sOst}, 10
    s_add_u32 s{sOst}, s{sOst}, {WS_OFB}
    s_lshl_b32 s{sFOr}, s{sRB}, 10
    s_add_u32 s{sFOr}, s{sFOr}, {WS_FOB}
    s_lshl_b32 s{sFOw}, s{sHQ}, 7
    s_add_u32 s{sFOw}, s{sFOw}, s{sFOr}
    s_and_b32 s{sF0}, s{sW}, 3
    s_lshl_b32 s{sF1}, s{sRB}, 2
    s_add_u32 s{sF1}, s{sF1}, s{sF0}
    s_lshr_b32 s{sF2}, s{sW}, 2
    s_lshl_b32 s{sOld}, s{sF1}, 1
    s_add_u32 s{sOld}, s{sOld}, s{sF2}
    s_lshl_b32 s{sOld}, s{sOld}, 13
    s_add_u32 s{sOld}, s{sOld}, {WS_OFB}
    s_lshl_b32 s{sOut}, s{sF1}, 15
    s_lshl_b32 s{sF0}, s{sHQ}, 7
    s_add_u32 s{sOut}, s{sOut}, s{sF0}
    s_lshl_b32 s{sF0}, s{sF2}, 6
    s_add_u32 s{sOut}, s{sOut}, s{sF0}
    s_add_u32 s{sOut}, s{sOut}, 1024
    s_mov_b32 s{sLo}, {f2u(2.0**-80):#x}
    s_mov_b32 s{sHi}, {f2u(2.0**96):#x}""")
    srd(SRD_OUT,16,4194304)
with Cap() as c1: att_setup()
FILL=c1.l
def fill(q,n):
    k=min(n,len(q))
    while k<len(q) and any(x.startswith('v_cmp') for x in q[max(0,k-3):k]): k+=1
    for l in q[:k]: A(l)
    del q[:k]
def kv_load(i):
    if OPT.get('nokv'): return
    d=i%ND
    A(f"""s_add_u32 s{sBlk}, s{sRB}, {i}
    s_and_b32 s{sBlk}, s{sBlk}, 31
    s_lshl_b32 s{sBlk}, s{sBlk}, 12
    s_add_u32 s{sOff}, s{sBlk}, s{sKVb}""")
    A.vmem(f"buffer_load_dwordx4 {vr(Kf[d],4)}, v{vKp}, {sr(SRD_WS,4)}, s{sOff} offen sc1",('kv',i))
    A(f"s_mov_b64 exec, {sr(sVM,2)}")
    A.vmem(f"buffer_load_dwordx4 {vr(Vf[d],4)}, v{vVo}, {sr(SRD_WS,4)}, s{sOff} offen offset:1024 sc1",('kv',i))
    A.vmem(f"buffer_load_dwordx4 {vr(Vf[d]+4,4)}, v{vVo}, {sr(SRD_WS,4)}, s{sOff} offen offset:1536 sc1",('kv',i))
    A("s_mov_b64 exec, -1")
def QK(u): A(f"v_mfma_f32_32x32x16_bf16 {vr(Sb[u%2],16)}, {vr(Kf[(u//2)%ND],4)}, {vr(Qf[u%2],4)}, 0")
def PV(u,t): A(f"v_smfmac_f32_32x32x32_bf16 {vr(Oa[u%2],16)}, {vr(Vf[(u//2)%ND]+4*t,4)}, {vr(Sb[u%2]+8*t,8)}, v{vIdx}")
NU=64
PRIO0=2; PRIO={OPT.get('q1',28):1,OPT.get('q2',56):0}
SCHED={}
nxt=2
for u_ in range(64):
    lim=u_//2-1+ND if u_>=2 else ND-1
    if nxt<=min(lim,31): SCHED.setdefault(u_,[]).append(nxt); nxt+=1
def unit(u):
    S=Sb[u%2]
    E=lambda r: A(f"v_exp_f32 v{S+r}, v{S+r}")
    E(0);E(1)
    if u>0: PV(u-1,1)
    E(2);E(3);E(4)
    for i in SCHED.get(u,[]): kv_load(i)
    if u in PRIO: A(f"s_setprio {PRIO[u]}")
    if u==2:
        A("s_mov_b64 exec, 1"); A.lds(f"ds_add_u32 v{vLF}, v{vEK} offset:48"); A("s_mov_b64 exec, -1")
    if u==OPT['rel']: A.lds(f"ds_write_b32 v{vLF}, v{vIdx} offset:44")
    if u+1<NU:
        if (u+1)%2==0: A.wait_vm(('kv',(u+1)//2))
        QK(u+1)
    for r in range(5,10): E(r)
    PV(u,0)
    for r in range(10,16): E(r)
    if u in (3,5,9,17,33): stamp(18+(3,5,9,17,33).index(u), 1 if u in (5,33) else 2)
UP=OPT.get('up',2)
issue_stage(0)
if UP>=2: issue_stage(1)
srd(SRD_WS,20,WS_BYTES)
stamp(0)
if OPT.get('ib'): A("s_barrier")
if UP>=3: issue_stage(2)
for s in range(8):
    A.wait_vm(s)
    A("s_barrier")
    stamp(1+s, 1 if s in (0,4) else 2)
    if s==0:
        for k in range(UP,3): issue_stage(k)
    if 1<=s<=5: issue_stage(s+2)
    if s==7:
        A.wait_vm('non')
    fill(FILL, 24 if s<7 else 999)
    if s==5: A.vmem(f"buffer_load_dwordx2 {vr(vN,2)}, v{vZ}, {sr(SRD_DBG,4)}, 0 offen sc1",'non')
A.wait_vm('non')
nonce_check(vN,vZ,sNon,sCnt,sU0)
A(f"""s_cmp_eq_u32 s{sBR}, 0
s_cbranch_scc1 L_nomask
s_cmp_gt_u32 s{sW}, 5
s_cbranch_scc1 L_nomask
v_and_b32 v{vt0}, 31, v0
v_lshrrev_b32 v{vt1}, 5, v0
v_lshlrev_b32 v{vt1}, 3, v{vt1}
v_sub_u32 v{vt0}, v{vt0}, v{vt1}
s_lshr_b32 s{sU0}, s{sW}, 1
s_lshl_b32 s{sU0}, s{sU0}, 4
s_and_b32 s{sU1}, s{sW}, 1
s_lshl_b32 s{sU1}, s{sU1}, 2
s_add_u32 s{sU0}, s{sU0}, s{sU1}
s_cmp_gt_u32 s{sW}, 3
s_cselect_b32 s{sU1}, 48, 0
s_sub_u32 s{sU0}, s{sU0}, s{sU1}
v_subrev_u32 v{vt0}, s{sU0}, v{vt0}
v_mov_b32 v{vt2}, {NEGBIG:#x}
s_mov_b32 s{sU1}, 0xfffffff1""")
for i in range(4):
    A(f"v_subrev_u32 v{Sb[0]+i}, {i}, v{vt0}\nv_and_b32 v{Sb[0]+i}, s{sU1}, v{Sb[0]+i}")
for i in range(4):
    A(f"v_cmp_eq_u32 vcc, 0, v{Sb[0]+i}\ns_nop 1\nv_cndmask_b32 v{Sb[0]+i}, v{vt2}, 0, vcc")
A(f"""s_add_u32 s{sU0}, s{sM0}, {MSK}
v_add_u32 v{vt0}, s{sU0}, v{vL16}
ds_write_b128 v{vt0}, {vr(Sb[0],4)}
s_waitcnt lgkmcnt(0)""")
A.label("L_nomask")
A("s_barrier")
if OPT['ewo']:
    A(f"s_cmp_eq_u32 s{sT0}, 0\ns_cbranch_scc1 L_noewo")
    srd(SRD_M,14,524288)
    A(f"""v_lshrrev_b32 v{vx}, 3, v0
    v_and_b32 v{vw}, 6, v{vx}
    v_xor_b32 v{vw}, v{vw}, v0
    v_and_b32 v{vw}, 7, v{vw}
    v_lshlrev_b32 v{vx}, 10, v{vx}
    v_lshl_add_u32 v{vx}, v{vw}, 4, v{vx}
    s_lshl_b32 s{sU0}, s{sW}, 16
    s_lshl_b32 s{sU1}, s{sHQ}, 7
    s_add_u32 s{sU0}, s{sU0}, s{sU1}
    s_lshl_b32 s{sU1}, s{sW}, 13""")
    for j in range(8):
        A(f"s_add_u32 m0, s{sU1}, {WOB+j*1024}")
        A(f"s_add_u32 s{sU0}, s{sU0}, 8192" if j else "s_nop 0")
        A.vmem(f"buffer_load_dwordx4 v{vx}, {sr(SRD_M,4)}, s{sU0} offen lds",'wob')
    A.label("L_noewo")
A("s_barrier")
stamp(30)
A(f"""s_cmp_eq_u32 s{sBR}, 0
s_cbranch_scc1 L_noloc
s_and_b32 s{sU0}, s{sW}, 3
s_lshr_b32 s{sU1}, s{sW}, 2
s_lshl_b32 s{sU2}, s{sU1}, 2
s_add_u32 s{sU2}, s{sU2}, s{sU0}
s_lshl_b32 s{sF0}, s{sU2}, 10
s_add_u32 s{sF0}, s{sF0}, {EAQ+2*4096}
v_add_u32 v{vx}, s{sF0}, v{vL16}
s_lshl_b32 s{sF0}, s{sU2}, 11
s_add_u32 s{sF0}, s{sF0}, {EAK+2*8192}
v_add_u32 v{vw}, s{sF0}, v{vL16}
v_add_u32 v{vEK}, s{sF0}, v{vVo}
v_add_u32 v{vEQ0}, {MSK}, v{vL16}""")
RA=dict(Sc=Sb[0],Sp=Sb[1],Oc=Oa[0],Mk=Kf[0],mx=vt0,mt=vt1,Qh=Qf[0],Kc=Qf[1],Kp=Oa[1],Vc=Vf[0],Vp=Vf[1],dst=Oa[1]+4,idx=vIdx)
for i in range(6): A.lds(f"ds_read_b128 {vr(Kf[i],4)}, v{vEQ0} offset:{i*1024}")
A.lds(f"ds_read_b128 {vr(RA['Qh'],4)}, v{vx}")
A.lds(f"ds_read_b128 {vr(RA['Kc'],4)}, v{vw} offset:8192",'kc')
A.lds(f"ds_read_b128 {vr(RA['Kp'],4)}, v{vw}",'kp')
A(f"s_mov_b64 exec, {sr(sVM,2)}")
A.lds(f"ds_read_b128 {vr(RA['Vc'],4)}, v{vEK} offset:{8192+1024}",'v')
A.lds(f"ds_read_b128 {vr(RA['Vc']+4,4)}, v{vEK} offset:{8192+1536}",'v')
A.lds(f"ds_read_b128 {vr(RA['Vp'],4)}, v{vEK} offset:1536",'v')
A(f"""s_mov_b64 exec, -1
v_bfe_u32 v{vt2}, v0, 4, 1
v_lshl_add_u32 v{vt2}, v{vt2}, 14, v{vVo}
s_and_b32 s{sF0}, s{sW}, 1
s_lshl_b32 s{sF0}, s{sF0}, 9
v_add_u32 v{vt2}, s{sF0}, v{vt2}
s_lshl_b32 s{sF0}, s{sR2}, 2
s_add_u32 s{sF0}, s{sF0}, s{sU1}
s_add_u32 s{sF0}, s{sF0}, 2
s_lshl_b32 s{sF0}, s{sF0}, 5
s_lshl_b32 s{sF1}, s{sHG}, 1
s_add_u32 s{sF0}, s{sF0}, s{sF1}
s_lshr_b32 s{sF1}, s{sU0}, 1
s_add_u32 s{sF0}, s{sF0}, s{sF1}
s_lshl_b32 s{sF0}, s{sF0}, 10
s_add_u32 s{sF0}, s{sF0}, {WS_OFA}""")
loc_unit(RA)
A.vmem(f"buffer_store_dwordx4 {vr(RA['dst'],4)}, v{vt2}, {sr(SRD_WS,4)}, s{sF0} offen sc1")
for i in range(16): A(f"v_mov_b32 v{Oa[0]+i}, 0")
for i in range(8): A(f"v_mov_b32 v{Oa[1]+i}, 0")
A.label("L_noloc")
A(f"v_mov_b32 v{vEK}, 1")
PM=(1<<33)-1
A(f"s_mov_b32 s{sX0}, -1\ns_mov_b32 s{sX0+1}, 1")
A(f"s_cmp_lg_u32 s{sW}, 0\ns_cbranch_scc1 L_nf2")
A(f"s_mov_b64 exec, {sr(sX0,2)}")
if OPT['pp']: poll_pipe(Sb[1],vFl,sFGr,sCnt,sNon)
else:
    poll_issue(vP,vFl,sFGr)
    poll_check(vP,vFl,sFGr,sCnt,sNon)
A(f"s_mov_b64 exec, -1\nds_write_b32 v{vLF}, v{vIdx} offset:32\ns_branch L_nf3")
A.label("L_nf2")
lds_word_spin(vt0,vLF,32,sCnt,sU0)
A.label("L_nf3")
A.vm=[]
if OPT.get('idle'):
    for _ in range(OPT['idle']): A("s_sleep 16")
stamp(16,2)
if OPT.get('rep'):
    A(f"s_mov_b32 s{sF2}, {OPT['rep']}")
    A.label("L_rep")
    A("s_nop 15")
    for d in range(2):
        for i in range(16): A(f"v_mov_b32 v{Oa[d]+i}, 0")
A.vmem(f"buffer_load_dwordx4 {vr(Qf[0],4)}, v{vL16}, {sr(SRD_WS,4)}, s{sQ0} offen sc1")
kv_load(0)
A.vmem(f"buffer_load_dwordx4 {vr(Qf[1],4)}, v{vL16}, {sr(SRD_WS,4)}, s{sQ1} offen sc1",'q1')
kv_load(1)
stamp(17)
A(f"s_setprio {PRIO0}")
A.wait_vm('q1')
QK(0)
A("s_nop 11")
for u in range(NU): unit(u)
A("s_nop 1")
PV(NU-1,1)
if OPT.get('rep'):
    A(f"s_sub_u32 s{sF2}, s{sF2}, 1\ns_cmp_lg_u32 s{sF2}, 0\ns_cbranch_scc1 L_rep")
if OPT.get('spin'):
    A(f"s_mov_b32 s{sF2}, {OPT['spin']}")
    A.label("L_spin")
    A(f"s_sub_u32 s{sF2}, s{sF2}, 1\ns_cmp_lg_u32 s{sF2}, 0\ns_cbranch_scc1 L_spin")
stamp(23)
A("s_setprio 3")
vR=Sb[0]; vRa=Sb[1]
A(f"""s_mul_i32 s{sU0}, s{sW}, 2304
s_add_u32 s{sU0}, s{sU0}, {RED}
v_add_u32 v{vRa}, s{sU0}, v{vL16}
v_lshlrev_b32 v{vRa+1}, 2, v0
v_add_u32 v{vRa+1}, s{sU0}, v{vRa+1}
s_xor_b32 s{sU1}, s{sW}, 1
s_mul_i32 s{sU1}, s{sU1}, 2304
s_add_u32 s{sU1}, s{sU1}, {RED}
v_add_u32 v{vEK}, s{sU1}, v{vL16}
v_lshlrev_b32 v{vRa+3}, 2, v0
v_add_u32 v{vRa+3}, s{sU1}, v{vRa+3}""")
A.lds(f"ds_write_b128 v{vRa}, {vr(Oa[1],4)}")
A.lds(f"ds_write_b128 v{vRa}, {vr(Oa[1]+4,4)} offset:1024")
A.lds(f"ds_write_b32 v{vRa+1}, v{Oa[1]+8} offset:2048")
A(f"""v_bfe_u32 v{vRa+4}, v0, 4, 1
v_lshlrev_b32 v{vRa+4}, 14, v{vRa+4}
v_add_u32 v{vRa+4}, v{vRa+4}, v{vVo}
s_and_b32 s{sU0}, s{sE}, 1
s_lshl_b32 s{sU0}, s{sU0}, 9
v_add_u32 v{vRa+4}, s{sU0}, v{vRa+4}""")
A.wait_lg_all()
A("s_barrier")
stamp(24)
A.lds(f"ds_read_b32 v{vR+8}, v{vRa+3} offset:2048",'r2')
A.lds(f"ds_read_b128 {vr(vR,4)}, v{vEK}",'r0')
A.lds(f"ds_read_b128 {vr(vR+4,4)}, v{vEK} offset:1024",'r1')
A.wait_lg('r2')
A(f"""v_add_f32 v{Oa[0]+8}, v{Oa[0]+8}, v{vR+8}
v_cmp_nle_f32 vcc, s{sLo}, v{Oa[0]+8}
v_cmp_nge_f32 {sr(sX0,2)}, s{sHi}, v{Oa[0]+8}""")
A.wait_lg('r0')
for i in range(4): A(f"v_add_f32 v{Oa[0]+i}, v{Oa[0]+i}, v{vR+i}")
A.wait_lg('r1')
for i in range(4,8): A(f"v_add_f32 v{Oa[0]+i}, v{Oa[0]+i}, v{vR+i}")
A(f"""s_or_b64 vcc, vcc, {sr(sX0,2)}
s_cmp_lg_u64 vcc, 0
s_cbranch_scc1 L_fallback""")
A.label("L_norm")
A(f"v_rcp_f32 v{vR+9}, v{Oa[0]+8}\ns_nop 0")
for i in range(8): A(f"v_mul_f32 v{Oa[0]+i}, v{Oa[0]+i}, v{vR+9}")
for i in range(4): A(f"v_cvt_pk_bf16_f32 v{vR+i}, v{Oa[0]+2*i}, v{Oa[0]+2*i+1}")
A.vmem(f"buffer_store_dwordx4 {vr(vR,4)}, v{vRa+4}, {sr(SRD_WS,4)}, s{sOst} offen sc1")
VB=Alloc(vBig,168)
Of=[VB.take(4,4) for _ in range(8)]
Wf=[[VB.take(4,4) for _ in range(4)] for _ in range(6)]
Ac=[VB.take(4,4) for _ in range(4)]
vWA=[vx,vw,vt2,vt3]; vOo=vEQ0; vXw=vEK; vXr=vEV
wo_tr_addr(vx,vt0,vt1)
A(f"""s_lshr_b32 s{sU2}, s{sW}, 2
s_lshl_b32 s{sU0}, s{sU2}, 15
s_lshl_b32 s{sU1}, s{sU2}, 6
v_add_u32 v{vx}, s{sU0}, v{vx}
v_xor_b32 v{vx}, s{sU1}, v{vx}
v_xor_b32 v{vw}, 32, v{vx}
v_xor_b32 v{vt2}, 64, v{vx}
v_xor_b32 v{vt3}, 96, v{vx}""")
assert WOB==0
def wo_read(hp_, slotset):
    for c in range(4):
        A.lds(f"ds_read_b64_tr_b16 {vr(Wf[slotset][c],2)}, v{vWA[c]} offset:{hp_*4096}",('wo',hp_))
        A.lds(f"ds_read_b64_tr_b16 {vr(Wf[slotset][c]+2,2)}, v{vWA[c]} offset:{hp_*4096+1024}",('wo',hp_))
wo_read(0,0)
A(f"""v_and_b32 v{vFl}, 15, v0
v_lshlrev_b32 v{vOo}, 11, v{vFl}
v_lshlrev_b32 v{vFl}, 7, v{vFl}
v_lshrrev_b32 v{vt0}, 4, v0
v_lshl_add_u32 v{vOo}, v{vt0}, 3, v{vOo}
s_xor_b32 s{sU1}, s{sW}, 5
s_mul_i32 s{sU1}, s{sU1}, 2304
s_add_u32 s{sU1}, s{sU1}, {RED}
v_add_u32 v{vXr}, s{sU1}, v{vL16}""")
A.wait_lg_all(); wo_read(1,1)
A(f"v_mov_b32 v{vt0}, {LF}\nv_mov_b32 v{vt1}, 1")
A.wait_vm_all()
if OPT.get('ow'): A.vmem(f"buffer_load_dword v{vN-1 if False else vIdx}, v{vRa+4}, {sr(SRD_WS,4)}, s{sOst} offen sc1")
A("s_mov_b64 exec, 1")
A.lds(f"ds_add_rtn_u32 v{vP}, v{vt0}, v{vt1} offset:40",'cnt')
A("s_mov_b64 exec, -1")
A.wait_lg('cnt')
A(f"""v_readfirstlane_b32 s{sU0}, v{vP}
s_cmp_lg_u32 s{sU0}, 7
s_cbranch_scc1 L_nl1""")
flag_store(vN,vZ,sFOw)
if not OPT['pp']: poll_issue(vP,vFl,sFOr,0xff)
A.label("L_nl1")
stamp(25)
for i in range(2,6):
    A.wait_lg_all(); wo_read(i,i)
A.wait_lg_all()
if OPT.get('dual',1):
    A(f"""s_lshr_b32 s{sU1}, s{sW}, 2
    s_lshl_b32 s{sU2}, s{sU1}, 9
    s_add_u32 s{sFOr}, s{sFOr}, s{sU2}
    s_lshl_b32 s{sU1}, s{sU1}, 4
    v_add_u32 v{vt0}, s{sU1}, v{vt0}
    s_and_b32 s{sU0}, s{sW}, 3
    s_cmp_lg_u32 s{sU0}, 0
    s_cbranch_scc1 L_nl2""")
    A("s_mov_b64 exec, 0xf"); poll_pipe(Ac[0],vFl,sFOr,sCnt,sNon); A("s_mov_b64 exec, -1")
else:
    A(f"s_cmp_lg_u32 s{sU0}, 7\ns_cbranch_scc1 L_nl2")
    A("s_mov_b64 exec, 0xff"); poll_pipe(Ac[0],vFl,sFOr,sCnt,sNon); A("s_mov_b64 exec, -1")
A(f"ds_write_b32 v{vt0}, v{vt1} offset:36\ns_branch L_nl3")
A.label("L_nl2")
lds_word_spin(vP,vt0,36,sCnt,sU1)
A.label("L_nl3")
A.vm=[]
stamp(26)
for i in range(8):
    if i==4: A(f"s_add_u32 s{sOld}, s{sOld}, 4096")
    A.vmem(f"buffer_load_dwordx4 {vr(Of[i],4)}, v{vL16}, {sr(SRD_WS,4)}, s{sOld} offen offset:{(i%4)*1024} sc1",('of',i))
A.wait_lg_all()
for i in range(8):
    A.wait_vm(('of',i))
    if i>=6: A.wait_lg(('wo',i))
    for c in range(4):
        A(f"v_mfma_f32_16x16x32_bf16 {vr(Ac[c],4)}, {vr(Wf[i%6][c],4)}, {vr(Of[i],4)}, {'0' if i==0 else vr(Ac[c],4)}")
    if i<2:
        A.wait_lg_all(); wo_read(6+i,i)
stamp(28,2)
A("s_nop 7")
A.lds(f"ds_write_b128 v{vXw}, {vr(Ac[2],4)}")
A.lds(f"ds_write_b128 v{vXw}, {vr(Ac[3],4)} offset:1024")
A.wait_lg_all()
A("s_barrier")
A.lds(f"ds_read_b128 {vr(Ac[2],4)}, v{vXr}",'x0')
A.lds(f"ds_read_b128 {vr(Ac[3],4)}, v{vXr} offset:1024",'x1')
for c in range(2):
    A.wait_lg(f'x{c}')
    for i in range(4): A(f"v_add_f32 v{Ac[c]+i}, v{Ac[c]+i}, v{Ac[2+c]+i}")
    A(f"v_cvt_pk_bf16_f32 v{Ac[c]}, v{Ac[c]}, v{Ac[c]+1}\nv_cvt_pk_bf16_f32 v{Ac[c]+1}, v{Ac[c]+2}, v{Ac[c]+3}")
    A.vmem(f"buffer_store_dwordx2 {vr(Ac[c],2)}, v{vOo}, {sr(SRD_OUT,4)}, s{sOut} offen offset:{c*32}")
stamp(27)
if 'amp' in OPT:
    A(f"""s_memrealtime s[96:97]
    s_sub_u32 s94, s94, s100
    s_mul_i32 s94, s94, {OPT.get('ampk',3)}
    s_min_u32 s94, s94, 20000
    s_waitcnt lgkmcnt(0)""")
    A.label("L_amp")
    A(f"""s_memrealtime s[98:99]
    s_waitcnt lgkmcnt(0)
    s_sub_u32 s98, s98, s96
    s_cmp_lt_u32 s98, s94
    s_cbranch_scc1 L_amp""")
stamp_out(vt0)
A("s_endpgm")

A.label("L_fallback"); A.reset()
fC=Oa[1]; fM=vt0; fT=vt1; fS=Kf[0]
fK=Kf[4]; fV=Vf[0]
A(f"""s_lshl_b32 s{sU0}, s{sKH}, 11
s_sub_u32 s{sU2}, s{sKVb}, s{sU0}
s_mov_b32 s{sOff}, s{sU2}
s_mov_b32 s{sCnt}, 0
v_mov_b32 v{fM}, {NEGBIG:#x}""")
A.label("L_fb1")
A(f"""buffer_load_dwordx4 {vr(fK,4)}, v{vKp}, {sr(SRD_WS,4)}, s{sOff} offen sc1
s_waitcnt vmcnt(0)
v_mfma_f32_32x32x16_bf16 {vr(fS,16)}, {vr(fK,4)}, {vr(Qf[0],4)}, 0
s_add_u32 s{sOff}, s{sOff}, 2048
s_add_u32 s{sCnt}, s{sCnt}, 1
s_nop 11""")
for i in range(8): A(f"v_max3_f32 v{fM}, v{fM}, v{fS+2*i}, v{fS+2*i+1}")
A(f"""s_cmp_lt_u32 s{sCnt}, 64
s_cbranch_scc1 L_fb1
v_mov_b32 v{fT}, v{fM}
s_nop 1
v_permlane32_swap_b32 v{fM}, v{fT}
s_nop 1
v_max_f32 v{fM}, v{fM}, v{fT}""")
for i in range(16): A(f"v_sub_f32 v{fC+i}, 0, v{fM}")
for i in range(16): A(f"v_mov_b32 v{Oa[0]+i}, 0")
A(f"""s_mov_b32 s{sOff}, s{sU2}
s_mov_b32 s{sCnt}, 0""")
A.label("L_fb2")
A(f"""buffer_load_dwordx4 {vr(fK,4)}, v{vKp}, {sr(SRD_WS,4)}, s{sOff} offen sc1
s_mov_b64 exec, {sr(sVM,2)}
buffer_load_dwordx4 {vr(fV,4)}, v{vVo}, {sr(SRD_WS,4)}, s{sOff} offen offset:1024 sc1
buffer_load_dwordx4 {vr(fV+4,4)}, v{vVo}, {sr(SRD_WS,4)}, s{sOff} offen offset:1536 sc1
s_mov_b64 exec, -1
s_waitcnt vmcnt(0)
v_mfma_f32_32x32x16_bf16 {vr(fS,16)}, {vr(fK,4)}, {vr(Qf[0],4)}, {vr(fC,16)}
s_add_u32 s{sOff}, s{sOff}, 2048
s_add_u32 s{sCnt}, s{sCnt}, 1
s_nop 11""")
for i in range(16): A(f"v_exp_f32 v{fS+i}, v{fS+i}")
A(f"""s_nop 1
v_smfmac_f32_32x32x32_bf16 {vr(Oa[0],16)}, {vr(fV,4)}, {vr(fS,8)}, v{vIdx}
v_smfmac_f32_32x32x32_bf16 {vr(Oa[0],16)}, {vr(fV+4,4)}, {vr(fS+8,8)}, v{vIdx}
s_cmp_lt_u32 s{sCnt}, 64
s_cbranch_scc1 L_fb2
s_nop 15
s_branch L_norm""")

A.label("L_aux")
A.reset()
VX=Alloc(2,168)
xt0=VX.take(); xt1=VX.take(); xt2=VX.take(); xZ=VX.take(); xN=VX.take(2,2)
xL16=VX.take(); xVo=VX.take()
xBig=VX.mark()
va=[[VX.take() for _ in range(4)] for _ in range(2)]; vwa=[VX.take() for _ in range(2)]
vKpos=VX.take(); vV1=VX.take(); gDum=VX.take(); gLF=VX.take()
acc=[VX.take(16,4) for _ in range(6)]
xf=[[VX.take(4,4) for _ in range(2)] for _ in range(2)]
wf=[VX.take(4,4) for _ in range(4)]
xf.append([VX.take(4,4) for _ in range(2)])
sT=sA0; sC=sA0+1; sV0=sA0+2; sV1=sA0+3; sNx=sA0+4; sCx=sA0+6; sVMx=sA0+8; sV2=sA0+11; sV3=sA0+12
sB0=sA0+13; sB1=sA0+14; sB2=sA0+15; sHa=sA0+16; sHf=sA0+17; sTT=sA0+18; sRP=sA0+22; sJ=sA0+23; sG0=sA0+19; sG1=sA0+20
A(f"""s_setprio 3
s_sub_u32 s{sT}, s{sW}, 8
s_and_b32 s{sRP}, s{sT}, 1
s_lshr_b32 s{sJ}, s{sT}, 1
v_mov_b32 v{xZ}, 0
s_waitcnt lgkmcnt(0)""")
srd(SRD_WS,20,WS_BYTES); srd(SRD_DBG,18,256)
if OPT.get('ib'): A("s_barrier")
A(f"""s_add_u32 s{sV0}, s2, s{sT}
s_cmp_lg_u32 s{sV0}, 0
s_cbranch_scc1 L_nonon
s_mov_b32 s{sV0}, {WS_EPOCH}
s_mov_b64 exec, 1
buffer_load_dwordx2 {vr(xN,2)}, v{xZ}, {sr(SRD_WS,4)}, s{sV0} offen sc1
s_waitcnt vmcnt(0)
v_add_u32 v{xN}, 2, v{xN}
v_or_b32 v{xN}, 1, v{xN}
v_or_b32 v{xN+1}, 0x80000000, v{xN+1}
buffer_store_dwordx2 {vr(xN,2)}, v{xZ}, {sr(SRD_DBG,4)}, 0 offen sc1
buffer_store_dwordx2 {vr(xN,2)}, v{xZ}, {sr(SRD_WS,4)}, s{sV0} offen sc1
s_mov_b64 exec, -1""")
A.label("L_nonon")
stamp(0)
if OPT.get('pw',1):
    srd(SRD_M,14,524288); srd(SRD_XA,8,524288)
    am=OPT.get('amap',4)
    A(f"""s_and_b32 s{sV0}, s2, { {4:1,2:3,1:7}[am] }
    s_xor_b32 s{sV0}, s{sV0}, { {4:0,2:1,1:3}[am] }
    s_add_u32 s{sV0}, s{sV0}, s{sT}
    s_cmp_lg_u32 s{sV0}, 0
    s_cbranch_scc1 L_npw
    s_lshl_b32 s{sV0}, s{sT1}, 14
    s_add_u32 s{sV0}, s{sV0}, 384
    v_lshlrev_b32 v{xt0}, 10, v0
    s_mov_b64 exec, 0xffff
    buffer_load_dword v{gDum}, v{xt0}, {sr(SRD_M,4)}, s{sV0} offen
    buffer_load_dword v{gDum}, v{xt0}, {sr(SRD_XA,4)}, s{sV0} offen
    s_mov_b64 exec, -1""")
    A.label("L_npw")
if OPT.get('pf',0):
    A(f"""s_cmp_eq_u32 s{sBR}, 0
    s_cselect_b32 s{SRD_X}, s10, s4
    s_cselect_b32 s{SRD_X+1}, s11, s5
    s_cselect_b32 s{SRD_W}, s12, s6
    s_cselect_b32 s{SRD_W+1}, s13, s7
    s_mov_b32 s{SRD_X+2}, 2097152
    s_mov_b32 s{SRD_X+3}, 0x00020000
    s_mov_b32 s{SRD_W+2}, 1572864
    s_mov_b32 s{SRD_W+3}, 0x00020000
    v_lshlrev_b32 v{xt0}, 7, v0
    v_lshrrev_b32 v{xt1}, 2, v0
    v_mul_u32_u24 v{xt1}, 3072, v{xt1}
    v_and_b32 v{xt2}, 3, v0
    v_lshl_add_u32 v{xt1}, v{xt2}, 7, v{xt1}""")
    if OPT['m']==2:
        A(f"""s_and_b32 s{sV0}, s{sR2}, 8
        s_lshl_b32 s{sV0}, s{sV0}, 17
        s_mov_b32 s{sV2}, s{sT1}
        s_mul_i32 s{sV1}, s{sV2}, 49152""")
    else:
        A(f"""s_lshr_b32 s{sV2}, s{sT1}, 3
        s_lshl_b32 s{sV2}, s{sV2}, 2
        s_and_b32 s{sV0}, s{sT1}, 3
        s_add_u32 s{sV2}, s{sV2}, s{sV0}
        s_and_b32 s{sV0}, s2, 6
        s_lshl_b32 s{sV0}, s{sV0}, 18
        s_mul_i32 s{sV1}, s{sV2}, 98304""")
    A(f"""s_lshl_b32 s{sV2}, s{sV2}, 15
    s_add_u32 s{sV0}, s{sV0}, s{sV2}
    s_lshl_b32 s{sV2}, s{sT}, 13
    s_add_u32 s{sV0}, s{sV0}, s{sV2}
    s_and_b32 s{sV2}, s2, 1
    s_lshl_b32 s{sV2}, s{sV2}, 9
    s_add_u32 s{sV1}, s{sV1}, s{sV2}
    s_lshl_b32 s{sV2}, s{sT}, 10
    s_add_u32 s{sV1}, s{sV1}, s{sV2}
    {"s_sleep "+str(OPT['pfd']) if OPT.get('pfd') else ""}
    buffer_load_dword v{gDum}, v{xt0}, {sr(SRD_X,4)}, s{sV0} offen
    s_cmp_eq_u32 s{sT}, 3
    s_cbranch_scc1 L_pfd
    buffer_load_dword v{gDum}, v{xt1}, {sr(SRD_W,4)}, s{sV1} offen""")
    if OPT['m']==1:
        A(f"s_add_u32 s{sV1}, s{sV1}, 49152\nbuffer_load_dword v{gDum}, v{xt1}, {sr(SRD_W,4)}, s{sV1} offen")
    A.label("L_pfd")
A(f"""v_mov_b32 v{gLF}, {LF}
v_lshl_add_u32 v{xt0}, v0, 2, v{gLF}
ds_write_b32 v{xt0}, v{xZ}
v_and_b32 v{xt0}, 31, v0
v_lshrrev_b32 v{xt1}, 5, v0
v_bfe_u32 v{xt2}, v0, 1, 3
v_xor_b32 v{xt2}, v{xt2}, v{xt1}
v_lshlrev_b32 v{xt2}, 4, v{xt2}
v_lshl_add_u32 v{xt2}, v{xt0}, 7, v{xt2}
s_lshl_b32 s{sV0}, s{sRP}, 13
s_add_u32 s{sV0}, s{sV0}, {LXO}
v_add_u32 v{va[0][0]}, s{sV0}, v{xt2}""")
for s in range(1,4): A(f"v_xor_b32 v{va[0][s]}, {32*s}, v{va[0][0]}")
for s in range(4): A(f"v_add_u32 v{va[1][s]}, {2*SL}, v{va[0][s]}")
A(f"""v_bfe_u32 v{xt2}, v0, 2, 2
v_lshl_add_u32 v{xt2}, v{xt1}, 3, v{xt2}
v_lshlrev_b32 v{xt2}, 7, v{xt2}
v_bfe_u32 v{vV1}, v0, 4, 1
v_lshl_add_u32 v{xt2}, v{vV1}, 5, v{xt2}
v_and_b32 v{vwa[0]}, 3, v0
v_lshl_add_u32 v{xt2}, v{vwa[0]}, 3, v{xt2}
v_bfe_u32 v{vwa[0]}, v0, 3, 1
v_lshl_add_u32 v{vwa[0]}, v{vwa[0]}, 6, v{xt2}
s_lshl_b32 s{sV0}, s{sJ}, 6
v_xor_b32 v{vwa[0]}, s{sV0}, v{vwa[0]}
v_add_u32 v{vwa[1]}, {2*SL}, v{vwa[0]}
v_and_b32 v{vKpos}, 0x33, v0
v_bfe_u32 v{xt2}, v0, 2, 1
v_lshl_add_u32 v{vKpos}, v{xt2}, 3, v{vKpos}
v_bfe_u32 v{xt2}, v0, 3, 1
v_lshl_add_u32 v{vKpos}, v{xt2}, 2, v{vKpos}
v_lshlrev_b32 v{vKpos}, 4, v{vKpos}
v_and_b32 v{xt2}, 15, v0
v_lshlrev_b32 v{xt2}, 4, v{xt2}
v_lshl_add_u32 v{xVo}, v{xt1}, 8, v{xt2}
v_lshlrev_b32 v{xL16}, 4, v0
s_mov_b32 s{sC}, {f2u(CSCALE):#x}
s_mov_b32 s{sVMx}, 0x0000ffff
s_mov_b32 s{sVMx+1}, 0x0000ffff
s_lshl_b32 s{sTT}, s{sR2}, 1
s_add_u32 s{sTT}, s{sTT}, s{sRP}
s_lshl_b32 s{sTT}, s{sTT}, 1
s_lshl_b32 s{sHf}, s{sHG}, 4
s_add_u32 s{sHf}, s{sHf}, s{sR2}""")
if OPT['pfc']:
    A(f"s_getpc_b64 {sr(sNx,2)}")
    A.label("L_pc")
    A(f"""s_sub_u32 s{sNx}, s{sNx}, L_pc-{NAME}
    s_subb_u32 s{sNx+1}, s{sNx+1}, 0
    s_lshl_b32 s{sV0}, s{sT}, 13
    s_mov_b32 s{sV1}, L_codeend-{NAME}-4
    v_lshlrev_b32 v{xt2}, 7, v0
    v_add_u32 v{xt2}, s{sV0}, v{xt2}
    v_min_u32 v{xt2}, s{sV1}, v{xt2}""")
PARTS=(1,2,0)
def rd_x(n,r):
    if n>=32: return
    s,ks=divmod(n,4); slot=(s+1)%3
    A.lds(f"ds_read_b128 {vr(xf[n%2][r],4)}, v{va[slot//2][ks]} offset:{(slot%2)*SL+r*4096}", ('x',n,r))
def rd_w(n,c):
    if n>=32: return
    s,ks=divmod(n,4); slot=(s+1)%3; p=PARTS[c]
    o=(slot%2)*SL+p*8192+ks*2048
    A.lds(f"ds_read_b64_tr_b16 {vr(wf[c],2)}, v{vwa[slot//2]} offset:{o}", ('w',n,c))
    A.lds(f"ds_read_b64_tr_b16 {vr(wf[c]+2,2)}, v{vwa[slot//2]} offset:{o+512}", ('w',n,c))
QD=OPT.get('qd',20)
def g_step(n):
    s,ks=divmod(n,4)
    if ks==3 and s<7:
        A.wait_lg_all()
        A("s_barrier")
    for c in range(3 if n<QD else 2):
        for r in range(2):
            A.wait_lg([('x',n,r),('w',n,c)])
            a_=acc[2*c+r]; C="0" if n==0 else vr(a_,16)
            if c==1: A(f"v_mfma_f32_32x32x16_bf16 {vr(a_,16)}, {vr(xf[n%2][r],4)}, {vr(wf[c],4)}, {C}")
            else: A(f"v_mfma_f32_32x32x16_bf16 {vr(a_,16)}, {vr(wf[c],4)}, {vr(xf[n%2][r],4)}, {C}")
            if r==0 and c<2: rd_x(n+1,c)
            if r==1 and not (c==2 and n+1>=QD): rd_w(n+1,c)
    if n==22: A.vmem(f"buffer_load_dwordx2 {vr(xN,2)}, v{xZ}, {sr(SRD_DBG,4)}, 0 offen sc1",'non')
def q_rd(m):
    if m>=32: return
    s,ks=divmod(m,4); slot=(s+1)%3; b=(m+1)%3
    o=(slot%2)*SL+ks*2048
    W=(wf[2],wf[3],wf[0])[b]
    for r in range(2): A.lds(f"ds_read_b128 {vr(xf[(2,0,1)[b]][r],4)}, v{va[slot//2][ks]} offset:{(slot%2)*SL+r*4096}", ('qx',m,r))
    A.lds(f"ds_read_b64_tr_b16 {vr(W,2)}, v{vwa[slot//2]} offset:{o}", ('qw',m))
    A.lds(f"ds_read_b64_tr_b16 {vr(W+2,2)}, v{vwa[slot//2]} offset:{o+512}", ('qw',m))
def q_phase(fillers):
    q_rd(QD+1)
    per=4
    for m in range(QD,32):
        b=(m+1)%3; W=(wf[2],wf[3],wf[0])[b]
        A.wait_lg(('qw',m))
        for r in range(2):
            A(f"v_mfma_f32_32x32x16_bf16 {vr(acc[4+r],16)}, {vr(W,4)}, {vr(xf[(2,0,1)[b]][r],4)}, {vr(acc[4+r],16)}")
            if r==0: q_rd(m+2)
            for _ in range(per):
                if fillers: fillers.pop(0)()
    while fillers: fillers.pop(0)()
    A.wait_lg_all()
    A("s_barrier")
def I(l): return lambda: A(l)
def Vm(l): return lambda: A.vmem(l)
def packf(a): return [I(f"v_cvt_pk_bf16_f32 v{a+i}, v{a+2*i}, v{a+2*i+1}") for i in range(8)]
def pack16(dst, a, scale=False):
    if scale:
        for i in range(16): A(f"v_mul_f32 v{a+i}, s{sC}, v{a+i}")
    for i in range(8): A(f"v_cvt_pk_bf16_f32 v{dst+i}, v{a+2*i}, v{a+2*i+1}")
A.wait_lg_all()
A("s_barrier")
rd_x(0,0); rd_w(0,0); rd_x(0,1); rd_w(0,1); rd_w(0,2)
assert (QD+1)%3==0
for n in range(32):
    g_step(n)
    if n==30: q_rd(QD)
stamp(9)
SVL=list(A.lg); SVV=list(A.vm)
A(f"""s_cmp_lg_u32 s{sBR}, 0
s_cbranch_scc1 L_epa""")
SC={0:' sc1',1:'',2:' sc0 sc1',3:' nt sc1'}[OPT.get('sc',0)]
A(f"""s_lshl_b32 s{sV0}, s{sTT}, 11
s_lshl_b32 s{sV1}, s{sJ}, 18
s_add_u32 s{sV0}, s{sV0}, s{sV1}
s_lshl_b32 s{sV1}, s{sHK}, 19
s_add_u32 s{sB0}, s{sV0}, s{sV1}
s_add_u32 s{sG0}, s{sB0}, 131072
s_lshl_b32 s{sV1}, s{sHV}, 19
s_add_u32 s{sB1}, s{sV0}, s{sV1}
s_lshr_b32 s{sB2}, s{sV0}, 1
s_lshl_b32 s{sV1}, s{sHG}, 18
s_add_u32 s{sB2}, s{sB2}, s{sV1}
s_add_u32 s{sB2}, s{sB2}, {WS_Q}
s_add_u32 s{sG1}, s{sB2}, 65536
v_lshl_add_u32 v{xt0}, v{vV1}, 17, v{xVo}""")
F=[]
for r in range(2):
    K=acc[r]; F+=packf(K)
    F.append(Vm(f"buffer_store_dwordx4 {vr(K,4)}, v{xL16}, {sr(SRD_WS,4)}, s{sB0} offen offset:{r*2048}{SC}"))
    F.append(Vm(f"buffer_store_dwordx4 {vr(K+4,4)}, v{xL16}, {sr(SRD_WS,4)}, s{sG0} offen offset:{r*2048}{SC}"))
for r in range(2):
    V=acc[2+r]; F+=packf(V)
    F.append(Vm(f"buffer_store_dwordx4 {vr(V,4)}, v{xt0}, {sr(SRD_WS,4)}, s{sB1} offen offset:{r*2048+1024}{SC}"))
    F.append(Vm(f"buffer_store_dwordx4 {vr(V+4,4)}, v{xt0}, {sr(SRD_WS,4)}, s{sB1} offen offset:{r*2048+1536}{SC}"))
q_phase(F)
A("s_nop 9")
for r in range(2):
    Q=acc[4+r]; pack16(Q,Q,True)
    A.vmem(f"buffer_store_dwordx4 {vr(Q,4)}, v{xL16}, {sr(SRD_WS,4)}, s{sB2} offen offset:{r*1024}{SC}")
    A.vmem(f"buffer_store_dwordx4 {vr(Q+4,4)}, v{xL16}, {sr(SRD_WS,4)}, s{sG1} offen offset:{r*1024}{SC}")
stamp(10,2)
A.wait_vm('non')
nonce_check(xN,xZ,sNx,sCx,sV1)
A(f"""s_lshl_b32 s{sHf}, s{sHf}, 7
s_add_u32 s{sHf}, s{sHf}, {WS_FG}""")
A.wait_vm_all()
stamp(11,2)
A("s_barrier")
A(f"s_cmp_lg_u32 s{sT}, 0\ns_cbranch_scc1 L_wo")
flag_store(xN,xZ,sHf)
A("s_branch L_wo")
A.label("L_epa"); A.reset(); A.vm=list(SVV); A.lg=list(SVL)
A(f"""s_lshl_b32 s{sV0}, s{sRP}, 14
s_lshl_b32 s{sV1}, s{sJ}, 12
s_add_u32 s{sV2}, s{sV0}, s{sV1}
s_add_u32 s{sV0}, s{sV2}, {EAK+8192}
v_add_u32 v{xt1}, s{sV0}, v{vKpos}
v_lshl_add_u32 v{xt0}, v{vV1}, 11, v{xVo}
v_add_u32 v{xt2}, s{sV0}, v{xt0}
s_lshl_b32 s{sHa}, s{sHf}, 13
s_add_u32 s{sHa}, s{sHa}, {WS_HA}
s_add_u32 s{sV1}, s{sV1}, s{sHa}
s_lshl_b32 s{sHf}, s{sHf}, 1
s_add_u32 s{sHf}, s{sHf}, s{sJ}
s_lshl_b32 s{sHf}, s{sHf}, 7
s_add_u32 s{sHf}, s{sHf}, {WS_FH}""")
F=packf(acc[1])+packf(acc[3])
F.append(I(f"""s_cmp_lg_u32 s{sRP}, 1
s_cbranch_scc1 L_noha
buffer_store_dwordx4 {vr(acc[1],4)}, v{vKpos}, {sr(SRD_WS,4)}, s{sV1} offen sc1
buffer_store_dwordx4 {vr(acc[1]+4,4)}, v{vKpos}, {sr(SRD_WS,4)}, s{sV1} offen offset:2048 sc1
buffer_store_dwordx4 {vr(acc[3]+4,4)}, v{xt0}, {sr(SRD_WS,4)}, s{sV1} offen offset:1536 sc1
L_noha:"""))
F+=packf(acc[0])+packf(acc[2])
q_phase(F)
for r in range(2):
    A.lds(f"ds_write_b128 v{xt1}, {vr(acc[r],4)} offset:{r*8192}")
    A.lds(f"ds_write_b128 v{xt1}, {vr(acc[r]+4,4)} offset:{r*8192+2048}")
    A.lds(f"ds_write_b128 v{xt2}, {vr(acc[2+r],4)} offset:{r*8192+1024}")
    A.lds(f"ds_write_b128 v{xt2}, {vr(acc[2+r]+4,4)} offset:{r*8192+1536}")
A(f"s_lshr_b32 s{sV0}, s{sV2}, 1\ns_add_u32 s{sV0}, s{sV0}, {EAQ}\nv_add_u32 v{xt1}, s{sV0}, v{xL16}")
for r in range(2):
    pack16(acc[4+r],acc[4+r],True)
    for e in range(2): A.lds(f"ds_write_b128 v{xt1}, {vr(acc[4+r]+4*e,4)} offset:{r*4096+e*1024}")
A.wait_lg_all()
A("s_barrier")
Mk=acc[0]; Sc=acc[2]; Sp=acc[3]; Oc=acc[4]; T5=acc[5]
Qh=T5; Kc=T5+4; Kp=T5+8; dstp=T5+12; Vc=xf[0][0]; Vp=xf[1][0]; FL=wf[0]
vAQ=va[0][0]; vAK=va[0][1]; vAV=va[0][2]; vOf=va[0][3]; mx=va[1][0]; mt=va[1][1]; xIdx=va[1][2]; xOne=va[1][3]
A(f"v_add_u32 v{xt0}, {MSK}, v{xL16}\nv_mov_b32 v{xt2}, {NEGBIG:#x}")
for i in range(6): A.lds(f"ds_read_b128 {vr(Mk+4*i,4)}, v{xt0} offset:{i*1024}")
A(f"""s_lshl_b32 s{sV0}, s{sT}, 10
s_add_u32 s{sV0}, s{sV0}, {EAQ}
v_add_u32 v{vAQ}, s{sV0}, v{xL16}
s_lshl_b32 s{sV0}, s{sT}, 11
s_add_u32 s{sV1}, s{sV0}, {EAK}
v_add_u32 v{vAK}, s{sV1}, v{xL16}
v_add_u32 v{vAV}, s{sV1}, v{xVo}
v_and_b32 v{xt0}, 27, v0
v_cmp_eq_u32 vcc, 16, v{xt0}
v_mov_b32 v{xt1}, 0x3f803f80
v_lshl_add_u32 v{vOf}, v{vV1}, 14, v{xVo}
v_cndmask_b32 v{xt1}, 0, v{xt1}, vcc
v_mov_b32 v{xIdx}, 0xdddddddd
v_mov_b32 v{xOne}, 1
s_and_b32 s{sV1}, s{sT}, 1
s_lshl_b32 s{sV1}, s{sV1}, 9
v_add_u32 v{vOf}, s{sV1}, v{vOf}
s_lshl_b32 s{sV3}, s{sR2}, 7
s_lshl_b32 s{sV1}, s{sHG}, 1
s_add_u32 s{sV3}, s{sV3}, s{sV1}
s_lshr_b32 s{sV1}, s{sT}, 1
s_add_u32 s{sV3}, s{sV3}, s{sV1}
s_lshl_b32 s{sV3}, s{sV3}, 10
s_add_u32 s{sV3}, s{sV3}, {WS_OFA}
s_add_u32 s{sHa}, s{sHa}, s{sV0}
s_sub_u32 s{sHa}, s{sHa}, 8192""")
for i in range(12): A(f"v_mov_b32 v{Vc+i}, v{xt1}")
A.wait_vm_all()
nonce_check(xN,xZ,sNx,sCx,sV1)
A(f"s_cmp_lg_u32 s{sRP}, 1\ns_cbranch_scc1 L_noha2")
flag_store(xN,xZ,sHf)
A.label("L_noha2")
A(f"s_sub_u32 s{sHf}, s{sHf}, 256")
stamp(18)
for it,T in enumerate((1,0)):
    A.lds(f"ds_read_b128 {vr(Qh,4)}, v{vAQ} offset:{T*4096}",'q')
    A.lds(f"ds_read_b128 {vr(Kc,4)}, v{vAK} offset:{(T+1)*8192}",'kc')
    if T: A.lds(f"ds_read_b128 {vr(Kp,4)}, v{vAK} offset:{T*8192}",'kp')
    A(f"s_mov_b64 exec, {sr(sVMx,2)}")
    A.lds(f"ds_read_b128 {vr(Vc,4)}, v{vAV} offset:{(T+1)*8192+1024}",'v')
    A.lds(f"ds_read_b128 {vr(Vc+4,4)}, v{vAV} offset:{(T+1)*8192+1536}",'v')
    if T: A.lds(f"ds_read_b128 {vr(Vp,4)}, v{vAV} offset:{T*8192+1536}",'v')
    A("s_mov_b64 exec, -1")
    if T==0:
        A.wait_lg_all()
        A(f"s_cmp_eq_u32 s{sR2}, 0\ns_cbranch_scc1 L_first")
        poll_issue(FL,xZ,sHf,1)
        poll_check(FL,xZ,sHf,sCx,sNx,1,sleep=OPT['slp'])
        A(f"""buffer_load_dwordx4 {vr(Kp,4)}, v{xL16}, {sr(SRD_WS,4)}, s{sHa} offen sc1
        s_mov_b64 exec, {sr(sVMx,2)}
        buffer_load_dwordx4 {vr(Vp,4)}, v{xVo}, {sr(SRD_WS,4)}, s{sHa} offen offset:1536 sc1
        s_mov_b64 exec, -1
        s_waitcnt vmcnt(0)
        s_branch L_first2""")
        A.label("L_first")
        for i in range(8): A(f"v_mov_b32 v{Mk+16+i}, v{xt2}")
        A("s_nop 1")
        A.label("L_first2")
        A.vm=[]
    dst=dstp if it%2==0 else wf[3]
    loc_unit(dict(Sc=Sc,Sp=Sp,Oc=Oc,Mk=Mk,mx=mx,mt=mt,Qh=Qh,Kc=Kc,Kp=Kp,Vc=Vc,Vp=Vp,dst=dst,idx=xIdx))
    A(f"s_add_u32 s{sV1}, s{sV3}, {T*32768}")
    A.vmem(f"buffer_store_dwordx4 {vr(dst,4)}, v{vOf}, {sr(SRD_WS,4)}, s{sV1} offen sc1",'oa')
stamp(19)
A(f"""s_lshl_b32 s{sV1}, s{sR2}, 3
s_add_u32 s{sV1}, s{sV1}, s{sHG}
s_lshl_b32 s{sV1}, s{sV1}, 7
s_add_u32 s{sV1}, s{sV1}, {WS_FOA}""")
A.wait_vm_all()
A("s_mov_b64 exec, 1")
A.lds(f"ds_add_u32 v{gLF}, v{xOne} offset:48")
A("s_mov_b64 exec, -1")
A(f"s_mov_b32 s{sCx}, 0")
A.label("L_cnt")
A(f"""ds_read_b32 v{FL}, v{gLF} offset:48
s_add_u32 s{sCx}, s{sCx}, 1
s_waitcnt lgkmcnt(0)
v_readfirstlane_b32 s{sV0}, v{FL}
s_cmp_gt_u32 s{sCx}, {SPIN*8}
s_cbranch_scc1 L_cntd
s_sleep 1
s_cmp_lt_u32 s{sV0}, 12
s_cbranch_scc1 L_cnt""")
A.label("L_cntd")
A(f"s_cmp_lg_u32 s{sT}, 0\ns_cbranch_scc1 L_wo")
flag_store(xN,xZ,sV1)
A.label("L_wo"); A.reset(); A.vm=['x']
lds_word_spin(xt0,gLF,44,sCx,sV0)
A(f"""s_lshr_b32 s{sV0}, s{sRB}, 1
s_lshl_b32 s{sV0}, s{sV0}, 10
s_add_u32 s{sV0}, s{sV0}, {WS_FOA}""")
srd(SRD_M,14,524288); srd(SRD_XA,8,524288); srd(SRD_OUT,16,4194304)
A(f"""v_lshrrev_b32 v{xt0}, 3, v0
v_and_b32 v{xt1}, 6, v{xt0}
v_xor_b32 v{xt1}, v{xt1}, v0
v_and_b32 v{xt1}, 7, v{xt1}
v_lshlrev_b32 v{xt0}, 10, v{xt0}
v_lshl_add_u32 v{xt0}, v{xt1}, 4, v{xt0}
s_lshl_b32 s{sB0}, s{sT}, 17
s_lshl_b32 s{sB1}, s{sHQ}, 7
s_add_u32 s{sB1}, s{sB1}, s{sB0}
s_lshl_b32 s{sB2}, s{sT}, 14""")
def wo_dma(base, srd_):
    for j in range(16):
        A(f"s_add_u32 m0, s{sB2}, {base+j*1024}")
        A(f"s_add_u32 s{sG0}, s{sB1}, {j*8192}")
        A.vmem(f"buffer_load_dwordx4 v{xt0}, {sr(srd_,4)}, s{sG0} offen lds")
        if j%OPT.get('pg',2)==OPT.get('pg',2)-1 and len(A.vm)>OPT['pace']: A(f"s_waitcnt vmcnt({OPT['pace']})"); A.vm=A.vm[len(A.vm)-OPT['pace']:]
if OPT['ewo']: A(f"s_cmp_lg_u32 s{sT0}, 0\ns_cbranch_scc1 L_woa")
wo_dma(WOB,SRD_M)
A.label("L_woa")
wo_dma(WOA,SRD_XA)
VY=Alloc(xBig,168)
yFl=VY.take(); yP=VY.take(2,2); yWA=[VY.take() for _ in range(4)]; yOo=VY.take()
yO=[VY.take(4,4) for _ in range(16)]
yW=[[VY.take(4,4) for _ in range(4)] for _ in range(3)]
yA=[VY.take(4,4) for _ in range(4)]
A(f"""v_and_b32 v{yFl}, 15, v0
v_lshlrev_b32 v{yOo}, 11, v{yFl}
v_lshlrev_b32 v{yFl}, 7, v{yFl}
v_lshrrev_b32 v{xt0}, 4, v0
v_lshl_add_u32 v{yOo}, v{xt0}, 3, v{yOo}""")
poll_issue(yP,yFl,sV0,0xff)
poll_check(yP,yFl,sV0,sCx,sNx,0xff,sleep=OPT['slp'])
stamp(20)
A(f"""s_lshl_b32 s{sV2}, s{sRB}, 2
s_add_u32 s{sV2}, s{sV2}, s{sT}
s_lshl_b32 s{sB0}, s{sV2}, 14
s_add_u32 s{sB0}, s{sB0}, {WS_OFA}""")
for i in range(16 if not OPT.get('nowo') else 0):
    if i and i%4==0: A(f"s_add_u32 s{sB0}, s{sB0}, 4096")
    A.vmem(f"buffer_load_dwordx4 {vr(yO[i],4)}, v{xL16}, {sr(SRD_WS,4)}, s{sB0} offen offset:{(i%4)*1024} sc1")
    if OPT['pace']<60 and i%2==1 and len(A.vm)>OPT['pace']: A(f"s_waitcnt vmcnt({OPT['pace']})"); A.vm=A.vm[-OPT['pace']:]
wo_tr_addr(yWA[0],xt0,xt1)
A(f"""v_add_u32 v{yWA[0]}, {WOA}, v{yWA[0]}
v_xor_b32 v{yWA[1]}, 32, v{yWA[0]}
v_xor_b32 v{yWA[2]}, 64, v{yWA[0]}
v_xor_b32 v{yWA[3]}, 96, v{yWA[0]}
s_lshl_b32 s{sB0}, s{sV2}, 15
s_lshl_b32 s{sB1}, s{sHQ}, 7
s_add_u32 s{sB0}, s{sB0}, s{sB1}""")
A.wait_vm_all()
stamp(21)
A("s_setprio 0")
A("s_barrier")
def woa_read(hp_,c):
    if hp_>=16: return
    b=hp_%3
    A.lds(f"ds_read_b64_tr_b16 {vr(yW[b][c],2)}, v{yWA[c]} offset:{hp_*4096}",('wa',hp_,c))
    A.lds(f"ds_read_b64_tr_b16 {vr(yW[b][c]+2,2)}, v{yWA[c]} offset:{hp_*4096+1024}",('wa',hp_,c))
for c in range(4): woa_read(0,c)
for c in range(2): woa_read(1,c)
for i in range(16):
    for c in range(4):
        A.wait_lg(('wa',i,c))
        A(f"v_mfma_f32_16x16x32_bf16 {vr(yA[c],4)}, {vr(yW[i%3][c],4)}, {vr(yO[i],4)}, {'0' if i==0 else vr(yA[c],4)}")
        woa_read(i+1+(c+2)//4,(c+2)%4)
A("s_nop 7")
for c in range(4):
    acc=yA[c]
    A(f"v_cvt_pk_bf16_f32 v{acc}, v{acc}, v{acc+1}\nv_cvt_pk_bf16_f32 v{acc+1}, v{acc+2}, v{acc+3}")
    A.vmem(f"buffer_store_dwordx2 {vr(acc,2)}, v{yOo}, {sr(SRD_OUT,4)}, s{sB0} offen offset:{c*32}")
stamp(22)
stamp_out(yFl)
A.label("L_end")
A("s_endpgm")
A.label("L_codeend")

errs=check(A.lines)
for e in errs[:25]: print("CHECK:",e, file=sys.stderr)
hdr=open('concat_heads__sliding_local_dilated__softmax_full_mha__prompt.s.ref').read().split('; Override')[0]
nv=168
out=hdr+f"""; @launch grid=(256,1,1) block=(768,1,1) lds={LDS_BYTES}
.amdgcn_target "amdgcn-amd-amdhsa--gfx950"
.text
.globl {NAME}
.p2align 8
.type {NAME},@function
"""+A.text()+f""".section .rodata,"a"
.p2align 6
.amdhsa_kernel {NAME}
  .amdhsa_next_free_vgpr {nv}
  .amdhsa_next_free_sgpr 102
  .amdhsa_accum_offset {nv}
  .amdhsa_group_segment_fixed_size 0
  .amdhsa_kernarg_size 72
  .amdhsa_user_sgpr_count 2
  .amdhsa_user_sgpr_kernarg_segment_ptr 1
  .amdhsa_system_sgpr_workgroup_id_x 1
.end_amdhsa_kernel
"""
open(sys.argv[1],'w').write(out)
print("vgpr att",VA.hi,VB.hi,"aux",VX.hi,VY.hi,"lines",len(A.lines),"errs",len(errs))
```

```python
import sys, math, struct
from asmlib import *
NAME="concat_heads__sliding_local_dilated__softmax_full_mha__prompt_kernel"
OPT=dict(nosl=1, cm=2, up=3, ib=1, pace=1, stamp=0, pfc=0, ewo=0, pp=1, m=2, rel=8, slp=2)
for a in sys.argv[2:]:
    k,v=a.split('='); OPT[k]=int(v) if v.lstrip('-').isdigit() else v

SL=40960; LXO=24576; EAQ=65536; EAK=81920-8192; RED=131072; LF=155648
WOB=0; WOA=65536
LDS_BYTES=163840
WS_KV=0; WS_OFB=4<<20; WS_OFA=6<<20; WS_Q=10<<20; WS_HA=12<<20
FGS=OPT.get('fgs',7); WS_FG=(8<<20)+OPT.get('fgo',0); WS_FOB=(8<<20)+262144+OPT.get('fbo',0); WS_EPOCH=(8<<20)+65536; WS_FOA=(8<<20)+131072; WS_FH=(8<<20)+163840
WS_STAMP=30<<20
WS_BYTES=32<<20
CSCALE=0.25*math.log2(math.e)
def f2u(x): return struct.unpack('<I',struct.pack('<f',x))[0]
NEGBIG=f2u(-1e30)
SPIN=30000

A=Asm()
sW=22; sHQ=23; sRB=24; sSG=25; sBR=26; sR2=27
SRD_X=28; SRD_W=32; SRD_XA=36; sHG=3; sHK=40; sHV=41; sT0=42; sT1=43; SRD_WS=44; SRD_DBG=48; SRD_M=52; SRD_OUT=56
sA0=60

def srd(base, ptr, nbytes):
    A(f"""s_mov_b32 s{base}, s{ptr}
    s_mov_b32 s{base+1}, s{ptr+1}
    s_mov_b32 s{base+2}, {nbytes}
    s_mov_b32 s{base+3}, 0x00020000""")
vSt=1
def stamp(idx, lvl=1):
    if OPT.get('amp')==idx:
        A("s_memrealtime s[94:95]\ns_waitcnt lgkmcnt(0)"); A.lg=[]
    if OPT['stamp']<lvl: return
    if 'only' in OPT and idx not in [int(x) for x in str(OPT['only']).split(',')]: return
    A(f"""s_memrealtime s[96:97]
    s_memtime s[98:99]
    s_waitcnt lgkmcnt(0)
    v_writelane_b32 v{vSt}, s96, {idx}
    v_writelane_b32 v{vSt}, s98, {idx+32}""")
    A.lg=[]
def stamp_out(vtmp):
    if not OPT['stamp']: return
    A(f"""v_writelane_b32 v{vSt}, s100, 31
    s_mul_i32 s96, s2, 12
    s_add_u32 s96, s96, s{sW}
    s_lshl_b32 s96, s96, 8
    s_add_u32 s96, s96, {WS_STAMP}
    v_lshlrev_b32 v{vtmp}, 2, v0
    buffer_store_dword v{vSt}, v{vtmp}, {sr(SRD_WS,4)}, s96 offen""")
def poll_issue(vdst, voff, soff, mask=-1):
    if mask!=-1: A(f"s_mov_b64 exec, {mask:#x}")
    A.vmem(f"buffer_load_dwordx2 {vr(vdst,2)}, v{voff}, {sr(SRD_WS,4)}, s{soff} offen sc1",'poll')
    if mask!=-1: A("s_mov_b64 exec, -1")
def poll_check(vdst, voff, soff, scnt, snon, mask=-1, sleep=0, keep=0):
    L=A.newlabel('L_poll'); Ld=A.newlabel('L_polld'); Lc=A.newlabel('L_pollc')
    A(f"s_mov_b32 s{scnt}, 0")
    if mask!=-1: A(f"s_mov_b64 exec, {mask:#x}")
    A.wait_vm('poll')
    A(f"s_branch {Lc}")
    A.label(L)
    if sleep and not OPT.get('nosl'): A(f"s_sleep {sleep}")
    A(f"""buffer_load_dwordx2 {vr(vdst,2)}, v{voff}, {sr(SRD_WS,4)}, s{soff} offen sc1
    s_waitcnt vmcnt(0)""")
    A.label(Lc)
    A(f"""v_cmp_eq_u64 vcc, {sr(snon,2)}, {vr(vdst,2)}
    s_add_u32 s{scnt}, s{scnt}, 1
    s_cmp_eq_u64 vcc, exec
    s_cbranch_scc1 {Ld}
    s_cmp_le_u32 s{scnt}, {SPIN}
    s_cbranch_scc1 {L}""")
    A.label(Ld)
    if mask!=-1: A("s_mov_b64 exec, -1")
def poll_pipe(vd, voff, soff, scnt, snon, gap=2):
    L=A.newlabel('L_pp'); Ld=A.newlabel('L_ppd')
    ld=lambda k: A(f"buffer_load_dwordx2 {vr(vd+2*k,2)}, v{voff}, {sr(SRD_WS,4)}, s{soff} offen sc1")
    A(f"s_mov_b32 s{scnt}, 0")
    for k in range(3):
        ld(k)
        if k<2 and not OPT.get('nosl'): A(f"s_sleep {gap}")
    A.label(L)
    for k in range(3):
        A(f"""s_waitcnt vmcnt(2)
        v_cmp_eq_u64 vcc, {sr(snon,2)}, {vr(vd+2*k,2)}
        s_cmp_eq_u64 vcc, exec
        s_cbranch_scc1 {Ld}""")
        ld(k)
    A(f"""s_add_u32 s{scnt}, s{scnt}, 1
    s_cmp_le_u32 s{scnt}, {SPIN}
    s_cbranch_scc1 {L}""")
    A.label(Ld)
def lds_word_spin(vF, vAddr, off, scnt, stmp):
    L=A.newlabel('L_ws'); Ld=A.newlabel('L_wsd')
    A(f"s_mov_b32 s{scnt}, 0")
    A.label(L)
    A(f"""ds_read_b32 v{vF}, v{vAddr} offset:{off}
    s_add_u32 s{scnt}, s{scnt}, 1
    s_waitcnt lgkmcnt(0)
    v_readfirstlane_b32 s{stmp}, v{vF}
    s_cmp_gt_u32 s{scnt}, {SPIN*8}
    s_cbranch_scc1 {Ld}
    {"s_sleep 1" if OPT.get('lsl') else ""}
    s_cmp_eq_u32 s{stmp}, 0
    s_cbranch_scc1 {L}""")
    A.label(Ld)
    A.lg=[]
def nonce_check(vN, vZ, snon, scnt, stmp):
    L=A.newlabel('L_non'); Ld=A.newlabel('L_nond')
    A(f"s_mov_b32 s{scnt}, 0")
    A.label(L)
    A(f"""v_readfirstlane_b32 s{snon}, v{vN}
    v_readfirstlane_b32 s{snon+1}, v{vN+1}
    s_add_u32 s{scnt}, s{scnt}, 1
    s_cmp_gt_u32 s{scnt}, {SPIN}
    s_cbranch_scc1 {Ld}
    s_cmp_eq_u32 s{snon}, 0
    s_cselect_b32 s{stmp}, 0, s{snon+1}
    s_cmp_lg_u32 s{stmp}, 0
    s_cbranch_scc1 {Ld}
    buffer_load_dwordx2 {vr(vN,2)}, v{vZ}, {sr(SRD_DBG,4)}, 0 offen sc1
    s_waitcnt vmcnt(0)
    s_branch {L}""")
    A.label(Ld)
def flag_store(vN, vZ, soff):
    A("s_mov_b64 exec, 1")
    A.vmem(f"buffer_store_dwordx2 {vr(vN,2)}, v{vZ}, {sr(SRD_WS,4)}, s{soff} offen sc1",'flag')
    A("s_mov_b64 exec, -1")
def lds_flags_spin(vF, vAddr, scnt, stmp, issued=False):
    L=A.newlabel('L_xs'); Ld=A.newlabel('L_xsd'); Lc=A.newlabel('L_xsc')
    A(f"s_mov_b32 s{scnt}, 0")
    if issued: A(f"s_branch {Lc}")
    A.label(L)
    A(f"ds_read_b128 {vr(vF,4)}, v{vAddr}")
    A.label(Lc)
    A(f"""s_add_u32 s{scnt}, s{scnt}, 1
    s_waitcnt lgkmcnt(0)
    v_and_b32 v{vF}, v{vF}, v{vF+1}
    v_and_b32 v{vF+2}, v{vF+2}, v{vF+3}
    v_and_b32 v{vF}, v{vF}, v{vF+2}
    s_cmp_gt_u32 s{scnt}, {SPIN*4}
    v_readfirstlane_b32 s{stmp}, v{vF}
    s_cbranch_scc1 {Ld}
    s_cmp_eq_u32 s{stmp}, 0
    s_cbranch_scc1 {L}""")
    A.label(Ld)
    A.lg=[]
def wo_tr_addr(dst, t0, t1):
    A(f"""v_lshrrev_b32 v{t0}, 2, v0
    v_and_b32 v{t0}, 7, v{t0}
    v_lshrrev_b32 v{t1}, 5, v0
    v_lshl_add_u32 v{t1}, v{t1}, 4, v{t0}
    v_lshlrev_b32 v{t1}, 7, v{t1}
    v_and_b32 v{t0}, 6, v{t0}
    v_bfe_u32 v{dst}, v0, 1, 1
    v_xor_b32 v{t0}, v{t0}, v{dst}
    v_lshl_add_u32 v{t1}, v{t0}, 4, v{t1}
    v_and_b32 v{t0}, 1, v0
    v_lshl_add_u32 v{dst}, v{t0}, 3, v{t1}""")


def loc_unit(R, pre=None):
    Sc,Sp,Oc,Mk=R['Sc'],R['Sp'],R['Oc'],R['Mk']; mx,mt=R['mx'],R['mt']
    if pre: pre()
    A.wait_lg('kc')
    A(f"v_mfma_f32_32x32x16_bf16 {vr(Sc,16)}, {vr(R['Kc'],4)}, {vr(R['Qh'],4)}, {vr(Mk,16)}")
    A.wait_lg('kp')
    A(f"v_mfma_f32_32x32x16_bf16 {vr(Sp,16)}, {vr(R['Kp'],4)}, {vr(R['Qh'],4)}, {vr(Mk+8,16)}")
    for i in range(9): A(f"v_mov_b32 v{Oc+i}, 0")
    A("s_nop 1")
    A(f"v_max_f32 v{mx}, v{Sc}, v{Sc+1}")
    A(f"v_max3_f32 v{mt}, v{Sc+2}, v{Sc+3}, v{Sc+4}")
    for i in range(5,15,4):
        A(f"v_max3_f32 v{mx}, v{mx}, v{Sc+i}, v{Sc+i+1}")
        if i+3<16: A(f"v_max3_f32 v{mt}, v{mt}, v{Sc+i+2}, v{Sc+i+3}")
    A(f"v_max3_f32 v{mt}, v{mt}, v{Sc+15}, v{Sp+8}")
    A(f"v_max3_f32 v{mx}, v{mx}, v{Sp+9}, v{Sp+10}")
    A(f"v_max3_f32 v{mt}, v{mt}, v{Sp+11}, v{Sp+12}")
    A(f"v_max3_f32 v{mx}, v{mx}, v{Sp+13}, v{Sp+14}")
    A(f"v_max3_f32 v{mx}, v{mx}, v{mt}, v{Sp+15}")
    A(f"""v_mov_b32 v{mt}, v{mx}
    s_nop 1
    v_permlane32_swap_b32 v{mx}, v{mt}
    s_nop 1
    v_max_f32 v{mx}, v{mx}, v{mt}""")
    regs=[Sp+8+i for i in range(8)]+[Sc+i for i in range(16)]
    for r in regs: A(f"v_sub_f32 v{r}, v{r}, v{mx}")
    A.wait_lg('v')
    for j,r in enumerate(regs):
        A(f"v_exp_f32 v{r}, v{r}")
        if j==9: A(f"v_smfmac_f32_32x32x32_bf16 {vr(Oc,16)}, {vr(R['Vp'],4)}, {vr(Sp+8,8)}, v{R['idx']}")
        if j==17: A(f"v_smfmac_f32_32x32x32_bf16 {vr(Oc,16)}, {vr(R['Vc'],4)}, {vr(Sc,8)}, v{R['idx']}")
    A("s_nop 1")
    A(f"v_smfmac_f32_32x32x32_bf16 {vr(Oc,16)}, {vr(R['Vc']+4,4)}, {vr(Sc+8,8)}, v{R['idx']}")
    A("s_nop 11")
    A(f"v_rcp_f32 v{mt}, v{Oc+8}\ns_nop 0")
    for i in range(8): A(f"v_mul_f32 v{Oc+i}, v{Oc+i}, v{mt}")
    for i in range(4): A(f"v_cvt_pk_bf16_f32 v{R['dst']+i}, v{Oc+2*i}, v{Oc+2*i+1}")
MSK=RED
AMAP={4:"",
 2:f"s_and_b32 s{sHQ}, s2, 3\ns_lshl_b32 s{sHQ}, s{sHQ}, 1\ns_and_b32 s{sT0}, s{sT1}, 1\ns_add_u32 s{sHQ}, s{sHQ}, s{sT0}\ns_and_b32 s{sRB}, s2, 4\ns_lshl_b32 s{sRB}, s{sRB}, 2\ns_lshr_b32 s{sT0}, s{sT1}, 1\ns_add_u32 s{sRB}, s{sRB}, s{sT0}",
 1:f"s_and_b32 s{sHQ}, s2, 7\ns_mov_b32 s{sRB}, s{sT1}"}[OPT.get('amap',4)]
A.label(NAME)
if OPT['stamp'] or 'amp' in OPT: A("s_memrealtime s[100:101]")
A(f"""s_cmp_ge_u32 s2, 256
s_cbranch_scc1 L_end
s_load_dwordx16 s[4:19], s[0:1], 0
s_load_dwordx2 s[20:21], s[0:1], 64
v_lshrrev_b32 v1, 6, v0
v_and_b32 v0, 63, v0
s_lshr_b32 s{sT1}, s2, 3
v_readfirstlane_b32 s{sW}, v1
""")
if OPT.get('map8'):
    A(f"""s_and_b32 s{sHQ}, s{sT1}, 7
    s_and_b32 s{sRB}, s2, 7
    s_lshl_b32 s{sRB}, s{sRB}, 2
    s_lshr_b32 s{sT0}, s{sT1}, 3
    s_add_u32 s{sRB}, s{sRB}, s{sT0}""")
else:
    A(f"""s_and_b32 s{sHQ}, s2, 1
s_lshl_b32 s{sHQ}, s{sHQ}, 2
s_and_b32 s{sT0}, s{sT1}, 3
s_add_u32 s{sHQ}, s{sHQ}, s{sT0}
s_and_b32 s{sRB}, s2, 6
s_lshl_b32 s{sRB}, s{sRB}, 2
s_lshr_b32 s{sT0}, s{sT1}, 2
s_add_u32 s{sRB}, s{sRB}, s{sT0}""")
if OPT['m']==2: A(f"s_lshr_b32 s{sBR}, s{sRB}, 4\ns_and_b32 s{sR2}, s{sRB}, 15")
else: A(f"s_and_b32 s{sBR}, s{sRB}, 1\ns_lshr_b32 s{sR2}, s{sRB}, 1")
A({1:f"s_lshl_b32 s{sSG}, s{sHQ}, 1\ns_add_u32 s{sSG}, s{sSG}, s{sR2}", 2:f"s_mov_b32 s{sSG}, s{sR2}", 3:f"s_and_b32 s{sSG}, s{sR2}, 3",
   4:f"s_and_b32 s{sSG}, s{sR2}, 1\ns_lshl_b32 s{sSG}, s{sSG}, 2", 5:f"s_and_b32 s{sSG}, s{sR2}, 3\ns_lshl_b32 s{sSG}, s{sSG}, 1", 6:f"s_and_b32 s{sSG}, s{sR2}, 1"}[OPT.get('rot',1)])
A(f"""s_and_b32 s{sT0}, s{sHQ}, 4
s_cmp_eq_u32 s{sBR}, 0
s_cselect_b32 s{sHK}, 1, 0
s_cselect_b32 s{sHV}, 2, 0
s_add_u32 s{sHK}, s{sHK}, s{sHQ}
s_and_b32 s{sHK}, s{sHK}, 3
s_or_b32 s{sHK}, s{sHK}, s{sT0}
s_add_u32 s{sHV}, s{sHV}, s{sHQ}
s_and_b32 s{sHV}, s{sHV}, 3
s_or_b32 s{sHV}, s{sHV}, s{sT0}
s_mov_b32 s{sHG}, s{sHQ}
{AMAP}
s_cmp_lg_u32 s{sHQ}, 3
s_cselect_b32 s{sT0}, s{sBR}, 0
s_cmp_ge_u32 s{sW}, 8
s_cbranch_scc1 L_aux""")

VA=Alloc(2,168)
vx=VA.take(); vw=VA.take(); vt0=VA.take(); vt1=VA.take(); vt2=VA.take(); vt3=VA.take()
vL16=VA.take(); vVo=VA.take(); vIdx=VA.take(); vFl=VA.take(); vP=VA.take(2,2); vN=VA.take(2,2); vZ=VA.take()
vEQ0=VA.take(); vEK=VA.take(); vEV=VA.take(); vx1=vEQ0; vLF=vt3; vKp=vEV
ND=6
vBig=VA.mark()
Qf=[VA.take(4,4) for _ in range(2)]
Sb=[VA.take(16,4) for _ in range(2)]
Oa=[VA.take(16,4) for _ in range(2)]
Kf=[VA.take(4,4) for _ in range(ND)]
Vf=[VA.take(8,4) for _ in range(ND)]
sXoff=sA0; sM0=sA0+1; sWoff=sA0+2; sFOr=sA0+3; sOld=sA0+4; sOut=sA0+5; sOst=sA0+6; sFOw=sA0+7
sU0=sA0+8; sU1=sA0+9; sU2=sA0+10
sE=sA0+11; sKH=sA0+12; sM2=sA0+13; sKVb=sA0+14; sOff=sA0+15; sNon=sA0+16; sVM=sA0+18; sCnt=sA0+20; sBlk=sA0+21
sFGr=sA0+22; sQ0=sA0+23; sQ1=sA0+24; sLo=sA0+25; sHi=sA0+26; sX0=sA0+28
sF0=sA0+30; sF1=sA0+31; sF2=sA0+32; sWoffK=sA0+33; sWoffV=sA0+34; sKO=sA0+35
A(f"""v_lshrrev_b32 v{vt0}, 3, v0
v_mul_u32_u24 v{vw}, 3072, v{vt0}
v_lshlrev_b32 v{vt0}, 10, v{vt0}
v_lshrrev_b32 v{vt1}, 2, v0
v_and_b32 v{vt1}, 4, v{vt1}
v_xor_b32 v{vt1}, v{vt1}, v0
v_and_b32 v{vt1}, 7, v{vt1}
v_lshl_add_u32 v{vw}, v{vt1}, 4, v{vw}
v_lshrrev_b32 v{vt1}, 4, v0
v_xor_b32 v{vt1}, v{vt1}, v0
v_and_b32 v{vt1}, 7, v{vt1}
v_lshl_add_u32 v{vx}, v{vt1}, 4, v{vt0}
v_xor_b32 v{vx1}, 64, v{vx}
v_add_u32 v{vx1}, 8192, v{vx1}
s_lshl_b32 s{sXoff}, s{sR2}, 17
s_lshl_b32 s{sU0}, s{sW}, 14
s_add_u32 s{sXoff}, s{sXoff}, s{sU0}
s_lshl_b32 s{sM0}, s{sW}, 10
s_lshl_b32 s{sM2}, s{sW}, 11
s_mul_i32 s{sWoff}, s{sW}, 24576
s_lshl_b32 s{sU0}, s{sHK}, 7
s_add_u32 s{sWoffK}, s{sWoff}, s{sU0}
s_lshl_b32 s{sU0}, s{sHV}, 7
s_add_u32 s{sWoffV}, s{sWoff}, s{sU0}
s_lshl_b32 s{sU0}, s{sHG}, 7
s_add_u32 s{sWoff}, s{sWoff}, s{sU0}
s_mov_b32 s{SRD_X+2}, 2097152
s_mov_b32 s{SRD_X+3}, 0x00020000
s_mov_b32 s{SRD_W+2}, 1572864
s_mov_b32 s{SRD_W+3}, 0x00020000
s_cmp_eq_u32 s{sBR}, 0
s_waitcnt lgkmcnt(0)
s_cselect_b32 s{SRD_X}, s10, s4
s_cselect_b32 s{SRD_X+1}, s11, s5
s_cselect_b32 s{SRD_W}, s12, s6
s_cselect_b32 s{SRD_W+1}, s13, s7""")
def issue_stage(s):
    slot=(s+1)%3
    CM=OPT.get('cm',0)
    if CM==0: A(f"s_add_u32 s{sU0}, s{sSG}, {s}\ns_and_b32 s{sU0}, s{sU0}, 7")
    elif s<CM: A(f"s_mov_b32 s{sU0}, {OPT.get('c0',0)+s}")
    else:
        if s==CM:
            mg={2:43,1:37,3:52}[CM]; M=8-CM
            A(f"s_mul_i32 s{sU0}, s{sSG}, {mg}\ns_lshr_b32 s{sU0}, s{sU0}, 8\ns_mul_i32 s{sU0}, s{sU0}, {M}\ns_sub_u32 s{sSG}, s{sSG}, s{sU0}")
        else:
            A(f"s_add_u32 s{sSG}, s{sSG}, 1\ns_cmp_eq_u32 s{sSG}, {8-CM}\ns_cselect_b32 s{sSG}, 0, s{sSG}")
        A(f"s_add_u32 s{sU0}, s{sSG}, {CM+OPT.get('c0',0)}\ns_and_b32 s{sU0}, s{sU0}, 7")
    A(f"""s_mul_i32 s{sU1}, s{sU0}, 196608
    s_lshl_b32 s{sU0}, s{sU0}, 7
    s_add_u32 m0, s{sM2}, {slot*SL+LXO}
    s_add_u32 s{sU0}, s{sU0}, s{sXoff}""")
    A.vmem(f"buffer_load_dwordx4 v{vx}, {sr(SRD_X,4)}, s{sU0} offen lds", s)
    for p in (1,2,0):
        A(f"s_add_u32 m0, s{sM0}, {slot*SL+p*7168}")
        A(f"s_add_u32 s{sU2}, s{sU1}, s{(sWoff,sWoffK,sWoffV)[p]}")
        A.vmem(f"buffer_load_dwordx4 v{vw}, {sr(SRD_W,4)}, s{sU2} offen offset:{p*1024} lds", s)
        if p==1:
            A(f"s_add_u32 m0, s{sM2}, {slot*SL+LXO+1024}\ns_nop 0")
            A.vmem(f"buffer_load_dwordx4 v{vx1}, {sr(SRD_X,4)}, s{sU0} offen lds", s)
class Cap:
    def __enter__(self): self.n=len(A.lines); return self
    def __exit__(self,*a): self.l=A.lines[self.n:]; del A.lines[self.n:]
def att_setup():
    srd(SRD_DBG,18,256)
    A(f"""v_mov_b32 v{vZ}, 0
    s_lshr_b32 s{sE}, s{sW}, 1
    s_and_b32 s{sKH}, s{sW}, 1
    s_lshl_b32 s{sF1}, s{sHQ}, 2
    s_add_u32 s{sF1}, s{sF1}, s{sE}
    s_lshl_b32 s{sKVb}, s{sF1}, 17
    s_lshl_b32 s{sF0}, s{sKH}, 11
    s_add_u32 s{sKVb}, s{sKVb}, s{sF0}
    s_lshl_b32 s{sQ0}, s{sF1}, 6
    s_lshl_b32 s{sF0}, s{sRB}, 1
    s_add_u32 s{sQ0}, s{sQ0}, s{sF0}
    s_add_u32 s{sQ0}, s{sQ0}, s{sKH}
    s_lshl_b32 s{sQ0}, s{sQ0}, 10
    s_add_u32 s{sQ0}, s{sQ0}, {WS_Q}
    s_xor_b32 s{sQ1}, s{sQ0}, 1024
    s_mov_b32 s{sVM}, 0x0000ffff
    s_mov_b32 s{sVM+1}, 0x0000ffff
    s_and_b32 s{sKO}, s{sRB}, {OPT.get('kom',25)}
    v_lshlrev_b32 v{vL16}, 4, v0
    v_and_b32 v{vt0}, 15, v0
    v_lshlrev_b32 v{vt1}, 4, v{vt0}
    v_lshrrev_b32 v{vt2}, 5, v0
    v_lshl_add_u32 v{vVo}, v{vt2}, 8, v{vt1}
    v_mov_b32 v{vIdx}, 0xdddddddd
    v_and_b32 v{vKp}, 0x33, v0
    v_bfe_u32 v{vt2}, v0, 2, 1
    v_lshl_add_u32 v{vKp}, v{vt2}, 3, v{vKp}
    v_bfe_u32 v{vt2}, v0, 3, 1
    v_lshl_add_u32 v{vKp}, v{vt2}, 2, v{vKp}
    v_lshlrev_b32 v{vKp}, 4, v{vKp}
    s_and_b32 s{sF2}, s{sHQ}, 4
    s_sub_u32 s{sF0}, s{sHQ}, 1
    s_and_b32 s{sF0}, s{sF0}, 3
    s_or_b32 s{sF0}, s{sF0}, s{sF2}
    s_lshl_b32 s{sF0}, s{sF0}, 11
    s_sub_u32 s{sF1}, s{sHQ}, 2
    s_and_b32 s{sF1}, s{sF1}, 3
    s_or_b32 s{sF1}, s{sF1}, s{sF2}
    s_lshl_b32 s{sF1}, s{sF1}, 11
    v_mov_b32 v{vt1}, s{sF0}
    v_mov_b32 v{vt2}, s{sF1}
    v_cmp_gt_u32 vcc, 16, v0
    s_lshl_b32 s{sF0}, s{sHQ}, 4
    s_lshr_b32 s{sF1}, s{sRB}, 1
    v_cndmask_b32 v{vt1}, v{vt2}, v{vt1}, vcc
    v_lshl_add_u32 v{vFl}, v{vt0}, 7, v{vt1}
    s_add_u32 s{sF0}, s{sF0}, s{sF1}
    s_lshl_b32 s{sF0}, s{sF0}, 7
    s_mov_b32 s{sFGr}, {WS_FG}
    v_writelane_b32 v{vFl}, s{sF0}, 32
    v_mov_b32 v{vLF}, {LF}
    v_and_b32 v{vt0}, 27, v0
    v_cmp_eq_u32 vcc, 16, v{vt0}
    v_mov_b32 v{vt1}, 0x3f803f80
    s_nop 0
    v_cndmask_b32 v{vt1}, 0, v{vt1}, vcc""")
    for d in range(ND):
        for i in range(8): A(f"v_mov_b32 v{Vf[d]+i}, v{vt1}")
    for d in range(2):
        for i in range(16): A(f"v_mov_b32 v{Oa[d]+i}, 0")
    A(f"""s_lshl_b32 s{sF0}, s{sRB}, 1
    s_add_u32 s{sF0}, s{sF0}, s{sKH}
    s_lshl_b32 s{sOst}, s{sF0}, 5
    s_lshl_b32 s{sF1}, s{sHQ}, 1
    s_add_u32 s{sOst}, s{sOst}, s{sF1}
    s_lshr_b32 s{sF1}, s{sE}, 1
    s_add_u32 s{sOst}, s{sOst}, s{sF1}
    s_lshl_b32 s{sOst}, s{sOst}, 10
    s_add_u32 s{sOst}, s{sOst}, {WS_OFB}
    s_lshl_b32 s{sFOr}, s{sRB}, 10
    s_add_u32 s{sFOr}, s{sFOr}, {WS_FOB}
    s_lshl_b32 s{sFOw}, s{sHQ}, 7
    s_add_u32 s{sFOw}, s{sFOw}, s{sFOr}
    s_and_b32 s{sF0}, s{sW}, 3
    s_lshl_b32 s{sF1}, s{sRB}, 2
    s_add_u32 s{sF1}, s{sF1}, s{sF0}
    s_lshr_b32 s{sF2}, s{sW}, 2
    s_lshl_b32 s{sOld}, s{sF1}, 1
    s_add_u32 s{sOld}, s{sOld}, s{sF2}
    s_lshl_b32 s{sOld}, s{sOld}, 13
    s_add_u32 s{sOld}, s{sOld}, {WS_OFB}
    s_lshl_b32 s{sOut}, s{sF1}, 15
    s_lshl_b32 s{sF0}, s{sHQ}, 7
    s_add_u32 s{sOut}, s{sOut}, s{sF0}
    s_lshl_b32 s{sF0}, s{sF2}, 6
    s_add_u32 s{sOut}, s{sOut}, s{sF0}
    s_add_u32 s{sOut}, s{sOut}, 1024
    s_mov_b32 s{sLo}, {f2u(2.0**-80):#x}
    s_mov_b32 s{sHi}, {f2u(2.0**96):#x}""")
    srd(SRD_OUT,16,4194304)
with Cap() as c1: att_setup()
FILL=c1.l
def fill(q,n):
    k=min(n,len(q))
    while k<len(q) and any(x.startswith('v_cmp') for x in q[max(0,k-3):k]): k+=1
    for l in q[:k]: A(l)
    del q[:k]
def kv_load(i):
    if OPT.get('nokv'): return
    d=i%ND
    A(f"""s_add_u32 s{sBlk}, s{sKO}, {i}
    s_and_b32 s{sBlk}, s{sBlk}, 31
    s_lshl_b32 s{sBlk}, s{sBlk}, 12
    s_add_u32 s{sOff}, s{sBlk}, s{sKVb}""")
    A.vmem(f"buffer_load_dwordx4 {vr(Kf[d],4)}, v{vKp}, {sr(SRD_WS,4)}, s{sOff} offen sc1",('kv',i))
    A(f"s_mov_b64 exec, {sr(sVM,2)}")
    A.vmem(f"buffer_load_dwordx4 {vr(Vf[d],4)}, v{vVo}, {sr(SRD_WS,4)}, s{sOff} offen offset:1024 sc1",('kv',i))
    A.vmem(f"buffer_load_dwordx4 {vr(Vf[d]+4,4)}, v{vVo}, {sr(SRD_WS,4)}, s{sOff} offen offset:1536 sc1",('kv',i))
    A("s_mov_b64 exec, -1")
def QK(u): A(f"v_mfma_f32_32x32x16_bf16 {vr(Sb[u%2],16)}, {vr(Kf[(u//2)%ND],4)}, {vr(Qf[u%2],4)}, 0")
def PV(u,t): A(f"v_smfmac_f32_32x32x32_bf16 {vr(Oa[u%2],16)}, {vr(Vf[(u//2)%ND]+4*t,4)}, {vr(Sb[u%2]+8*t,8)}, v{vIdx}")
NU=64
PRIO0=2; PRIO={OPT.get('q1',28):1,OPT.get('q2',56):0}
SCHED={}
nxt=2
for u_ in range(64):
    lim=u_//2-1+ND if u_>=2 else ND-1
    if nxt<=min(lim,31): SCHED.setdefault(u_,[]).append(nxt); nxt+=1
def unit(u):
    S=Sb[u%2]
    E=lambda r: A(f"v_exp_f32 v{S+r}, v{S+r}")
    E(0);E(1)
    if u>0: PV(u-1,1)
    E(2);E(3);E(4)
    for i in SCHED.get(u,[]): kv_load(i)
    if u in PRIO: A(f"s_setprio {PRIO[u]}")
    if u==2:
        A("s_mov_b64 exec, 1"); A.lds(f"ds_add_u32 v{vLF}, v{vEK} offset:48"); A("s_mov_b64 exec, -1")
    if u==OPT['rel']: A.lds(f"ds_write_b32 v{vLF}, v{vIdx} offset:44")
    if u+1<NU:
        if (u+1)%2==0: A.wait_vm(('kv',(u+1)//2))
        QK(u+1)
    for r in range(5,10): E(r)
    PV(u,0)
    for r in range(10,16): E(r)
    if u in (3,5,9,17,33): stamp(18+(3,5,9,17,33).index(u), 1 if u in (5,33) else 2)
UP=OPT.get('up',2)
issue_stage(0)
if UP>=2: issue_stage(1)
srd(SRD_WS,20,WS_BYTES)
stamp(0)
if OPT.get('ib'): A("s_barrier")
if UP>=3: issue_stage(2)
for s in range(8):
    A.wait_vm(s)
    A("s_barrier")
    stamp(1+s, 1 if s in (0,4) else 2)
    if s==0:
        for k in range(UP,3): issue_stage(k)
    if 1<=s<=5: issue_stage(s+2)
    if s==7:
        A.wait_vm('non')
    fill(FILL, 24 if s<7 else 999)
    if s==5: A.vmem(f"buffer_load_dwordx2 {vr(vN,2)}, v{vZ}, {sr(SRD_DBG,4)}, 0 offen sc1",'non')
A.wait_vm('non')
nonce_check(vN,vZ,sNon,sCnt,sU0)
if OPT['stamp']: A(f"v_writelane_b32 v{vSt}, s{sCnt}, 29")
A(f"""s_cmp_eq_u32 s{sBR}, 0
s_cbranch_scc1 L_nomask
s_cmp_gt_u32 s{sW}, 5
s_cbranch_scc1 L_nomask
v_and_b32 v{vt0}, 31, v0
v_lshrrev_b32 v{vt1}, 5, v0
v_lshlrev_b32 v{vt1}, 3, v{vt1}
v_sub_u32 v{vt0}, v{vt0}, v{vt1}
s_lshr_b32 s{sU0}, s{sW}, 1
s_lshl_b32 s{sU0}, s{sU0}, 4
s_and_b32 s{sU1}, s{sW}, 1
s_lshl_b32 s{sU1}, s{sU1}, 2
s_add_u32 s{sU0}, s{sU0}, s{sU1}
s_cmp_gt_u32 s{sW}, 3
s_cselect_b32 s{sU1}, 48, 0
s_sub_u32 s{sU0}, s{sU0}, s{sU1}
v_subrev_u32 v{vt0}, s{sU0}, v{vt0}
v_mov_b32 v{vt2}, {NEGBIG:#x}
s_mov_b32 s{sU1}, 0xfffffff1""")
for i in range(4):
    A(f"v_subrev_u32 v{Sb[0]+i}, {i}, v{vt0}\nv_and_b32 v{Sb[0]+i}, s{sU1}, v{Sb[0]+i}")
for i in range(4):
    A(f"v_cmp_eq_u32 vcc, 0, v{Sb[0]+i}\ns_nop 1\nv_cndmask_b32 v{Sb[0]+i}, v{vt2}, 0, vcc")
A(f"""s_add_u32 s{sU0}, s{sM0}, {MSK}
v_add_u32 v{vt0}, s{sU0}, v{vL16}
ds_write_b128 v{vt0}, {vr(Sb[0],4)}
s_waitcnt lgkmcnt(0)""")
A.label("L_nomask")
A("s_barrier")
if OPT['ewo']:
    A(f"s_cmp_eq_u32 s{sT0}, 0\ns_cbranch_scc1 L_noewo")
    srd(SRD_M,14,524288)
    A(f"""v_lshrrev_b32 v{vx}, 3, v0
    v_and_b32 v{vw}, 6, v{vx}
    v_xor_b32 v{vw}, v{vw}, v0
    v_and_b32 v{vw}, 7, v{vw}
    v_lshlrev_b32 v{vx}, 10, v{vx}
    v_lshl_add_u32 v{vx}, v{vw}, 4, v{vx}
    s_lshl_b32 s{sU0}, s{sW}, 16
    s_lshl_b32 s{sU1}, s{sHQ}, 7
    s_add_u32 s{sU0}, s{sU0}, s{sU1}
    s_lshl_b32 s{sU1}, s{sW}, 13""")
    for j in range(8):
        A(f"s_add_u32 m0, s{sU1}, {WOB+j*1024}")
        A(f"s_add_u32 s{sU0}, s{sU0}, 8192" if j else "s_nop 0")
        A.vmem(f"buffer_load_dwordx4 v{vx}, {sr(SRD_M,4)}, s{sU0} offen lds",'wob')
    A.label("L_noewo")
A("s_barrier")
stamp(30)
A(f"""s_cmp_eq_u32 s{sBR}, 0
s_cbranch_scc1 L_noloc
s_and_b32 s{sU0}, s{sW}, 3
s_lshr_b32 s{sU1}, s{sW}, 2
s_lshl_b32 s{sU2}, s{sU1}, 2
s_add_u32 s{sU2}, s{sU2}, s{sU0}
s_lshl_b32 s{sF0}, s{sU2}, 10
s_add_u32 s{sF0}, s{sF0}, {EAQ+2*4096}
v_add_u32 v{vx}, s{sF0}, v{vL16}
s_lshl_b32 s{sF0}, s{sU2}, 11
s_add_u32 s{sF0}, s{sF0}, {EAK+2*8192}
v_add_u32 v{vw}, s{sF0}, v{vL16}
v_add_u32 v{vEK}, s{sF0}, v{vVo}
v_add_u32 v{vEQ0}, {MSK}, v{vL16}""")
RA=dict(Sc=Sb[0],Sp=Sb[1],Oc=Oa[0],Mk=Kf[0],mx=vt0,mt=vt1,Qh=Qf[0],Kc=Qf[1],Kp=Oa[1],Vc=Vf[0],Vp=Vf[1],dst=Oa[1]+4,idx=vIdx)
for i in range(6): A.lds(f"ds_read_b128 {vr(Kf[i],4)}, v{vEQ0} offset:{i*1024}")
A.lds(f"ds_read_b128 {vr(RA['Qh'],4)}, v{vx}")
A.lds(f"ds_read_b128 {vr(RA['Kc'],4)}, v{vw} offset:8192",'kc')
A.lds(f"ds_read_b128 {vr(RA['Kp'],4)}, v{vw}",'kp')
A(f"s_mov_b64 exec, {sr(sVM,2)}")
A.lds(f"ds_read_b128 {vr(RA['Vc'],4)}, v{vEK} offset:{8192+1024}",'v')
A.lds(f"ds_read_b128 {vr(RA['Vc']+4,4)}, v{vEK} offset:{8192+1536}",'v')
A.lds(f"ds_read_b128 {vr(RA['Vp'],4)}, v{vEK} offset:1536",'v')
A(f"""s_mov_b64 exec, -1
v_bfe_u32 v{vt2}, v0, 4, 1
v_lshl_add_u32 v{vt2}, v{vt2}, 14, v{vVo}
s_and_b32 s{sF0}, s{sW}, 1
s_lshl_b32 s{sF0}, s{sF0}, 9
v_add_u32 v{vt2}, s{sF0}, v{vt2}
s_lshl_b32 s{sF0}, s{sR2}, 2
s_add_u32 s{sF0}, s{sF0}, s{sU1}
s_add_u32 s{sF0}, s{sF0}, 2
s_lshl_b32 s{sF0}, s{sF0}, 5
s_lshl_b32 s{sF1}, s{sHG}, 1
s_add_u32 s{sF0}, s{sF0}, s{sF1}
s_lshr_b32 s{sF1}, s{sU0}, 1
s_add_u32 s{sF0}, s{sF0}, s{sF1}
s_lshl_b32 s{sF0}, s{sF0}, 10
s_add_u32 s{sF0}, s{sF0}, {WS_OFA}""")
loc_unit(RA)
A.vmem(f"buffer_store_dwordx4 {vr(RA['dst'],4)}, v{vt2}, {sr(SRD_WS,4)}, s{sF0} offen sc1")
for i in range(16): A(f"v_mov_b32 v{Oa[0]+i}, 0")
for i in range(8): A(f"v_mov_b32 v{Oa[1]+i}, 0")
A.label("L_noloc")
A(f"v_mov_b32 v{vEK}, 1")
PM=(1<<33)-1
A(f"s_mov_b32 s{sX0}, -1\ns_mov_b32 s{sX0+1}, 1")
A(f"s_cmp_lg_u32 s{sW}, 0\ns_cbranch_scc1 L_nf2")
A(f"s_mov_b64 exec, {sr(sX0,2)}")
if OPT['pp']: poll_pipe(Sb[1],vFl,sFGr,sCnt,sNon)
else:
    poll_issue(vP,vFl,sFGr)
    poll_check(vP,vFl,sFGr,sCnt,sNon)
A(f"s_mov_b64 exec, -1\nds_write_b32 v{vLF}, v{vIdx} offset:32\ns_branch L_nf3")
A.label("L_nf2")
lds_word_spin(vt0,vLF,32,sCnt,sU0)
A.label("L_nf3")
A.vm=[]
if OPT.get('idle'):
    for _ in range(OPT['idle']): A("s_sleep 16")
stamp(16,2)
if OPT.get('rep'):
    A(f"s_mov_b32 s{sF2}, {OPT['rep']}")
    A.label("L_rep")
    A("s_nop 15")
    for d in range(2):
        for i in range(16): A(f"v_mov_b32 v{Oa[d]+i}, 0")
A.vmem(f"buffer_load_dwordx4 {vr(Qf[0],4)}, v{vL16}, {sr(SRD_WS,4)}, s{sQ0} offen sc1")
kv_load(0)
A.vmem(f"buffer_load_dwordx4 {vr(Qf[1],4)}, v{vL16}, {sr(SRD_WS,4)}, s{sQ1} offen sc1",'q1')
kv_load(1)
stamp(17)
A(f"s_setprio {PRIO0}")
A.wait_vm('q1')
QK(0)
A("s_nop 11")
for u in range(NU): unit(u)
A("s_nop 1")
PV(NU-1,1)
if OPT.get('rep'):
    A(f"s_sub_u32 s{sF2}, s{sF2}, 1\ns_cmp_lg_u32 s{sF2}, 0\ns_cbranch_scc1 L_rep")
if OPT.get('spin'):
    A(f"s_mov_b32 s{sF2}, {OPT['spin']}")
    A.label("L_spin")
    A(f"s_sub_u32 s{sF2}, s{sF2}, 1\ns_cmp_lg_u32 s{sF2}, 0\ns_cbranch_scc1 L_spin")
stamp(23)
A("s_setprio 3")
vR=Sb[0]; vRa=Sb[1]
A(f"""s_mul_i32 s{sU0}, s{sW}, 2304
s_add_u32 s{sU0}, s{sU0}, {RED}
v_add_u32 v{vRa}, s{sU0}, v{vL16}
v_lshlrev_b32 v{vRa+1}, 2, v0
v_add_u32 v{vRa+1}, s{sU0}, v{vRa+1}
s_xor_b32 s{sU1}, s{sW}, 1
s_mul_i32 s{sU1}, s{sU1}, 2304
s_add_u32 s{sU1}, s{sU1}, {RED}
v_add_u32 v{vEK}, s{sU1}, v{vL16}
v_lshlrev_b32 v{vRa+3}, 2, v0
v_add_u32 v{vRa+3}, s{sU1}, v{vRa+3}""")
A.lds(f"ds_write_b128 v{vRa}, {vr(Oa[1],4)}")
A.lds(f"ds_write_b128 v{vRa}, {vr(Oa[1]+4,4)} offset:1024")
A.lds(f"ds_write_b32 v{vRa+1}, v{Oa[1]+8} offset:2048")
A(f"""v_bfe_u32 v{vRa+4}, v0, 4, 1
v_lshlrev_b32 v{vRa+4}, 14, v{vRa+4}
v_add_u32 v{vRa+4}, v{vRa+4}, v{vVo}
s_and_b32 s{sU0}, s{sE}, 1
s_lshl_b32 s{sU0}, s{sU0}, 9
v_add_u32 v{vRa+4}, s{sU0}, v{vRa+4}""")
A.wait_lg_all()
A("s_barrier")
stamp(24)
A.lds(f"ds_read_b32 v{vR+8}, v{vRa+3} offset:2048",'r2')
A.lds(f"ds_read_b128 {vr(vR,4)}, v{vEK}",'r0')
A.lds(f"ds_read_b128 {vr(vR+4,4)}, v{vEK} offset:1024",'r1')
A.wait_lg('r2')
A(f"""v_add_f32 v{Oa[0]+8}, v{Oa[0]+8}, v{vR+8}
v_cmp_nle_f32 vcc, s{sLo}, v{Oa[0]+8}
v_cmp_nge_f32 {sr(sX0,2)}, s{sHi}, v{Oa[0]+8}""")
A.wait_lg('r0')
for i in range(4): A(f"v_add_f32 v{Oa[0]+i}, v{Oa[0]+i}, v{vR+i}")
A.wait_lg('r1')
for i in range(4,8): A(f"v_add_f32 v{Oa[0]+i}, v{Oa[0]+i}, v{vR+i}")
A(f"""s_or_b64 vcc, vcc, {sr(sX0,2)}
s_cmp_lg_u64 vcc, 0
s_cbranch_scc1 L_fallback""")
A.label("L_norm")
A(f"v_rcp_f32 v{vR+9}, v{Oa[0]+8}\ns_nop 0")
for i in range(8): A(f"v_mul_f32 v{Oa[0]+i}, v{Oa[0]+i}, v{vR+9}")
for i in range(4): A(f"v_cvt_pk_bf16_f32 v{vR+i}, v{Oa[0]+2*i}, v{Oa[0]+2*i+1}")
A.vmem(f"buffer_store_dwordx4 {vr(vR,4)}, v{vRa+4}, {sr(SRD_WS,4)}, s{sOst} offen sc1")
VB=Alloc(vBig,168)
Of=[VB.take(4,4) for _ in range(8)]
Wf=[[VB.take(4,4) for _ in range(4)] for _ in range(6)]
Ac=[VB.take(4,4) for _ in range(4)]
vWA=[vx,vw,vt2,vt3]; vOo=vEQ0; vXw=vEK; vXr=vEV
wo_tr_addr(vx,vt0,vt1)
A(f"""s_lshr_b32 s{sU2}, s{sW}, 2
s_lshl_b32 s{sU0}, s{sU2}, 15
s_lshl_b32 s{sU1}, s{sU2}, 6
v_add_u32 v{vx}, s{sU0}, v{vx}
v_xor_b32 v{vx}, s{sU1}, v{vx}
v_xor_b32 v{vw}, 32, v{vx}
v_xor_b32 v{vt2}, 64, v{vx}
v_xor_b32 v{vt3}, 96, v{vx}""")
assert WOB==0
def wo_read(hp_, slotset):
    for c in range(4):
        A.lds(f"ds_read_b64_tr_b16 {vr(Wf[slotset][c],2)}, v{vWA[c]} offset:{hp_*4096}",('wo',hp_))
        A.lds(f"ds_read_b64_tr_b16 {vr(Wf[slotset][c]+2,2)}, v{vWA[c]} offset:{hp_*4096+1024}",('wo',hp_))
wo_read(0,0)
A(f"""v_and_b32 v{vFl}, 15, v0
v_lshlrev_b32 v{vOo}, 11, v{vFl}
v_lshlrev_b32 v{vFl}, 7, v{vFl}
v_lshrrev_b32 v{vt0}, 4, v0
v_lshl_add_u32 v{vOo}, v{vt0}, 3, v{vOo}
s_xor_b32 s{sU1}, s{sW}, 5
s_mul_i32 s{sU1}, s{sU1}, 2304
s_add_u32 s{sU1}, s{sU1}, {RED}
v_add_u32 v{vXr}, s{sU1}, v{vL16}""")
A.wait_lg_all(); wo_read(1,1)
A(f"v_mov_b32 v{vt0}, {LF}\nv_mov_b32 v{vt1}, 1")
A.wait_vm_all()
if OPT.get('ow'): A.vmem(f"buffer_load_dword v{vN-1 if False else vIdx}, v{vRa+4}, {sr(SRD_WS,4)}, s{sOst} offen sc1")
A("s_mov_b64 exec, 1")
A.lds(f"ds_add_rtn_u32 v{vP}, v{vt0}, v{vt1} offset:40",'cnt')
A("s_mov_b64 exec, -1")
A.wait_lg('cnt')
A(f"""v_readfirstlane_b32 s{sU0}, v{vP}
s_cmp_lg_u32 s{sU0}, 7
s_cbranch_scc1 L_nl1""")
flag_store(vN,vZ,sFOw)
if not OPT['pp']: poll_issue(vP,vFl,sFOr,0xff)
A.label("L_nl1")
stamp(25)
for i in range(2,6):
    A.wait_lg_all(); wo_read(i,i)
A.wait_lg_all()
if OPT.get('dual',1):
    A(f"""s_lshr_b32 s{sU1}, s{sW}, 2
    s_lshl_b32 s{sU2}, s{sU1}, 9
    s_add_u32 s{sFOr}, s{sFOr}, s{sU2}
    s_lshl_b32 s{sU1}, s{sU1}, 4
    v_add_u32 v{vt0}, s{sU1}, v{vt0}
    s_and_b32 s{sU0}, s{sW}, 3
    s_cmp_lg_u32 s{sU0}, 0
    s_cbranch_scc1 L_nl2""")
    A("s_mov_b64 exec, 0xf"); poll_pipe(Ac[0],vFl,sFOr,sCnt,sNon); A("s_mov_b64 exec, -1")
else:
    A(f"s_cmp_lg_u32 s{sU0}, 7\ns_cbranch_scc1 L_nl2")
    A("s_mov_b64 exec, 0xff"); poll_pipe(Ac[0],vFl,sFOr,sCnt,sNon); A("s_mov_b64 exec, -1")
A(f"ds_write_b32 v{vt0}, v{vt1} offset:36\ns_branch L_nl3")
A.label("L_nl2")
lds_word_spin(vP,vt0,36,sCnt,sU1)
A.label("L_nl3")
A.vm=[]
stamp(26)
for i in range(8):
    if i==4: A(f"s_add_u32 s{sOld}, s{sOld}, 4096")
    A.vmem(f"buffer_load_dwordx4 {vr(Of[i],4)}, v{vL16}, {sr(SRD_WS,4)}, s{sOld} offen offset:{(i%4)*1024} sc1",('of',i))
A.wait_lg_all()
for i in range(8):
    A.wait_vm(('of',i))
    if i>=6: A.wait_lg(('wo',i))
    for c in range(4):
        A(f"v_mfma_f32_16x16x32_bf16 {vr(Ac[c],4)}, {vr(Wf[i%6][c],4)}, {vr(Of[i],4)}, {'0' if i==0 else vr(Ac[c],4)}")
    if i<2:
        A.wait_lg_all(); wo_read(6+i,i)
stamp(28,2)
A("s_nop 7")
A.lds(f"ds_write_b128 v{vXw}, {vr(Ac[2],4)}")
A.lds(f"ds_write_b128 v{vXw}, {vr(Ac[3],4)} offset:1024")
A.wait_lg_all()
A("s_barrier")
A.lds(f"ds_read_b128 {vr(Ac[2],4)}, v{vXr}",'x0')
A.lds(f"ds_read_b128 {vr(Ac[3],4)}, v{vXr} offset:1024",'x1')
for c in range(2):
    A.wait_lg(f'x{c}')
    for i in range(4): A(f"v_add_f32 v{Ac[c]+i}, v{Ac[c]+i}, v{Ac[2+c]+i}")
    A(f"v_cvt_pk_bf16_f32 v{Ac[c]}, v{Ac[c]}, v{Ac[c]+1}\nv_cvt_pk_bf16_f32 v{Ac[c]+1}, v{Ac[c]+2}, v{Ac[c]+3}")
    A.vmem(f"buffer_store_dwordx2 {vr(Ac[c],2)}, v{vOo}, {sr(SRD_OUT,4)}, s{sOut} offen offset:{c*32}")
stamp(27)
if 'amp' in OPT:
    A(f"""s_memrealtime s[96:97]
    s_sub_u32 s94, s94, s100
    s_mul_i32 s94, s94, {OPT.get('ampk',3)}
    s_min_u32 s94, s94, 20000
    s_waitcnt lgkmcnt(0)""")
    A.label("L_amp")
    A(f"""s_memrealtime s[98:99]
    s_waitcnt lgkmcnt(0)
    s_sub_u32 s98, s98, s96
    s_cmp_lt_u32 s98, s94
    s_cbranch_scc1 L_amp""")
stamp_out(vt0)
A("s_endpgm")

A.label("L_fallback"); A.reset()
fC=Oa[1]; fM=vt0; fT=vt1; fS=Kf[0]
fK=Kf[4]; fV=Vf[0]
A(f"""s_lshl_b32 s{sU0}, s{sKH}, 11
s_sub_u32 s{sU2}, s{sKVb}, s{sU0}
s_mov_b32 s{sOff}, s{sU2}
s_mov_b32 s{sCnt}, 0
v_mov_b32 v{fM}, {NEGBIG:#x}""")
A.label("L_fb1")
A(f"""buffer_load_dwordx4 {vr(fK,4)}, v{vKp}, {sr(SRD_WS,4)}, s{sOff} offen sc1
s_waitcnt vmcnt(0)
v_mfma_f32_32x32x16_bf16 {vr(fS,16)}, {vr(fK,4)}, {vr(Qf[0],4)}, 0
s_add_u32 s{sOff}, s{sOff}, 2048
s_add_u32 s{sCnt}, s{sCnt}, 1
s_nop 11""")
for i in range(8): A(f"v_max3_f32 v{fM}, v{fM}, v{fS+2*i}, v{fS+2*i+1}")
A(f"""s_cmp_lt_u32 s{sCnt}, 64
s_cbranch_scc1 L_fb1
v_mov_b32 v{fT}, v{fM}
s_nop 1
v_permlane32_swap_b32 v{fM}, v{fT}
s_nop 1
v_max_f32 v{fM}, v{fM}, v{fT}""")
for i in range(16): A(f"v_sub_f32 v{fC+i}, 0, v{fM}")
for i in range(16): A(f"v_mov_b32 v{Oa[0]+i}, 0")
A(f"""s_mov_b32 s{sOff}, s{sU2}
s_mov_b32 s{sCnt}, 0""")
A.label("L_fb2")
A(f"""buffer_load_dwordx4 {vr(fK,4)}, v{vKp}, {sr(SRD_WS,4)}, s{sOff} offen sc1
s_mov_b64 exec, {sr(sVM,2)}
buffer_load_dwordx4 {vr(fV,4)}, v{vVo}, {sr(SRD_WS,4)}, s{sOff} offen offset:1024 sc1
buffer_load_dwordx4 {vr(fV+4,4)}, v{vVo}, {sr(SRD_WS,4)}, s{sOff} offen offset:1536 sc1
s_mov_b64 exec, -1
s_waitcnt vmcnt(0)
v_mfma_f32_32x32x16_bf16 {vr(fS,16)}, {vr(fK,4)}, {vr(Qf[0],4)}, {vr(fC,16)}
s_add_u32 s{sOff}, s{sOff}, 2048
s_add_u32 s{sCnt}, s{sCnt}, 1
s_nop 11""")
for i in range(16): A(f"v_exp_f32 v{fS+i}, v{fS+i}")
A(f"""s_nop 1
v_smfmac_f32_32x32x32_bf16 {vr(Oa[0],16)}, {vr(fV,4)}, {vr(fS,8)}, v{vIdx}
v_smfmac_f32_32x32x32_bf16 {vr(Oa[0],16)}, {vr(fV+4,4)}, {vr(fS+8,8)}, v{vIdx}
s_cmp_lt_u32 s{sCnt}, 64
s_cbranch_scc1 L_fb2
s_nop 15
s_branch L_norm""")

A.label("L_aux")
A.reset()
VX=Alloc(2,168)
xt0=VX.take(); xt1=VX.take(); xt2=VX.take(); xZ=VX.take(); xN=VX.take(2,2)
xL16=VX.take(); xVo=VX.take()
xBig=VX.mark()
va=[[VX.take() for _ in range(4)] for _ in range(2)]; vwa=[VX.take() for _ in range(2)]
vKpos=VX.take(); vV1=VX.take(); gDum=VX.take(); gPW=VX.take(); gLF=VX.take()
acc=[VX.take(16,4) for _ in range(6)]
xf=[[VX.take(4,4) for _ in range(2)] for _ in range(2)]
wf=[VX.take(4,4) for _ in range(4)]
xf.append([VX.take(4,4) for _ in range(2)])
sT=sA0; sC=sA0+24; sV0=sA0+2; sV1=sA0+3; sNx=sA0+4; sCx=sA0+6; sVMx=sA0+8; sV2=sA0+11; sV3=sA0+12
sB0=sA0+13; sB1=sA0+14; sB2=sA0+15; sHa=sA0+16; sHf=sA0+17; sTT=sA0+18; sRP=sA0+22; sJ=sA0+23; sG0=sA0+19; sG1=sA0+20
A(f"""s_setprio 3
s_sub_u32 s{sT}, s{sW}, 8
s_and_b32 s{sRP}, s{sT}, 1
s_lshr_b32 s{sJ}, s{sT}, 1
v_mov_b32 v{xZ}, 0
s_waitcnt lgkmcnt(0)""")
srd(SRD_WS,20,WS_BYTES); srd(SRD_DBG,18,256)
if OPT.get('ib'): A("s_barrier")
A(f"""s_add_u32 s{sV0}, s2, s{sT}
s_cmp_lg_u32 s{sV0}, 0
s_cbranch_scc1 L_nonon
s_mov_b32 s{sV0}, {WS_EPOCH}
s_mov_b64 exec, 1
buffer_load_dwordx2 {vr(xN,2)}, v{xZ}, {sr(SRD_WS,4)}, s{sV0} offen sc1
s_waitcnt vmcnt(0)
v_add_u32 v{xN}, 2, v{xN}
v_or_b32 v{xN}, 1, v{xN}
v_or_b32 v{xN+1}, 0x80000000, v{xN+1}
buffer_store_dwordx2 {vr(xN,2)}, v{xZ}, {sr(SRD_DBG,4)}, 0 offen sc1
buffer_store_dwordx2 {vr(xN,2)}, v{xZ}, {sr(SRD_WS,4)}, s{sV0} offen sc1
s_mov_b64 exec, -1""")
A.label("L_nonon")
stamp(0)
if OPT.get('pf',0):
    A(f"""s_cmp_eq_u32 s{sBR}, 0
    s_cselect_b32 s{SRD_X}, s10, s4
    s_cselect_b32 s{SRD_X+1}, s11, s5
    s_cselect_b32 s{SRD_W}, s12, s6
    s_cselect_b32 s{SRD_W+1}, s13, s7
    s_mov_b32 s{SRD_X+2}, 2097152
    s_mov_b32 s{SRD_X+3}, 0x00020000
    s_mov_b32 s{SRD_W+2}, 1572864
    s_mov_b32 s{SRD_W+3}, 0x00020000
    v_lshlrev_b32 v{xt0}, 7, v0
    v_lshrrev_b32 v{xt1}, 2, v0
    v_mul_u32_u24 v{xt1}, 3072, v{xt1}
    v_and_b32 v{xt2}, 3, v0
    v_lshl_add_u32 v{xt1}, v{xt2}, 7, v{xt1}""")
    if OPT['m']==2:
        A(f"""s_and_b32 s{sV0}, s{sR2}, 8
        s_lshl_b32 s{sV0}, s{sV0}, 17
        s_mov_b32 s{sV2}, s{sT1}
        s_mul_i32 s{sV1}, s{sV2}, 49152""")
    else:
        A(f"""s_lshr_b32 s{sV2}, s{sT1}, 3
        s_lshl_b32 s{sV2}, s{sV2}, 2
        s_and_b32 s{sV0}, s{sT1}, 3
        s_add_u32 s{sV2}, s{sV2}, s{sV0}
        s_and_b32 s{sV0}, s2, 6
        s_lshl_b32 s{sV0}, s{sV0}, 18
        s_mul_i32 s{sV1}, s{sV2}, 98304""")
    A(f"""s_lshl_b32 s{sV2}, s{sV2}, 15
    s_add_u32 s{sV0}, s{sV0}, s{sV2}
    s_lshl_b32 s{sV2}, s{sT}, 13
    s_add_u32 s{sV0}, s{sV0}, s{sV2}
    s_and_b32 s{sV2}, s2, 1
    s_lshl_b32 s{sV2}, s{sV2}, 9
    s_add_u32 s{sV1}, s{sV1}, s{sV2}
    s_lshl_b32 s{sV2}, s{sT}, 10
    s_add_u32 s{sV1}, s{sV1}, s{sV2}
    {"s_sleep "+str(OPT['pfd']) if OPT.get('pfd') else ""}
    buffer_load_dword v{gDum}, v{xt0}, {sr(SRD_X,4)}, s{sV0} offen
    s_cmp_eq_u32 s{sT}, 3
    s_cbranch_scc1 L_pfd
    buffer_load_dword v{gDum}, v{xt1}, {sr(SRD_W,4)}, s{sV1} offen""")
    if OPT['m']==1:
        A(f"s_add_u32 s{sV1}, s{sV1}, 49152\nbuffer_load_dword v{gDum}, v{xt1}, {sr(SRD_W,4)}, s{sV1} offen")
    A.label("L_pfd")
A(f"""v_mov_b32 v{gLF}, {LF}
v_lshl_add_u32 v{xt0}, v0, 2, v{gLF}
ds_write_b32 v{xt0}, v{xZ}
v_and_b32 v{xt0}, 31, v0
v_lshrrev_b32 v{xt1}, 5, v0
v_bfe_u32 v{xt2}, v0, 1, 3
v_xor_b32 v{xt2}, v{xt2}, v{xt1}
v_lshlrev_b32 v{xt2}, 4, v{xt2}
v_lshl_add_u32 v{xt2}, v{xt0}, 7, v{xt2}
s_lshl_b32 s{sV0}, s{sRP}, 13
s_add_u32 s{sV0}, s{sV0}, {LXO}
v_add_u32 v{va[0][0]}, s{sV0}, v{xt2}""")
for s in range(1,4): A(f"v_xor_b32 v{va[0][s]}, {32*s}, v{va[0][0]}")
for s in range(4): A(f"v_add_u32 v{va[1][s]}, {2*SL}, v{va[0][s]}")
A(f"""v_bfe_u32 v{xt2}, v0, 2, 2
v_lshl_add_u32 v{xt2}, v{xt1}, 3, v{xt2}
v_lshlrev_b32 v{xt2}, 7, v{xt2}
v_bfe_u32 v{vV1}, v0, 4, 1
v_lshl_add_u32 v{xt2}, v{vV1}, 5, v{xt2}
v_and_b32 v{vwa[0]}, 3, v0
v_lshl_add_u32 v{xt2}, v{vwa[0]}, 3, v{xt2}
v_bfe_u32 v{vwa[0]}, v0, 3, 1
v_lshl_add_u32 v{vwa[0]}, v{vwa[0]}, 6, v{xt2}
s_lshl_b32 s{sV0}, s{sJ}, 6
v_xor_b32 v{vwa[0]}, s{sV0}, v{vwa[0]}
v_add_u32 v{vwa[1]}, {2*SL}, v{vwa[0]}
v_and_b32 v{vKpos}, 0x33, v0
v_bfe_u32 v{xt2}, v0, 2, 1
v_lshl_add_u32 v{vKpos}, v{xt2}, 3, v{vKpos}
v_bfe_u32 v{xt2}, v0, 3, 1
v_lshl_add_u32 v{vKpos}, v{xt2}, 2, v{vKpos}
v_lshlrev_b32 v{vKpos}, 4, v{vKpos}
v_and_b32 v{xt2}, 15, v0
v_lshlrev_b32 v{xt2}, 4, v{xt2}
v_lshl_add_u32 v{xVo}, v{xt1}, 8, v{xt2}
v_lshlrev_b32 v{xL16}, 4, v0
s_mov_b32 s{sC}, {f2u(CSCALE):#x}
s_mov_b32 s{sC+1}, {f2u(CSCALE):#x}
s_mov_b32 s{sVMx}, 0x0000ffff
s_mov_b32 s{sVMx+1}, 0x0000ffff
s_lshl_b32 s{sTT}, s{sR2}, 1
s_add_u32 s{sTT}, s{sTT}, s{sRP}
s_lshl_b32 s{sTT}, s{sTT}, 1
s_lshl_b32 s{sHf}, s{sHG}, 4
s_add_u32 s{sHf}, s{sHf}, s{sR2}""")
if OPT['pfc']:
    A(f"s_getpc_b64 {sr(sNx,2)}")
    A.label("L_pc")
    A(f"""s_sub_u32 s{sNx}, s{sNx}, L_pc-{NAME}
    s_subb_u32 s{sNx+1}, s{sNx+1}, 0
    s_lshl_b32 s{sV0}, s{sT}, 13
    s_mov_b32 s{sV1}, L_codeend-{NAME}-4
    v_lshlrev_b32 v{xt2}, 7, v0
    v_add_u32 v{xt2}, s{sV0}, v{xt2}
    v_min_u32 v{xt2}, s{sV1}, v{xt2}""")
PARTS=(1,2,0)
def rd_x(n,r):
    if n>=32: return
    s,ks=divmod(n,4); slot=(s+1)%3
    A.lds(f"ds_read_b128 {vr(xf[n%2][r],4)}, v{va[slot//2][ks]} offset:{(slot%2)*SL+r*4096}", ('x',n,r))
def rd_w(n,c):
    if n>=32: return
    s,ks=divmod(n,4); slot=(s+1)%3; p=PARTS[c]
    o=(slot%2)*SL+p*8192+ks*2048
    A.lds(f"ds_read_b64_tr_b16 {vr(wf[c],2)}, v{vwa[slot//2]} offset:{o}", ('w',n,c))
    A.lds(f"ds_read_b64_tr_b16 {vr(wf[c]+2,2)}, v{vwa[slot//2]} offset:{o+512}", ('w',n,c))
def pw_prefetch():
    srd(SRD_M,14,524288); srd(SRD_XA,8,524288)
    am=OPT.get('amap',4)
    A(f"""s_and_b32 s{sV0}, s2, { {4:1,2:3,1:7}[am] }
    s_xor_b32 s{sV0}, s{sV0}, { {4:0,2:1,1:3}[am] }
    s_add_u32 s{sV0}, s{sV0}, s{sT}
    s_cmp_lg_u32 s{sV0}, 0
    s_cbranch_scc1 L_npw
    s_lshl_b32 s{sV0}, s{sT1}, 14
    s_add_u32 s{sV0}, s{sV0}, 384
    v_lshlrev_b32 v{gPW}, 10, v0
    s_mov_b64 exec, 0xffff
    buffer_load_dword v{gDum}, v{gPW}, {sr(SRD_M,4)}, s{sV0} offen
    buffer_load_dword v{gDum}, v{gPW}, {sr(SRD_XA,4)}, s{sV0} offen
    s_mov_b64 exec, -1""")
    A.label("L_npw")
QD=OPT.get('qd',20)
def g_step(n):
    s,ks=divmod(n,4)
    if ks==3 and s<7:
        A.wait_lg_all()
        A("s_barrier")
    for c in range(3 if n<QD else 2):
        for r in range(2):
            A.wait_lg([('x',n,r),('w',n,c)])
            a_=acc[2*c+r]; C="0" if n==0 else vr(a_,16)
            if c==1: A(f"v_mfma_f32_32x32x16_bf16 {vr(a_,16)}, {vr(xf[n%2][r],4)}, {vr(wf[c],4)}, {C}")
            else: A(f"v_mfma_f32_32x32x16_bf16 {vr(a_,16)}, {vr(wf[c],4)}, {vr(xf[n%2][r],4)}, {C}")
            if r==0 and c<2: rd_x(n+1,c)
            if r==1 and not (c==2 and n+1>=QD): rd_w(n+1,c)
    if n==OPT.get('pwn',18): pw_prefetch()
    if n==22: A.vmem(f"buffer_load_dwordx2 {vr(xN,2)}, v{xZ}, {sr(SRD_DBG,4)}, 0 offen sc1",'non')
def q_rd(m):
    if m>=32: return
    s,ks=divmod(m,4); slot=(s+1)%3; b=(m+1)%3
    o=(slot%2)*SL+ks*2048
    W=(wf[2],wf[3],wf[0])[b]
    for r in range(2): A.lds(f"ds_read_b128 {vr(xf[(2,0,1)[b]][r],4)}, v{va[slot//2][ks]} offset:{(slot%2)*SL+r*4096}", ('qx',m,r))
    A.lds(f"ds_read_b64_tr_b16 {vr(W,2)}, v{vwa[slot//2]} offset:{o}", ('qw',m))
    A.lds(f"ds_read_b64_tr_b16 {vr(W+2,2)}, v{vwa[slot//2]} offset:{o+512}", ('qw',m))
def q_phase(fillers):
    q_rd(QD+1)
    per=4
    for m in range(QD,32):
        b=(m+1)%3; W=(wf[2],wf[3],wf[0])[b]
        A.wait_lg(('qw',m))
        for r in range(2):
            A(f"v_mfma_f32_32x32x16_bf16 {vr(acc[4+r],16)}, {vr(W,4)}, {vr(xf[(2,0,1)[b]][r],4)}, {vr(acc[4+r],16)}")
            if r==0: q_rd(m+2)
            for _ in range(per):
                if fillers: fillers.pop(0)()
    while fillers: fillers.pop(0)()
    A.wait_lg_all()
    A("s_barrier")
def I(l): return lambda: A(l)
def Vm(l): return lambda: A.vmem(l)
def packf(a): return [I(f"v_cvt_pk_bf16_f32 v{a+i}, v{a+2*i}, v{a+2*i+1}") for i in range(8)]
def pack16(dst, a, scale=False):
    if scale:
        for i in range(0,16,2): A(f"v_pk_mul_f32 {vr(a+i,2)}, {vr(a+i,2)}, {sr(sC,2)}")
    for i in range(8): A(f"v_cvt_pk_bf16_f32 v{dst+i}, v{a+2*i}, v{a+2*i+1}")
A.wait_lg_all()
A("s_barrier")
rd_x(0,0); rd_w(0,0); rd_x(0,1); rd_w(0,1); rd_w(0,2)
assert (QD+1)%3==0
for n in range(32):
    g_step(n)
    if n==30: q_rd(QD)
stamp(9)
SVL=list(A.lg); SVV=list(A.vm)
A(f"""s_cmp_lg_u32 s{sBR}, 0
s_cbranch_scc1 L_epa""")
SC={0:' sc1',1:'',2:' sc0 sc1',3:' nt sc1'}[OPT.get('sc',0)]
A(f"""s_lshl_b32 s{sV0}, s{sTT}, 11
s_lshl_b32 s{sV1}, s{sJ}, 18
s_add_u32 s{sV0}, s{sV0}, s{sV1}
s_lshl_b32 s{sV1}, s{sHK}, 19
s_add_u32 s{sB0}, s{sV0}, s{sV1}
s_add_u32 s{sG0}, s{sB0}, 131072
s_lshl_b32 s{sV1}, s{sHV}, 19
s_add_u32 s{sB1}, s{sV0}, s{sV1}
s_lshr_b32 s{sB2}, s{sV0}, 1
s_lshl_b32 s{sV1}, s{sHG}, 18
s_add_u32 s{sB2}, s{sB2}, s{sV1}
s_add_u32 s{sB2}, s{sB2}, {WS_Q}
s_add_u32 s{sG1}, s{sB2}, 65536
v_lshl_add_u32 v{xt0}, v{vV1}, 17, v{xVo}""")
F=[]
for r in range(2):
    K=acc[r]; F+=packf(K)
    F.append(Vm(f"buffer_store_dwordx4 {vr(K,4)}, v{xL16}, {sr(SRD_WS,4)}, s{sB0} offen offset:{r*2048}{SC}"))
    F.append(Vm(f"buffer_store_dwordx4 {vr(K+4,4)}, v{xL16}, {sr(SRD_WS,4)}, s{sG0} offen offset:{r*2048}{SC}"))
for r in range(2):
    V=acc[2+r]; F+=packf(V)
    F.append(Vm(f"buffer_store_dwordx4 {vr(V,4)}, v{xt0}, {sr(SRD_WS,4)}, s{sB1} offen offset:{r*2048+1024}{SC}"))
    F.append(Vm(f"buffer_store_dwordx4 {vr(V+4,4)}, v{xt0}, {sr(SRD_WS,4)}, s{sB1} offen offset:{r*2048+1536}{SC}"))
q_phase(F)
A("s_nop 9")
for r in range(2):
    Q=acc[4+r]; pack16(Q,Q,True)
    A.vmem(f"buffer_store_dwordx4 {vr(Q,4)}, v{xL16}, {sr(SRD_WS,4)}, s{sB2} offen offset:{r*1024}{SC}")
    A.vmem(f"buffer_store_dwordx4 {vr(Q+4,4)}, v{xL16}, {sr(SRD_WS,4)}, s{sG1} offen offset:{r*1024}{SC}")
stamp(10,2)
A.wait_vm('non')
nonce_check(xN,xZ,sNx,sCx,sV1)
A(f"""s_lshl_b32 s{sHf}, s{sHf}, 7
s_add_u32 s{sHf}, s{sHf}, {WS_FG}""")
A.wait_vm_all()
stamp(11,2)
A("s_barrier")
A(f"s_cmp_lg_u32 s{sT}, 0\ns_cbranch_scc1 L_wo")
flag_store(xN,xZ,sHf)
A("s_branch L_wo")
A.label("L_epa"); A.reset(); A.vm=list(SVV); A.lg=list(SVL)
A(f"""s_lshl_b32 s{sV0}, s{sRP}, 14
s_lshl_b32 s{sV1}, s{sJ}, 12
s_add_u32 s{sV2}, s{sV0}, s{sV1}
s_add_u32 s{sV0}, s{sV2}, {EAK+8192}
v_add_u32 v{xt1}, s{sV0}, v{vKpos}
v_lshl_add_u32 v{xt0}, v{vV1}, 11, v{xVo}
v_add_u32 v{xt2}, s{sV0}, v{xt0}
s_lshl_b32 s{sHa}, s{sHf}, 13
s_add_u32 s{sHa}, s{sHa}, {WS_HA}
s_add_u32 s{sV1}, s{sV1}, s{sHa}
s_lshl_b32 s{sHf}, s{sHf}, 1
s_add_u32 s{sHf}, s{sHf}, s{sJ}
s_lshl_b32 s{sHf}, s{sHf}, 7
s_add_u32 s{sHf}, s{sHf}, {WS_FH}""")
F=packf(acc[1])+packf(acc[3])
F.append(I(f"""s_cmp_lg_u32 s{sRP}, 1
s_cbranch_scc1 L_noha
buffer_store_dwordx4 {vr(acc[1],4)}, v{vKpos}, {sr(SRD_WS,4)}, s{sV1} offen sc1
buffer_store_dwordx4 {vr(acc[1]+4,4)}, v{vKpos}, {sr(SRD_WS,4)}, s{sV1} offen offset:2048 sc1
buffer_store_dwordx4 {vr(acc[3]+4,4)}, v{xt0}, {sr(SRD_WS,4)}, s{sV1} offen offset:1536 sc1
L_noha:"""))
F+=packf(acc[0])+packf(acc[2])
q_phase(F)
for r in range(2):
    A.lds(f"ds_write_b128 v{xt1}, {vr(acc[r],4)} offset:{r*8192}")
    A.lds(f"ds_write_b128 v{xt1}, {vr(acc[r]+4,4)} offset:{r*8192+2048}")
    A.lds(f"ds_write_b128 v{xt2}, {vr(acc[2+r],4)} offset:{r*8192+1024}")
    A.lds(f"ds_write_b128 v{xt2}, {vr(acc[2+r]+4,4)} offset:{r*8192+1536}")
A(f"s_lshr_b32 s{sV0}, s{sV2}, 1\ns_add_u32 s{sV0}, s{sV0}, {EAQ}\nv_add_u32 v{xt1}, s{sV0}, v{xL16}")
for r in range(2):
    pack16(acc[4+r],acc[4+r],True)
    for e in range(2): A.lds(f"ds_write_b128 v{xt1}, {vr(acc[4+r]+4*e,4)} offset:{r*4096+e*1024}")
A.wait_lg_all()
A("s_barrier")
Mk=acc[0]; Sc=acc[2]; Sp=acc[3]; Oc=acc[4]; T5=acc[5]
Qh=T5; Kc=T5+4; Kp=T5+8; dstp=T5+12; Vc=xf[0][0]; Vp=xf[1][0]; FL=wf[0]
vAQ=va[0][0]; vAK=va[0][1]; vAV=va[0][2]; vOf=va[0][3]; mx=va[1][0]; mt=va[1][1]; xIdx=va[1][2]; xOne=va[1][3]
A(f"v_add_u32 v{xt0}, {MSK}, v{xL16}\nv_mov_b32 v{xt2}, {NEGBIG:#x}")
for i in range(6): A.lds(f"ds_read_b128 {vr(Mk+4*i,4)}, v{xt0} offset:{i*1024}")
A(f"""s_lshl_b32 s{sV0}, s{sT}, 10
s_add_u32 s{sV0}, s{sV0}, {EAQ}
v_add_u32 v{vAQ}, s{sV0}, v{xL16}
s_lshl_b32 s{sV0}, s{sT}, 11
s_add_u32 s{sV1}, s{sV0}, {EAK}
v_add_u32 v{vAK}, s{sV1}, v{xL16}
v_add_u32 v{vAV}, s{sV1}, v{xVo}
v_and_b32 v{xt0}, 27, v0
v_cmp_eq_u32 vcc, 16, v{xt0}
v_mov_b32 v{xt1}, 0x3f803f80
v_lshl_add_u32 v{vOf}, v{vV1}, 14, v{xVo}
v_cndmask_b32 v{xt1}, 0, v{xt1}, vcc
v_mov_b32 v{xIdx}, 0xdddddddd
v_mov_b32 v{xOne}, 1
s_and_b32 s{sV1}, s{sT}, 1
s_lshl_b32 s{sV1}, s{sV1}, 9
v_add_u32 v{vOf}, s{sV1}, v{vOf}
s_lshl_b32 s{sV3}, s{sR2}, 7
s_lshl_b32 s{sV1}, s{sHG}, 1
s_add_u32 s{sV3}, s{sV3}, s{sV1}
s_lshr_b32 s{sV1}, s{sT}, 1
s_add_u32 s{sV3}, s{sV3}, s{sV1}
s_lshl_b32 s{sV3}, s{sV3}, 10
s_add_u32 s{sV3}, s{sV3}, {WS_OFA}
s_add_u32 s{sHa}, s{sHa}, s{sV0}
s_sub_u32 s{sHa}, s{sHa}, 8192""")
for i in range(12): A(f"v_mov_b32 v{Vc+i}, v{xt1}")
A.wait_vm_all()
nonce_check(xN,xZ,sNx,sCx,sV1)
A(f"s_cmp_lg_u32 s{sRP}, 1\ns_cbranch_scc1 L_noha2")
flag_store(xN,xZ,sHf)
A.label("L_noha2")
A(f"s_sub_u32 s{sHf}, s{sHf}, 256")
stamp(18)
for it,T in enumerate((1,0)):
    A.lds(f"ds_read_b128 {vr(Qh,4)}, v{vAQ} offset:{T*4096}",'q')
    A.lds(f"ds_read_b128 {vr(Kc,4)}, v{vAK} offset:{(T+1)*8192}",'kc')
    if T: A.lds(f"ds_read_b128 {vr(Kp,4)}, v{vAK} offset:{T*8192}",'kp')
    A(f"s_mov_b64 exec, {sr(sVMx,2)}")
    A.lds(f"ds_read_b128 {vr(Vc,4)}, v{vAV} offset:{(T+1)*8192+1024}",'v')
    A.lds(f"ds_read_b128 {vr(Vc+4,4)}, v{vAV} offset:{(T+1)*8192+1536}",'v')
    if T: A.lds(f"ds_read_b128 {vr(Vp,4)}, v{vAV} offset:{T*8192+1536}",'v')
    A("s_mov_b64 exec, -1")
    if T==0:
        A.wait_lg_all()
        A(f"s_cmp_eq_u32 s{sR2}, 0\ns_cbranch_scc1 L_first")
        poll_issue(FL,xZ,sHf,1)
        poll_check(FL,xZ,sHf,sCx,sNx,1,sleep=OPT['slp'])
        A(f"""buffer_load_dwordx4 {vr(Kp,4)}, v{xL16}, {sr(SRD_WS,4)}, s{sHa} offen sc1
        s_mov_b64 exec, {sr(sVMx,2)}
        buffer_load_dwordx4 {vr(Vp,4)}, v{xVo}, {sr(SRD_WS,4)}, s{sHa} offen offset:1536 sc1
        s_mov_b64 exec, -1
        s_waitcnt vmcnt(0)
        s_branch L_first2""")
        A.label("L_first")
        for i in range(8): A(f"v_mov_b32 v{Mk+16+i}, v{xt2}")
        A("s_nop 1")
        A.label("L_first2")
        A.vm=[]
    dst=dstp if it%2==0 else wf[3]
    loc_unit(dict(Sc=Sc,Sp=Sp,Oc=Oc,Mk=Mk,mx=mx,mt=mt,Qh=Qh,Kc=Kc,Kp=Kp,Vc=Vc,Vp=Vp,dst=dst,idx=xIdx))
    A(f"s_add_u32 s{sV1}, s{sV3}, {T*32768}")
    A.vmem(f"buffer_store_dwordx4 {vr(dst,4)}, v{vOf}, {sr(SRD_WS,4)}, s{sV1} offen sc1",'oa')
stamp(19)
A(f"""s_lshl_b32 s{sV1}, s{sR2}, 3
s_add_u32 s{sV1}, s{sV1}, s{sHG}
s_lshl_b32 s{sV1}, s{sV1}, 7
s_add_u32 s{sV1}, s{sV1}, {WS_FOA}""")
A.wait_vm_all()
A("s_mov_b64 exec, 1")
A.lds(f"ds_add_u32 v{gLF}, v{xOne} offset:48")
A("s_mov_b64 exec, -1")
A(f"s_mov_b32 s{sCx}, 0")
A.label("L_cnt")
A(f"""ds_read_b32 v{FL}, v{gLF} offset:48
s_add_u32 s{sCx}, s{sCx}, 1
s_waitcnt lgkmcnt(0)
v_readfirstlane_b32 s{sV0}, v{FL}
s_cmp_gt_u32 s{sCx}, {SPIN*8}
s_cbranch_scc1 L_cntd
{"" if OPT.get('nosl') else "s_sleep 1"}
s_cmp_lt_u32 s{sV0}, 12
s_cbranch_scc1 L_cnt""")
A.label("L_cntd")
A(f"s_cmp_lg_u32 s{sT}, 0\ns_cbranch_scc1 L_wo")
flag_store(xN,xZ,sV1)
A.label("L_wo"); A.reset(); A.vm=['x']
lds_word_spin(xt0,gLF,44,sCx,sV0)
A(f"""s_lshr_b32 s{sV0}, s{sRB}, 1
s_lshl_b32 s{sV0}, s{sV0}, 10
s_add_u32 s{sV0}, s{sV0}, {WS_FOA}""")
srd(SRD_M,14,524288); srd(SRD_XA,8,524288); srd(SRD_OUT,16,4194304)
A(f"""v_lshrrev_b32 v{xt0}, 3, v0
v_and_b32 v{xt1}, 6, v{xt0}
v_xor_b32 v{xt1}, v{xt1}, v0
v_and_b32 v{xt1}, 7, v{xt1}
v_lshlrev_b32 v{xt0}, 10, v{xt0}
v_lshl_add_u32 v{xt0}, v{xt1}, 4, v{xt0}
s_lshl_b32 s{sB0}, s{sT}, 17
s_lshl_b32 s{sB1}, s{sHQ}, 7
s_add_u32 s{sB1}, s{sB1}, s{sB0}
s_lshl_b32 s{sB2}, s{sT}, 14""")
def wo_dma(base, srd_):
    for j in range(16):
        A(f"s_add_u32 m0, s{sB2}, {base+j*1024}")
        A(f"s_add_u32 s{sG0}, s{sB1}, {j*8192}")
        A.vmem(f"buffer_load_dwordx4 v{xt0}, {sr(srd_,4)}, s{sG0} offen lds")
        if j%OPT.get('pg',2)==OPT.get('pg',2)-1 and len(A.vm)>OPT['pace']: A(f"s_waitcnt vmcnt({OPT['pace']})"); A.vm=A.vm[len(A.vm)-OPT['pace']:]
if OPT['ewo']: A(f"s_cmp_lg_u32 s{sT0}, 0\ns_cbranch_scc1 L_woa")
wo_dma(WOB,SRD_M)
A.label("L_woa")
wo_dma(WOA,SRD_XA)
VY=Alloc(xBig,168)
yFl=VY.take(); yP=VY.take(2,2); yWA=[VY.take() for _ in range(4)]; yOo=VY.take()
yO=[VY.take(4,4) for _ in range(16)]
yW=[[VY.take(4,4) for _ in range(4)] for _ in range(3)]
yA=[VY.take(4,4) for _ in range(4)]
A(f"""v_and_b32 v{yFl}, 15, v0
v_lshlrev_b32 v{yOo}, 11, v{yFl}
v_lshlrev_b32 v{yFl}, 7, v{yFl}
v_lshrrev_b32 v{xt0}, 4, v0
v_lshl_add_u32 v{yOo}, v{xt0}, 3, v{yOo}""")
poll_issue(yP,yFl,sV0,0xff)
poll_check(yP,yFl,sV0,sCx,sNx,0xff,sleep=OPT['slp'])
stamp(20)
A(f"""s_lshl_b32 s{sV2}, s{sRB}, 2
s_add_u32 s{sV2}, s{sV2}, s{sT}
s_lshl_b32 s{sB0}, s{sV2}, 14
s_add_u32 s{sB0}, s{sB0}, {WS_OFA}""")
for i in range(16 if not OPT.get('nowo') else 0):
    if i and i%4==0: A(f"s_add_u32 s{sB0}, s{sB0}, 4096")
    A.vmem(f"buffer_load_dwordx4 {vr(yO[i],4)}, v{xL16}, {sr(SRD_WS,4)}, s{sB0} offen offset:{(i%4)*1024} sc1")
    if OPT['pace']<60 and i%2==1 and len(A.vm)>OPT['pace']: A(f"s_waitcnt vmcnt({OPT['pace']})"); A.vm=A.vm[-OPT['pace']:]
wo_tr_addr(yWA[0],xt0,xt1)
A(f"""v_add_u32 v{yWA[0]}, {WOA}, v{yWA[0]}
v_xor_b32 v{yWA[1]}, 32, v{yWA[0]}
v_xor_b32 v{yWA[2]}, 64, v{yWA[0]}
v_xor_b32 v{yWA[3]}, 96, v{yWA[0]}
s_lshl_b32 s{sB0}, s{sV2}, 15
s_lshl_b32 s{sB1}, s{sHQ}, 7
s_add_u32 s{sB0}, s{sB0}, s{sB1}""")
A.wait_vm_all()
stamp(21)
A("s_setprio 0")
A("s_barrier")
def woa_read(hp_,c):
    if hp_>=16: return
    b=hp_%3
    A.lds(f"ds_read_b64_tr_b16 {vr(yW[b][c],2)}, v{yWA[c]} offset:{hp_*4096}",('wa',hp_,c))
    A.lds(f"ds_read_b64_tr_b16 {vr(yW[b][c]+2,2)}, v{yWA[c]} offset:{hp_*4096+1024}",('wa',hp_,c))
for c in range(4): woa_read(0,c)
for c in range(2): woa_read(1,c)
for i in range(16):
    for c in range(4):
        A.wait_lg(('wa',i,c))
        A(f"v_mfma_f32_16x16x32_bf16 {vr(yA[c],4)}, {vr(yW[i%3][c],4)}, {vr(yO[i],4)}, {'0' if i==0 else vr(yA[c],4)}")
        woa_read(i+1+(c+2)//4,(c+2)%4)
A("s_nop 7")
for c in range(4):
    acc=yA[c]
    A(f"v_cvt_pk_bf16_f32 v{acc}, v{acc}, v{acc+1}\nv_cvt_pk_bf16_f32 v{acc+1}, v{acc+2}, v{acc+3}")
    A.vmem(f"buffer_store_dwordx2 {vr(acc,2)}, v{yOo}, {sr(SRD_OUT,4)}, s{sB0} offen offset:{c*32}")
stamp(22)
stamp_out(yFl)
A.label("L_end")
A("s_endpgm")
A.label("L_codeend")

errs=check(A.lines)
for e in errs[:25]: print("CHECK:",e, file=sys.stderr)
hdr=open('concat_heads__sliding_local_dilated__softmax_full_mha__prompt.s.ref').read().split('; Override')[0]
nv=168
DOC="""; ---------------------------------------------------------------------------------------------
; ---------------------------------------------------------------------------------------------
"""
out=hdr+f"""; @launch grid=(256,1,1) block=(768,1,1) lds={LDS_BYTES}
"""+DOC+f""".amdgcn_target "amdgcn-amd-amdhsa--gfx950"
.text
.globl {NAME}
.p2align 8
.type {NAME},@function
"""+A.text()+f""".section .rodata,"a"
.p2align 6
.amdhsa_kernel {NAME}
  .amdhsa_next_free_vgpr {nv}
  .amdhsa_next_free_sgpr 102
  .amdhsa_accum_offset {nv}
  .amdhsa_group_segment_fixed_size 0
  .amdhsa_kernarg_size 72
  .amdhsa_user_sgpr_count 2
  .amdhsa_user_sgpr_kernarg_segment_ptr 1
  .amdhsa_system_sgpr_workgroup_id_x 1
.end_amdhsa_kernel
"""
open(sys.argv[1],'w').write(out)
print("vgpr att",VA.hi,VB.hi,"aux",VX.hi,VY.hi,"lines",len(A.lines),"errs",len(errs))
```

```python
import sys, math, struct
from asmlib import *
NAME="concat_heads__sliding_local_dilated__softmax_full_mha__prompt_kernel"
OPT=dict(nosl=1, cm=2, up=3, ib=1, pace=1, stamp=0, pfc=0, ewo=0, pp=1, m=1, qd=23, rel=8, slp=2)
for a in sys.argv[2:]:
    k,v=a.split('='); OPT[k]=int(v) if v.lstrip('-').isdigit() else v

SL=40960; LXO=24576; EAQ=65536; EAK=81920-8192; RED=131072; LF=155648
WOB=0; WOA=65536
LDS_BYTES=163840
WS_KV=0; WS_OFB=4<<20; WS_OFA=6<<20; WS_Q=10<<20; WS_HA=12<<20
FGS=OPT.get('fgs',7); WS_FG=(8<<20)+OPT.get('fgo',0); WS_FOB=(8<<20)+262144+OPT.get('fbo',0); WS_EPOCH=(8<<20)+65536; WS_FOA=(8<<20)+131072; WS_FH=(8<<20)+163840
WS_STAMP=30<<20
WS_BYTES=32<<20
CSCALE=0.25*math.log2(math.e)
def f2u(x): return struct.unpack('<I',struct.pack('<f',x))[0]
NEGBIG=f2u(-1e30)
SPIN=30000

A=Asm()
OSA={0:'',1:' sc1',2:' nt',3:' sc0 sc1'}[OPT.get('osa',0)]; OSB={0:'',1:' sc1',2:' nt',3:' sc0 sc1'}[OPT.get('osb',0)]
sW=22; sHQ=23; sRB=24; sSG=25; sBR=26; sR2=27
SRD_X=28; SRD_W=32; SRD_XA=36; sHG=3; sHK=40; sHV=41; sT0=42; sT1=43; SRD_WS=44; SRD_DBG=48; SRD_M=52; SRD_OUT=56
sA0=60

def srd(base, ptr, nbytes):
    A(f"""s_mov_b32 s{base}, s{ptr}
    s_mov_b32 s{base+1}, s{ptr+1}
    s_mov_b32 s{base+2}, {nbytes}
    s_mov_b32 s{base+3}, 0x00020000""")
vSt=1
def stamp(idx, lvl=1):
    if OPT.get('amp')==idx:
        A("s_memrealtime s[94:95]\ns_waitcnt lgkmcnt(0)"); A.lg=[]
    if OPT['stamp']<lvl: return
    if 'only' in OPT and idx not in [int(x) for x in str(OPT['only']).split(',')]: return
    A(f"""s_memrealtime s[96:97]
    s_memtime s[98:99]
    s_waitcnt lgkmcnt(0)
    v_writelane_b32 v{vSt}, s96, {idx}
    v_writelane_b32 v{vSt}, s98, {idx+32}""")
    A.lg=[]
def stamp_out(vtmp):
    if not OPT['stamp']: return
    A(f"""v_writelane_b32 v{vSt}, s100, 31
    s_mul_i32 s96, s2, 12
    s_add_u32 s96, s96, s{sW}
    s_lshl_b32 s96, s96, 8
    s_add_u32 s96, s96, {WS_STAMP}
    v_lshlrev_b32 v{vtmp}, 2, v0
    buffer_store_dword v{vSt}, v{vtmp}, {sr(SRD_WS,4)}, s96 offen""")
def poll_issue(vdst, voff, soff, mask=-1):
    if mask!=-1: A(f"s_mov_b64 exec, {mask:#x}")
    A.vmem(f"buffer_load_dwordx2 {vr(vdst,2)}, v{voff}, {sr(SRD_WS,4)}, s{soff} offen sc1",'poll')
    if mask!=-1: A("s_mov_b64 exec, -1")
def poll_check(vdst, voff, soff, scnt, snon, mask=-1, sleep=0, keep=0):
    L=A.newlabel('L_poll'); Ld=A.newlabel('L_polld'); Lc=A.newlabel('L_pollc')
    A(f"s_mov_b32 s{scnt}, 0")
    if mask!=-1: A(f"s_mov_b64 exec, {mask:#x}")
    A.wait_vm('poll')
    A(f"s_branch {Lc}")
    A.label(L)
    if sleep and not OPT.get('nosl'): A(f"s_sleep {sleep}")
    A(f"""buffer_load_dwordx2 {vr(vdst,2)}, v{voff}, {sr(SRD_WS,4)}, s{soff} offen sc1
    s_waitcnt vmcnt(0)""")
    A.label(Lc)
    A(f"""v_cmp_eq_u64 vcc, {sr(snon,2)}, {vr(vdst,2)}
    s_add_u32 s{scnt}, s{scnt}, 1
    s_cmp_eq_u64 vcc, exec
    s_cbranch_scc1 {Ld}
    s_cmp_le_u32 s{scnt}, {SPIN}
    s_cbranch_scc1 {L}""")
    A.label(Ld)
    if mask!=-1: A("s_mov_b64 exec, -1")
def poll_pipe(vd, voff, soff, scnt, snon, gap=2):
    L=A.newlabel('L_pp'); Ld=A.newlabel('L_ppd')
    ld=lambda k: A(f"buffer_load_dwordx2 {vr(vd+2*k,2)}, v{voff}, {sr(SRD_WS,4)}, s{soff} offen sc1")
    A(f"s_mov_b32 s{scnt}, 0")
    for k in range(3):
        ld(k)
        if k<2 and not OPT.get('nosl'): A(f"s_sleep {gap}")
    A.label(L)
    for k in range(3):
        A(f"""s_waitcnt vmcnt(2)
        v_cmp_eq_u64 vcc, {sr(snon,2)}, {vr(vd+2*k,2)}
        s_cmp_eq_u64 vcc, exec
        s_cbranch_scc1 {Ld}""")
        ld(k)
    A(f"""s_add_u32 s{scnt}, s{scnt}, 1
    s_cmp_le_u32 s{scnt}, {SPIN}
    s_cbranch_scc1 {L}""")
    A.label(Ld)
def lds_word_spin(vF, vAddr, off, scnt, stmp):
    L=A.newlabel('L_ws'); Ld=A.newlabel('L_wsd')
    A(f"s_mov_b32 s{scnt}, 0")
    A.label(L)
    A(f"""ds_read_b32 v{vF}, v{vAddr} offset:{off}
    s_add_u32 s{scnt}, s{scnt}, 1
    s_waitcnt lgkmcnt(0)
    v_readfirstlane_b32 s{stmp}, v{vF}
    s_cmp_gt_u32 s{scnt}, {SPIN*8}
    s_cbranch_scc1 {Ld}
    {"s_sleep 1" if OPT.get('lsl') else ""}
    s_cmp_eq_u32 s{stmp}, 0
    s_cbranch_scc1 {L}""")
    A.label(Ld)
    A.lg=[]
def nonce_check(vN, vZ, snon, scnt, stmp):
    L=A.newlabel('L_non'); Ld=A.newlabel('L_nond')
    A(f"s_mov_b32 s{scnt}, 0")
    A.label(L)
    A(f"""v_readfirstlane_b32 s{snon}, v{vN}
    v_readfirstlane_b32 s{snon+1}, v{vN+1}
    s_add_u32 s{scnt}, s{scnt}, 1
    s_cmp_gt_u32 s{scnt}, {SPIN}
    s_cbranch_scc1 {Ld}
    s_cmp_eq_u32 s{snon}, 0
    s_cselect_b32 s{stmp}, 0, s{snon+1}
    s_cmp_lg_u32 s{stmp}, 0
    s_cbranch_scc1 {Ld}
    buffer_load_dwordx2 {vr(vN,2)}, v{vZ}, {sr(SRD_DBG,4)}, 0 offen sc1
    s_waitcnt vmcnt(0)
    s_branch {L}""")
    A.label(Ld)
def flag_store(vN, vZ, soff):
    A("s_mov_b64 exec, 1")
    A.vmem(f"buffer_store_dwordx2 {vr(vN,2)}, v{vZ}, {sr(SRD_WS,4)}, s{soff} offen sc1",'flag')
    A("s_mov_b64 exec, -1")
def lds_flags_spin(vF, vAddr, scnt, stmp, issued=False):
    L=A.newlabel('L_xs'); Ld=A.newlabel('L_xsd'); Lc=A.newlabel('L_xsc')
    A(f"s_mov_b32 s{scnt}, 0")
    if issued: A(f"s_branch {Lc}")
    A.label(L)
    A(f"ds_read_b128 {vr(vF,4)}, v{vAddr}")
    A.label(Lc)
    A(f"""s_add_u32 s{scnt}, s{scnt}, 1
    s_waitcnt lgkmcnt(0)
    v_and_b32 v{vF}, v{vF}, v{vF+1}
    v_and_b32 v{vF+2}, v{vF+2}, v{vF+3}
    v_and_b32 v{vF}, v{vF}, v{vF+2}
    s_cmp_gt_u32 s{scnt}, {SPIN*4}
    v_readfirstlane_b32 s{stmp}, v{vF}
    s_cbranch_scc1 {Ld}
    s_cmp_eq_u32 s{stmp}, 0
    s_cbranch_scc1 {L}""")
    A.label(Ld)
    A.lg=[]
def wo_tr_addr(dst, t0, t1):
    A(f"""v_lshrrev_b32 v{t0}, 2, v0
    v_and_b32 v{t0}, 7, v{t0}
    v_lshrrev_b32 v{t1}, 5, v0
    v_lshl_add_u32 v{t1}, v{t1}, 4, v{t0}
    v_lshlrev_b32 v{t1}, 7, v{t1}
    v_and_b32 v{t0}, 6, v{t0}
    v_bfe_u32 v{dst}, v0, 1, 1
    v_xor_b32 v{t0}, v{t0}, v{dst}
    v_lshl_add_u32 v{t1}, v{t0}, 4, v{t1}
    v_and_b32 v{t0}, 1, v0
    v_lshl_add_u32 v{dst}, v{t0}, 3, v{t1}""")


def loc_unit(R, pre=None):
    Sc,Sp,Oc,Mk=R['Sc'],R['Sp'],R['Oc'],R['Mk']; mx,mt=R['mx'],R['mt']
    if pre: pre()
    A.wait_lg('kc')
    A(f"v_mfma_f32_32x32x16_bf16 {vr(Sc,16)}, {vr(R['Kc'],4)}, {vr(R['Qh'],4)}, {vr(Mk,16)}")
    A.wait_lg('kp')
    A(f"v_mfma_f32_32x32x16_bf16 {vr(Sp,16)}, {vr(R['Kp'],4)}, {vr(R['Qh'],4)}, {vr(Mk+8,16)}")
    for i in range(9): A(f"v_mov_b32 v{Oc+i}, 0")
    A("s_nop 1")
    A(f"v_max_f32 v{mx}, v{Sc}, v{Sc+1}")
    A(f"v_max3_f32 v{mt}, v{Sc+2}, v{Sc+3}, v{Sc+4}")
    for i in range(5,15,4):
        A(f"v_max3_f32 v{mx}, v{mx}, v{Sc+i}, v{Sc+i+1}")
        if i+3<16: A(f"v_max3_f32 v{mt}, v{mt}, v{Sc+i+2}, v{Sc+i+3}")
    A(f"v_max3_f32 v{mt}, v{mt}, v{Sc+15}, v{Sp+8}")
    A(f"v_max3_f32 v{mx}, v{mx}, v{Sp+9}, v{Sp+10}")
    A(f"v_max3_f32 v{mt}, v{mt}, v{Sp+11}, v{Sp+12}")
    A(f"v_max3_f32 v{mx}, v{mx}, v{Sp+13}, v{Sp+14}")
    A(f"v_max3_f32 v{mx}, v{mx}, v{mt}, v{Sp+15}")
    A(f"""v_mov_b32 v{mt}, v{mx}
    s_nop 1
    v_permlane32_swap_b32 v{mx}, v{mt}
    s_nop 1
    v_max_f32 v{mx}, v{mx}, v{mt}""")
    regs=[Sp+8+i for i in range(8)]+[Sc+i for i in range(16)]
    for r in regs: A(f"v_sub_f32 v{r}, v{r}, v{mx}")
    A.wait_lg('v')
    for j,r in enumerate(regs):
        A(f"v_exp_f32 v{r}, v{r}")
        if j==9: A(f"v_smfmac_f32_32x32x32_bf16 {vr(Oc,16)}, {vr(R['Vp'],4)}, {vr(Sp+8,8)}, v{R['idx']}")
        if j==17: A(f"v_smfmac_f32_32x32x32_bf16 {vr(Oc,16)}, {vr(R['Vc'],4)}, {vr(Sc,8)}, v{R['idx']}")
    A("s_nop 1")
    A(f"v_smfmac_f32_32x32x32_bf16 {vr(Oc,16)}, {vr(R['Vc']+4,4)}, {vr(Sc+8,8)}, v{R['idx']}")
    A("s_nop 11")
    A(f"v_rcp_f32 v{mt}, v{Oc+8}\ns_nop 0")
    for i in range(8): A(f"v_mul_f32 v{Oc+i}, v{Oc+i}, v{mt}")
    for i in range(4): A(f"v_cvt_pk_bf16_f32 v{R['dst']+i}, v{Oc+2*i}, v{Oc+2*i+1}")
MSK=RED
AMAP={4:"",
 2:f"s_and_b32 s{sHQ}, s2, 3\ns_lshl_b32 s{sHQ}, s{sHQ}, 1\ns_and_b32 s{sT0}, s{sT1}, 1\ns_add_u32 s{sHQ}, s{sHQ}, s{sT0}\ns_and_b32 s{sRB}, s2, 4\ns_lshl_b32 s{sRB}, s{sRB}, 2\ns_lshr_b32 s{sT0}, s{sT1}, 1\ns_add_u32 s{sRB}, s{sRB}, s{sT0}",
 1:f"s_and_b32 s{sHQ}, s2, 7\ns_mov_b32 s{sRB}, s{sT1}"}[OPT.get('amap',4)]
A.label(NAME)
if OPT['stamp'] or 'amp' in OPT: A("s_memrealtime s[100:101]")
A(f"""s_cmp_ge_u32 s2, 256
s_cbranch_scc1 L_end
s_load_dwordx16 s[4:19], s[0:1], 0
s_load_dwordx2 s[20:21], s[0:1], 64
v_lshrrev_b32 v1, 6, v0
v_and_b32 v0, 63, v0
s_lshr_b32 s{sT1}, s2, 3
v_readfirstlane_b32 s{sW}, v1
""")
if OPT.get('map8'):
    A(f"""s_and_b32 s{sHQ}, s{sT1}, 7
    s_and_b32 s{sRB}, s2, 7
    s_lshl_b32 s{sRB}, s{sRB}, 2
    s_lshr_b32 s{sT0}, s{sT1}, 3
    s_add_u32 s{sRB}, s{sRB}, s{sT0}""")
else:
    A(f"""s_and_b32 s{sHQ}, s2, 1
s_lshl_b32 s{sHQ}, s{sHQ}, 2
s_and_b32 s{sT0}, s{sT1}, 3
s_add_u32 s{sHQ}, s{sHQ}, s{sT0}
s_and_b32 s{sRB}, s2, 6
s_lshl_b32 s{sRB}, s{sRB}, 2
s_lshr_b32 s{sT0}, s{sT1}, 2
s_add_u32 s{sRB}, s{sRB}, s{sT0}""")
if OPT['m']==2: A(f"s_lshr_b32 s{sBR}, s{sRB}, 4\ns_and_b32 s{sR2}, s{sRB}, 15")
else: A(f"s_and_b32 s{sBR}, s{sRB}, 1\ns_lshr_b32 s{sR2}, s{sRB}, 1")
A({1:f"s_lshl_b32 s{sSG}, s{sHQ}, 1\ns_add_u32 s{sSG}, s{sSG}, s{sR2}", 2:f"s_mov_b32 s{sSG}, s{sR2}", 3:f"s_and_b32 s{sSG}, s{sR2}, 3",
   4:f"s_and_b32 s{sSG}, s{sR2}, 1\ns_lshl_b32 s{sSG}, s{sSG}, 2", 5:f"s_and_b32 s{sSG}, s{sR2}, 3\ns_lshl_b32 s{sSG}, s{sSG}, 1", 6:f"s_and_b32 s{sSG}, s{sR2}, 1"}[OPT.get('rot',1)])
A(f"""s_and_b32 s{sT0}, s{sHQ}, 4
s_cmp_eq_u32 s{sBR}, 0
s_cselect_b32 s{sHK}, 1, 0
s_cselect_b32 s{sHV}, 2, 0
s_add_u32 s{sHK}, s{sHK}, s{sHQ}
s_and_b32 s{sHK}, s{sHK}, 3
s_or_b32 s{sHK}, s{sHK}, s{sT0}
s_add_u32 s{sHV}, s{sHV}, s{sHQ}
s_and_b32 s{sHV}, s{sHV}, 3
s_or_b32 s{sHV}, s{sHV}, s{sT0}
s_mov_b32 s{sHG}, s{sHQ}
{AMAP}
s_cmp_lg_u32 s{sHQ}, 3
s_cselect_b32 s{sT0}, s{sBR}, 0
s_cmp_ge_u32 s{sW}, 8
s_cbranch_scc1 L_aux""")

VA=Alloc(2,168)
vx=VA.take(); vw=VA.take(); vt0=VA.take(); vt1=VA.take(); vt2=VA.take(); vt3=VA.take()
vL16=VA.take(); vVo=VA.take(); vIdx=VA.take(); vFl=VA.take(); vP=VA.take(2,2); vN=VA.take(2,2); vZ=VA.take()
vEQ0=VA.take(); vEK=VA.take(); vEV=VA.take(); vx1=vEQ0; vLF=vt3; vKp=vEV
ND=6
vBig=VA.mark()
Qf=[VA.take(4,4) for _ in range(2)]
Sb=[VA.take(16,4) for _ in range(2)]
Oa=[VA.take(16,4) for _ in range(2)]
Kf=[VA.take(4,4) for _ in range(ND)]
Vf=[VA.take(8,4) for _ in range(ND)]
sXoff=sA0; sM0=sA0+1; sWoff=sA0+2; sFOr=sA0+3; sOld=sA0+4; sOut=sA0+5; sOst=sA0+6; sFOw=sA0+7
sU0=sA0+8; sU1=sA0+9; sU2=sA0+10
sE=sA0+11; sKH=sA0+12; sM2=sA0+13; sKVb=sA0+14; sOff=sA0+15; sNon=sA0+16; sVM=sA0+18; sCnt=sA0+20; sBlk=sA0+21
sFGr=sA0+22; sQ0=sA0+23; sQ1=sA0+24; sLo=sA0+25; sHi=sA0+26; sX0=sA0+28
sF0=sA0+30; sF1=sA0+31; sF2=sA0+32; sWoffK=sA0+33; sWoffV=sA0+34; sKO=sA0+35
A(f"""v_lshrrev_b32 v{vt0}, 3, v0
v_mul_u32_u24 v{vw}, 3072, v{vt0}
v_lshlrev_b32 v{vt0}, 10, v{vt0}
v_lshrrev_b32 v{vt1}, 2, v0
v_and_b32 v{vt1}, 4, v{vt1}
v_xor_b32 v{vt1}, v{vt1}, v0
v_and_b32 v{vt1}, 7, v{vt1}
v_lshl_add_u32 v{vw}, v{vt1}, 4, v{vw}
v_lshrrev_b32 v{vt1}, 4, v0
v_xor_b32 v{vt1}, v{vt1}, v0
v_and_b32 v{vt1}, 7, v{vt1}
v_lshl_add_u32 v{vx}, v{vt1}, 4, v{vt0}
v_xor_b32 v{vx1}, 64, v{vx}
v_add_u32 v{vx1}, 8192, v{vx1}
s_lshl_b32 s{sXoff}, s{sR2}, 17
s_lshl_b32 s{sU0}, s{sW}, 14
s_add_u32 s{sXoff}, s{sXoff}, s{sU0}
s_lshl_b32 s{sM0}, s{sW}, 10
s_lshl_b32 s{sM2}, s{sW}, 11
s_mul_i32 s{sWoff}, s{sW}, 24576
s_lshl_b32 s{sU0}, s{sHK}, 7
s_add_u32 s{sWoffK}, s{sWoff}, s{sU0}
s_lshl_b32 s{sU0}, s{sHV}, 7
s_add_u32 s{sWoffV}, s{sWoff}, s{sU0}
s_lshl_b32 s{sU0}, s{sHG}, 7
s_add_u32 s{sWoff}, s{sWoff}, s{sU0}
s_mov_b32 s{SRD_X+2}, 2097152
s_mov_b32 s{SRD_X+3}, 0x00020000
s_mov_b32 s{SRD_W+2}, 1572864
s_mov_b32 s{SRD_W+3}, 0x00020000
s_cmp_eq_u32 s{sBR}, 0
s_waitcnt lgkmcnt(0)
s_cselect_b32 s{SRD_X}, s10, s4
s_cselect_b32 s{SRD_X+1}, s11, s5
s_cselect_b32 s{SRD_W}, s12, s6
s_cselect_b32 s{SRD_W+1}, s13, s7""")
def issue_stage(s):
    slot=(s+1)%3
    CM=OPT.get('cm',0)
    if CM==0: A(f"s_add_u32 s{sU0}, s{sSG}, {s}\ns_and_b32 s{sU0}, s{sU0}, 7")
    elif s<CM: A(f"s_mov_b32 s{sU0}, {OPT.get('c0',0)+s}")
    else:
        if s==CM:
            mg={2:43,1:37,3:52}[CM]; M=8-CM
            A(f"s_mul_i32 s{sU0}, s{sSG}, {mg}\ns_lshr_b32 s{sU0}, s{sU0}, 8\ns_mul_i32 s{sU0}, s{sU0}, {M}\ns_sub_u32 s{sSG}, s{sSG}, s{sU0}")
        else:
            A(f"s_add_u32 s{sSG}, s{sSG}, 1\ns_cmp_eq_u32 s{sSG}, {8-CM}\ns_cselect_b32 s{sSG}, 0, s{sSG}")
        A(f"s_add_u32 s{sU0}, s{sSG}, {CM+OPT.get('c0',0)}\ns_and_b32 s{sU0}, s{sU0}, 7")
    A(f"""s_mul_i32 s{sU1}, s{sU0}, 196608
    s_lshl_b32 s{sU0}, s{sU0}, 7
    s_add_u32 m0, s{sM2}, {slot*SL+LXO}
    s_add_u32 s{sU0}, s{sU0}, s{sXoff}""")
    A.vmem(f"buffer_load_dwordx4 v{vx}, {sr(SRD_X,4)}, s{sU0} offen lds", s)
    for p in (1,2,0):
        A(f"s_add_u32 m0, s{sM0}, {slot*SL+p*7168}")
        A(f"s_add_u32 s{sU2}, s{sU1}, s{(sWoff,sWoffK,sWoffV)[p]}")
        A.vmem(f"buffer_load_dwordx4 v{vw}, {sr(SRD_W,4)}, s{sU2} offen offset:{p*1024} lds", s)
        if p==1:
            A(f"s_add_u32 m0, s{sM2}, {slot*SL+LXO+1024}\ns_nop 0")
            A.vmem(f"buffer_load_dwordx4 v{vx1}, {sr(SRD_X,4)}, s{sU0} offen lds", s)
class Cap:
    def __enter__(self): self.n=len(A.lines); return self
    def __exit__(self,*a): self.l=A.lines[self.n:]; del A.lines[self.n:]
def att_setup():
    srd(SRD_DBG,18,256)
    A(f"""v_mov_b32 v{vZ}, 0
    s_lshr_b32 s{sE}, s{sW}, 1
    s_and_b32 s{sKH}, s{sW}, 1
    s_lshl_b32 s{sF1}, s{sHQ}, 2
    s_add_u32 s{sF1}, s{sF1}, s{sE}
    s_lshl_b32 s{sKVb}, s{sF1}, 17
    s_lshl_b32 s{sF0}, s{sKH}, 11
    s_add_u32 s{sKVb}, s{sKVb}, s{sF0}
    s_lshl_b32 s{sQ0}, s{sF1}, 6
    s_lshl_b32 s{sF0}, s{sRB}, 1
    s_add_u32 s{sQ0}, s{sQ0}, s{sF0}
    s_add_u32 s{sQ0}, s{sQ0}, s{sKH}
    s_lshl_b32 s{sQ0}, s{sQ0}, 10
    s_add_u32 s{sQ0}, s{sQ0}, {WS_Q}
    s_xor_b32 s{sQ1}, s{sQ0}, 1024
    s_mov_b32 s{sVM}, 0x0000ffff
    s_mov_b32 s{sVM+1}, 0x0000ffff
    s_and_b32 s{sKO}, s{sRB}, {OPT.get('kom',25)}
    v_lshlrev_b32 v{vL16}, 4, v0
    v_and_b32 v{vt0}, 15, v0
    v_lshlrev_b32 v{vt1}, 4, v{vt0}
    v_lshrrev_b32 v{vt2}, 5, v0
    v_lshl_add_u32 v{vVo}, v{vt2}, 8, v{vt1}
    v_mov_b32 v{vIdx}, 0xdddddddd
    v_and_b32 v{vKp}, 0x33, v0
    v_bfe_u32 v{vt2}, v0, 2, 1
    v_lshl_add_u32 v{vKp}, v{vt2}, 3, v{vKp}
    v_bfe_u32 v{vt2}, v0, 3, 1
    v_lshl_add_u32 v{vKp}, v{vt2}, 2, v{vKp}
    v_lshlrev_b32 v{vKp}, 4, v{vKp}
    s_and_b32 s{sF2}, s{sHQ}, 4
    s_sub_u32 s{sF0}, s{sHQ}, 1
    s_and_b32 s{sF0}, s{sF0}, 3
    s_or_b32 s{sF0}, s{sF0}, s{sF2}
    s_lshl_b32 s{sF0}, s{sF0}, 11
    s_sub_u32 s{sF1}, s{sHQ}, 2
    s_and_b32 s{sF1}, s{sF1}, 3
    s_or_b32 s{sF1}, s{sF1}, s{sF2}
    s_lshl_b32 s{sF1}, s{sF1}, 11
    v_mov_b32 v{vt1}, s{sF0}
    v_mov_b32 v{vt2}, s{sF1}
    v_cmp_gt_u32 vcc, 16, v0
    s_lshl_b32 s{sF0}, s{sHQ}, 4
    s_lshr_b32 s{sF1}, s{sRB}, 1
    v_cndmask_b32 v{vt1}, v{vt2}, v{vt1}, vcc
    v_lshl_add_u32 v{vFl}, v{vt0}, 7, v{vt1}
    s_add_u32 s{sF0}, s{sF0}, s{sF1}
    s_lshl_b32 s{sF0}, s{sF0}, 7
    s_mov_b32 s{sFGr}, {WS_FG}
    v_writelane_b32 v{vFl}, s{sF0}, 32
    v_mov_b32 v{vLF}, {LF}
    v_and_b32 v{vt0}, 27, v0
    v_cmp_eq_u32 vcc, 16, v{vt0}
    v_mov_b32 v{vt1}, 0x3f803f80
    s_nop 0
    v_cndmask_b32 v{vt1}, 0, v{vt1}, vcc""")
    for d in range(ND):
        for i in range(8): A(f"v_mov_b32 v{Vf[d]+i}, v{vt1}")
    for d in range(2):
        for i in range(16): A(f"v_mov_b32 v{Oa[d]+i}, 0")
    A(f"""s_lshl_b32 s{sF0}, s{sRB}, 1
    s_add_u32 s{sF0}, s{sF0}, s{sKH}
    s_lshl_b32 s{sOst}, s{sF0}, 5
    s_lshl_b32 s{sF1}, s{sHQ}, 1
    s_add_u32 s{sOst}, s{sOst}, s{sF1}
    s_lshr_b32 s{sF1}, s{sE}, 1
    s_add_u32 s{sOst}, s{sOst}, s{sF1}
    s_lshl_b32 s{sOst}, s{sOst}, 10
    s_add_u32 s{sOst}, s{sOst}, {WS_OFB}
    s_lshl_b32 s{sFOr}, s{sRB}, 10
    s_add_u32 s{sFOr}, s{sFOr}, {WS_FOB}
    s_lshl_b32 s{sFOw}, s{sHQ}, 7
    s_add_u32 s{sFOw}, s{sFOw}, s{sFOr}
    s_and_b32 s{sF0}, s{sW}, 3
    s_lshl_b32 s{sF1}, s{sRB}, 2
    s_add_u32 s{sF1}, s{sF1}, s{sF0}
    s_lshr_b32 s{sF2}, s{sW}, 2
    s_lshl_b32 s{sOld}, s{sF1}, 1
    s_add_u32 s{sOld}, s{sOld}, s{sF2}
    s_lshl_b32 s{sOld}, s{sOld}, 13
    s_add_u32 s{sOld}, s{sOld}, {WS_OFB}
    s_lshl_b32 s{sOut}, s{sF1}, 15
    s_lshl_b32 s{sF0}, s{sHQ}, 7
    s_add_u32 s{sOut}, s{sOut}, s{sF0}
    s_lshl_b32 s{sF0}, s{sF2}, 6
    s_add_u32 s{sOut}, s{sOut}, s{sF0}
    s_add_u32 s{sOut}, s{sOut}, 1024
    s_mov_b32 s{sLo}, {f2u(2.0**-80):#x}
    s_mov_b32 s{sHi}, {f2u(2.0**96):#x}""")
    srd(SRD_OUT,16,4194304)
with Cap() as c1: att_setup()
FILL=c1.l
def fill(q,n):
    k=min(n,len(q))
    while k<len(q) and any(x.startswith('v_cmp') for x in q[max(0,k-3):k]): k+=1
    for l in q[:k]: A(l)
    del q[:k]
def kv_load(i):
    if OPT.get('nokv'): return
    d=i%ND
    A(f"""s_add_u32 s{sBlk}, s{sKO}, {i}
    s_and_b32 s{sBlk}, s{sBlk}, 31
    s_lshl_b32 s{sBlk}, s{sBlk}, 12
    s_add_u32 s{sOff}, s{sBlk}, s{sKVb}""")
    A.vmem(f"buffer_load_dwordx4 {vr(Kf[d],4)}, v{vKp}, {sr(SRD_WS,4)}, s{sOff} offen sc1",('kv',i))
    A(f"s_mov_b64 exec, {sr(sVM,2)}")
    A.vmem(f"buffer_load_dwordx4 {vr(Vf[d],4)}, v{vVo}, {sr(SRD_WS,4)}, s{sOff} offen offset:1024 sc1",('kv',i))
    A.vmem(f"buffer_load_dwordx4 {vr(Vf[d]+4,4)}, v{vVo}, {sr(SRD_WS,4)}, s{sOff} offen offset:1536 sc1",('kv',i))
    A("s_mov_b64 exec, -1")
def QK(u): A(f"v_mfma_f32_32x32x16_bf16 {vr(Sb[u%2],16)}, {vr(Kf[(u//2)%ND],4)}, {vr(Qf[u%2],4)}, 0")
def PV(u,t): A(f"v_smfmac_f32_32x32x32_bf16 {vr(Oa[u%2],16)}, {vr(Vf[(u//2)%ND]+4*t,4)}, {vr(Sb[u%2]+8*t,8)}, v{vIdx}")
NU=64
PRIO0=2; PRIO={OPT.get('q1',28):1,OPT.get('q2',56):0}
SCHED={}
nxt=2
for u_ in range(64):
    lim=u_//2-1+ND if u_>=2 else ND-1
    if nxt<=min(lim,31): SCHED.setdefault(u_,[]).append(nxt); nxt+=1
def unit(u):
    S=Sb[u%2]
    E=lambda r: A(f"v_exp_f32 v{S+r}, v{S+r}")
    E(0);E(1)
    if u>0: PV(u-1,1)
    E(2);E(3);E(4)
    for i in SCHED.get(u,[]): kv_load(i)
    if u in PRIO: A(f"s_setprio {PRIO[u]}")
    if u==2:
        A("s_mov_b64 exec, 1"); A.lds(f"ds_add_u32 v{vLF}, v{vEK} offset:48"); A("s_mov_b64 exec, -1")
    if u==OPT['rel']: A.lds(f"ds_write_b32 v{vLF}, v{vIdx} offset:44")
    if u+1<NU:
        if (u+1)%2==0: A.wait_vm(('kv',(u+1)//2))
        QK(u+1)
    for r in range(5,10): E(r)
    PV(u,0)
    for r in range(10,16): E(r)
    if u in (3,5,9,17,33): stamp(18+(3,5,9,17,33).index(u), 1 if u in (5,33) else 2)
UP=OPT.get('up',2)
issue_stage(0)
if UP>=2: issue_stage(1)
srd(SRD_WS,20,WS_BYTES)
stamp(0)
if OPT.get('ib'): A("s_barrier")
if UP>=3: issue_stage(2)
for s in range(8):
    A.wait_vm(s)
    A("s_barrier")
    stamp(1+s, 1 if s in (0,4) else 2)
    if s==0:
        for k in range(UP,3): issue_stage(k)
    if 1<=s<=5: issue_stage(s+2)
    if s==7:
        A.wait_vm('non')
    fill(FILL, 24 if s<7 else 999)
    if s==5: A.vmem(f"buffer_load_dwordx2 {vr(vN,2)}, v{vZ}, {sr(SRD_DBG,4)}, 0 offen sc1",'non')
A.wait_vm('non')
nonce_check(vN,vZ,sNon,sCnt,sU0)
if OPT['stamp']: A(f"v_writelane_b32 v{vSt}, s{sCnt}, 29")
A(f"""s_cmp_eq_u32 s{sBR}, 0
s_cbranch_scc1 L_nomask
s_cmp_gt_u32 s{sW}, 5
s_cbranch_scc1 L_nomask
v_and_b32 v{vt0}, 31, v0
v_lshrrev_b32 v{vt1}, 5, v0
v_lshlrev_b32 v{vt1}, 3, v{vt1}
v_sub_u32 v{vt0}, v{vt0}, v{vt1}
s_lshr_b32 s{sU0}, s{sW}, 1
s_lshl_b32 s{sU0}, s{sU0}, 4
s_and_b32 s{sU1}, s{sW}, 1
s_lshl_b32 s{sU1}, s{sU1}, 2
s_add_u32 s{sU0}, s{sU0}, s{sU1}
s_cmp_gt_u32 s{sW}, 3
s_cselect_b32 s{sU1}, 48, 0
s_sub_u32 s{sU0}, s{sU0}, s{sU1}
v_subrev_u32 v{vt0}, s{sU0}, v{vt0}
v_mov_b32 v{vt2}, {NEGBIG:#x}
s_mov_b32 s{sU1}, 0xfffffff1""")
for i in range(4):
    A(f"v_subrev_u32 v{Sb[0]+i}, {i}, v{vt0}\nv_and_b32 v{Sb[0]+i}, s{sU1}, v{Sb[0]+i}")
for i in range(4):
    A(f"v_cmp_eq_u32 vcc, 0, v{Sb[0]+i}\ns_nop 1\nv_cndmask_b32 v{Sb[0]+i}, v{vt2}, 0, vcc")
A(f"""s_add_u32 s{sU0}, s{sM0}, {MSK}
v_add_u32 v{vt0}, s{sU0}, v{vL16}
ds_write_b128 v{vt0}, {vr(Sb[0],4)}
s_waitcnt lgkmcnt(0)""")
A.label("L_nomask")
A("s_barrier")
if OPT['ewo']:
    A(f"s_cmp_eq_u32 s{sT0}, 0\ns_cbranch_scc1 L_noewo")
    srd(SRD_M,14,524288)
    A(f"""v_lshrrev_b32 v{vx}, 3, v0
    v_and_b32 v{vw}, 6, v{vx}
    v_xor_b32 v{vw}, v{vw}, v0
    v_and_b32 v{vw}, 7, v{vw}
    v_lshlrev_b32 v{vx}, 10, v{vx}
    v_lshl_add_u32 v{vx}, v{vw}, 4, v{vx}
    s_lshl_b32 s{sU0}, s{sW}, 16
    s_lshl_b32 s{sU1}, s{sHQ}, 7
    s_add_u32 s{sU0}, s{sU0}, s{sU1}
    s_lshl_b32 s{sU1}, s{sW}, 13""")
    for j in range(8):
        A(f"s_add_u32 m0, s{sU1}, {WOB+j*1024}")
        A(f"s_add_u32 s{sU0}, s{sU0}, 8192" if j else "s_nop 0")
        A.vmem(f"buffer_load_dwordx4 v{vx}, {sr(SRD_M,4)}, s{sU0} offen lds",'wob')
    A.label("L_noewo")
A("s_barrier")
stamp(30)
A(f"""s_cmp_eq_u32 s{sBR}, 0
s_cbranch_scc1 L_noloc
s_and_b32 s{sU0}, s{sW}, 3
s_lshr_b32 s{sU1}, s{sW}, 2
s_lshl_b32 s{sU2}, s{sU1}, 2
s_add_u32 s{sU2}, s{sU2}, s{sU0}
s_lshl_b32 s{sF0}, s{sU2}, 10
s_add_u32 s{sF0}, s{sF0}, {EAQ+2*4096}
v_add_u32 v{vx}, s{sF0}, v{vL16}
s_lshl_b32 s{sF0}, s{sU2}, 11
s_add_u32 s{sF0}, s{sF0}, {EAK+2*8192}
v_add_u32 v{vw}, s{sF0}, v{vL16}
v_add_u32 v{vEK}, s{sF0}, v{vVo}
v_add_u32 v{vEQ0}, {MSK}, v{vL16}""")
RA=dict(Sc=Sb[0],Sp=Sb[1],Oc=Oa[0],Mk=Kf[0],mx=vt0,mt=vt1,Qh=Qf[0],Kc=Qf[1],Kp=Oa[1],Vc=Vf[0],Vp=Vf[1],dst=Oa[1]+4,idx=vIdx)
for i in range(6): A.lds(f"ds_read_b128 {vr(Kf[i],4)}, v{vEQ0} offset:{i*1024}")
A.lds(f"ds_read_b128 {vr(RA['Qh'],4)}, v{vx}")
A.lds(f"ds_read_b128 {vr(RA['Kc'],4)}, v{vw} offset:8192",'kc')
A.lds(f"ds_read_b128 {vr(RA['Kp'],4)}, v{vw}",'kp')
A(f"s_mov_b64 exec, {sr(sVM,2)}")
A.lds(f"ds_read_b128 {vr(RA['Vc'],4)}, v{vEK} offset:{8192+1024}",'v')
A.lds(f"ds_read_b128 {vr(RA['Vc']+4,4)}, v{vEK} offset:{8192+1536}",'v')
A.lds(f"ds_read_b128 {vr(RA['Vp'],4)}, v{vEK} offset:1536",'v')
A(f"""s_mov_b64 exec, -1
v_bfe_u32 v{vt2}, v0, 4, 1
v_lshl_add_u32 v{vt2}, v{vt2}, 14, v{vVo}
s_and_b32 s{sF0}, s{sW}, 1
s_lshl_b32 s{sF0}, s{sF0}, 9
v_add_u32 v{vt2}, s{sF0}, v{vt2}
s_lshl_b32 s{sF0}, s{sR2}, 2
s_add_u32 s{sF0}, s{sF0}, s{sU1}
s_add_u32 s{sF0}, s{sF0}, 2
s_lshl_b32 s{sF0}, s{sF0}, 5
s_lshl_b32 s{sF1}, s{sHG}, 1
s_add_u32 s{sF0}, s{sF0}, s{sF1}
s_lshr_b32 s{sF1}, s{sU0}, 1
s_add_u32 s{sF0}, s{sF0}, s{sF1}
s_lshl_b32 s{sF0}, s{sF0}, 10
s_add_u32 s{sF0}, s{sF0}, {WS_OFA}""")
loc_unit(RA)
A.vmem(f"buffer_store_dwordx4 {vr(RA['dst'],4)}, v{vt2}, {sr(SRD_WS,4)}, s{sF0} offen sc1")
for i in range(16): A(f"v_mov_b32 v{Oa[0]+i}, 0")
for i in range(8): A(f"v_mov_b32 v{Oa[1]+i}, 0")
A.label("L_noloc")
A(f"v_mov_b32 v{vEK}, 1")
PM=(1<<33)-1
A(f"s_mov_b32 s{sX0}, -1\ns_mov_b32 s{sX0+1}, 1")
if OPT.get('ap')==1: pass
elif OPT.get('ap')==2: A(f"s_cmp_gt_u32 s{sW}, 3\ns_cbranch_scc1 L_nf2")
else: A(f"s_cmp_lg_u32 s{sW}, 0\ns_cbranch_scc1 L_nf2")
A(f"s_mov_b64 exec, {sr(sX0,2)}")
if OPT['pp']: poll_pipe(Sb[1],vFl,sFGr,sCnt,sNon)
else:
    poll_issue(vP,vFl,sFGr)
    poll_check(vP,vFl,sFGr,sCnt,sNon)
A(f"s_mov_b64 exec, -1\nds_write_b32 v{vLF}, v{vIdx} offset:32\ns_branch L_nf3")
A.label("L_nf2")
lds_word_spin(vt0,vLF,32,sCnt,sU0)
A.label("L_nf3")
A.vm=[]
if OPT.get('idle'):
    for _ in range(OPT['idle']): A("s_sleep 16")
stamp(16,2)
if OPT.get('rep'):
    A(f"s_mov_b32 s{sF2}, {OPT['rep']}")
    A.label("L_rep")
    A("s_nop 15")
    for d in range(2):
        for i in range(16): A(f"v_mov_b32 v{Oa[d]+i}, 0")
A.vmem(f"buffer_load_dwordx4 {vr(Qf[0],4)}, v{vL16}, {sr(SRD_WS,4)}, s{sQ0} offen sc1")
kv_load(0)
A.vmem(f"buffer_load_dwordx4 {vr(Qf[1],4)}, v{vL16}, {sr(SRD_WS,4)}, s{sQ1} offen sc1",'q1')
kv_load(1)
stamp(17)
A(f"s_setprio {PRIO0}")
A.wait_vm('q1')
QK(0)
A("s_nop 11")
for u in range(NU): unit(u)
A("s_nop 1")
PV(NU-1,1)
if OPT.get('rep'):
    A(f"s_sub_u32 s{sF2}, s{sF2}, 1\ns_cmp_lg_u32 s{sF2}, 0\ns_cbranch_scc1 L_rep")
if OPT.get('spin'):
    A(f"s_mov_b32 s{sF2}, {OPT['spin']}")
    A.label("L_spin")
    A(f"s_sub_u32 s{sF2}, s{sF2}, 1\ns_cmp_lg_u32 s{sF2}, 0\ns_cbranch_scc1 L_spin")
stamp(23)
A("s_setprio 3")
vR=Sb[0]; vRa=Sb[1]
A(f"""s_mul_i32 s{sU0}, s{sW}, 2304
s_add_u32 s{sU0}, s{sU0}, {RED}
v_add_u32 v{vRa}, s{sU0}, v{vL16}
v_lshlrev_b32 v{vRa+1}, 2, v0
v_add_u32 v{vRa+1}, s{sU0}, v{vRa+1}
s_xor_b32 s{sU1}, s{sW}, 1
s_mul_i32 s{sU1}, s{sU1}, 2304
s_add_u32 s{sU1}, s{sU1}, {RED}
v_add_u32 v{vEK}, s{sU1}, v{vL16}
v_lshlrev_b32 v{vRa+3}, 2, v0
v_add_u32 v{vRa+3}, s{sU1}, v{vRa+3}""")
A.lds(f"ds_write_b128 v{vRa}, {vr(Oa[1],4)}")
A.lds(f"ds_write_b128 v{vRa}, {vr(Oa[1]+4,4)} offset:1024")
A.lds(f"ds_write_b32 v{vRa+1}, v{Oa[1]+8} offset:2048")
A(f"""v_bfe_u32 v{vRa+4}, v0, 4, 1
v_lshlrev_b32 v{vRa+4}, 14, v{vRa+4}
v_add_u32 v{vRa+4}, v{vRa+4}, v{vVo}
s_and_b32 s{sU0}, s{sE}, 1
s_lshl_b32 s{sU0}, s{sU0}, 9
v_add_u32 v{vRa+4}, s{sU0}, v{vRa+4}""")
A.wait_lg_all()
A("s_barrier")
stamp(24)
A.lds(f"ds_read_b32 v{vR+8}, v{vRa+3} offset:2048",'r2')
A.lds(f"ds_read_b128 {vr(vR,4)}, v{vEK}",'r0')
A.lds(f"ds_read_b128 {vr(vR+4,4)}, v{vEK} offset:1024",'r1')
A.wait_lg('r2')
A(f"""v_add_f32 v{Oa[0]+8}, v{Oa[0]+8}, v{vR+8}
v_cmp_nle_f32 vcc, s{sLo}, v{Oa[0]+8}
v_cmp_nge_f32 {sr(sX0,2)}, s{sHi}, v{Oa[0]+8}""")
A.wait_lg('r0')
for i in range(4): A(f"v_add_f32 v{Oa[0]+i}, v{Oa[0]+i}, v{vR+i}")
A.wait_lg('r1')
for i in range(4,8): A(f"v_add_f32 v{Oa[0]+i}, v{Oa[0]+i}, v{vR+i}")
A(f"""s_or_b64 vcc, vcc, {sr(sX0,2)}
s_cmp_lg_u64 vcc, 0
s_cbranch_scc1 L_fallback""")
A.label("L_norm")
A(f"v_rcp_f32 v{vR+9}, v{Oa[0]+8}\ns_nop 0")
for i in range(8): A(f"v_mul_f32 v{Oa[0]+i}, v{Oa[0]+i}, v{vR+9}")
for i in range(4): A(f"v_cvt_pk_bf16_f32 v{vR+i}, v{Oa[0]+2*i}, v{Oa[0]+2*i+1}")
A.vmem(f"buffer_store_dwordx4 {vr(vR,4)}, v{vRa+4}, {sr(SRD_WS,4)}, s{sOst} offen sc1")
VB=Alloc(vBig,168)
Of=[VB.take(4,4) for _ in range(8)]
Wf=[[VB.take(4,4) for _ in range(4)] for _ in range(6)]
Ac=[VB.take(4,4) for _ in range(4)]
vWA=[vx,vw,vt2,vt3]; vOo=vEQ0; vXw=vEK; vXr=vEV
wo_tr_addr(vx,vt0,vt1)
A(f"""s_lshr_b32 s{sU2}, s{sW}, 2
s_lshl_b32 s{sU0}, s{sU2}, 15
s_lshl_b32 s{sU1}, s{sU2}, 6
v_add_u32 v{vx}, s{sU0}, v{vx}
v_xor_b32 v{vx}, s{sU1}, v{vx}
v_xor_b32 v{vw}, 32, v{vx}
v_xor_b32 v{vt2}, 64, v{vx}
v_xor_b32 v{vt3}, 96, v{vx}""")
assert WOB==0
def wo_read(hp_, slotset):
    for c in range(4):
        A.lds(f"ds_read_b64_tr_b16 {vr(Wf[slotset][c],2)}, v{vWA[c]} offset:{hp_*4096}",('wo',hp_))
        A.lds(f"ds_read_b64_tr_b16 {vr(Wf[slotset][c]+2,2)}, v{vWA[c]} offset:{hp_*4096+1024}",('wo',hp_))
wo_read(0,0)
A(f"""v_and_b32 v{vFl}, 15, v0
v_lshlrev_b32 v{vOo}, 11, v{vFl}
v_lshlrev_b32 v{vFl}, 7, v{vFl}
v_lshrrev_b32 v{vt0}, 4, v0
v_lshl_add_u32 v{vOo}, v{vt0}, 3, v{vOo}
s_xor_b32 s{sU1}, s{sW}, 5
s_mul_i32 s{sU1}, s{sU1}, 2304
s_add_u32 s{sU1}, s{sU1}, {RED}
v_add_u32 v{vXr}, s{sU1}, v{vL16}""")
A.wait_lg_all(); wo_read(1,1)
A(f"v_mov_b32 v{vt0}, {LF}\nv_mov_b32 v{vt1}, 1")
A.wait_vm_all()
if OPT.get('ow'): A.vmem(f"buffer_load_dword v{vN-1 if False else vIdx}, v{vRa+4}, {sr(SRD_WS,4)}, s{sOst} offen sc1")
A("s_mov_b64 exec, 1")
A.lds(f"ds_add_rtn_u32 v{vP}, v{vt0}, v{vt1} offset:40",'cnt')
A("s_mov_b64 exec, -1")
A.wait_lg('cnt')
A(f"""v_readfirstlane_b32 s{sU0}, v{vP}
s_cmp_lg_u32 s{sU0}, 7
s_cbranch_scc1 L_nl1""")
flag_store(vN,vZ,sFOw)
if not OPT['pp']: poll_issue(vP,vFl,sFOr,0xff)
A.label("L_nl1")
stamp(25)
for i in range(2,6):
    A.wait_lg_all(); wo_read(i,i)
A.wait_lg_all()
if OPT.get('dual',1):
    A(f"""s_lshr_b32 s{sU1}, s{sW}, 2
    s_lshl_b32 s{sU2}, s{sU1}, 9
    s_add_u32 s{sFOr}, s{sFOr}, s{sU2}
    s_lshl_b32 s{sU1}, s{sU1}, 4
    v_add_u32 v{vt0}, s{sU1}, v{vt0}
    s_and_b32 s{sU0}, s{sW}, 3
    s_cmp_lg_u32 s{sU0}, 0
    s_cbranch_scc1 L_nl2""")
    A("s_mov_b64 exec, 0xf"); poll_pipe(Ac[0],vFl,sFOr,sCnt,sNon); A("s_mov_b64 exec, -1")
else:
    A(f"s_cmp_lg_u32 s{sU0}, 7\ns_cbranch_scc1 L_nl2")
    A("s_mov_b64 exec, 0xff"); poll_pipe(Ac[0],vFl,sFOr,sCnt,sNon); A("s_mov_b64 exec, -1")
A(f"ds_write_b32 v{vt0}, v{vt1} offset:36\ns_branch L_nl3")
A.label("L_nl2")
lds_word_spin(vP,vt0,36,sCnt,sU1)
A.label("L_nl3")
A.vm=[]
stamp(26)
for i in range(8):
    if i==4: A(f"s_add_u32 s{sOld}, s{sOld}, 4096")
    A.vmem(f"buffer_load_dwordx4 {vr(Of[i],4)}, v{vL16}, {sr(SRD_WS,4)}, s{sOld} offen offset:{(i%4)*1024} sc1",('of',i))
A.wait_lg_all()
for i in range(8):
    A.wait_vm(('of',i))
    if i>=6: A.wait_lg(('wo',i))
    for c in range(4):
        A(f"v_mfma_f32_16x16x32_bf16 {vr(Ac[c],4)}, {vr(Wf[i%6][c],4)}, {vr(Of[i],4)}, {'0' if i==0 else vr(Ac[c],4)}")
    if i<2:
        A.wait_lg_all(); wo_read(6+i,i)
stamp(28,2)
A("s_nop 7")
A.lds(f"ds_write_b128 v{vXw}, {vr(Ac[2],4)}")
A.lds(f"ds_write_b128 v{vXw}, {vr(Ac[3],4)} offset:1024")
A.wait_lg_all()
A("s_barrier")
A.lds(f"ds_read_b128 {vr(Ac[2],4)}, v{vXr}",'x0')
A.lds(f"ds_read_b128 {vr(Ac[3],4)}, v{vXr} offset:1024",'x1')
for c in range(2):
    A.wait_lg(f'x{c}')
    for i in range(4): A(f"v_add_f32 v{Ac[c]+i}, v{Ac[c]+i}, v{Ac[2+c]+i}")
    A(f"v_cvt_pk_bf16_f32 v{Ac[c]}, v{Ac[c]}, v{Ac[c]+1}\nv_cvt_pk_bf16_f32 v{Ac[c]+1}, v{Ac[c]+2}, v{Ac[c]+3}")
    A.vmem(f"buffer_store_dwordx2 {vr(Ac[c],2)}, v{vOo}, {sr(SRD_OUT,4)}, s{sOut} offen offset:{c*32}{OSB}")
stamp(27)
if 'amp' in OPT:
    A(f"""s_memrealtime s[96:97]
    s_sub_u32 s94, s94, s100
    s_mul_i32 s94, s94, {OPT.get('ampk',3)}
    s_min_u32 s94, s94, 20000
    s_waitcnt lgkmcnt(0)""")
    A.label("L_amp")
    A(f"""s_memrealtime s[98:99]
    s_waitcnt lgkmcnt(0)
    s_sub_u32 s98, s98, s96
    s_cmp_lt_u32 s98, s94
    s_cbranch_scc1 L_amp""")
stamp_out(vt0)
A("s_endpgm")

A.label("L_fallback"); A.reset()
fC=Oa[1]; fM=vt0; fT=vt1; fS=Kf[0]
fK=Kf[4]; fV=Vf[0]
A(f"""s_lshl_b32 s{sU0}, s{sKH}, 11
s_sub_u32 s{sU2}, s{sKVb}, s{sU0}
s_mov_b32 s{sOff}, s{sU2}
s_mov_b32 s{sCnt}, 0
v_mov_b32 v{fM}, {NEGBIG:#x}""")
A.label("L_fb1")
A(f"""buffer_load_dwordx4 {vr(fK,4)}, v{vKp}, {sr(SRD_WS,4)}, s{sOff} offen sc1
s_waitcnt vmcnt(0)
v_mfma_f32_32x32x16_bf16 {vr(fS,16)}, {vr(fK,4)}, {vr(Qf[0],4)}, 0
s_add_u32 s{sOff}, s{sOff}, 2048
s_add_u32 s{sCnt}, s{sCnt}, 1
s_nop 11""")
for i in range(8): A(f"v_max3_f32 v{fM}, v{fM}, v{fS+2*i}, v{fS+2*i+1}")
A(f"""s_cmp_lt_u32 s{sCnt}, 64
s_cbranch_scc1 L_fb1
v_mov_b32 v{fT}, v{fM}
s_nop 1
v_permlane32_swap_b32 v{fM}, v{fT}
s_nop 1
v_max_f32 v{fM}, v{fM}, v{fT}""")
for i in range(16): A(f"v_sub_f32 v{fC+i}, 0, v{fM}")
for i in range(16): A(f"v_mov_b32 v{Oa[0]+i}, 0")
A(f"""s_mov_b32 s{sOff}, s{sU2}
s_mov_b32 s{sCnt}, 0""")
A.label("L_fb2")
A(f"""buffer_load_dwordx4 {vr(fK,4)}, v{vKp}, {sr(SRD_WS,4)}, s{sOff} offen sc1
s_mov_b64 exec, {sr(sVM,2)}
buffer_load_dwordx4 {vr(fV,4)}, v{vVo}, {sr(SRD_WS,4)}, s{sOff} offen offset:1024 sc1
buffer_load_dwordx4 {vr(fV+4,4)}, v{vVo}, {sr(SRD_WS,4)}, s{sOff} offen offset:1536 sc1
s_mov_b64 exec, -1
s_waitcnt vmcnt(0)
v_mfma_f32_32x32x16_bf16 {vr(fS,16)}, {vr(fK,4)}, {vr(Qf[0],4)}, {vr(fC,16)}
s_add_u32 s{sOff}, s{sOff}, 2048
s_add_u32 s{sCnt}, s{sCnt}, 1
s_nop 11""")
for i in range(16): A(f"v_exp_f32 v{fS+i}, v{fS+i}")
A(f"""s_nop 1
v_smfmac_f32_32x32x32_bf16 {vr(Oa[0],16)}, {vr(fV,4)}, {vr(fS,8)}, v{vIdx}
v_smfmac_f32_32x32x32_bf16 {vr(Oa[0],16)}, {vr(fV+4,4)}, {vr(fS+8,8)}, v{vIdx}
s_cmp_lt_u32 s{sCnt}, 64
s_cbranch_scc1 L_fb2
s_nop 15
s_branch L_norm""")

A.label("L_aux")
A.reset()
VX=Alloc(2,168)
xt0=VX.take(); xt1=VX.take(); xt2=VX.take(); xZ=VX.take(); xN=VX.take(2,2)
xL16=VX.take(); xVo=VX.take()
xBig=VX.mark()
va=[[VX.take() for _ in range(4)] for _ in range(2)]; vwa=[VX.take() for _ in range(2)]
vKpos=VX.take(); vV1=VX.take(); gDum=VX.take(); gPW=VX.take(); gLF=VX.take()
acc=[VX.take(16,4) for _ in range(6)]
xf=[[VX.take(4,4) for _ in range(2)] for _ in range(2)]
wf=[VX.take(4,4) for _ in range(4)]
xf.append([VX.take(4,4) for _ in range(2)])
sT=sA0; sC=sA0+24; sV0=sA0+2; sV1=sA0+3; sNx=sA0+4; sCx=sA0+6; sVMx=sA0+8; sV2=sA0+11; sV3=sA0+12
sB0=sA0+13; sB1=sA0+14; sB2=sA0+15; sHa=sA0+16; sHf=sA0+17; sTT=sA0+18; sRP=sA0+22; sJ=sA0+23; sG0=sA0+19; sG1=sA0+20
A(f"""s_setprio 3
s_sub_u32 s{sT}, s{sW}, 8
s_and_b32 s{sRP}, s{sT}, 1
s_lshr_b32 s{sJ}, s{sT}, 1
v_mov_b32 v{xZ}, 0
s_waitcnt lgkmcnt(0)""")
srd(SRD_WS,20,WS_BYTES); srd(SRD_DBG,18,256)
if OPT.get('ib'): A("s_barrier")
A(f"""s_add_u32 s{sV0}, s2, s{sT}
s_cmp_lg_u32 s{sV0}, 0
s_cbranch_scc1 L_nonon
s_mov_b32 s{sV0}, {WS_EPOCH}
s_mov_b64 exec, 1
buffer_load_dwordx2 {vr(xN,2)}, v{xZ}, {sr(SRD_WS,4)}, s{sV0} offen sc1
s_waitcnt vmcnt(0)
v_add_u32 v{xN}, 2, v{xN}
v_or_b32 v{xN}, 1, v{xN}
v_or_b32 v{xN+1}, 0x80000000, v{xN+1}
buffer_store_dwordx2 {vr(xN,2)}, v{xZ}, {sr(SRD_DBG,4)}, 0 offen sc1
buffer_store_dwordx2 {vr(xN,2)}, v{xZ}, {sr(SRD_WS,4)}, s{sV0} offen sc1
s_mov_b64 exec, -1""")
A.label("L_nonon")
stamp(0)
if OPT.get('pf',0):
    A(f"""s_cmp_eq_u32 s{sBR}, 0
    s_cselect_b32 s{SRD_X}, s10, s4
    s_cselect_b32 s{SRD_X+1}, s11, s5
    s_cselect_b32 s{SRD_W}, s12, s6
    s_cselect_b32 s{SRD_W+1}, s13, s7
    s_mov_b32 s{SRD_X+2}, 2097152
    s_mov_b32 s{SRD_X+3}, 0x00020000
    s_mov_b32 s{SRD_W+2}, 1572864
    s_mov_b32 s{SRD_W+3}, 0x00020000
    v_lshlrev_b32 v{xt0}, 7, v0
    v_lshrrev_b32 v{xt1}, 2, v0
    v_mul_u32_u24 v{xt1}, 3072, v{xt1}
    v_and_b32 v{xt2}, 3, v0
    v_lshl_add_u32 v{xt1}, v{xt2}, 7, v{xt1}""")
    if OPT['m']==2:
        A(f"""s_and_b32 s{sV0}, s{sR2}, 8
        s_lshl_b32 s{sV0}, s{sV0}, 17
        s_mov_b32 s{sV2}, s{sT1}
        s_mul_i32 s{sV1}, s{sV2}, 49152""")
    else:
        A(f"""s_lshr_b32 s{sV2}, s{sT1}, 3
        s_lshl_b32 s{sV2}, s{sV2}, 2
        s_and_b32 s{sV0}, s{sT1}, 3
        s_add_u32 s{sV2}, s{sV2}, s{sV0}
        s_and_b32 s{sV0}, s2, 6
        s_lshl_b32 s{sV0}, s{sV0}, 18
        s_mul_i32 s{sV1}, s{sV2}, 98304""")
    A(f"""s_lshl_b32 s{sV2}, s{sV2}, 15
    s_add_u32 s{sV0}, s{sV0}, s{sV2}
    s_lshl_b32 s{sV2}, s{sT}, 13
    s_add_u32 s{sV0}, s{sV0}, s{sV2}
    s_and_b32 s{sV2}, s2, 1
    s_lshl_b32 s{sV2}, s{sV2}, 9
    s_add_u32 s{sV1}, s{sV1}, s{sV2}
    s_lshl_b32 s{sV2}, s{sT}, 10
    s_add_u32 s{sV1}, s{sV1}, s{sV2}
    {"s_sleep "+str(OPT['pfd']) if OPT.get('pfd') else ""}
    buffer_load_dword v{gDum}, v{xt0}, {sr(SRD_X,4)}, s{sV0} offen
    s_cmp_eq_u32 s{sT}, 3
    s_cbranch_scc1 L_pfd
    buffer_load_dword v{gDum}, v{xt1}, {sr(SRD_W,4)}, s{sV1} offen""")
    if OPT['m']==1:
        A(f"s_add_u32 s{sV1}, s{sV1}, 49152\nbuffer_load_dword v{gDum}, v{xt1}, {sr(SRD_W,4)}, s{sV1} offen")
    A.label("L_pfd")
A(f"""v_mov_b32 v{gLF}, {LF}
v_lshl_add_u32 v{xt0}, v0, 2, v{gLF}
ds_write_b32 v{xt0}, v{xZ}
v_and_b32 v{xt0}, 31, v0
v_lshrrev_b32 v{xt1}, 5, v0
v_bfe_u32 v{xt2}, v0, 1, 3
v_xor_b32 v{xt2}, v{xt2}, v{xt1}
v_lshlrev_b32 v{xt2}, 4, v{xt2}
v_lshl_add_u32 v{xt2}, v{xt0}, 7, v{xt2}
s_lshl_b32 s{sV0}, s{sRP}, 13
s_add_u32 s{sV0}, s{sV0}, {LXO}
v_add_u32 v{va[0][0]}, s{sV0}, v{xt2}""")
for s in range(1,4): A(f"v_xor_b32 v{va[0][s]}, {32*s}, v{va[0][0]}")
for s in range(4): A(f"v_add_u32 v{va[1][s]}, {2*SL}, v{va[0][s]}")
A(f"""v_bfe_u32 v{xt2}, v0, 2, 2
v_lshl_add_u32 v{xt2}, v{xt1}, 3, v{xt2}
v_lshlrev_b32 v{xt2}, 7, v{xt2}
v_bfe_u32 v{vV1}, v0, 4, 1
v_lshl_add_u32 v{xt2}, v{vV1}, 5, v{xt2}
v_and_b32 v{vwa[0]}, 3, v0
v_lshl_add_u32 v{xt2}, v{vwa[0]}, 3, v{xt2}
v_bfe_u32 v{vwa[0]}, v0, 3, 1
v_lshl_add_u32 v{vwa[0]}, v{vwa[0]}, 6, v{xt2}
s_lshl_b32 s{sV0}, s{sJ}, 6
v_xor_b32 v{vwa[0]}, s{sV0}, v{vwa[0]}
v_add_u32 v{vwa[1]}, {2*SL}, v{vwa[0]}
v_and_b32 v{vKpos}, 0x33, v0
v_bfe_u32 v{xt2}, v0, 2, 1
v_lshl_add_u32 v{vKpos}, v{xt2}, 3, v{vKpos}
v_bfe_u32 v{xt2}, v0, 3, 1
v_lshl_add_u32 v{vKpos}, v{xt2}, 2, v{vKpos}
v_lshlrev_b32 v{vKpos}, 4, v{vKpos}
v_and_b32 v{xt2}, 15, v0
v_lshlrev_b32 v{xt2}, 4, v{xt2}
v_lshl_add_u32 v{xVo}, v{xt1}, 8, v{xt2}
v_lshlrev_b32 v{xL16}, 4, v0
s_mov_b32 s{sC}, {f2u(CSCALE):#x}
s_mov_b32 s{sC+1}, {f2u(CSCALE):#x}
s_mov_b32 s{sVMx}, 0x0000ffff
s_mov_b32 s{sVMx+1}, 0x0000ffff
s_lshl_b32 s{sTT}, s{sR2}, 1
s_add_u32 s{sTT}, s{sTT}, s{sRP}
s_lshl_b32 s{sTT}, s{sTT}, 1
s_lshl_b32 s{sHf}, s{sHG}, 4
s_add_u32 s{sHf}, s{sHf}, s{sR2}""")
if OPT['pfc']:
    A(f"s_getpc_b64 {sr(sNx,2)}")
    A.label("L_pc")
    A(f"""s_sub_u32 s{sNx}, s{sNx}, L_pc-{NAME}
    s_subb_u32 s{sNx+1}, s{sNx+1}, 0
    s_lshl_b32 s{sV0}, s{sT}, 13
    s_mov_b32 s{sV1}, L_codeend-{NAME}-4
    v_lshlrev_b32 v{xt2}, 7, v0
    v_add_u32 v{xt2}, s{sV0}, v{xt2}
    v_min_u32 v{xt2}, s{sV1}, v{xt2}""")
PARTS=(1,2,0)
def rd_x(n,r):
    if n>=32: return
    s,ks=divmod(n,4); slot=(s+1)%3
    A.lds(f"ds_read_b128 {vr(xf[n%2][r],4)}, v{va[slot//2][ks]} offset:{(slot%2)*SL+r*4096}", ('x',n,r))
def rd_w(n,c):
    if n>=32: return
    s,ks=divmod(n,4); slot=(s+1)%3; p=PARTS[c]
    o=(slot%2)*SL+p*8192+ks*2048
    A.lds(f"ds_read_b64_tr_b16 {vr(wf[c],2)}, v{vwa[slot//2]} offset:{o}", ('w',n,c))
    A.lds(f"ds_read_b64_tr_b16 {vr(wf[c]+2,2)}, v{vwa[slot//2]} offset:{o+512}", ('w',n,c))
def pw_prefetch():
    Lp=A.newlabel('L_npw')
    srd(SRD_M,14,524288); srd(SRD_XA,8,524288)
    am=OPT.get('amap',4)
    A(f"""s_and_b32 s{sV0}, s2, { {4:1,2:3,1:7}[am] }
    s_xor_b32 s{sV0}, s{sV0}, { {4:0,2:1,1:3}[am] }
    s_add_u32 s{sV0}, s{sV0}, s{sT}
    s_cmp_lg_u32 s{sV0}, 0
    s_cbranch_scc1 {Lp}
    s_lshl_b32 s{sV0}, s{sT1}, 14
    s_add_u32 s{sV0}, s{sV0}, 384
    v_lshlrev_b32 v{gPW}, 10, v0
    s_mov_b64 exec, 0xffff
    buffer_load_dword v{gDum}, v{gPW}, {sr(SRD_M,4)}, s{sV0} offen
    buffer_load_dword v{gDum}, v{gPW}, {sr(SRD_XA,4)}, s{sV0} offen
    s_mov_b64 exec, -1""")
    A.label(Lp)
QD=OPT.get('qd',20)
def g_step(n, SN=0):
    s,ks=divmod(n,4)
    cur=n<SN; nxt=n+1<SN
    if ks==3 and s<7 and not nxt:
        if cur:
            for c in range(3): rd_w(n,c)
            rd_x(n,0); rd_x(n,1); cur=False
        A.wait_lg_all()
        A("s_barrier")
    for c in range(3 if n<QD else 2):
        if cur:
            if c==0: rd_x(n,0); rd_x(n,1)
            rd_w(n,c)
        for r in range(2):
            A.wait_lg([('x',n,r),('w',n,c)])
            a_=acc[2*c+r]; C="0" if n==0 else vr(a_,16)
            if c==1: A(f"v_mfma_f32_32x32x16_bf16 {vr(a_,16)}, {vr(xf[n%2][r],4)}, {vr(wf[c],4)}, {C}")
            else: A(f"v_mfma_f32_32x32x16_bf16 {vr(a_,16)}, {vr(wf[c],4)}, {vr(xf[n%2][r],4)}, {C}")
            if not nxt:
                if r==0 and c<2: rd_x(n+1,c)
                if r==1 and not (c==2 and n+1>=QD): rd_w(n+1,c)
    if ks==3 and s<7 and nxt:
        A.wait_lg_all()
        A("s_barrier")
    if n==OPT.get('pwn',18): pw_prefetch()
    if n==22: A.vmem(f"buffer_load_dwordx2 {vr(xN,2)}, v{xZ}, {sr(SRD_DBG,4)}, 0 offen sc1",'non')
def q_rd(m):
    if m>=32: return
    s,ks=divmod(m,4); slot=(s+1)%3; b=(m+1)%3
    o=(slot%2)*SL+ks*2048
    W=(wf[2],wf[3],wf[0])[b]
    for r in range(2): A.lds(f"ds_read_b128 {vr(xf[(2,0,1)[b]][r],4)}, v{va[slot//2][ks]} offset:{(slot%2)*SL+r*4096}", ('qx',m,r))
    A.lds(f"ds_read_b64_tr_b16 {vr(W,2)}, v{vwa[slot//2]} offset:{o}", ('qw',m))
    A.lds(f"ds_read_b64_tr_b16 {vr(W+2,2)}, v{vwa[slot//2]} offset:{o+512}", ('qw',m))
def q_phase(fillers):
    q_rd(QD+1)
    per=4
    for m in range(QD,32):
        b=(m+1)%3; W=(wf[2],wf[3],wf[0])[b]
        A.wait_lg(('qw',m))
        for r in range(2):
            A(f"v_mfma_f32_32x32x16_bf16 {vr(acc[4+r],16)}, {vr(W,4)}, {vr(xf[(2,0,1)[b]][r],4)}, {vr(acc[4+r],16)}")
            if r==0: q_rd(m+2)
            for _ in range(per):
                if fillers: fillers.pop(0)()
    while fillers: fillers.pop(0)()
    A.wait_lg_all()
    A("s_barrier")
def I(l): return lambda: A(l)
def Vm(l): return lambda: A.vmem(l)
def packf(a): return [I(f"v_cvt_pk_bf16_f32 v{a+i}, v{a+2*i}, v{a+2*i+1}") for i in range(8)]
def pack16(dst, a, scale=False):
    if scale:
        for i in range(0,16,2): A(f"v_pk_mul_f32 {vr(a+i,2)}, {vr(a+i,2)}, {sr(sC,2)}")
    for i in range(8): A(f"v_cvt_pk_bf16_f32 v{dst+i}, v{a+2*i}, v{a+2*i+1}")
A.wait_lg_all()
A("s_barrier")
assert (QD+1)%3==0
def g_all(SN):
    if SN==0: rd_x(0,0); rd_w(0,0); rd_x(0,1); rd_w(0,1); rd_w(0,2)
    for n in range(32):
        g_step(n,SN)
        if n==30: q_rd(QD)
    stamp(9)
SA=OPT.get('sa',0)
if SA:
    A(f"s_cmp_lg_u32 s{sBR}, 0\ns_cbranch_scc1 L_ga")
g_all(0)
SVL=list(A.lg); SVV=list(A.vm)
if not SA: A(f"s_cmp_lg_u32 s{sBR}, 0\ns_cbranch_scc1 L_epa")
SC=' sc1'
A(f"""s_lshl_b32 s{sV0}, s{sTT}, 11
s_lshl_b32 s{sV1}, s{sJ}, 18
s_add_u32 s{sV0}, s{sV0}, s{sV1}
s_lshl_b32 s{sV1}, s{sHK}, 19
s_add_u32 s{sB0}, s{sV0}, s{sV1}
s_add_u32 s{sG0}, s{sB0}, 131072
s_lshl_b32 s{sV1}, s{sHV}, 19
s_add_u32 s{sB1}, s{sV0}, s{sV1}
s_lshr_b32 s{sB2}, s{sV0}, 1
s_lshl_b32 s{sV1}, s{sHG}, 18
s_add_u32 s{sB2}, s{sB2}, s{sV1}
s_add_u32 s{sB2}, s{sB2}, {WS_Q}
s_add_u32 s{sG1}, s{sB2}, 65536
v_lshl_add_u32 v{xt0}, v{vV1}, 17, v{xVo}""")
F=[]
for r in range(2):
    K=acc[r]; F+=packf(K)
    F.append(Vm(f"buffer_store_dwordx4 {vr(K,4)}, v{xL16}, {sr(SRD_WS,4)}, s{sB0} offen offset:{r*2048}{SC}"))
    F.append(Vm(f"buffer_store_dwordx4 {vr(K+4,4)}, v{xL16}, {sr(SRD_WS,4)}, s{sG0} offen offset:{r*2048}{SC}"))
for r in range(2):
    V=acc[2+r]; F+=packf(V)
    F.append(Vm(f"buffer_store_dwordx4 {vr(V,4)}, v{xt0}, {sr(SRD_WS,4)}, s{sB1} offen offset:{r*2048+1024}{SC}"))
    F.append(Vm(f"buffer_store_dwordx4 {vr(V+4,4)}, v{xt0}, {sr(SRD_WS,4)}, s{sB1} offen offset:{r*2048+1536}{SC}"))
q_phase(F)
A("s_nop 9")
for r in range(2):
    Q=acc[4+r]; pack16(Q,Q,True)
    A.vmem(f"buffer_store_dwordx4 {vr(Q,4)}, v{xL16}, {sr(SRD_WS,4)}, s{sB2} offen offset:{r*1024}{SC}")
    A.vmem(f"buffer_store_dwordx4 {vr(Q+4,4)}, v{xL16}, {sr(SRD_WS,4)}, s{sG1} offen offset:{r*1024}{SC}")
stamp(10,2)
A.wait_vm('non')
nonce_check(xN,xZ,sNx,sCx,sV1)
A(f"""s_lshl_b32 s{sHf}, s{sHf}, 7
s_add_u32 s{sHf}, s{sHf}, {WS_FG}""")
A.wait_vm_all()
stamp(11,2)
A("s_barrier")
A(f"s_cmp_lg_u32 s{sT}, 0\ns_cbranch_scc1 L_wo")
flag_store(xN,xZ,sHf)
A("s_branch L_wo")
if SA:
    A.label("L_ga"); A.reset(); g_all(SA)
else:
    A.label("L_epa"); A.reset(); A.vm=list(SVV); A.lg=list(SVL)
A(f"""s_lshl_b32 s{sV0}, s{sRP}, 14
s_lshl_b32 s{sV1}, s{sJ}, 12
s_add_u32 s{sV2}, s{sV0}, s{sV1}
s_add_u32 s{sV0}, s{sV2}, {EAK+8192}
v_add_u32 v{xt1}, s{sV0}, v{vKpos}
v_lshl_add_u32 v{xt0}, v{vV1}, 11, v{xVo}
v_add_u32 v{xt2}, s{sV0}, v{xt0}
s_lshl_b32 s{sHa}, s{sHf}, 13
s_add_u32 s{sHa}, s{sHa}, {WS_HA}
s_add_u32 s{sV1}, s{sV1}, s{sHa}
s_lshl_b32 s{sHf}, s{sHf}, 1
s_add_u32 s{sHf}, s{sHf}, s{sJ}
s_lshl_b32 s{sHf}, s{sHf}, 7
s_add_u32 s{sHf}, s{sHf}, {WS_FH}""")
F=packf(acc[1])+packf(acc[3])
F.append(I(f"""s_cmp_lg_u32 s{sRP}, 1
s_cbranch_scc1 L_noha
buffer_store_dwordx4 {vr(acc[1],4)}, v{vKpos}, {sr(SRD_WS,4)}, s{sV1} offen sc1
buffer_store_dwordx4 {vr(acc[1]+4,4)}, v{vKpos}, {sr(SRD_WS,4)}, s{sV1} offen offset:2048 sc1
buffer_store_dwordx4 {vr(acc[3]+4,4)}, v{xt0}, {sr(SRD_WS,4)}, s{sV1} offen offset:1536 sc1
L_noha:"""))
F+=packf(acc[0])+packf(acc[2])
q_phase(F)
for r in range(2):
    A.lds(f"ds_write_b128 v{xt1}, {vr(acc[r],4)} offset:{r*8192}")
    A.lds(f"ds_write_b128 v{xt1}, {vr(acc[r]+4,4)} offset:{r*8192+2048}")
    A.lds(f"ds_write_b128 v{xt2}, {vr(acc[2+r],4)} offset:{r*8192+1024}")
    A.lds(f"ds_write_b128 v{xt2}, {vr(acc[2+r]+4,4)} offset:{r*8192+1536}")
A(f"s_lshr_b32 s{sV0}, s{sV2}, 1\ns_add_u32 s{sV0}, s{sV0}, {EAQ}\nv_add_u32 v{xt1}, s{sV0}, v{xL16}")
for r in range(2):
    pack16(acc[4+r],acc[4+r],True)
    for e in range(2): A.lds(f"ds_write_b128 v{xt1}, {vr(acc[4+r]+4*e,4)} offset:{r*4096+e*1024}")
A.wait_lg_all()
A("s_barrier")
Mk=acc[0]; Sc=acc[2]; Sp=acc[3]; Oc=acc[4]; T5=acc[5]
Qh=T5; Kc=T5+4; Kp=T5+8; dstp=T5+12; Vc=xf[0][0]; Vp=xf[1][0]; FL=wf[0]
vAQ=va[0][0]; vAK=va[0][1]; vAV=va[0][2]; vOf=va[0][3]; mx=va[1][0]; mt=va[1][1]; xIdx=va[1][2]; xOne=va[1][3]
A(f"v_add_u32 v{xt0}, {MSK}, v{xL16}\nv_mov_b32 v{xt2}, {NEGBIG:#x}")
for i in range(6): A.lds(f"ds_read_b128 {vr(Mk+4*i,4)}, v{xt0} offset:{i*1024}")
A(f"""s_lshl_b32 s{sV0}, s{sT}, 10
s_add_u32 s{sV0}, s{sV0}, {EAQ}
v_add_u32 v{vAQ}, s{sV0}, v{xL16}
s_lshl_b32 s{sV0}, s{sT}, 11
s_add_u32 s{sV1}, s{sV0}, {EAK}
v_add_u32 v{vAK}, s{sV1}, v{xL16}
v_add_u32 v{vAV}, s{sV1}, v{xVo}
v_and_b32 v{xt0}, 27, v0
v_cmp_eq_u32 vcc, 16, v{xt0}
v_mov_b32 v{xt1}, 0x3f803f80
v_lshl_add_u32 v{vOf}, v{vV1}, 14, v{xVo}
v_cndmask_b32 v{xt1}, 0, v{xt1}, vcc
v_mov_b32 v{xIdx}, 0xdddddddd
v_mov_b32 v{xOne}, 1
s_and_b32 s{sV1}, s{sT}, 1
s_lshl_b32 s{sV1}, s{sV1}, 9
v_add_u32 v{vOf}, s{sV1}, v{vOf}
s_lshl_b32 s{sV3}, s{sR2}, 7
s_lshl_b32 s{sV1}, s{sHG}, 1
s_add_u32 s{sV3}, s{sV3}, s{sV1}
s_lshr_b32 s{sV1}, s{sT}, 1
s_add_u32 s{sV3}, s{sV3}, s{sV1}
s_lshl_b32 s{sV3}, s{sV3}, 10
s_add_u32 s{sV3}, s{sV3}, {WS_OFA}
s_add_u32 s{sHa}, s{sHa}, s{sV0}
s_sub_u32 s{sHa}, s{sHa}, 8192""")
for i in range(12): A(f"v_mov_b32 v{Vc+i}, v{xt1}")
A.wait_vm_all()
nonce_check(xN,xZ,sNx,sCx,sV1)
A(f"s_cmp_lg_u32 s{sRP}, 1\ns_cbranch_scc1 L_noha2")
flag_store(xN,xZ,sHf)
A.label("L_noha2")
A(f"s_sub_u32 s{sHf}, s{sHf}, 256")
stamp(18)
for it,T in enumerate((1,0)):
    A.lds(f"ds_read_b128 {vr(Qh,4)}, v{vAQ} offset:{T*4096}",'q')
    A.lds(f"ds_read_b128 {vr(Kc,4)}, v{vAK} offset:{(T+1)*8192}",'kc')
    if T: A.lds(f"ds_read_b128 {vr(Kp,4)}, v{vAK} offset:{T*8192}",'kp')
    A(f"s_mov_b64 exec, {sr(sVMx,2)}")
    A.lds(f"ds_read_b128 {vr(Vc,4)}, v{vAV} offset:{(T+1)*8192+1024}",'v')
    A.lds(f"ds_read_b128 {vr(Vc+4,4)}, v{vAV} offset:{(T+1)*8192+1536}",'v')
    if T: A.lds(f"ds_read_b128 {vr(Vp,4)}, v{vAV} offset:{T*8192+1536}",'v')
    A("s_mov_b64 exec, -1")
    if T==0:
        A.wait_lg_all()
        A(f"s_cmp_eq_u32 s{sR2}, 0\ns_cbranch_scc1 L_first")
        poll_issue(FL,xZ,sHf,1)
        poll_check(FL,xZ,sHf,sCx,sNx,1,sleep=OPT['slp'])
        A(f"""buffer_load_dwordx4 {vr(Kp,4)}, v{xL16}, {sr(SRD_WS,4)}, s{sHa} offen sc1
        s_mov_b64 exec, {sr(sVMx,2)}
        buffer_load_dwordx4 {vr(Vp,4)}, v{xVo}, {sr(SRD_WS,4)}, s{sHa} offen offset:1536 sc1
        s_mov_b64 exec, -1
        s_waitcnt vmcnt(0)
        s_branch L_first2""")
        A.label("L_first")
        for i in range(8): A(f"v_mov_b32 v{Mk+16+i}, v{xt2}")
        A("s_nop 1")
        A.label("L_first2")
        A.vm=[]
    dst=dstp if it%2==0 else wf[3]
    loc_unit(dict(Sc=Sc,Sp=Sp,Oc=Oc,Mk=Mk,mx=mx,mt=mt,Qh=Qh,Kc=Kc,Kp=Kp,Vc=Vc,Vp=Vp,dst=dst,idx=xIdx))
    A(f"s_add_u32 s{sV1}, s{sV3}, {T*32768}")
    A.vmem(f"buffer_store_dwordx4 {vr(dst,4)}, v{vOf}, {sr(SRD_WS,4)}, s{sV1} offen sc1",'oa')
stamp(19)
A(f"""s_lshl_b32 s{sV1}, s{sR2}, 3
s_add_u32 s{sV1}, s{sV1}, s{sHG}
s_lshl_b32 s{sV1}, s{sV1}, 7
s_add_u32 s{sV1}, s{sV1}, {WS_FOA}""")
A.wait_vm_all()
A("s_mov_b64 exec, 1")
A.lds(f"ds_add_u32 v{gLF}, v{xOne} offset:48")
A("s_mov_b64 exec, -1")
A(f"s_mov_b32 s{sCx}, 0")
A.label("L_cnt")
A(f"""ds_read_b32 v{FL}, v{gLF} offset:48
s_add_u32 s{sCx}, s{sCx}, 1
s_waitcnt lgkmcnt(0)
v_readfirstlane_b32 s{sV0}, v{FL}
s_cmp_gt_u32 s{sCx}, {SPIN*8}
s_cbranch_scc1 L_cntd
{"" if OPT.get('nosl') else "s_sleep 1"}
s_cmp_lt_u32 s{sV0}, 12
s_cbranch_scc1 L_cnt""")
A.label("L_cntd")
A(f"s_cmp_lg_u32 s{sT}, 0\ns_cbranch_scc1 L_wo")
flag_store(xN,xZ,sV1)
A.label("L_wo"); A.reset(); A.vm=['x']
lds_word_spin(xt0,gLF,44,sCx,sV0)
A(f"""s_lshr_b32 s{sV0}, s{sRB}, 1
s_lshl_b32 s{sV0}, s{sV0}, 10
s_add_u32 s{sV0}, s{sV0}, {WS_FOA}""")
srd(SRD_M,14,524288); srd(SRD_XA,8,524288); srd(SRD_OUT,16,4194304)
A(f"""v_lshrrev_b32 v{xt0}, 3, v0
v_and_b32 v{xt1}, 6, v{xt0}
v_xor_b32 v{xt1}, v{xt1}, v0
v_and_b32 v{xt1}, 7, v{xt1}
v_lshlrev_b32 v{xt0}, 10, v{xt0}
v_lshl_add_u32 v{xt0}, v{xt1}, 4, v{xt0}
s_lshl_b32 s{sB0}, s{sT}, 17
s_lshl_b32 s{sB1}, s{sHQ}, 7
s_add_u32 s{sB1}, s{sB1}, s{sB0}
s_lshl_b32 s{sB2}, s{sT}, 14""")
def wo_dma(base, srd_):
    for j in range(16):
        A(f"s_add_u32 m0, s{sB2}, {base+j*1024}")
        A(f"s_add_u32 s{sG0}, s{sB1}, {j*8192}")
        A.vmem(f"buffer_load_dwordx4 v{xt0}, {sr(srd_,4)}, s{sG0} offen lds")
        if j%OPT.get('pg',2)==OPT.get('pg',2)-1 and len(A.vm)>OPT['pace']: A(f"s_waitcnt vmcnt({OPT['pace']})"); A.vm=A.vm[len(A.vm)-OPT['pace']:]
if OPT['ewo']: A(f"s_cmp_lg_u32 s{sT0}, 0\ns_cbranch_scc1 L_woa")
wo_dma(WOB,SRD_M)
A.label("L_woa")
wo_dma(WOA,SRD_XA)
VY=Alloc(xBig,168)
yFl=VY.take(); yP=VY.take(2,2); yWA=[VY.take() for _ in range(4)]; yOo=VY.take()
yO=[VY.take(4,4) for _ in range(16)]
yW=[[VY.take(4,4) for _ in range(4)] for _ in range(3)]
yA=[VY.take(4,4) for _ in range(4)]
A(f"""v_and_b32 v{yFl}, 15, v0
v_lshlrev_b32 v{yOo}, 11, v{yFl}
v_lshlrev_b32 v{yFl}, 7, v{yFl}
v_lshrrev_b32 v{xt0}, 4, v0
v_lshl_add_u32 v{yOo}, v{xt0}, 3, v{yOo}""")
poll_issue(yP,yFl,sV0,0xff)
poll_check(yP,yFl,sV0,sCx,sNx,0xff,sleep=OPT['slp'])
stamp(20)
A(f"""s_lshl_b32 s{sV2}, s{sRB}, 2
s_add_u32 s{sV2}, s{sV2}, s{sT}
s_lshl_b32 s{sB0}, s{sV2}, 14
s_add_u32 s{sB0}, s{sB0}, {WS_OFA}""")
for i in range(16 if not OPT.get('nowo') else 0):
    if i and i%4==0: A(f"s_add_u32 s{sB0}, s{sB0}, 4096")
    A.vmem(f"buffer_load_dwordx4 {vr(yO[i],4)}, v{xL16}, {sr(SRD_WS,4)}, s{sB0} offen offset:{(i%4)*1024} sc1")
    if OPT['pace']<60 and i%2==1 and len(A.vm)>OPT['pace']: A(f"s_waitcnt vmcnt({OPT['pace']})"); A.vm=A.vm[-OPT['pace']:]
wo_tr_addr(yWA[0],xt0,xt1)
A(f"""v_add_u32 v{yWA[0]}, {WOA}, v{yWA[0]}
v_xor_b32 v{yWA[1]}, 32, v{yWA[0]}
v_xor_b32 v{yWA[2]}, 64, v{yWA[0]}
v_xor_b32 v{yWA[3]}, 96, v{yWA[0]}
s_lshl_b32 s{sB0}, s{sV2}, 15
s_lshl_b32 s{sB1}, s{sHQ}, 7
s_add_u32 s{sB0}, s{sB0}, s{sB1}""")
A.wait_vm_all()
stamp(21)
A("s_setprio 0")
A("s_barrier")
def woa_read(hp_,c):
    if hp_>=16: return
    b=hp_%3
    A.lds(f"ds_read_b64_tr_b16 {vr(yW[b][c],2)}, v{yWA[c]} offset:{hp_*4096}",('wa',hp_,c))
    A.lds(f"ds_read_b64_tr_b16 {vr(yW[b][c]+2,2)}, v{yWA[c]} offset:{hp_*4096+1024}",('wa',hp_,c))
for c in range(4): woa_read(0,c)
for c in range(2): woa_read(1,c)
for i in range(16):
    for c in range(4):
        A.wait_lg(('wa',i,c))
        A(f"v_mfma_f32_16x16x32_bf16 {vr(yA[c],4)}, {vr(yW[i%3][c],4)}, {vr(yO[i],4)}, {'0' if i==0 else vr(yA[c],4)}")
        woa_read(i+1+(c+2)//4,(c+2)%4)
A("s_nop 7")
for c in range(4):
    acc=yA[c]
    A(f"v_cvt_pk_bf16_f32 v{acc}, v{acc}, v{acc+1}\nv_cvt_pk_bf16_f32 v{acc+1}, v{acc+2}, v{acc+3}")
    A.vmem(f"buffer_store_dwordx2 {vr(acc,2)}, v{yOo}, {sr(SRD_OUT,4)}, s{sB0} offen offset:{c*32}{OSA}")
stamp(22)
stamp_out(yFl)
A.label("L_end")
A("s_endpgm")
A.label("L_codeend")

errs=check(A.lines)
for e in errs[:25]: print("CHECK:",e, file=sys.stderr)
hdr=open('concat_heads__sliding_local_dilated__softmax_full_mha__prompt.s.ref').read().split('; Override')[0]
nv=168
DOC="""; ---------------------------------------------------------------------------------------------
; ---------------------------------------------------------------------------------------------
"""
out=hdr+f"""; @launch grid=(256,1,1) block=(768,1,1) lds={LDS_BYTES}
"""+DOC+f""".amdgcn_target "amdgcn-amd-amdhsa--gfx950"
.text
.globl {NAME}
.p2align 8
.type {NAME},@function
"""+A.text()+f""".section .rodata,"a"
.p2align 6
.amdhsa_kernel {NAME}
  .amdhsa_next_free_vgpr {nv}
  .amdhsa_next_free_sgpr 102
  .amdhsa_accum_offset {nv}
  .amdhsa_group_segment_fixed_size 0
  .amdhsa_kernarg_size 72
  .amdhsa_user_sgpr_count 2
  .amdhsa_user_sgpr_kernarg_segment_ptr 1
  .amdhsa_system_sgpr_workgroup_id_x 1
.end_amdhsa_kernel
"""
open(sys.argv[1],'w').write(out)
print("vgpr att",VA.hi,VB.hi,"aux",VX.hi,VY.hi,"lines",len(A.lines),"errs",len(errs))
```

```python
import sys, math, struct
from asmlib import *
NAME="concat_heads__sliding_local_dilated__softmax_full_mha__prompt_kernel"
OPT=dict(nosl=1, cm=2, up=3, ib=1, pace=1, stamp=0, pfc=0, ewo=0, pp=1, m=1, qd=23, rel=8, slp=2)
for a in sys.argv[2:]:
    k,v=a.split('='); OPT[k]=int(v) if v.lstrip('-').isdigit() else v

SL=40960; LXO=24576; EAQ=65536; EAK=81920-8192; RED=131072; LF=155648
WOB=0; WOA=65536
LDS_BYTES=163840
WS_KV=0; WS_OFB=4<<20; WS_OFA=6<<20; WS_Q=10<<20; WS_HA=12<<20
FGS=OPT.get('fgs',7); WS_FG=(8<<20)+OPT.get('fgo',0); WS_FOB=(8<<20)+262144+OPT.get('fbo',0); WS_EPOCH=(8<<20)+65536; WS_FOA=(8<<20)+131072; WS_FH=(8<<20)+163840
WS_STAMP=30<<20
WS_BYTES=32<<20
CSCALE=0.25*math.log2(math.e)
def f2u(x): return struct.unpack('<I',struct.pack('<f',x))[0]
NEGBIG=f2u(-1e30)
SPIN=30000

A=Asm()
OSA={0:'',1:' sc1',2:' nt',3:' sc0 sc1'}[OPT.get('osa',0)]; OSB={0:'',1:' sc1',2:' nt',3:' sc0 sc1'}[OPT.get('osb',0)]
sW=22; sHQ=23; sRB=24; sSG=25; sBR=26; sR2=27
SRD_X=28; SRD_W=32; SRD_XA=36; sHG=3; sHK=40; sHV=41; sT0=42; sT1=43; SRD_WS=44; SRD_DBG=48; SRD_M=52; SRD_OUT=56
sA0=60

def srd(base, ptr, nbytes):
    A(f"""s_mov_b32 s{base}, s{ptr}
    s_mov_b32 s{base+1}, s{ptr+1}
    s_mov_b32 s{base+2}, {nbytes}
    s_mov_b32 s{base+3}, 0x00020000""")
vSt=1
def stamp(idx, lvl=1):
    if OPT.get('amp')==idx:
        A("s_memrealtime s[94:95]\ns_waitcnt lgkmcnt(0)"); A.lg=[]
    if OPT['stamp']<lvl: return
    if 'only' in OPT and idx not in [int(x) for x in str(OPT['only']).split(',')]: return
    A(f"""s_memrealtime s[96:97]
    s_memtime s[98:99]
    s_waitcnt lgkmcnt(0)
    v_writelane_b32 v{vSt}, s96, {idx}
    v_writelane_b32 v{vSt}, s98, {idx+32}""")
    A.lg=[]
def stamp_out(vtmp):
    if not OPT['stamp']: return
    A(f"""v_writelane_b32 v{vSt}, s100, 31
    s_mul_i32 s96, s2, 12
    s_add_u32 s96, s96, s{sW}
    s_lshl_b32 s96, s96, 8
    s_add_u32 s96, s96, {WS_STAMP}
    v_lshlrev_b32 v{vtmp}, 2, v0
    buffer_store_dword v{vSt}, v{vtmp}, {sr(SRD_WS,4)}, s96 offen""")
def poll_issue(vdst, voff, soff, mask=-1):
    if mask!=-1: A(f"s_mov_b64 exec, {mask:#x}")
    A.vmem(f"buffer_load_dwordx2 {vr(vdst,2)}, v{voff}, {sr(SRD_WS,4)}, s{soff} offen sc1",'poll')
    if mask!=-1: A("s_mov_b64 exec, -1")
def poll_check(vdst, voff, soff, scnt, snon, mask=-1, sleep=0, keep=0):
    L=A.newlabel('L_poll'); Ld=A.newlabel('L_polld'); Lc=A.newlabel('L_pollc')
    A(f"s_mov_b32 s{scnt}, 0")
    if mask!=-1: A(f"s_mov_b64 exec, {mask:#x}")
    A.wait_vm('poll')
    A(f"s_branch {Lc}")
    A.label(L)
    if sleep and not OPT.get('nosl'): A(f"s_sleep {sleep}")
    A(f"""buffer_load_dwordx2 {vr(vdst,2)}, v{voff}, {sr(SRD_WS,4)}, s{soff} offen sc1
    s_waitcnt vmcnt(0)""")
    A.label(Lc)
    A(f"""v_cmp_eq_u64 vcc, {sr(snon,2)}, {vr(vdst,2)}
    s_add_u32 s{scnt}, s{scnt}, 1
    s_cmp_eq_u64 vcc, exec
    s_cbranch_scc1 {Ld}
    s_cmp_le_u32 s{scnt}, {SPIN}
    s_cbranch_scc1 {L}""")
    A.label(Ld)
    if mask!=-1: A("s_mov_b64 exec, -1")
def poll_pipe(vd, voff, soff, scnt, snon, gap=2):
    L=A.newlabel('L_pp'); Ld=A.newlabel('L_ppd')
    ld=lambda k: A(f"buffer_load_dwordx2 {vr(vd+2*k,2)}, v{voff}, {sr(SRD_WS,4)}, s{soff} offen sc1")
    A(f"s_mov_b32 s{scnt}, 0")
    for k in range(3):
        ld(k)
        if k<2 and not OPT.get('nosl'): A(f"s_sleep {gap}")
    A.label(L)
    for k in range(3):
        A(f"""s_waitcnt vmcnt(2)
        v_cmp_eq_u64 vcc, {sr(snon,2)}, {vr(vd+2*k,2)}
        s_cmp_eq_u64 vcc, exec
        s_cbranch_scc1 {Ld}""")
        ld(k)
    A(f"""s_add_u32 s{scnt}, s{scnt}, 1
    s_cmp_le_u32 s{scnt}, {SPIN}
    s_cbranch_scc1 {L}""")
    A.label(Ld)
def lds_word_spin(vF, vAddr, off, scnt, stmp):
    L=A.newlabel('L_ws'); Ld=A.newlabel('L_wsd')
    A(f"s_mov_b32 s{scnt}, 0")
    A.label(L)
    A(f"""ds_read_b32 v{vF}, v{vAddr} offset:{off}
    s_add_u32 s{scnt}, s{scnt}, 1
    s_waitcnt lgkmcnt(0)
    v_readfirstlane_b32 s{stmp}, v{vF}
    s_cmp_gt_u32 s{scnt}, {SPIN*8}
    s_cbranch_scc1 {Ld}
    {"s_sleep 1" if OPT.get('lsl') else ""}
    s_cmp_eq_u32 s{stmp}, 0
    s_cbranch_scc1 {L}""")
    A.label(Ld)
    A.lg=[]
def nonce_check(vN, vZ, snon, scnt, stmp):
    L=A.newlabel('L_non'); Ld=A.newlabel('L_nond')
    A(f"s_mov_b32 s{scnt}, 0")
    A.label(L)
    A(f"""v_readfirstlane_b32 s{snon}, v{vN}
    v_readfirstlane_b32 s{snon+1}, v{vN+1}
    s_add_u32 s{scnt}, s{scnt}, 1
    s_cmp_gt_u32 s{scnt}, {SPIN}
    s_cbranch_scc1 {Ld}
    s_cmp_eq_u32 s{snon}, 0
    s_cselect_b32 s{stmp}, 0, s{snon+1}
    s_cmp_lg_u32 s{stmp}, 0
    s_cbranch_scc1 {Ld}
    buffer_load_dwordx2 {vr(vN,2)}, v{vZ}, {sr(SRD_DBG,4)}, 0 offen sc1
    s_waitcnt vmcnt(0)
    s_branch {L}""")
    A.label(Ld)
def flag_store(vN, vZ, soff):
    A("s_mov_b64 exec, 1")
    A.vmem(f"buffer_store_dwordx2 {vr(vN,2)}, v{vZ}, {sr(SRD_WS,4)}, s{soff} offen sc1",'flag')
    A("s_mov_b64 exec, -1")
def lds_flags_spin(vF, vAddr, scnt, stmp, issued=False):
    L=A.newlabel('L_xs'); Ld=A.newlabel('L_xsd'); Lc=A.newlabel('L_xsc')
    A(f"s_mov_b32 s{scnt}, 0")
    if issued: A(f"s_branch {Lc}")
    A.label(L)
    A(f"ds_read_b128 {vr(vF,4)}, v{vAddr}")
    A.label(Lc)
    A(f"""s_add_u32 s{scnt}, s{scnt}, 1
    s_waitcnt lgkmcnt(0)
    v_and_b32 v{vF}, v{vF}, v{vF+1}
    v_and_b32 v{vF+2}, v{vF+2}, v{vF+3}
    v_and_b32 v{vF}, v{vF}, v{vF+2}
    s_cmp_gt_u32 s{scnt}, {SPIN*4}
    v_readfirstlane_b32 s{stmp}, v{vF}
    s_cbranch_scc1 {Ld}
    s_cmp_eq_u32 s{stmp}, 0
    s_cbranch_scc1 {L}""")
    A.label(Ld)
    A.lg=[]
def wo_tr_addr(dst, t0, t1):
    A(f"""v_lshrrev_b32 v{t0}, 2, v0
    v_and_b32 v{t0}, 7, v{t0}
    v_lshrrev_b32 v{t1}, 5, v0
    v_lshl_add_u32 v{t1}, v{t1}, 4, v{t0}
    v_lshlrev_b32 v{t1}, 7, v{t1}
    v_and_b32 v{t0}, 6, v{t0}
    v_bfe_u32 v{dst}, v0, 1, 1
    v_xor_b32 v{t0}, v{t0}, v{dst}
    v_lshl_add_u32 v{t1}, v{t0}, 4, v{t1}
    v_and_b32 v{t0}, 1, v0
    v_lshl_add_u32 v{dst}, v{t0}, 3, v{t1}""")


def loc_unit(R, pre=None):
    Sc,Sp,Oc,Mk=R['Sc'],R['Sp'],R['Oc'],R['Mk']; mx,mt=R['mx'],R['mt']
    if pre: pre()
    A.wait_lg('kc')
    A(f"v_mfma_f32_32x32x16_bf16 {vr(Sc,16)}, {vr(R['Kc'],4)}, {vr(R['Qh'],4)}, {vr(Mk,16)}")
    A.wait_lg('kp')
    A(f"v_mfma_f32_32x32x16_bf16 {vr(Sp,16)}, {vr(R['Kp'],4)}, {vr(R['Qh'],4)}, {vr(Mk+8,16)}")
    for i in range(9): A(f"v_mov_b32 v{Oc+i}, 0")
    A("s_nop 1")
    A(f"v_max_f32 v{mx}, v{Sc}, v{Sc+1}")
    A(f"v_max3_f32 v{mt}, v{Sc+2}, v{Sc+3}, v{Sc+4}")
    for i in range(5,15,4):
        A(f"v_max3_f32 v{mx}, v{mx}, v{Sc+i}, v{Sc+i+1}")
        if i+3<16: A(f"v_max3_f32 v{mt}, v{mt}, v{Sc+i+2}, v{Sc+i+3}")
    A(f"v_max3_f32 v{mt}, v{mt}, v{Sc+15}, v{Sp+8}")
    A(f"v_max3_f32 v{mx}, v{mx}, v{Sp+9}, v{Sp+10}")
    A(f"v_max3_f32 v{mt}, v{mt}, v{Sp+11}, v{Sp+12}")
    A(f"v_max3_f32 v{mx}, v{mx}, v{Sp+13}, v{Sp+14}")
    A(f"v_max3_f32 v{mx}, v{mx}, v{mt}, v{Sp+15}")
    A(f"""v_mov_b32 v{mt}, v{mx}
    s_nop 1
    v_permlane32_swap_b32 v{mx}, v{mt}
    s_nop 1
    v_max_f32 v{mx}, v{mx}, v{mt}
    v_mul_f32 v{mx}, s{R['c']}, v{mx}""")
    regs=[Sp+8+i for i in range(8)]+[Sc+i for i in range(16)]
    for r in regs: A(f"v_fma_f32 v{r}, v{r}, s{R['c']}, -v{mx}")
    A.wait_lg('v')
    for j,r in enumerate(regs):
        A(f"v_exp_f32 v{r}, v{r}")
        if j==9: A(f"v_smfmac_f32_32x32x32_bf16 {vr(Oc,16)}, {vr(R['Vp'],4)}, {vr(Sp+8,8)}, v{R['idx']}")
        if j==17: A(f"v_smfmac_f32_32x32x32_bf16 {vr(Oc,16)}, {vr(R['Vc'],4)}, {vr(Sc,8)}, v{R['idx']}")
    A("s_nop 1")
    A(f"v_smfmac_f32_32x32x32_bf16 {vr(Oc,16)}, {vr(R['Vc']+4,4)}, {vr(Sc+8,8)}, v{R['idx']}")
    A("s_nop 11")
    A(f"v_rcp_f32 v{mt}, v{Oc+8}\ns_nop 0")
    for i in range(8): A(f"v_mul_f32 v{Oc+i}, v{Oc+i}, v{mt}")
    for i in range(4): A(f"v_cvt_pk_bf16_f32 v{R['dst']+i}, v{Oc+2*i}, v{Oc+2*i+1}")
MSK=RED
AMAP={4:"",
 2:f"s_and_b32 s{sHQ}, s2, 3\ns_lshl_b32 s{sHQ}, s{sHQ}, 1\ns_and_b32 s{sT0}, s{sT1}, 1\ns_add_u32 s{sHQ}, s{sHQ}, s{sT0}\ns_and_b32 s{sRB}, s2, 4\ns_lshl_b32 s{sRB}, s{sRB}, 2\ns_lshr_b32 s{sT0}, s{sT1}, 1\ns_add_u32 s{sRB}, s{sRB}, s{sT0}",
 1:f"s_and_b32 s{sHQ}, s2, 7\ns_mov_b32 s{sRB}, s{sT1}"}[OPT.get('amap',4)]
A.label(NAME)
if OPT['stamp'] or 'amp' in OPT: A("s_memrealtime s[100:101]")
A(f"""s_cmp_ge_u32 s2, 256
s_cbranch_scc1 L_end
s_load_dwordx16 s[4:19], s[0:1], 0
s_load_dwordx2 s[20:21], s[0:1], 64
v_lshrrev_b32 v1, 6, v0
v_and_b32 v0, 63, v0
s_lshr_b32 s{sT1}, s2, 3
v_readfirstlane_b32 s{sW}, v1
""")
if OPT.get('map8'):
    A(f"""s_and_b32 s{sHQ}, s{sT1}, 7
    s_and_b32 s{sRB}, s2, 7
    s_lshl_b32 s{sRB}, s{sRB}, 2
    s_lshr_b32 s{sT0}, s{sT1}, 3
    s_add_u32 s{sRB}, s{sRB}, s{sT0}""")
else:
    A(f"""s_and_b32 s{sHQ}, s2, 1
s_lshl_b32 s{sHQ}, s{sHQ}, 2
s_and_b32 s{sT0}, s{sT1}, 3
s_add_u32 s{sHQ}, s{sHQ}, s{sT0}
s_and_b32 s{sRB}, s2, 6
s_lshl_b32 s{sRB}, s{sRB}, 2
s_lshr_b32 s{sT0}, s{sT1}, 2
s_add_u32 s{sRB}, s{sRB}, s{sT0}""")
if OPT['m']==2: A(f"s_lshr_b32 s{sBR}, s{sRB}, 4\ns_and_b32 s{sR2}, s{sRB}, 15")
else: A(f"s_and_b32 s{sBR}, s{sRB}, 1\ns_lshr_b32 s{sR2}, s{sRB}, 1")
A({1:f"s_lshl_b32 s{sSG}, s{sHQ}, 1\ns_add_u32 s{sSG}, s{sSG}, s{sR2}", 2:f"s_mov_b32 s{sSG}, s{sR2}", 3:f"s_and_b32 s{sSG}, s{sR2}, 3",
   4:f"s_and_b32 s{sSG}, s{sR2}, 1\ns_lshl_b32 s{sSG}, s{sSG}, 2", 5:f"s_and_b32 s{sSG}, s{sR2}, 3\ns_lshl_b32 s{sSG}, s{sSG}, 1", 6:f"s_and_b32 s{sSG}, s{sR2}, 1"}[OPT.get('rot',1)])
A(f"""s_and_b32 s{sT0}, s{sHQ}, 4
s_cmp_eq_u32 s{sBR}, 0
s_cselect_b32 s{sHK}, 1, 0
s_cselect_b32 s{sHV}, 2, 0
s_add_u32 s{sHK}, s{sHK}, s{sHQ}
s_and_b32 s{sHK}, s{sHK}, 3
s_or_b32 s{sHK}, s{sHK}, s{sT0}
s_add_u32 s{sHV}, s{sHV}, s{sHQ}
s_and_b32 s{sHV}, s{sHV}, 3
s_or_b32 s{sHV}, s{sHV}, s{sT0}
s_mov_b32 s{sHG}, s{sHQ}
{AMAP}
s_cmp_lg_u32 s{sHQ}, 3
s_cselect_b32 s{sT0}, s{sBR}, 0
s_cmp_ge_u32 s{sW}, 8
s_cbranch_scc1 L_aux""")

VA=Alloc(2,168)
vx=VA.take(); vw=VA.take(); vt0=VA.take(); vt1=VA.take(); vt2=VA.take(); vt3=VA.take()
vL16=VA.take(); vVo=VA.take(); vIdx=VA.take(); vFl=VA.take(); vP=VA.take(2,2); vN=VA.take(2,2); vZ=VA.take()
vEQ0=VA.take(); vEK=VA.take(); vEV=VA.take(); vx1=vEQ0; vLF=vt3; vKp=vEV
ND=6
vBig=VA.mark()
Qf=[VA.take(4,4) for _ in range(2)]
Sb=[VA.take(16,4) for _ in range(2)]
Oa=[VA.take(16,4) for _ in range(2)]
Kf=[VA.take(4,4) for _ in range(ND)]
Vf=[VA.take(8,4) for _ in range(ND)]
sXoff=sA0; sM0=sA0+1; sWoff=sA0+2; sFOr=sA0+3; sOld=sA0+4; sOut=sA0+5; sOst=sA0+6; sFOw=sA0+7
sU0=sA0+8; sU1=sA0+9; sU2=sA0+10
sE=sA0+11; sKH=sA0+12; sM2=sA0+13; sKVb=sA0+14; sOff=sA0+15; sNon=sA0+16; sVM=sA0+18; sCnt=sA0+20; sBlk=sA0+21
sFGr=sA0+22; sQ0=sA0+23; sQ1=sA0+24; sLo=sA0+25; sHi=sA0+26; sX0=sA0+28
sF0=sA0+30; sF1=sA0+31; sF2=sA0+32; sWoffK=sA0+33; sWoffV=sA0+34; sKO=sA0+35
A(f"""v_lshrrev_b32 v{vt0}, 3, v0
v_mul_u32_u24 v{vw}, 3072, v{vt0}
v_lshlrev_b32 v{vt0}, 10, v{vt0}
v_lshrrev_b32 v{vt1}, 2, v0
v_and_b32 v{vt1}, 4, v{vt1}
v_xor_b32 v{vt1}, v{vt1}, v0
v_and_b32 v{vt1}, 7, v{vt1}
v_lshl_add_u32 v{vw}, v{vt1}, 4, v{vw}
v_lshrrev_b32 v{vt1}, 4, v0
v_xor_b32 v{vt1}, v{vt1}, v0
v_and_b32 v{vt1}, 7, v{vt1}
v_lshl_add_u32 v{vx}, v{vt1}, 4, v{vt0}
v_xor_b32 v{vx1}, 64, v{vx}
v_add_u32 v{vx1}, 8192, v{vx1}
s_lshl_b32 s{sXoff}, s{sR2}, 17
s_lshl_b32 s{sU0}, s{sW}, 14
s_add_u32 s{sXoff}, s{sXoff}, s{sU0}
s_lshl_b32 s{sM0}, s{sW}, 10
s_lshl_b32 s{sM2}, s{sW}, 11
s_mul_i32 s{sWoff}, s{sW}, 24576
s_lshl_b32 s{sU0}, s{sHK}, 7
s_add_u32 s{sWoffK}, s{sWoff}, s{sU0}
s_lshl_b32 s{sU0}, s{sHV}, 7
s_add_u32 s{sWoffV}, s{sWoff}, s{sU0}
s_lshl_b32 s{sU0}, s{sHG}, 7
s_add_u32 s{sWoff}, s{sWoff}, s{sU0}
s_mov_b32 s{SRD_X+2}, 2097152
s_mov_b32 s{SRD_X+3}, 0x00020000
s_mov_b32 s{SRD_W+2}, 1572864
s_mov_b32 s{SRD_W+3}, 0x00020000
s_cmp_eq_u32 s{sBR}, 0
s_waitcnt lgkmcnt(0)
s_cselect_b32 s{SRD_X}, s10, s4
s_cselect_b32 s{SRD_X+1}, s11, s5
s_cselect_b32 s{SRD_W}, s12, s6
s_cselect_b32 s{SRD_W+1}, s13, s7""")
def issue_stage(s):
    slot=(s+1)%3
    CM=OPT.get('cm',0)
    if CM==0: A(f"s_add_u32 s{sU0}, s{sSG}, {s}\ns_and_b32 s{sU0}, s{sU0}, 7")
    elif s<CM: A(f"s_mov_b32 s{sU0}, {OPT.get('c0',0)+s}")
    else:
        if s==CM:
            mg={2:43,1:37,3:52}[CM]; M=8-CM
            A(f"s_mul_i32 s{sU0}, s{sSG}, {mg}\ns_lshr_b32 s{sU0}, s{sU0}, 8\ns_mul_i32 s{sU0}, s{sU0}, {M}\ns_sub_u32 s{sSG}, s{sSG}, s{sU0}")
        else:
            A(f"s_add_u32 s{sSG}, s{sSG}, 1\ns_cmp_eq_u32 s{sSG}, {8-CM}\ns_cselect_b32 s{sSG}, 0, s{sSG}")
        A(f"s_add_u32 s{sU0}, s{sSG}, {CM+OPT.get('c0',0)}\ns_and_b32 s{sU0}, s{sU0}, 7")
    A(f"""s_mul_i32 s{sU1}, s{sU0}, 196608
    s_lshl_b32 s{sU0}, s{sU0}, 7
    s_add_u32 m0, s{sM2}, {slot*SL+LXO}
    s_add_u32 s{sU0}, s{sU0}, s{sXoff}""")
    A.vmem(f"buffer_load_dwordx4 v{vx}, {sr(SRD_X,4)}, s{sU0} offen lds", s)
    for p in (1,2,0):
        A(f"s_add_u32 m0, s{sM0}, {slot*SL+p*7168}")
        A(f"s_add_u32 s{sU2}, s{sU1}, s{(sWoff,sWoffK,sWoffV)[p]}")
        A.vmem(f"buffer_load_dwordx4 v{vw}, {sr(SRD_W,4)}, s{sU2} offen offset:{p*1024} lds", s)
        if p==1:
            A(f"s_add_u32 m0, s{sM2}, {slot*SL+LXO+1024}\ns_nop 0")
            A.vmem(f"buffer_load_dwordx4 v{vx1}, {sr(SRD_X,4)}, s{sU0} offen lds", s)
class Cap:
    def __enter__(self): self.n=len(A.lines); return self
    def __exit__(self,*a): self.l=A.lines[self.n:]; del A.lines[self.n:]
def att_setup():
    srd(SRD_DBG,18,256)
    A(f"""v_mov_b32 v{vZ}, 0
    s_lshr_b32 s{sE}, s{sW}, 1
    s_and_b32 s{sKH}, s{sW}, 1
    s_lshl_b32 s{sF1}, s{sHQ}, 2
    s_add_u32 s{sF1}, s{sF1}, s{sE}
    s_lshl_b32 s{sKVb}, s{sF1}, 17
    s_lshl_b32 s{sF0}, s{sKH}, 11
    s_add_u32 s{sKVb}, s{sKVb}, s{sF0}
    s_lshl_b32 s{sQ0}, s{sF1}, 6
    s_lshl_b32 s{sF0}, s{sRB}, 1
    s_add_u32 s{sQ0}, s{sQ0}, s{sF0}
    s_add_u32 s{sQ0}, s{sQ0}, s{sKH}
    s_lshl_b32 s{sQ0}, s{sQ0}, 10
    s_add_u32 s{sQ0}, s{sQ0}, {WS_Q}
    s_xor_b32 s{sQ1}, s{sQ0}, 1024
    s_mov_b32 s{sVM}, 0x0000ffff
    s_mov_b32 s{sVM+1}, 0x0000ffff
    s_and_b32 s{sKO}, s{sRB}, {OPT.get('kom',24)}
    v_lshlrev_b32 v{vL16}, 4, v0
    v_and_b32 v{vt0}, 15, v0
    v_lshlrev_b32 v{vt1}, 4, v{vt0}
    v_lshrrev_b32 v{vt2}, 5, v0
    v_lshl_add_u32 v{vVo}, v{vt2}, 8, v{vt1}
    v_mov_b32 v{vIdx}, 0xdddddddd
    v_and_b32 v{vKp}, 0x33, v0
    v_bfe_u32 v{vt2}, v0, 2, 1
    v_lshl_add_u32 v{vKp}, v{vt2}, 3, v{vKp}
    v_bfe_u32 v{vt2}, v0, 3, 1
    v_lshl_add_u32 v{vKp}, v{vt2}, 2, v{vKp}
    v_lshlrev_b32 v{vKp}, 4, v{vKp}
    s_and_b32 s{sF2}, s{sHQ}, 4
    s_sub_u32 s{sF0}, s{sHQ}, 1
    s_and_b32 s{sF0}, s{sF0}, 3
    s_or_b32 s{sF0}, s{sF0}, s{sF2}
    s_lshl_b32 s{sF0}, s{sF0}, 11
    s_sub_u32 s{sF1}, s{sHQ}, 2
    s_and_b32 s{sF1}, s{sF1}, 3
    s_or_b32 s{sF1}, s{sF1}, s{sF2}
    s_lshl_b32 s{sF1}, s{sF1}, 11
""")
    if OPT.get('tp'): A(f"""    v_mov_b32 v{vt1}, s{sF0}
    v_mov_b32 v{vt2}, s{sF1}
    v_cmp_gt_u32 vcc, 4, v0
    s_lshl_b32 s{sF0}, s{sHQ}, 4
    s_lshr_b32 s{sF1}, s{sRB}, 1
    v_cndmask_b32 v{vt1}, v{vt2}, v{vt1}, vcc
    s_and_b32 s{sF2}, s{sF1}, 12
    v_and_b32 v{vt2}, 3, v0
    v_add_u32 v{vt2}, s{sF2}, v{vt2}
    v_lshl_add_u32 v{vFl}, v{vt2}, 7, v{vt1}
    s_add_u32 s{sF0}, s{sF0}, s{sF1}
    s_lshl_b32 s{sF0}, s{sF0}, 7
    s_mov_b32 s{sFGr}, {WS_FG}
    v_writelane_b32 v{vFl}, s{sF0}, 8
""")
    else: A(f"""    v_mov_b32 v{vt1}, s{sF0}
    v_mov_b32 v{vt2}, s{sF1}
    v_cmp_gt_u32 vcc, 16, v0
    s_lshl_b32 s{sF0}, s{sHQ}, 4
    s_lshr_b32 s{sF1}, s{sRB}, 1
    v_cndmask_b32 v{vt1}, v{vt2}, v{vt1}, vcc
    v_lshl_add_u32 v{vFl}, v{vt0}, 7, v{vt1}
    s_add_u32 s{sF0}, s{sF0}, s{sF1}
    s_lshl_b32 s{sF0}, s{sF0}, 7
    s_mov_b32 s{sFGr}, {WS_FG}
    v_writelane_b32 v{vFl}, s{sF0}, 32
""")
    A(f"""    v_mov_b32 v{vLF}, {LF}
    v_and_b32 v{vt0}, 27, v0
    v_cmp_eq_u32 vcc, 16, v{vt0}
    v_mov_b32 v{vt1}, 0x3f803f80
    s_nop 0
    v_cndmask_b32 v{vt1}, 0, v{vt1}, vcc""")
    for d in range(ND):
        for i in range(8): A(f"v_mov_b32 v{Vf[d]+i}, v{vt1}")
    for d in range(2):
        for i in range(16): A(f"v_mov_b32 v{Oa[d]+i}, 0")
    A(f"""s_lshl_b32 s{sF0}, s{sRB}, 1
    s_add_u32 s{sF0}, s{sF0}, s{sKH}
    s_lshl_b32 s{sOst}, s{sF0}, 5
    s_lshl_b32 s{sF1}, s{sHQ}, 1
    s_add_u32 s{sOst}, s{sOst}, s{sF1}
    s_lshr_b32 s{sF1}, s{sE}, 1
    s_add_u32 s{sOst}, s{sOst}, s{sF1}
    s_lshl_b32 s{sOst}, s{sOst}, 10
    s_add_u32 s{sOst}, s{sOst}, {WS_OFB}
    s_lshl_b32 s{sFOr}, s{sRB}, 10
    s_add_u32 s{sFOr}, s{sFOr}, {WS_FOB}
    s_lshl_b32 s{sFOw}, s{sHQ}, 7
    s_add_u32 s{sFOw}, s{sFOw}, s{sFOr}
    s_and_b32 s{sF0}, s{sW}, 3
    s_lshl_b32 s{sF1}, s{sRB}, 2
    s_add_u32 s{sF1}, s{sF1}, s{sF0}
    s_lshr_b32 s{sF2}, s{sW}, 2
    s_lshl_b32 s{sOld}, s{sF1}, 1
    s_add_u32 s{sOld}, s{sOld}, s{sF2}
    s_lshl_b32 s{sOld}, s{sOld}, 13
    s_add_u32 s{sOld}, s{sOld}, {WS_OFB}
    s_lshl_b32 s{sOut}, s{sF1}, 15
    s_lshl_b32 s{sF0}, s{sHQ}, 7
    s_add_u32 s{sOut}, s{sOut}, s{sF0}
    s_lshl_b32 s{sF0}, s{sF2}, 6
    s_add_u32 s{sOut}, s{sOut}, s{sF0}
    s_add_u32 s{sOut}, s{sOut}, 1024
    s_mov_b32 s{sLo}, {f2u(2.0**-80):#x}
    s_mov_b32 s{sHi}, {f2u(2.0**96):#x}""")
    srd(SRD_OUT,16,4194304)
with Cap() as c1: att_setup()
FILL=c1.l
def fill(q,n):
    k=min(n,len(q))
    while k<len(q) and any(x.startswith('v_cmp') for x in q[max(0,k-3):k]): k+=1
    for l in q[:k]: A(l)
    del q[:k]
def kv_load(i):
    if OPT.get('nokv'): return
    d=i%ND
    A(f"""s_add_u32 s{sBlk}, s{sKO}, {i}
    s_and_b32 s{sBlk}, s{sBlk}, 31
    s_lshl_b32 s{sBlk}, s{sBlk}, 12
    s_add_u32 s{sOff}, s{sBlk}, s{sKVb}""")
    A.vmem(f"buffer_load_dwordx4 {vr(Kf[d],4)}, v{vKp}, {sr(SRD_WS,4)}, s{sOff} offen sc1",('kv',i))
    A(f"s_mov_b64 exec, {sr(sVM,2)}")
    A.vmem(f"buffer_load_dwordx4 {vr(Vf[d],4)}, v{vVo}, {sr(SRD_WS,4)}, s{sOff} offen offset:1024 sc1",('kv',i))
    A.vmem(f"buffer_load_dwordx4 {vr(Vf[d]+4,4)}, v{vVo}, {sr(SRD_WS,4)}, s{sOff} offen offset:1536 sc1",('kv',i))
    A("s_mov_b64 exec, -1")
def QK(u): A(f"v_mfma_f32_32x32x16_bf16 {vr(Sb[u%2],16)}, {vr(Kf[(u//2)%ND],4)}, {vr(Qf[u%2],4)}, 0")
def PV(u,t): A(f"v_smfmac_f32_32x32x32_bf16 {vr(Oa[u%2],16)}, {vr(Vf[(u//2)%ND]+4*t,4)}, {vr(Sb[u%2]+8*t,8)}, v{vIdx}")
NU=64
PRIO0=2; PRIO={OPT.get('q1',28):1,OPT.get('q2',56):0}
SCHED={}
nxt=2
for u_ in range(64):
    lim=u_//2-1+ND if u_>=2 else ND-1
    if nxt<=min(lim,31): SCHED.setdefault(u_,[]).append(nxt); nxt+=1
def unit(u):
    S=Sb[u%2]
    E=lambda r: A(f"v_exp_f32 v{S+r}, v{S+r}")
    E(0);E(1)
    if u>0: PV(u-1,1)
    E(2);E(3);E(4)
    if OPT.get('tp') and 8 in SCHED.get(u,[]): lds_word_spin(vt0,vLF,56,sCnt,sU0)
    for i in SCHED.get(u,[]): kv_load(i)
    if u in PRIO: A(f"s_setprio {PRIO[u]}")
    if u==2:
        A("s_mov_b64 exec, 1"); A.lds(f"ds_add_u32 v{vLF}, v{vEK} offset:48"); A("s_mov_b64 exec, -1")
    if u==OPT['rel']: A.lds(f"ds_write_b32 v{vLF}, v{vIdx} offset:44")
    if u+1<NU:
        if (u+1)%2==0: A.wait_vm(('kv',(u+1)//2))
        QK(u+1)
    for r in range(5,10): E(r)
    PV(u,0)
    for r in range(10,16): E(r)
    if u in (3,5,9,17,33): stamp(18+(3,5,9,17,33).index(u), 1 if u in (5,33) else 2)
UP=OPT.get('up',2)
issue_stage(0)
if UP>=2: issue_stage(1)
srd(SRD_WS,20,WS_BYTES)
stamp(0)
if OPT.get('ib'): A("s_barrier")
if UP>=3: issue_stage(2)
for s in range(8):
    A.wait_vm(s)
    A("s_barrier")
    stamp(1+s, 1 if s in (0,4) else 2)
    if s==0:
        for k in range(UP,3): issue_stage(k)
    if 1<=s<=5: issue_stage(s+2)
    if s==7:
        A.wait_vm('non')
    fill(FILL, 24 if s<7 else 999)
    if s==5: A.vmem(f"buffer_load_dwordx2 {vr(vN,2)}, v{vZ}, {sr(SRD_DBG,4)}, 0 offen sc1",'non')
A.wait_vm('non')
nonce_check(vN,vZ,sNon,sCnt,sU0)
if OPT['stamp']: A(f"v_writelane_b32 v{vSt}, s{sCnt}, 29")
A(f"""s_cmp_eq_u32 s{sBR}, 0
s_cbranch_scc1 L_nomask
s_cmp_gt_u32 s{sW}, 5
s_cbranch_scc1 L_nomask
v_and_b32 v{vt0}, 31, v0
v_lshrrev_b32 v{vt1}, 5, v0
v_lshlrev_b32 v{vt1}, 3, v{vt1}
v_sub_u32 v{vt0}, v{vt0}, v{vt1}
s_lshr_b32 s{sU0}, s{sW}, 1
s_lshl_b32 s{sU0}, s{sU0}, 4
s_and_b32 s{sU1}, s{sW}, 1
s_lshl_b32 s{sU1}, s{sU1}, 2
s_add_u32 s{sU0}, s{sU0}, s{sU1}
s_cmp_gt_u32 s{sW}, 3
s_cselect_b32 s{sU1}, 48, 0
s_sub_u32 s{sU0}, s{sU0}, s{sU1}
v_subrev_u32 v{vt0}, s{sU0}, v{vt0}
v_mov_b32 v{vt2}, {NEGBIG:#x}
s_mov_b32 s{sU1}, 0xfffffff1""")
for i in range(4):
    A(f"v_subrev_u32 v{Sb[0]+i}, {i}, v{vt0}\nv_and_b32 v{Sb[0]+i}, s{sU1}, v{Sb[0]+i}")
for i in range(4):
    A(f"v_cmp_eq_u32 vcc, 0, v{Sb[0]+i}\ns_nop 1\nv_cndmask_b32 v{Sb[0]+i}, v{vt2}, 0, vcc")
A(f"""s_add_u32 s{sU0}, s{sM0}, {MSK}
v_add_u32 v{vt0}, s{sU0}, v{vL16}
ds_write_b128 v{vt0}, {vr(Sb[0],4)}
s_waitcnt lgkmcnt(0)""")
A.label("L_nomask")
A("s_barrier")
if OPT['ewo']:
    A(f"s_cmp_eq_u32 s{sT0}, 0\ns_cbranch_scc1 L_noewo")
    srd(SRD_M,14,524288)
    A(f"""v_lshrrev_b32 v{vx}, 3, v0
    v_and_b32 v{vw}, 6, v{vx}
    v_xor_b32 v{vw}, v{vw}, v0
    v_and_b32 v{vw}, 7, v{vw}
    v_lshlrev_b32 v{vx}, 10, v{vx}
    v_lshl_add_u32 v{vx}, v{vw}, 4, v{vx}
    s_lshl_b32 s{sU0}, s{sW}, 16
    s_lshl_b32 s{sU1}, s{sHQ}, 7
    s_add_u32 s{sU0}, s{sU0}, s{sU1}
    s_lshl_b32 s{sU1}, s{sW}, 13""")
    for j in range(8):
        A(f"s_add_u32 m0, s{sU1}, {WOB+j*1024}")
        A(f"s_add_u32 s{sU0}, s{sU0}, 8192" if j else "s_nop 0")
        A.vmem(f"buffer_load_dwordx4 v{vx}, {sr(SRD_M,4)}, s{sU0} offen lds",'wob')
    A.label("L_noewo")
A("s_barrier")
stamp(30)
A(f"""s_cmp_eq_u32 s{sBR}, 0
s_cbranch_scc1 L_noloc
s_and_b32 s{sU0}, s{sW}, 3
s_lshr_b32 s{sU1}, s{sW}, 2
s_lshl_b32 s{sU2}, s{sU1}, 2
s_add_u32 s{sU2}, s{sU2}, s{sU0}
s_lshl_b32 s{sF0}, s{sU2}, 10
s_add_u32 s{sF0}, s{sF0}, {EAQ+2*4096}
v_add_u32 v{vx}, s{sF0}, v{vL16}
s_lshl_b32 s{sF0}, s{sU2}, 11
s_add_u32 s{sF0}, s{sF0}, {EAK+2*8192}
v_add_u32 v{vw}, s{sF0}, v{vL16}
v_add_u32 v{vEK}, s{sF0}, v{vVo}
v_add_u32 v{vEQ0}, {MSK}, v{vL16}""")
RA=dict(Sc=Sb[0],Sp=Sb[1],Oc=Oa[0],Mk=Kf[0],mx=vt0,mt=vt1,Qh=Qf[0],Kc=Qf[1],Kp=Oa[1],Vc=Vf[0],Vp=Vf[1],dst=Oa[1]+4,idx=vIdx,c=sF2)
A(f"s_mov_b32 s{sF2}, {f2u(CSCALE):#x}")
for i in range(6): A.lds(f"ds_read_b128 {vr(Kf[i],4)}, v{vEQ0} offset:{i*1024}")
A.lds(f"ds_read_b128 {vr(RA['Qh'],4)}, v{vx}")
A.lds(f"ds_read_b128 {vr(RA['Kc'],4)}, v{vw} offset:8192",'kc')
A.lds(f"ds_read_b128 {vr(RA['Kp'],4)}, v{vw}",'kp')
A(f"s_mov_b64 exec, {sr(sVM,2)}")
A.lds(f"ds_read_b128 {vr(RA['Vc'],4)}, v{vEK} offset:{8192+1024}",'v')
A.lds(f"ds_read_b128 {vr(RA['Vc']+4,4)}, v{vEK} offset:{8192+1536}",'v')
A.lds(f"ds_read_b128 {vr(RA['Vp'],4)}, v{vEK} offset:1536",'v')
A(f"""s_mov_b64 exec, -1
v_bfe_u32 v{vt2}, v0, 4, 1
v_lshl_add_u32 v{vt2}, v{vt2}, 14, v{vVo}
s_and_b32 s{sF0}, s{sW}, 1
s_lshl_b32 s{sF0}, s{sF0}, 9
v_add_u32 v{vt2}, s{sF0}, v{vt2}
s_lshl_b32 s{sF0}, s{sR2}, 2
s_add_u32 s{sF0}, s{sF0}, s{sU1}
s_add_u32 s{sF0}, s{sF0}, 2
s_lshl_b32 s{sF0}, s{sF0}, 5
s_lshl_b32 s{sF1}, s{sHG}, 1
s_add_u32 s{sF0}, s{sF0}, s{sF1}
s_lshr_b32 s{sF1}, s{sU0}, 1
s_add_u32 s{sF0}, s{sF0}, s{sF1}
s_lshl_b32 s{sF0}, s{sF0}, 10
s_add_u32 s{sF0}, s{sF0}, {WS_OFA}""")
loc_unit(RA)
A.vmem(f"buffer_store_dwordx4 {vr(RA['dst'],4)}, v{vt2}, {sr(SRD_WS,4)}, s{sF0} offen sc1")
for i in range(16): A(f"v_mov_b32 v{Oa[0]+i}, 0")
for i in range(8): A(f"v_mov_b32 v{Oa[1]+i}, 0")
A.label("L_noloc")
A(f"v_mov_b32 v{vEK}, 1")
PM=(1<<33)-1
A(f"s_mov_b32 s{sX0}, {0x1ff if OPT.get('tp') else -1}\ns_mov_b32 s{sX0+1}, {0 if OPT.get('tp') else 1}")
if OPT.get('ap')==1: pass
elif OPT.get('ap')==2: A(f"s_cmp_gt_u32 s{sW}, 3\ns_cbranch_scc1 L_nf2")
else: A(f"s_cmp_lg_u32 s{sW}, 0\ns_cbranch_scc1 L_nf2")
A(f"s_mov_b64 exec, {sr(sX0,2)}")
if OPT['pp']: poll_pipe(Sb[1],vFl,sFGr,sCnt,sNon)
else:
    poll_issue(vP,vFl,sFGr)
    poll_check(vP,vFl,sFGr,sCnt,sNon)
A(f"s_mov_b64 exec, -1\nds_write_b32 v{vLF}, v{vIdx} offset:32\ns_branch L_nf3")
A.label("L_nf2")
lds_word_spin(vt0,vLF,32,sCnt,sU0)
A.label("L_nf3")
A.vm=[]
if OPT.get('idle'):
    for _ in range(OPT['idle']): A("s_sleep 16")
stamp(16,2)
if OPT.get('rep'):
    A(f"s_mov_b32 s{sF2}, {OPT['rep']}")
    A.label("L_rep")
    A("s_nop 15")
    for d in range(2):
        for i in range(16): A(f"v_mov_b32 v{Oa[d]+i}, 0")
A.vmem(f"buffer_load_dwordx4 {vr(Qf[0],4)}, v{vL16}, {sr(SRD_WS,4)}, s{sQ0} offen sc1")
kv_load(0)
A.vmem(f"buffer_load_dwordx4 {vr(Qf[1],4)}, v{vL16}, {sr(SRD_WS,4)}, s{sQ1} offen sc1",'q1')
kv_load(1)
stamp(17)
A(f"s_setprio {PRIO0}")
A.wait_vm('q1')
QK(0)
A("s_nop 11")
for u in range(NU): unit(u)
A("s_nop 1")
PV(NU-1,1)
if OPT.get('rep'):
    A(f"s_sub_u32 s{sF2}, s{sF2}, 1\ns_cmp_lg_u32 s{sF2}, 0\ns_cbranch_scc1 L_rep")
if OPT.get('spin'):
    A(f"s_mov_b32 s{sF2}, {OPT['spin']}")
    A.label("L_spin")
    A(f"s_sub_u32 s{sF2}, s{sF2}, 1\ns_cmp_lg_u32 s{sF2}, 0\ns_cbranch_scc1 L_spin")
stamp(23)
A("s_setprio 3")
vR=Sb[0]; vRa=Sb[1]
A(f"""s_mul_i32 s{sU0}, s{sW}, 2304
s_add_u32 s{sU0}, s{sU0}, {RED}
v_add_u32 v{vRa}, s{sU0}, v{vL16}
v_lshlrev_b32 v{vRa+1}, 2, v0
v_add_u32 v{vRa+1}, s{sU0}, v{vRa+1}
s_xor_b32 s{sU1}, s{sW}, 1
s_mul_i32 s{sU1}, s{sU1}, 2304
s_add_u32 s{sU1}, s{sU1}, {RED}
v_add_u32 v{vEK}, s{sU1}, v{vL16}
v_lshlrev_b32 v{vRa+3}, 2, v0
v_add_u32 v{vRa+3}, s{sU1}, v{vRa+3}""")
A.lds(f"ds_write_b128 v{vRa}, {vr(Oa[1],4)}")
A.lds(f"ds_write_b128 v{vRa}, {vr(Oa[1]+4,4)} offset:1024")
A.lds(f"ds_write_b32 v{vRa+1}, v{Oa[1]+8} offset:2048")
A(f"""v_bfe_u32 v{vRa+4}, v0, 4, 1
v_lshlrev_b32 v{vRa+4}, 14, v{vRa+4}
v_add_u32 v{vRa+4}, v{vRa+4}, v{vVo}
s_and_b32 s{sU0}, s{sE}, 1
s_lshl_b32 s{sU0}, s{sU0}, 9
v_add_u32 v{vRa+4}, s{sU0}, v{vRa+4}""")
A.wait_lg_all()
A("s_barrier")
stamp(24)
A.lds(f"ds_read_b32 v{vR+8}, v{vRa+3} offset:2048",'r2')
A.lds(f"ds_read_b128 {vr(vR,4)}, v{vEK}",'r0')
A.lds(f"ds_read_b128 {vr(vR+4,4)}, v{vEK} offset:1024",'r1')
A.wait_lg('r2')
A(f"""v_add_f32 v{Oa[0]+8}, v{Oa[0]+8}, v{vR+8}
v_cmp_nle_f32 vcc, s{sLo}, v{Oa[0]+8}
v_cmp_nge_f32 {sr(sX0,2)}, s{sHi}, v{Oa[0]+8}""")
A.wait_lg('r0')
for i in range(4): A(f"v_add_f32 v{Oa[0]+i}, v{Oa[0]+i}, v{vR+i}")
A.wait_lg('r1')
for i in range(4,8): A(f"v_add_f32 v{Oa[0]+i}, v{Oa[0]+i}, v{vR+i}")
A(f"""s_or_b64 vcc, vcc, {sr(sX0,2)}
s_cmp_lg_u64 vcc, 0
s_cbranch_scc1 L_fallback""")
A.label("L_norm")
A(f"v_rcp_f32 v{vR+9}, v{Oa[0]+8}\ns_nop 0")
for i in range(8): A(f"v_mul_f32 v{Oa[0]+i}, v{Oa[0]+i}, v{vR+9}")
for i in range(4): A(f"v_cvt_pk_bf16_f32 v{vR+i}, v{Oa[0]+2*i}, v{Oa[0]+2*i+1}")
A.vmem(f"buffer_store_dwordx4 {vr(vR,4)}, v{vRa+4}, {sr(SRD_WS,4)}, s{sOst} offen sc1")
VB=Alloc(vBig,168)
Of=[VB.take(4,4) for _ in range(8)]
Wf=[[VB.take(4,4) for _ in range(4)] for _ in range(6)]
Ac=[VB.take(4,4) for _ in range(4)]
vWA=[vx,vw,vt2,vt3]; vOo=vEQ0; vXw=vEK; vXr=vEV
wo_tr_addr(vx,vt0,vt1)
A(f"""s_lshr_b32 s{sU2}, s{sW}, 2
s_lshl_b32 s{sU0}, s{sU2}, 15
s_lshl_b32 s{sU1}, s{sU2}, 6
v_add_u32 v{vx}, s{sU0}, v{vx}
v_xor_b32 v{vx}, s{sU1}, v{vx}
v_xor_b32 v{vw}, 32, v{vx}
v_xor_b32 v{vt2}, 64, v{vx}
v_xor_b32 v{vt3}, 96, v{vx}""")
assert WOB==0
def wo_read(hp_, slotset):
    for c in range(4):
        A.lds(f"ds_read_b64_tr_b16 {vr(Wf[slotset][c],2)}, v{vWA[c]} offset:{hp_*4096}",('wo',hp_))
        A.lds(f"ds_read_b64_tr_b16 {vr(Wf[slotset][c]+2,2)}, v{vWA[c]} offset:{hp_*4096+1024}",('wo',hp_))
wo_read(0,0)
A(f"""v_and_b32 v{vFl}, 15, v0
v_lshlrev_b32 v{vOo}, 11, v{vFl}
v_lshlrev_b32 v{vFl}, 7, v{vFl}
v_lshrrev_b32 v{vt0}, 4, v0
v_lshl_add_u32 v{vOo}, v{vt0}, 3, v{vOo}
s_xor_b32 s{sU1}, s{sW}, 5
s_mul_i32 s{sU1}, s{sU1}, 2304
s_add_u32 s{sU1}, s{sU1}, {RED}
v_add_u32 v{vXr}, s{sU1}, v{vL16}""")
A.wait_lg_all(); wo_read(1,1)
A(f"v_mov_b32 v{vt0}, {LF}\nv_mov_b32 v{vt1}, 1")
A.wait_vm_all()
if OPT.get('ow'): A.vmem(f"buffer_load_dword v{vN-1 if False else vIdx}, v{vRa+4}, {sr(SRD_WS,4)}, s{sOst} offen sc1")
A("s_mov_b64 exec, 1")
A.lds(f"ds_add_rtn_u32 v{vP}, v{vt0}, v{vt1} offset:40",'cnt')
A("s_mov_b64 exec, -1")
A.wait_lg('cnt')
A(f"""v_readfirstlane_b32 s{sU0}, v{vP}
s_cmp_lg_u32 s{sU0}, 7
s_cbranch_scc1 L_nl1""")
flag_store(vN,vZ,sFOw)
if not OPT['pp']: poll_issue(vP,vFl,sFOr,0xff)
A.label("L_nl1")
stamp(25)
for i in range(2,6):
    A.wait_lg_all(); wo_read(i,i)
A.wait_lg_all()
if OPT.get('dual',1):
    A(f"""s_lshr_b32 s{sU1}, s{sW}, 2
    s_lshl_b32 s{sU2}, s{sU1}, 9
    s_add_u32 s{sFOr}, s{sFOr}, s{sU2}
    s_lshl_b32 s{sU1}, s{sU1}, 4
    v_add_u32 v{vt0}, s{sU1}, v{vt0}
    s_and_b32 s{sU0}, s{sW}, 3
    s_cmp_lg_u32 s{sU0}, 0
    s_cbranch_scc1 L_nl2""")
    A("s_mov_b64 exec, 0xf"); poll_pipe(Ac[0],vFl,sFOr,sCnt,sNon); A("s_mov_b64 exec, -1")
else:
    A(f"s_cmp_lg_u32 s{sU0}, 7\ns_cbranch_scc1 L_nl2")
    A("s_mov_b64 exec, 0xff"); poll_pipe(Ac[0],vFl,sFOr,sCnt,sNon); A("s_mov_b64 exec, -1")
A(f"ds_write_b32 v{vt0}, v{vt1} offset:36\ns_branch L_nl3")
A.label("L_nl2")
lds_word_spin(vP,vt0,36,sCnt,sU1)
A.label("L_nl3")
A.vm=[]
stamp(26)
for i in range(8):
    if i==4: A(f"s_add_u32 s{sOld}, s{sOld}, 4096")
    A.vmem(f"buffer_load_dwordx4 {vr(Of[i],4)}, v{vL16}, {sr(SRD_WS,4)}, s{sOld} offen offset:{(i%4)*1024} sc1",('of',i))
A.wait_lg_all()
for i in range(8):
    A.wait_vm(('of',i))
    if i>=6: A.wait_lg(('wo',i))
    for c in range(4):
        A(f"v_mfma_f32_16x16x32_bf16 {vr(Ac[c],4)}, {vr(Wf[i%6][c],4)}, {vr(Of[i],4)}, {'0' if i==0 else vr(Ac[c],4)}")
    if i<2:
        A.wait_lg_all(); wo_read(6+i,i)
stamp(28,2)
A("s_nop 7")
A.lds(f"ds_write_b128 v{vXw}, {vr(Ac[2],4)}")
A.lds(f"ds_write_b128 v{vXw}, {vr(Ac[3],4)} offset:1024")
A.wait_lg_all()
A("s_barrier")
A.lds(f"ds_read_b128 {vr(Ac[2],4)}, v{vXr}",'x0')
A.lds(f"ds_read_b128 {vr(Ac[3],4)}, v{vXr} offset:1024",'x1')
for c in range(2):
    A.wait_lg(f'x{c}')
    for i in range(4): A(f"v_add_f32 v{Ac[c]+i}, v{Ac[c]+i}, v{Ac[2+c]+i}")
    A(f"v_cvt_pk_bf16_f32 v{Ac[c]}, v{Ac[c]}, v{Ac[c]+1}\nv_cvt_pk_bf16_f32 v{Ac[c]+1}, v{Ac[c]+2}, v{Ac[c]+3}")
    A.vmem(f"buffer_store_dwordx2 {vr(Ac[c],2)}, v{vOo}, {sr(SRD_OUT,4)}, s{sOut} offen offset:{c*32}{OSB}")
stamp(27)
if 'amp' in OPT:
    A(f"""s_memrealtime s[96:97]
    s_sub_u32 s94, s94, s100
    s_mul_i32 s94, s94, {OPT.get('ampk',3)}
    s_min_u32 s94, s94, 20000
    s_waitcnt lgkmcnt(0)""")
    A.label("L_amp")
    A(f"""s_memrealtime s[98:99]
    s_waitcnt lgkmcnt(0)
    s_sub_u32 s98, s98, s96
    s_cmp_lt_u32 s98, s94
    s_cbranch_scc1 L_amp""")
stamp_out(vt0)
A("s_endpgm")

A.label("L_fallback"); A.reset()
fC=Oa[1]; fM=vt0; fT=vt1; fS=Kf[0]
fK=Kf[4]; fV=Vf[0]
A(f"""s_lshl_b32 s{sU0}, s{sKH}, 11
s_sub_u32 s{sU2}, s{sKVb}, s{sU0}
s_mov_b32 s{sOff}, s{sU2}
s_mov_b32 s{sCnt}, 0
v_mov_b32 v{fM}, {NEGBIG:#x}""")
A.label("L_fb1")
A(f"""buffer_load_dwordx4 {vr(fK,4)}, v{vKp}, {sr(SRD_WS,4)}, s{sOff} offen sc1
s_waitcnt vmcnt(0)
v_mfma_f32_32x32x16_bf16 {vr(fS,16)}, {vr(fK,4)}, {vr(Qf[0],4)}, 0
s_add_u32 s{sOff}, s{sOff}, 2048
s_add_u32 s{sCnt}, s{sCnt}, 1
s_nop 11""")
for i in range(8): A(f"v_max3_f32 v{fM}, v{fM}, v{fS+2*i}, v{fS+2*i+1}")
A(f"""s_cmp_lt_u32 s{sCnt}, 64
s_cbranch_scc1 L_fb1
v_mov_b32 v{fT}, v{fM}
s_nop 1
v_permlane32_swap_b32 v{fM}, v{fT}
s_nop 1
v_max_f32 v{fM}, v{fM}, v{fT}""")
for i in range(16): A(f"v_sub_f32 v{fC+i}, 0, v{fM}")
for i in range(16): A(f"v_mov_b32 v{Oa[0]+i}, 0")
A(f"""s_mov_b32 s{sOff}, s{sU2}
s_mov_b32 s{sCnt}, 0""")
A.label("L_fb2")
A(f"""buffer_load_dwordx4 {vr(fK,4)}, v{vKp}, {sr(SRD_WS,4)}, s{sOff} offen sc1
s_mov_b64 exec, {sr(sVM,2)}
buffer_load_dwordx4 {vr(fV,4)}, v{vVo}, {sr(SRD_WS,4)}, s{sOff} offen offset:1024 sc1
buffer_load_dwordx4 {vr(fV+4,4)}, v{vVo}, {sr(SRD_WS,4)}, s{sOff} offen offset:1536 sc1
s_mov_b64 exec, -1
s_waitcnt vmcnt(0)
v_mfma_f32_32x32x16_bf16 {vr(fS,16)}, {vr(fK,4)}, {vr(Qf[0],4)}, {vr(fC,16)}
s_add_u32 s{sOff}, s{sOff}, 2048
s_add_u32 s{sCnt}, s{sCnt}, 1
s_nop 11""")
for i in range(16): A(f"v_exp_f32 v{fS+i}, v{fS+i}")
A(f"""s_nop 1
v_smfmac_f32_32x32x32_bf16 {vr(Oa[0],16)}, {vr(fV,4)}, {vr(fS,8)}, v{vIdx}
v_smfmac_f32_32x32x32_bf16 {vr(Oa[0],16)}, {vr(fV+4,4)}, {vr(fS+8,8)}, v{vIdx}
s_cmp_lt_u32 s{sCnt}, 64
s_cbranch_scc1 L_fb2
s_nop 15
s_branch L_norm""")

A.label("L_aux")
A.reset()
VX=Alloc(2,168)
xt0=VX.take(); xt1=VX.take(); xt2=VX.take(); xZ=VX.take(); xN=VX.take(2,2)
xL16=VX.take(); xVo=VX.take()
xBig=VX.mark()
va=[[VX.take() for _ in range(4)] for _ in range(2)]; vwa=[VX.take() for _ in range(2)]
vKpos=VX.take(); vV1=VX.take(); gDum=VX.take(); gPW=VX.take(); gLF=VX.take()
acc=[VX.take(16,4) for _ in range(6)]
xf=[[VX.take(4,4) for _ in range(2)] for _ in range(2)]
wf=[VX.take(4,4) for _ in range(4)]
xf.append([VX.take(4,4) for _ in range(2)])
sT=sA0; sC=sA0+24; sV0=sA0+2; sV1=sA0+3; sNx=sA0+4; sCx=sA0+6; sVMx=sA0+8; sV2=sA0+11; sV3=sA0+12
sB0=sA0+13; sB1=sA0+14; sB2=sA0+15; sHa=sA0+16; sHf=sA0+17; sTT=sA0+18; sRP=sA0+22; sJ=sA0+23; sG0=sA0+19; sG1=sA0+20
A(f"""s_setprio 3
s_sub_u32 s{sT}, s{sW}, 8
s_and_b32 s{sRP}, s{sT}, 1
s_lshr_b32 s{sJ}, s{sT}, 1
v_mov_b32 v{xZ}, 0
s_waitcnt lgkmcnt(0)""")
srd(SRD_WS,20,WS_BYTES); srd(SRD_DBG,18,256)
if OPT.get('ib'): A("s_barrier")
A(f"""s_add_u32 s{sV0}, s2, s{sT}
s_cmp_lg_u32 s{sV0}, 0
s_cbranch_scc1 L_nonon
s_mov_b32 s{sV0}, {WS_EPOCH}
s_mov_b64 exec, 1
buffer_load_dwordx2 {vr(xN,2)}, v{xZ}, {sr(SRD_WS,4)}, s{sV0} offen sc1
s_waitcnt vmcnt(0)
v_add_u32 v{xN}, 2, v{xN}
v_or_b32 v{xN}, 1, v{xN}
v_or_b32 v{xN+1}, 0x80000000, v{xN+1}
buffer_store_dwordx2 {vr(xN,2)}, v{xZ}, {sr(SRD_DBG,4)}, 0 offen sc1
buffer_store_dwordx2 {vr(xN,2)}, v{xZ}, {sr(SRD_WS,4)}, s{sV0} offen sc1
s_mov_b64 exec, -1""")
A.label("L_nonon")
stamp(0)
if OPT.get('pf',0):
    A(f"""s_cmp_eq_u32 s{sBR}, 0
    s_cselect_b32 s{SRD_X}, s10, s4
    s_cselect_b32 s{SRD_X+1}, s11, s5
    s_cselect_b32 s{SRD_W}, s12, s6
    s_cselect_b32 s{SRD_W+1}, s13, s7
    s_mov_b32 s{SRD_X+2}, 2097152
    s_mov_b32 s{SRD_X+3}, 0x00020000
    s_mov_b32 s{SRD_W+2}, 1572864
    s_mov_b32 s{SRD_W+3}, 0x00020000
    v_lshlrev_b32 v{xt0}, 7, v0
    v_lshrrev_b32 v{xt1}, 2, v0
    v_mul_u32_u24 v{xt1}, 3072, v{xt1}
    v_and_b32 v{xt2}, 3, v0
    v_lshl_add_u32 v{xt1}, v{xt2}, 7, v{xt1}""")
    if OPT['m']==2:
        A(f"""s_and_b32 s{sV0}, s{sR2}, 8
        s_lshl_b32 s{sV0}, s{sV0}, 17
        s_mov_b32 s{sV2}, s{sT1}
        s_mul_i32 s{sV1}, s{sV2}, 49152""")
    else:
        A(f"""s_lshr_b32 s{sV2}, s{sT1}, 3
        s_lshl_b32 s{sV2}, s{sV2}, 2
        s_and_b32 s{sV0}, s{sT1}, 3
        s_add_u32 s{sV2}, s{sV2}, s{sV0}
        s_and_b32 s{sV0}, s2, 6
        s_lshl_b32 s{sV0}, s{sV0}, 18
        s_mul_i32 s{sV1}, s{sV2}, 98304""")
    A(f"""s_lshl_b32 s{sV2}, s{sV2}, 15
    s_add_u32 s{sV0}, s{sV0}, s{sV2}
    s_lshl_b32 s{sV2}, s{sT}, 13
    s_add_u32 s{sV0}, s{sV0}, s{sV2}
    s_and_b32 s{sV2}, s2, 1
    s_lshl_b32 s{sV2}, s{sV2}, 9
    s_add_u32 s{sV1}, s{sV1}, s{sV2}
    s_lshl_b32 s{sV2}, s{sT}, 10
    s_add_u32 s{sV1}, s{sV1}, s{sV2}
    {"s_sleep "+str(OPT['pfd']) if OPT.get('pfd') else ""}
    buffer_load_dword v{gDum}, v{xt0}, {sr(SRD_X,4)}, s{sV0} offen
    s_cmp_eq_u32 s{sT}, 3
    s_cbranch_scc1 L_pfd
    buffer_load_dword v{gDum}, v{xt1}, {sr(SRD_W,4)}, s{sV1} offen""")
    if OPT['m']==1:
        A(f"s_add_u32 s{sV1}, s{sV1}, 49152\nbuffer_load_dword v{gDum}, v{xt1}, {sr(SRD_W,4)}, s{sV1} offen")
    A.label("L_pfd")
A(f"""v_mov_b32 v{gLF}, {LF}
v_lshl_add_u32 v{xt0}, v0, 2, v{gLF}
ds_write_b32 v{xt0}, v{xZ}
v_and_b32 v{xt0}, 31, v0
v_lshrrev_b32 v{xt1}, 5, v0
v_bfe_u32 v{xt2}, v0, 1, 3
v_xor_b32 v{xt2}, v{xt2}, v{xt1}
v_lshlrev_b32 v{xt2}, 4, v{xt2}
v_lshl_add_u32 v{xt2}, v{xt0}, 7, v{xt2}
s_lshl_b32 s{sV0}, s{sRP}, 13
s_add_u32 s{sV0}, s{sV0}, {LXO}
v_add_u32 v{va[0][0]}, s{sV0}, v{xt2}""")
for s in range(1,4): A(f"v_xor_b32 v{va[0][s]}, {32*s}, v{va[0][0]}")
for s in range(4): A(f"v_add_u32 v{va[1][s]}, {2*SL}, v{va[0][s]}")
A(f"""v_bfe_u32 v{xt2}, v0, 2, 2
v_lshl_add_u32 v{xt2}, v{xt1}, 3, v{xt2}
v_lshlrev_b32 v{xt2}, 7, v{xt2}
v_bfe_u32 v{vV1}, v0, 4, 1
v_lshl_add_u32 v{xt2}, v{vV1}, 5, v{xt2}
v_and_b32 v{vwa[0]}, 3, v0
v_lshl_add_u32 v{xt2}, v{vwa[0]}, 3, v{xt2}
v_bfe_u32 v{vwa[0]}, v0, 3, 1
v_lshl_add_u32 v{vwa[0]}, v{vwa[0]}, 6, v{xt2}
s_lshl_b32 s{sV0}, s{sJ}, 6
v_xor_b32 v{vwa[0]}, s{sV0}, v{vwa[0]}
v_add_u32 v{vwa[1]}, {2*SL}, v{vwa[0]}
v_and_b32 v{vKpos}, 0x33, v0
v_bfe_u32 v{xt2}, v0, 2, 1
v_lshl_add_u32 v{vKpos}, v{xt2}, 3, v{vKpos}
v_bfe_u32 v{xt2}, v0, 3, 1
v_lshl_add_u32 v{vKpos}, v{xt2}, 2, v{vKpos}
v_lshlrev_b32 v{vKpos}, 4, v{vKpos}
v_and_b32 v{xt2}, 15, v0
v_lshlrev_b32 v{xt2}, 4, v{xt2}
v_lshl_add_u32 v{xVo}, v{xt1}, 8, v{xt2}
v_lshlrev_b32 v{xL16}, 4, v0
s_mov_b32 s{sC}, {f2u(CSCALE):#x}
s_mov_b32 s{sC+1}, {f2u(CSCALE):#x}
s_mov_b32 s{sVMx}, 0x0000ffff
s_mov_b32 s{sVMx+1}, 0x0000ffff
s_lshl_b32 s{sTT}, s{sR2}, 1
s_add_u32 s{sTT}, s{sTT}, s{sRP}
s_lshl_b32 s{sTT}, s{sTT}, 1
s_lshl_b32 s{sHf}, s{sHG}, 4
s_add_u32 s{sHf}, s{sHf}, s{sR2}""")
if OPT['pfc']:
    A(f"s_getpc_b64 {sr(sNx,2)}")
    A.label("L_pc")
    A(f"""s_sub_u32 s{sNx}, s{sNx}, L_pc-{NAME}
    s_subb_u32 s{sNx+1}, s{sNx+1}, 0
    s_lshl_b32 s{sV0}, s{sT}, 13
    s_mov_b32 s{sV1}, L_codeend-{NAME}-4
    v_lshlrev_b32 v{xt2}, 7, v0
    v_add_u32 v{xt2}, s{sV0}, v{xt2}
    v_min_u32 v{xt2}, s{sV1}, v{xt2}""")
PARTS=(1,2,0)
def rd_x(n,r):
    if n>=32: return
    s,ks=divmod(n,4); slot=(s+1)%3
    A.lds(f"ds_read_b128 {vr(xf[n%2][r],4)}, v{va[slot//2][ks]} offset:{(slot%2)*SL+r*4096}", ('x',n,r))
def rd_w(n,c):
    if n>=32: return
    s,ks=divmod(n,4); slot=(s+1)%3; p=PARTS[c]
    o=(slot%2)*SL+p*8192+ks*2048
    A.lds(f"ds_read_b64_tr_b16 {vr(wf[c],2)}, v{vwa[slot//2]} offset:{o}", ('w',n,c))
    A.lds(f"ds_read_b64_tr_b16 {vr(wf[c]+2,2)}, v{vwa[slot//2]} offset:{o+512}", ('w',n,c))
def pw_prefetch():
    Lp=A.newlabel('L_npw')
    srd(SRD_M,14,524288); srd(SRD_XA,8,524288)
    am=OPT.get('amap',4)
    A(f"""s_and_b32 s{sV0}, s2, { {4:1,2:3,1:7}[am] }
    s_xor_b32 s{sV0}, s{sV0}, { {4:0,2:1,1:3}[am] }
    s_add_u32 s{sV0}, s{sV0}, s{sT}
    s_cmp_lg_u32 s{sV0}, 0
    s_cbranch_scc1 {Lp}
    s_lshl_b32 s{sV0}, s{sT1}, 14
    s_add_u32 s{sV0}, s{sV0}, 384
    v_lshlrev_b32 v{gPW}, 10, v0
    s_mov_b64 exec, 0xffff
    buffer_load_dword v{gDum}, v{gPW}, {sr(SRD_M,4)}, s{sV0} offen
    buffer_load_dword v{gDum}, v{gPW}, {sr(SRD_XA,4)}, s{sV0} offen
    s_mov_b64 exec, -1""")
    A.label(Lp)
QD=OPT.get('qd',20)
def g_step(n, SN=0):
    s,ks=divmod(n,4)
    cur=n<SN; nxt=n+1<SN
    if ks==3 and s<7 and not nxt:
        if cur:
            for c in range(3): rd_w(n,c)
            rd_x(n,0); rd_x(n,1); cur=False
        A.wait_lg_all()
        A("s_barrier")
    for c in range(3 if n<QD else 2):
        if cur:
            if c==0: rd_x(n,0); rd_x(n,1)
            rd_w(n,c)
        for r in range(2):
            A.wait_lg([('x',n,r),('w',n,c)])
            a_=acc[2*c+r]; C="0" if n==0 else vr(a_,16)
            if c==1: A(f"v_mfma_f32_32x32x16_bf16 {vr(a_,16)}, {vr(xf[n%2][r],4)}, {vr(wf[c],4)}, {C}")
            else: A(f"v_mfma_f32_32x32x16_bf16 {vr(a_,16)}, {vr(wf[c],4)}, {vr(xf[n%2][r],4)}, {C}")
            if not nxt:
                if r==0 and c<2: rd_x(n+1,c)
                if r==1 and not (c==2 and n+1>=QD): rd_w(n+1,c)
    if ks==3 and s<7 and nxt:
        A.wait_lg_all()
        A("s_barrier")
    if n==OPT.get('pwn',18): pw_prefetch()
    if n==22: A.vmem(f"buffer_load_dwordx2 {vr(xN,2)}, v{xZ}, {sr(SRD_DBG,4)}, 0 offen sc1",'non')
def q_rd(m):
    if m>=32: return
    s,ks=divmod(m,4); slot=(s+1)%3; b=(m+1)%3
    o=(slot%2)*SL+ks*2048
    W=(wf[2],wf[3],wf[0])[b]
    for r in range(2): A.lds(f"ds_read_b128 {vr(xf[(2,0,1)[b]][r],4)}, v{va[slot//2][ks]} offset:{(slot%2)*SL+r*4096}", ('qx',m,r))
    A.lds(f"ds_read_b64_tr_b16 {vr(W,2)}, v{vwa[slot//2]} offset:{o}", ('qw',m))
    A.lds(f"ds_read_b64_tr_b16 {vr(W+2,2)}, v{vwa[slot//2]} offset:{o+512}", ('qw',m))
def q_phase(fillers):
    q_rd(QD+1)
    per=4
    for m in range(QD,32):
        b=(m+1)%3; W=(wf[2],wf[3],wf[0])[b]
        A.wait_lg(('qw',m))
        for r in range(2):
            A(f"v_mfma_f32_32x32x16_bf16 {vr(acc[4+r],16)}, {vr(W,4)}, {vr(xf[(2,0,1)[b]][r],4)}, {vr(acc[4+r],16)}")
            if r==0: q_rd(m+2)
            for _ in range(per):
                if fillers: fillers.pop(0)()
    while fillers: fillers.pop(0)()
    A.wait_lg_all()
    A("s_barrier")
def I(l): return lambda: A(l)
def Vm(l): return lambda: A.vmem(l)
def packf(a): return [I(f"v_cvt_pk_bf16_f32 v{a+i}, v{a+2*i}, v{a+2*i+1}") for i in range(8)]
def pack16(dst, a, scale=False):
    if scale:
        for i in range(0,16,2): A(f"v_pk_mul_f32 {vr(a+i,2)}, {vr(a+i,2)}, {sr(sC,2)}")
    for i in range(8): A(f"v_cvt_pk_bf16_f32 v{dst+i}, v{a+2*i}, v{a+2*i+1}")
A.wait_lg_all()
A("s_barrier")
if OPT.get('adel'):
    A(f"s_cmp_eq_u32 s{sBR}, 0\ns_cbranch_scc1 L_nodel")
    for _ in range(OPT['adel']): A("s_sleep 16")
    A.label("L_nodel")
assert (QD+1)%3==0
def g_all(SN):
    if SN==0: rd_x(0,0); rd_w(0,0); rd_x(0,1); rd_w(0,1); rd_w(0,2)
    for n in range(32):
        g_step(n,SN)
        if n==30: q_rd(QD)
    stamp(9)
SA=OPT.get('sa',0)
if SA:
    A(f"s_cmp_lg_u32 s{sBR}, 0\ns_cbranch_scc1 L_ga")
g_all(0)
SVL=list(A.lg); SVV=list(A.vm)
if not SA: A(f"s_cmp_lg_u32 s{sBR}, 0\ns_cbranch_scc1 L_epa")
SC=' sc1'
A(f"""s_lshl_b32 s{sV0}, s{sTT}, 11
s_lshl_b32 s{sV1}, s{sJ}, 18
s_add_u32 s{sV0}, s{sV0}, s{sV1}
s_lshl_b32 s{sV1}, s{sHK}, 19
s_add_u32 s{sB0}, s{sV0}, s{sV1}
s_add_u32 s{sG0}, s{sB0}, 131072
s_lshl_b32 s{sV1}, s{sHV}, 19
s_add_u32 s{sB1}, s{sV0}, s{sV1}
s_lshr_b32 s{sB2}, s{sV0}, 1
s_lshl_b32 s{sV1}, s{sHG}, 18
s_add_u32 s{sB2}, s{sB2}, s{sV1}
s_add_u32 s{sB2}, s{sB2}, {WS_Q}
s_add_u32 s{sG1}, s{sB2}, 65536
v_lshl_add_u32 v{xt0}, v{vV1}, 17, v{xVo}""")
F=[]
for r in range(2):
    K=acc[r]; F+=packf(K)
    F.append(Vm(f"buffer_store_dwordx4 {vr(K,4)}, v{xL16}, {sr(SRD_WS,4)}, s{sB0} offen offset:{r*2048}{SC}"))
    F.append(Vm(f"buffer_store_dwordx4 {vr(K+4,4)}, v{xL16}, {sr(SRD_WS,4)}, s{sG0} offen offset:{r*2048}{SC}"))
for r in range(2):
    V=acc[2+r]; F+=packf(V)
    F.append(Vm(f"buffer_store_dwordx4 {vr(V,4)}, v{xt0}, {sr(SRD_WS,4)}, s{sB1} offen offset:{r*2048+1024}{SC}"))
    F.append(Vm(f"buffer_store_dwordx4 {vr(V+4,4)}, v{xt0}, {sr(SRD_WS,4)}, s{sB1} offen offset:{r*2048+1536}{SC}"))
q_phase(F)
A("s_nop 9")
for r in range(2):
    Q=acc[4+r]; pack16(Q,Q,True)
    A.vmem(f"buffer_store_dwordx4 {vr(Q,4)}, v{xL16}, {sr(SRD_WS,4)}, s{sB2} offen offset:{r*1024}{SC}")
    A.vmem(f"buffer_store_dwordx4 {vr(Q+4,4)}, v{xL16}, {sr(SRD_WS,4)}, s{sG1} offen offset:{r*1024}{SC}")
stamp(10,2)
A.wait_vm('non')
nonce_check(xN,xZ,sNx,sCx,sV1)
A(f"""s_lshl_b32 s{sHf}, s{sHf}, 7
s_add_u32 s{sHf}, s{sHf}, {WS_FG}""")
A.wait_vm_all()
stamp(11,2)
A("s_barrier")
A(f"s_cmp_lg_u32 s{sT}, 0\ns_cbranch_scc1 L_wo")
flag_store(xN,xZ,sHf)
A("s_branch L_wo")
if SA:
    A.label("L_ga"); A.reset(); g_all(SA)
else:
    A.label("L_epa"); A.reset(); A.vm=list(SVV); A.lg=list(SVL)
A(f"""s_lshl_b32 s{sV0}, s{sRP}, 14
s_lshl_b32 s{sV1}, s{sJ}, 12
s_add_u32 s{sV2}, s{sV0}, s{sV1}
s_add_u32 s{sV0}, s{sV2}, {EAK+8192}
v_add_u32 v{xt1}, s{sV0}, v{vKpos}
v_lshl_add_u32 v{xt0}, v{vV1}, 11, v{xVo}
v_add_u32 v{xt2}, s{sV0}, v{xt0}
s_lshl_b32 s{sHa}, s{sHf}, 13
s_add_u32 s{sHa}, s{sHa}, {WS_HA}
s_add_u32 s{sV1}, s{sV1}, s{sHa}
s_lshl_b32 s{sHf}, s{sHf}, 1
s_add_u32 s{sHf}, s{sHf}, s{sJ}
s_lshl_b32 s{sHf}, s{sHf}, 7
s_add_u32 s{sHf}, s{sHf}, {WS_FH}""")
F=packf(acc[1])+packf(acc[3])
F.append(I(f"""s_cmp_lg_u32 s{sRP}, 1
s_cbranch_scc1 L_noha
buffer_store_dwordx4 {vr(acc[1],4)}, v{vKpos}, {sr(SRD_WS,4)}, s{sV1} offen sc1
buffer_store_dwordx4 {vr(acc[1]+4,4)}, v{vKpos}, {sr(SRD_WS,4)}, s{sV1} offen offset:2048 sc1
buffer_store_dwordx4 {vr(acc[3]+4,4)}, v{xt0}, {sr(SRD_WS,4)}, s{sV1} offen offset:1536 sc1
L_noha:"""))
F+=packf(acc[0])+packf(acc[2])
q_phase(F)
for r in range(2):
    A.lds(f"ds_write_b128 v{xt1}, {vr(acc[r],4)} offset:{r*8192}")
    A.lds(f"ds_write_b128 v{xt1}, {vr(acc[r]+4,4)} offset:{r*8192+2048}")
    A.lds(f"ds_write_b128 v{xt2}, {vr(acc[2+r],4)} offset:{r*8192+1024}")
    A.lds(f"ds_write_b128 v{xt2}, {vr(acc[2+r]+4,4)} offset:{r*8192+1536}")
A(f"s_lshr_b32 s{sV0}, s{sV2}, 1\ns_add_u32 s{sV0}, s{sV0}, {EAQ}\nv_add_u32 v{xt1}, s{sV0}, v{xL16}")
for r in range(2):
    pack16(acc[4+r],acc[4+r])
    for e in range(2): A.lds(f"ds_write_b128 v{xt1}, {vr(acc[4+r]+4*e,4)} offset:{r*4096+e*1024}")
A.wait_lg_all()
A("s_barrier")
Mk=acc[0]; Sc=acc[2]; Sp=acc[3]; Oc=acc[4]; T5=acc[5]
Qh=T5; Kc=T5+4; Kp=T5+8; dstp=T5+12; Vc=xf[0][0]; Vp=xf[1][0]; FL=wf[0]
vAQ=va[0][0]; vAK=va[0][1]; vAV=va[0][2]; vOf=va[0][3]; mx=va[1][0]; mt=va[1][1]; xIdx=va[1][2]; xOne=va[1][3]
A(f"v_add_u32 v{xt0}, {MSK}, v{xL16}\nv_mov_b32 v{xt2}, {NEGBIG:#x}")
for i in range(6): A.lds(f"ds_read_b128 {vr(Mk+4*i,4)}, v{xt0} offset:{i*1024}")
A(f"""s_lshl_b32 s{sV0}, s{sT}, 10
s_add_u32 s{sV0}, s{sV0}, {EAQ}
v_add_u32 v{vAQ}, s{sV0}, v{xL16}
s_lshl_b32 s{sV0}, s{sT}, 11
s_add_u32 s{sV1}, s{sV0}, {EAK}
v_add_u32 v{vAK}, s{sV1}, v{xL16}
v_add_u32 v{vAV}, s{sV1}, v{xVo}
v_and_b32 v{xt0}, 27, v0
v_cmp_eq_u32 vcc, 16, v{xt0}
v_mov_b32 v{xt1}, 0x3f803f80
v_lshl_add_u32 v{vOf}, v{vV1}, 14, v{xVo}
v_cndmask_b32 v{xt1}, 0, v{xt1}, vcc
v_mov_b32 v{xIdx}, 0xdddddddd
v_mov_b32 v{xOne}, 1
s_and_b32 s{sV1}, s{sT}, 1
s_lshl_b32 s{sV1}, s{sV1}, 9
v_add_u32 v{vOf}, s{sV1}, v{vOf}
s_lshl_b32 s{sV3}, s{sR2}, 7
s_lshl_b32 s{sV1}, s{sHG}, 1
s_add_u32 s{sV3}, s{sV3}, s{sV1}
s_lshr_b32 s{sV1}, s{sT}, 1
s_add_u32 s{sV3}, s{sV3}, s{sV1}
s_lshl_b32 s{sV3}, s{sV3}, 10
s_add_u32 s{sV3}, s{sV3}, {WS_OFA}
s_add_u32 s{sHa}, s{sHa}, s{sV0}
s_sub_u32 s{sHa}, s{sHa}, 8192""")
for i in range(12): A(f"v_mov_b32 v{Vc+i}, v{xt1}")
A.wait_vm_all()
nonce_check(xN,xZ,sNx,sCx,sV1)
A(f"s_cmp_lg_u32 s{sRP}, 1\ns_cbranch_scc1 L_noha2")
flag_store(xN,xZ,sHf)
A.label("L_noha2")
A(f"s_sub_u32 s{sHf}, s{sHf}, 256")
stamp(18)
for it,T in enumerate((1,0)):
    A.lds(f"ds_read_b128 {vr(Qh,4)}, v{vAQ} offset:{T*4096}",'q')
    A.lds(f"ds_read_b128 {vr(Kc,4)}, v{vAK} offset:{(T+1)*8192}",'kc')
    if T: A.lds(f"ds_read_b128 {vr(Kp,4)}, v{vAK} offset:{T*8192}",'kp')
    A(f"s_mov_b64 exec, {sr(sVMx,2)}")
    A.lds(f"ds_read_b128 {vr(Vc,4)}, v{vAV} offset:{(T+1)*8192+1024}",'v')
    A.lds(f"ds_read_b128 {vr(Vc+4,4)}, v{vAV} offset:{(T+1)*8192+1536}",'v')
    if T: A.lds(f"ds_read_b128 {vr(Vp,4)}, v{vAV} offset:{T*8192+1536}",'v')
    A("s_mov_b64 exec, -1")
    if T==0:
        A.wait_lg_all()
        A(f"s_cmp_eq_u32 s{sR2}, 0\ns_cbranch_scc1 L_first")
        poll_issue(FL,xZ,sHf,1)
        poll_check(FL,xZ,sHf,sCx,sNx,1,sleep=OPT['slp'])
        A(f"""buffer_load_dwordx4 {vr(Kp,4)}, v{xL16}, {sr(SRD_WS,4)}, s{sHa} offen sc1
        s_mov_b64 exec, {sr(sVMx,2)}
        buffer_load_dwordx4 {vr(Vp,4)}, v{xVo}, {sr(SRD_WS,4)}, s{sHa} offen offset:1536 sc1
        s_mov_b64 exec, -1
        s_waitcnt vmcnt(0)
        s_branch L_first2""")
        A.label("L_first")
        for i in range(8): A(f"v_mov_b32 v{Mk+16+i}, v{xt2}")
        A("s_nop 1")
        A.label("L_first2")
        A.vm=[]
    dst=dstp if it%2==0 else wf[3]
    loc_unit(dict(Sc=Sc,Sp=Sp,Oc=Oc,Mk=Mk,mx=mx,mt=mt,Qh=Qh,Kc=Kc,Kp=Kp,Vc=Vc,Vp=Vp,dst=dst,idx=xIdx,c=sC))
    A(f"s_add_u32 s{sV1}, s{sV3}, {T*32768}")
    A.vmem(f"buffer_store_dwordx4 {vr(dst,4)}, v{vOf}, {sr(SRD_WS,4)}, s{sV1} offen sc1",'oa')
stamp(19)
A(f"""s_lshl_b32 s{sV1}, s{sR2}, 3
s_add_u32 s{sV1}, s{sV1}, s{sHG}
s_lshl_b32 s{sV1}, s{sV1}, 7
s_add_u32 s{sV1}, s{sV1}, {WS_FOA}""")
A.wait_vm_all()
A("s_mov_b64 exec, 1")
A.lds(f"ds_add_u32 v{gLF}, v{xOne} offset:48")
A("s_mov_b64 exec, -1")
A(f"s_mov_b32 s{sCx}, 0")
A.label("L_cnt")
A(f"""ds_read_b32 v{FL}, v{gLF} offset:48
s_add_u32 s{sCx}, s{sCx}, 1
s_waitcnt lgkmcnt(0)
v_readfirstlane_b32 s{sV0}, v{FL}
s_cmp_gt_u32 s{sCx}, {SPIN*8}
s_cbranch_scc1 L_cntd
{"" if OPT.get('nosl') else "s_sleep 1"}
s_cmp_lt_u32 s{sV0}, 12
s_cbranch_scc1 L_cnt""")
A.label("L_cntd")
A(f"s_cmp_lg_u32 s{sT}, 0\ns_cbranch_scc1 L_wo")
flag_store(xN,xZ,sV1)
A.label("L_wo"); A.reset(); A.vm=['x']
if OPT.get('tp'):
    A(f"""s_cmp_lg_u32 s{sT}, 1
    s_cbranch_scc1 L_np2
    s_and_b32 s{sV2}, s{sHQ}, 4
    s_sub_u32 s{sV0}, s{sHQ}, 1
    s_and_b32 s{sV0}, s{sV0}, 3
    s_or_b32 s{sV0}, s{sV0}, s{sV2}
    s_lshl_b32 s{sV0}, s{sV0}, 11
    s_sub_u32 s{sV1}, s{sHQ}, 2
    s_and_b32 s{sV1}, s{sV1}, 3
    s_or_b32 s{sV1}, s{sV1}, s{sV2}
    s_lshl_b32 s{sV1}, s{sV1}, 11
    v_mov_b32 v{xt0}, s{sV0}
    v_mov_b32 v{xt1}, s{sV1}
    v_cmp_gt_u32 vcc, 16, v0
    v_and_b32 v{xt2}, 15, v0
    s_mov_b32 s{sV0}, {WS_FG}
    v_cndmask_b32 v{xt0}, v{xt1}, v{xt0}, vcc
    v_lshl_add_u32 v{xt0}, v{xt2}, 7, v{xt0}
    v_mov_b32 v{xt1}, 1
    s_mov_b64 exec, 0xffffffff""")
    poll_pipe(acc[0],xt0,sV0,sCx,sNx)
    A(f"s_mov_b64 exec, -1\nds_write_b32 v{gLF}, v{xt1} offset:56\ns_waitcnt vmcnt(0)")
    A.label("L_np2")
lds_word_spin(xt0,gLF,44,sCx,sV0)
A(f"""s_lshr_b32 s{sV0}, s{sRB}, 1
s_lshl_b32 s{sV0}, s{sV0}, 10
s_add_u32 s{sV0}, s{sV0}, {WS_FOA}""")
srd(SRD_M,14,524288); srd(SRD_XA,8,524288); srd(SRD_OUT,16,4194304)
A(f"""v_lshrrev_b32 v{xt0}, 3, v0
v_and_b32 v{xt1}, 6, v{xt0}
v_xor_b32 v{xt1}, v{xt1}, v0
v_and_b32 v{xt1}, 7, v{xt1}
v_lshlrev_b32 v{xt0}, 10, v{xt0}
v_lshl_add_u32 v{xt0}, v{xt1}, 4, v{xt0}
s_lshl_b32 s{sB0}, s{sT}, 17
s_lshl_b32 s{sB1}, s{sHQ}, 7
s_add_u32 s{sB1}, s{sB1}, s{sB0}
s_lshl_b32 s{sB2}, s{sT}, 14""")
def wo_dma(base, srd_):
    for j in range(16):
        A(f"s_add_u32 m0, s{sB2}, {base+j*1024}")
        A(f"s_add_u32 s{sG0}, s{sB1}, {j*8192}")
        A.vmem(f"buffer_load_dwordx4 v{xt0}, {sr(srd_,4)}, s{sG0} offen lds")
        if j%OPT.get('pg',2)==OPT.get('pg',2)-1 and len(A.vm)>OPT['pace']: A(f"s_waitcnt vmcnt({OPT['pace']})"); A.vm=A.vm[len(A.vm)-OPT['pace']:]
if OPT['ewo']: A(f"s_cmp_lg_u32 s{sT0}, 0\ns_cbranch_scc1 L_woa")
wo_dma(WOB,SRD_M)
A.label("L_woa")
wo_dma(WOA,SRD_XA)
VY=Alloc(xBig,168)
yFl=VY.take(); yP=VY.take(2,2); yWA=[VY.take() for _ in range(4)]; yOo=VY.take()
yO=[VY.take(4,4) for _ in range(16)]
yW=[[VY.take(4,4) for _ in range(4)] for _ in range(3)]
yA=[VY.take(4,4) for _ in range(4)]
A(f"""v_and_b32 v{yFl}, 15, v0
v_lshlrev_b32 v{yOo}, 11, v{yFl}
v_lshlrev_b32 v{yFl}, 7, v{yFl}
v_lshrrev_b32 v{xt0}, 4, v0
v_lshl_add_u32 v{yOo}, v{xt0}, 3, v{yOo}""")
poll_issue(yP,yFl,sV0,0xff)
poll_check(yP,yFl,sV0,sCx,sNx,0xff,sleep=OPT['slp'])
stamp(20)
A(f"""s_lshl_b32 s{sV2}, s{sRB}, 2
s_add_u32 s{sV2}, s{sV2}, s{sT}
s_lshl_b32 s{sB0}, s{sV2}, 14
s_add_u32 s{sB0}, s{sB0}, {WS_OFA}""")
for i in range(16 if not OPT.get('nowo') else 0):
    if i and i%4==0: A(f"s_add_u32 s{sB0}, s{sB0}, 4096")
    A.vmem(f"buffer_load_dwordx4 {vr(yO[i],4)}, v{xL16}, {sr(SRD_WS,4)}, s{sB0} offen offset:{(i%4)*1024} sc1")
    if OPT['pace']<60 and i%2==1 and len(A.vm)>OPT['pace']: A(f"s_waitcnt vmcnt({OPT['pace']})"); A.vm=A.vm[-OPT['pace']:]
wo_tr_addr(yWA[0],xt0,xt1)
A(f"""v_add_u32 v{yWA[0]}, {WOA}, v{yWA[0]}
v_xor_b32 v{yWA[1]}, 32, v{yWA[0]}
v_xor_b32 v{yWA[2]}, 64, v{yWA[0]}
v_xor_b32 v{yWA[3]}, 96, v{yWA[0]}
s_lshl_b32 s{sB0}, s{sV2}, 15
s_lshl_b32 s{sB1}, s{sHQ}, 7
s_add_u32 s{sB0}, s{sB0}, s{sB1}""")
A.wait_vm_all()
stamp(21)
A("s_setprio 0")
A("s_barrier")
def woa_read(hp_,c):
    if hp_>=16: return
    b=hp_%3
    A.lds(f"ds_read_b64_tr_b16 {vr(yW[b][c],2)}, v{yWA[c]} offset:{hp_*4096}",('wa',hp_,c))
    A.lds(f"ds_read_b64_tr_b16 {vr(yW[b][c]+2,2)}, v{yWA[c]} offset:{hp_*4096+1024}",('wa',hp_,c))
for c in range(4): woa_read(0,c)
for c in range(2): woa_read(1,c)
for i in range(16):
    for c in range(4):
        A.wait_lg(('wa',i,c))
        A(f"v_mfma_f32_16x16x32_bf16 {vr(yA[c],4)}, {vr(yW[i%3][c],4)}, {vr(yO[i],4)}, {'0' if i==0 else vr(yA[c],4)}")
        woa_read(i+1+(c+2)//4,(c+2)%4)
A("s_nop 7")
for c in range(4):
    acc=yA[c]
    A(f"v_cvt_pk_bf16_f32 v{acc}, v{acc}, v{acc+1}\nv_cvt_pk_bf16_f32 v{acc+1}, v{acc+2}, v{acc+3}")
    A.vmem(f"buffer_store_dwordx2 {vr(acc,2)}, v{yOo}, {sr(SRD_OUT,4)}, s{sB0} offen offset:{c*32}{OSA}")
stamp(22)
stamp_out(yFl)
A.label("L_end")
A("s_endpgm")
A.label("L_codeend")

errs=check(A.lines)
for e in errs[:25]: print("CHECK:",e, file=sys.stderr)
hdr=open('concat_heads__sliding_local_dilated__softmax_full_mha__prompt.s.ref').read().split('; Override')[0]
nv=168
DOC="""; ---------------------------------------------------------------------------------------------
; ---------------------------------------------------------------------------------------------
"""
out=hdr+f"""; @launch grid=(256,1,1) block=(768,1,1) lds={LDS_BYTES}
"""+DOC+f""".amdgcn_target "amdgcn-amd-amdhsa--gfx950"
.text
.globl {NAME}
.p2align 8
.type {NAME},@function
"""+A.text()+f""".section .rodata,"a"
.p2align 6
.amdhsa_kernel {NAME}
  .amdhsa_next_free_vgpr {nv}
  .amdhsa_next_free_sgpr 102
  .amdhsa_accum_offset {nv}
  .amdhsa_group_segment_fixed_size 0
  .amdhsa_kernarg_size 72
  .amdhsa_user_sgpr_count 2
  .amdhsa_user_sgpr_kernarg_segment_ptr 1
  .amdhsa_system_sgpr_workgroup_id_x 1
.end_amdhsa_kernel
"""
open(sys.argv[1],'w').write(out)
print("vgpr att",VA.hi,VB.hi,"aux",VX.hi,VY.hi,"lines",len(A.lines),"errs",len(errs))
```

```python
import sys, math, struct
from asmlib import *
NAME="concat_heads__sliding_local_dilated__softmax_full_mha__prompt_kernel"
OPT=dict(nosl=1, cm=2, up=3, ib=1, pace=1, stamp=0, pfc=0, ewo=0, pp=1, m=1, qd=23, rel=8, slp=2)
for a in sys.argv[2:]:
    k,v=a.split('='); OPT[k]=int(v) if v.lstrip('-').isdigit() else v

SL=40960; LXO=24576; EAQ=65536; EAK=81920-8192; RED=131072; LF=155648
WOB=0; WOA=65536
LDS_BYTES=163840
WS_KV=0; WS_OFB=4<<20; WS_OFA=6<<20; WS_Q=10<<20; WS_HA=12<<20
FGS=OPT.get('fgs',7); WS_FG=(8<<20)+OPT.get('fgo',0); WS_FOB=(8<<20)+262144+OPT.get('fbo',0); WS_EPOCH=(8<<20)+65536; WS_FOA=(8<<20)+131072; WS_FH=(8<<20)+163840
WS_STAMP=30<<20
WS_BYTES=32<<20
CSCALE=0.25*math.log2(math.e)
def f2u(x): return struct.unpack('<I',struct.pack('<f',x))[0]
NEGBIG=f2u(-1e30)
SPIN=30000

A=Asm()
OSA={0:'',1:' sc1',2:' nt',3:' sc0 sc1'}[OPT.get('osa',0)]; OSB={0:'',1:' sc1',2:' nt',3:' sc0 sc1'}[OPT.get('osb',0)]
sW=22; sHQ=23; sRB=24; sSG=25; sBR=26; sR2=27
SRD_X=28; SRD_W=32; SRD_XA=36; sHG=3; sHK=40; sHV=41; sT0=42; sT1=43; SRD_WS=44; SRD_DBG=48; SRD_M=52; SRD_OUT=56
sA0=60

def srd(base, ptr, nbytes):
    A(f"""s_mov_b32 s{base}, s{ptr}
    s_mov_b32 s{base+1}, s{ptr+1}
    s_mov_b32 s{base+2}, {nbytes}
    s_mov_b32 s{base+3}, 0x00020000""")
vSt=1
def stamp(idx, lvl=1):
    if OPT.get('jit') and idx in (0,3,9,10,16,18,19,21,23,24,25,26,30):
        L=A.newlabel('L_j')
        A(f"""s_mul_i32 s101, s2, {2654435761 & 0x7fffffff}
        s_add_u32 s101, s101, s{sW}
        s_mul_i32 s101, s101, {(idx*40503+OPT['jit']*977)|1}
        s_lshr_b32 s101, s101, 27
        s_add_u32 s101, s101, 1""")
        A.label(L)
        A(f"s_sleep 3\ns_sub_u32 s101, s101, 1\ns_cmp_lg_u32 s101, 0\ns_cbranch_scc1 {L}")
    if OPT.get('amp')==idx:
        A("s_memrealtime s[94:95]\ns_waitcnt lgkmcnt(0)"); A.lg=[]
    if OPT['stamp']<lvl: return
    if 'only' in OPT and idx not in [int(x) for x in str(OPT['only']).split(',')]: return
    A(f"""s_memrealtime s[96:97]
    s_memtime s[98:99]
    s_waitcnt lgkmcnt(0)
    v_writelane_b32 v{vSt}, s96, {idx}
    v_writelane_b32 v{vSt}, s98, {idx+32}""")
    A.lg=[]
def stamp_out(vtmp):
    if not OPT['stamp']: return
    A(f"""v_writelane_b32 v{vSt}, s100, 31
    s_mul_i32 s96, s2, 12
    s_add_u32 s96, s96, s{sW}
    s_lshl_b32 s96, s96, 8
    s_add_u32 s96, s96, {WS_STAMP}
    v_lshlrev_b32 v{vtmp}, 2, v0
    buffer_store_dword v{vSt}, v{vtmp}, {sr(SRD_WS,4)}, s96 offen""")
def poll_issue(vdst, voff, soff, mask=-1):
    if mask!=-1: A(f"s_mov_b64 exec, {mask:#x}")
    A.vmem(f"buffer_load_dwordx2 {vr(vdst,2)}, v{voff}, {sr(SRD_WS,4)}, s{soff} offen sc1",'poll')
    if mask!=-1: A("s_mov_b64 exec, -1")
def poll_check(vdst, voff, soff, scnt, snon, mask=-1, sleep=0, keep=0):
    L=A.newlabel('L_poll'); Ld=A.newlabel('L_polld'); Lc=A.newlabel('L_pollc')
    A(f"s_mov_b32 s{scnt}, 0")
    if mask!=-1: A(f"s_mov_b64 exec, {mask:#x}")
    A.wait_vm('poll')
    A(f"s_branch {Lc}")
    A.label(L)
    if sleep and not OPT.get('nosl'): A(f"s_sleep {sleep}")
    A(f"""buffer_load_dwordx2 {vr(vdst,2)}, v{voff}, {sr(SRD_WS,4)}, s{soff} offen sc1
    s_waitcnt vmcnt(0)""")
    A.label(Lc)
    A(f"""v_cmp_eq_u64 vcc, {sr(snon,2)}, {vr(vdst,2)}
    s_add_u32 s{scnt}, s{scnt}, 1
    s_cmp_eq_u64 vcc, exec
    s_cbranch_scc1 {Ld}
    s_cmp_le_u32 s{scnt}, {SPIN}
    s_cbranch_scc1 {L}""")
    A.label(Ld)
    if mask!=-1: A("s_mov_b64 exec, -1")
def poll_pipe(vd, voff, soff, scnt, snon, gap=2):
    L=A.newlabel('L_pp'); Ld=A.newlabel('L_ppd')
    ld=lambda k: A(f"buffer_load_dwordx2 {vr(vd+2*k,2)}, v{voff}, {sr(SRD_WS,4)}, s{soff} offen sc1")
    A(f"s_mov_b32 s{scnt}, 0")
    for k in range(3):
        ld(k)
        if k<2 and not OPT.get('nosl'): A(f"s_sleep {gap}")
    A.label(L)
    for k in range(3):
        A(f"""s_waitcnt vmcnt(2)
        v_cmp_eq_u64 vcc, {sr(snon,2)}, {vr(vd+2*k,2)}
        s_cmp_eq_u64 vcc, exec
        s_cbranch_scc1 {Ld}""")
        ld(k)
    A(f"""s_add_u32 s{scnt}, s{scnt}, 1
    s_cmp_le_u32 s{scnt}, {SPIN}
    s_cbranch_scc1 {L}""")
    A.label(Ld)
def lds_word_spin(vF, vAddr, off, scnt, stmp):
    L=A.newlabel('L_ws'); Ld=A.newlabel('L_wsd')
    A(f"s_mov_b32 s{scnt}, 0")
    A.label(L)
    A(f"""ds_read_b32 v{vF}, v{vAddr} offset:{off}
    s_add_u32 s{scnt}, s{scnt}, 1
    s_waitcnt lgkmcnt(0)
    v_readfirstlane_b32 s{stmp}, v{vF}
    s_cmp_gt_u32 s{scnt}, {SPIN*8}
    s_cbranch_scc1 {Ld}
    {"s_sleep 1" if OPT.get('lsl') else ""}
    s_cmp_eq_u32 s{stmp}, 0
    s_cbranch_scc1 {L}""")
    A.label(Ld)
    A.lg=[]
def nonce_check(vN, vZ, snon, scnt, stmp):
    L=A.newlabel('L_non'); Ld=A.newlabel('L_nond')
    A(f"s_mov_b32 s{scnt}, 0")
    A.label(L)
    A(f"""v_readfirstlane_b32 s{snon}, v{vN}
    v_readfirstlane_b32 s{snon+1}, v{vN+1}
    s_add_u32 s{scnt}, s{scnt}, 1
    s_cmp_gt_u32 s{scnt}, {SPIN}
    s_cbranch_scc1 {Ld}
    s_cmp_eq_u32 s{snon}, 0
    s_cselect_b32 s{stmp}, 0, s{snon+1}
    s_cmp_lg_u32 s{stmp}, 0
    s_cbranch_scc1 {Ld}
    buffer_load_dwordx2 {vr(vN,2)}, v{vZ}, {sr(SRD_DBG,4)}, 0 offen sc1
    s_waitcnt vmcnt(0)
    s_branch {L}""")
    A.label(Ld)
def flag_store(vN, vZ, soff):
    A("s_mov_b64 exec, 1")
    A.vmem(f"buffer_store_dwordx2 {vr(vN,2)}, v{vZ}, {sr(SRD_WS,4)}, s{soff} offen sc1",'flag')
    A("s_mov_b64 exec, -1")
def lds_flags_spin(vF, vAddr, scnt, stmp, issued=False):
    L=A.newlabel('L_xs'); Ld=A.newlabel('L_xsd'); Lc=A.newlabel('L_xsc')
    A(f"s_mov_b32 s{scnt}, 0")
    if issued: A(f"s_branch {Lc}")
    A.label(L)
    A(f"ds_read_b128 {vr(vF,4)}, v{vAddr}")
    A.label(Lc)
    A(f"""s_add_u32 s{scnt}, s{scnt}, 1
    s_waitcnt lgkmcnt(0)
    v_and_b32 v{vF}, v{vF}, v{vF+1}
    v_and_b32 v{vF+2}, v{vF+2}, v{vF+3}
    v_and_b32 v{vF}, v{vF}, v{vF+2}
    s_cmp_gt_u32 s{scnt}, {SPIN*4}
    v_readfirstlane_b32 s{stmp}, v{vF}
    s_cbranch_scc1 {Ld}
    s_cmp_eq_u32 s{stmp}, 0
    s_cbranch_scc1 {L}""")
    A.label(Ld)
    A.lg=[]
def wo_tr_addr(dst, t0, t1):
    A(f"""v_lshrrev_b32 v{t0}, 2, v0
    v_and_b32 v{t0}, 7, v{t0}
    v_lshrrev_b32 v{t1}, 5, v0
    v_lshl_add_u32 v{t1}, v{t1}, 4, v{t0}
    v_lshlrev_b32 v{t1}, 7, v{t1}
    v_and_b32 v{t0}, 6, v{t0}
    v_bfe_u32 v{dst}, v0, 1, 1
    v_xor_b32 v{t0}, v{t0}, v{dst}
    v_lshl_add_u32 v{t1}, v{t0}, 4, v{t1}
    v_and_b32 v{t0}, 1, v0
    v_lshl_add_u32 v{dst}, v{t0}, 3, v{t1}""")


def loc_unit(R, pre=None):
    Sc,Sp,Oc,Mk=R['Sc'],R['Sp'],R['Oc'],R['Mk']; mx,mt=R['mx'],R['mt']
    if pre: pre()
    A.wait_lg('kc')
    A(f"v_mfma_f32_32x32x16_bf16 {vr(Sc,16)}, {vr(R['Kc'],4)}, {vr(R['Qh'],4)}, {vr(Mk,16)}")
    A.wait_lg('kp')
    A(f"v_mfma_f32_32x32x16_bf16 {vr(Sp,16)}, {vr(R['Kp'],4)}, {vr(R['Qh'],4)}, {vr(Mk+8,16)}")
    for i in range(9): A(f"v_mov_b32 v{Oc+i}, 0")
    A("s_nop 1")
    A(f"v_max_f32 v{mx}, v{Sc}, v{Sc+1}")
    A(f"v_max3_f32 v{mt}, v{Sc+2}, v{Sc+3}, v{Sc+4}")
    for i in range(5,15,4):
        A(f"v_max3_f32 v{mx}, v{mx}, v{Sc+i}, v{Sc+i+1}")
        if i+3<16: A(f"v_max3_f32 v{mt}, v{mt}, v{Sc+i+2}, v{Sc+i+3}")
    A(f"v_max3_f32 v{mt}, v{mt}, v{Sc+15}, v{Sp+8}")
    A(f"v_max3_f32 v{mx}, v{mx}, v{Sp+9}, v{Sp+10}")
    A(f"v_max3_f32 v{mt}, v{mt}, v{Sp+11}, v{Sp+12}")
    A(f"v_max3_f32 v{mx}, v{mx}, v{Sp+13}, v{Sp+14}")
    A(f"v_max3_f32 v{mx}, v{mx}, v{mt}, v{Sp+15}")
    A(f"""v_mov_b32 v{mt}, v{mx}
    s_nop 1
    v_permlane32_swap_b32 v{mx}, v{mt}
    s_nop 1
    v_max_f32 v{mx}, v{mx}, v{mt}
    v_mul_f32 v{mx}, s{R['c']}, v{mx}""")
    regs=[Sp+8+i for i in range(8)]+[Sc+i for i in range(16)]
    for r in regs: A(f"v_fma_f32 v{r}, v{r}, s{R['c']}, -v{mx}")
    A.wait_lg('v')
    for j,r in enumerate(regs):
        A(f"v_exp_f32 v{r}, v{r}")
        if j==9: A(f"v_smfmac_f32_32x32x32_bf16 {vr(Oc,16)}, {vr(R['Vp'],4)}, {vr(Sp+8,8)}, v{R['idx']}")
        if j==17: A(f"v_smfmac_f32_32x32x32_bf16 {vr(Oc,16)}, {vr(R['Vc'],4)}, {vr(Sc,8)}, v{R['idx']}")
    A("s_nop 1")
    A(f"v_smfmac_f32_32x32x32_bf16 {vr(Oc,16)}, {vr(R['Vc']+4,4)}, {vr(Sc+8,8)}, v{R['idx']}")
    A("s_nop 11")
    A(f"v_rcp_f32 v{mt}, v{Oc+8}\ns_nop 0")
    for i in range(8): A(f"v_mul_f32 v{Oc+i}, v{Oc+i}, v{mt}")
    for i in range(4): A(f"v_cvt_pk_bf16_f32 v{R['dst']+i}, v{Oc+2*i}, v{Oc+2*i+1}")
MSK=122880
AMAP={4:"",
 2:f"s_and_b32 s{sHQ}, s2, 3\ns_lshl_b32 s{sHQ}, s{sHQ}, 1\ns_and_b32 s{sT0}, s{sT1}, 1\ns_add_u32 s{sHQ}, s{sHQ}, s{sT0}\ns_and_b32 s{sRB}, s2, 4\ns_lshl_b32 s{sRB}, s{sRB}, 2\ns_lshr_b32 s{sT0}, s{sT1}, 1\ns_add_u32 s{sRB}, s{sRB}, s{sT0}",
 1:f"s_and_b32 s{sHQ}, s2, 7\ns_mov_b32 s{sRB}, s{sT1}"}[OPT.get('amap',4)]
A.label(NAME)
if OPT['stamp'] or 'amp' in OPT: A("s_memrealtime s[100:101]")
A(f"""s_cmp_ge_u32 s2, 256
s_cbranch_scc1 L_end
s_load_dwordx16 s[4:19], s[0:1], 0
s_load_dwordx2 s[20:21], s[0:1], 64
v_lshrrev_b32 v1, 6, v0
v_and_b32 v0, 63, v0
s_lshr_b32 s{sT1}, s2, 3
v_readfirstlane_b32 s{sW}, v1
""")
if OPT.get('map8'):
    A(f"""s_and_b32 s{sHQ}, s{sT1}, 7
    s_and_b32 s{sRB}, s2, 7
    s_lshl_b32 s{sRB}, s{sRB}, 2
    s_lshr_b32 s{sT0}, s{sT1}, 3
    s_add_u32 s{sRB}, s{sRB}, s{sT0}""")
else:
    A(f"""s_and_b32 s{sHQ}, s2, 1
{f"s_xor_b32 s{sHQ}, s{sHQ}, 1" if OPT.get('hx') else ""}
s_lshl_b32 s{sHQ}, s{sHQ}, 2
s_and_b32 s{sT0}, s{sT1}, 3
s_add_u32 s{sHQ}, s{sHQ}, s{sT0}
s_and_b32 s{sRB}, s2, 6
s_lshl_b32 s{sRB}, s{sRB}, 2
s_lshr_b32 s{sT0}, s{sT1}, 2
s_add_u32 s{sRB}, s{sRB}, s{sT0}""")
if OPT['m']==2: A(f"s_lshr_b32 s{sBR}, s{sRB}, 4\ns_and_b32 s{sR2}, s{sRB}, 15")
else: A(f"s_and_b32 s{sBR}, s{sRB}, 1\ns_lshr_b32 s{sR2}, s{sRB}, 1")
A({1:f"s_lshl_b32 s{sSG}, s{sHQ}, 1\ns_add_u32 s{sSG}, s{sSG}, s{sR2}", 2:f"s_mov_b32 s{sSG}, s{sR2}", 3:f"s_and_b32 s{sSG}, s{sR2}, 3",
   4:f"s_and_b32 s{sSG}, s{sR2}, 1\ns_lshl_b32 s{sSG}, s{sSG}, 2", 5:f"s_and_b32 s{sSG}, s{sR2}, 3\ns_lshl_b32 s{sSG}, s{sSG}, 1", 6:f"s_and_b32 s{sSG}, s{sR2}, 1"}[OPT.get('rot',1)])
A(f"""s_and_b32 s{sT0}, s{sHQ}, 4
s_cmp_eq_u32 s{sBR}, 0
s_cselect_b32 s{sHK}, 1, 0
s_cselect_b32 s{sHV}, 2, 0
s_add_u32 s{sHK}, s{sHK}, s{sHQ}
s_and_b32 s{sHK}, s{sHK}, 3
s_or_b32 s{sHK}, s{sHK}, s{sT0}
s_add_u32 s{sHV}, s{sHV}, s{sHQ}
s_and_b32 s{sHV}, s{sHV}, 3
s_or_b32 s{sHV}, s{sHV}, s{sT0}
s_mov_b32 s{sHG}, s{sHQ}
{AMAP}
s_cmp_lg_u32 s{sHQ}, 3
s_cselect_b32 s{sT0}, s{sBR}, 0
s_cmp_ge_u32 s{sW}, 8
s_cbranch_scc1 L_aux""")

VA=Alloc(2,168)
vx=VA.take(); vw=VA.take(); vt0=VA.take(); vt1=VA.take(); vt2=VA.take(); vt3=VA.take()
vL16=VA.take(); vVo=VA.take(); vIdx=VA.take(); vFl=VA.take(); vP=VA.take(2,2); vN=VA.take(2,2); vZ=VA.take()
vEQ0=VA.take(); vEK=VA.take(); vEV=VA.take(); vx1=vEQ0; vLF=vt3; vKp=vEV
ND=6
vBig=VA.mark()
Qf=[VA.take(4,4) for _ in range(2)]
Sb=[VA.take(16,4) for _ in range(2)]
Oa=[VA.take(16,4) for _ in range(2)]
Kf=[VA.take(4,4) for _ in range(ND)]
Vf=[VA.take(8,4) for _ in range(ND)]
sXoff=sA0; sM0=sA0+1; sWoff=sA0+2; sFOr=sA0+3; sOld=sA0+4; sOut=sA0+5; sOst=sA0+6; sFOw=sA0+7
sU0=sA0+8; sU1=sA0+9; sU2=sA0+10
sE=sA0+11; sKH=sA0+12; sM2=sA0+13; sKVb=sA0+14; sOff=sA0+15; sNon=sA0+16; sVM=sA0+18; sCnt=sA0+20; sBlk=sA0+21
sFGr=sA0+22; sQ0=sA0+23; sQ1=sA0+24; sLo=sA0+25; sHi=sA0+26; sX0=sA0+28
sF0=sA0+30; sF1=sA0+31; sF2=sA0+32; sWoffK=sA0+33; sWoffV=sA0+34; sKO=sA0+35
A(f"""v_lshrrev_b32 v{vt0}, 3, v0
v_mul_u32_u24 v{vw}, 3072, v{vt0}
v_lshlrev_b32 v{vt0}, 10, v{vt0}
v_lshrrev_b32 v{vt1}, 2, v0
v_and_b32 v{vt1}, 4, v{vt1}
v_xor_b32 v{vt1}, v{vt1}, v0
v_and_b32 v{vt1}, 7, v{vt1}
v_lshl_add_u32 v{vw}, v{vt1}, 4, v{vw}
v_lshrrev_b32 v{vt1}, 4, v0
v_xor_b32 v{vt1}, v{vt1}, v0
v_and_b32 v{vt1}, 7, v{vt1}
v_lshl_add_u32 v{vx}, v{vt1}, 4, v{vt0}
v_xor_b32 v{vx1}, 64, v{vx}
v_add_u32 v{vx1}, 8192, v{vx1}
s_lshl_b32 s{sXoff}, s{sR2}, 17
s_lshl_b32 s{sU0}, s{sW}, 14
s_add_u32 s{sXoff}, s{sXoff}, s{sU0}
s_lshl_b32 s{sM0}, s{sW}, 10
s_lshl_b32 s{sM2}, s{sW}, 11
s_mul_i32 s{sWoff}, s{sW}, 24576
s_lshl_b32 s{sU0}, s{sHK}, 7
s_add_u32 s{sWoffK}, s{sWoff}, s{sU0}
s_lshl_b32 s{sU0}, s{sHV}, 7
s_add_u32 s{sWoffV}, s{sWoff}, s{sU0}
s_lshl_b32 s{sU0}, s{sHG}, 7
s_add_u32 s{sWoff}, s{sWoff}, s{sU0}
s_mov_b32 s{SRD_X+2}, 2097152
s_mov_b32 s{SRD_X+3}, 0x00020000
s_mov_b32 s{SRD_W+2}, 1572864
s_mov_b32 s{SRD_W+3}, 0x00020000
s_cmp_eq_u32 s{sBR}, 0
s_waitcnt lgkmcnt(0)
s_cselect_b32 s{SRD_X}, s10, s4
s_cselect_b32 s{SRD_X+1}, s11, s5
s_cselect_b32 s{SRD_W}, s12, s6
s_cselect_b32 s{SRD_W+1}, s13, s7""")
def issue_stage(s):
    slot=(s+1)%3
    CM=OPT.get('cm',0)
    if CM==0: A(f"s_add_u32 s{sU0}, s{sSG}, {s}\ns_and_b32 s{sU0}, s{sU0}, 7")
    elif s<CM: A(f"s_mov_b32 s{sU0}, {OPT.get('c0',0)+s}")
    else:
        if s==CM:
            mg={2:43,1:37,3:52}[CM]; M=8-CM
            A(f"s_mul_i32 s{sU0}, s{sSG}, {mg}\ns_lshr_b32 s{sU0}, s{sU0}, 8\ns_mul_i32 s{sU0}, s{sU0}, {M}\ns_sub_u32 s{sSG}, s{sSG}, s{sU0}")
        else:
            A(f"s_add_u32 s{sSG}, s{sSG}, 1\ns_cmp_eq_u32 s{sSG}, {8-CM}\ns_cselect_b32 s{sSG}, 0, s{sSG}")
        A(f"s_add_u32 s{sU0}, s{sSG}, {CM+OPT.get('c0',0)}\ns_and_b32 s{sU0}, s{sU0}, 7")
    A(f"""s_mul_i32 s{sU1}, s{sU0}, 196608
    s_lshl_b32 s{sU0}, s{sU0}, 7
    s_add_u32 m0, s{sM2}, {slot*SL+LXO}
    s_add_u32 s{sU0}, s{sU0}, s{sXoff}""")
    A.vmem(f"buffer_load_dwordx4 v{vx}, {sr(SRD_X,4)}, s{sU0} offen lds", s)
    for p in (1,2,0):
        A(f"s_add_u32 m0, s{sM0}, {slot*SL+p*7168}")
        A(f"s_add_u32 s{sU2}, s{sU1}, s{(sWoff,sWoffK,sWoffV)[p]}")
        A.vmem(f"buffer_load_dwordx4 v{vw}, {sr(SRD_W,4)}, s{sU2} offen offset:{p*1024} lds", s)
        if p==1:
            A(f"s_add_u32 m0, s{sM2}, {slot*SL+LXO+1024}\ns_nop 0")
            A.vmem(f"buffer_load_dwordx4 v{vx1}, {sr(SRD_X,4)}, s{sU0} offen lds", s)
class Cap:
    def __enter__(self): self.n=len(A.lines); return self
    def __exit__(self,*a): self.l=A.lines[self.n:]; del A.lines[self.n:]
def att_setup():
    srd(SRD_DBG,18,256)
    A(f"""v_mov_b32 v{vZ}, 0
    s_lshr_b32 s{sE}, s{sW}, 1
    s_and_b32 s{sKH}, s{sW}, 1
    s_lshl_b32 s{sF1}, s{sHQ}, 2
    s_add_u32 s{sF1}, s{sF1}, s{sE}
    s_lshl_b32 s{sKVb}, s{sF1}, 17
    s_lshl_b32 s{sF0}, s{sKH}, 11
    s_add_u32 s{sKVb}, s{sKVb}, s{sF0}
    s_lshl_b32 s{sQ0}, s{sF1}, 6
    s_lshl_b32 s{sF0}, s{sRB}, 1
    s_add_u32 s{sQ0}, s{sQ0}, s{sF0}
    s_add_u32 s{sQ0}, s{sQ0}, s{sKH}
    s_lshl_b32 s{sQ0}, s{sQ0}, 10
    s_add_u32 s{sQ0}, s{sQ0}, {WS_Q}
    s_xor_b32 s{sQ1}, s{sQ0}, 1024
    s_mov_b32 s{sVM}, 0x0000ffff
    s_mov_b32 s{sVM+1}, 0x0000ffff
    s_and_b32 s{sKO}, s{sRB}, {OPT.get('kom',24)}
    v_lshlrev_b32 v{vL16}, 4, v0
    v_and_b32 v{vt0}, 15, v0
    v_lshlrev_b32 v{vt1}, 4, v{vt0}
    v_lshrrev_b32 v{vt2}, 5, v0
    v_lshl_add_u32 v{vVo}, v{vt2}, 8, v{vt1}
    v_mov_b32 v{vIdx}, 0xdddddddd
    v_and_b32 v{vKp}, 0x33, v0
    v_bfe_u32 v{vt2}, v0, 2, 1
    v_lshl_add_u32 v{vKp}, v{vt2}, 3, v{vKp}
    v_bfe_u32 v{vt2}, v0, 3, 1
    v_lshl_add_u32 v{vKp}, v{vt2}, 2, v{vKp}
    v_lshlrev_b32 v{vKp}, 4, v{vKp}
    s_and_b32 s{sF2}, s{sHQ}, 4
    s_sub_u32 s{sF0}, s{sHQ}, 1
    s_and_b32 s{sF0}, s{sF0}, 3
    s_or_b32 s{sF0}, s{sF0}, s{sF2}
    s_lshl_b32 s{sF0}, s{sF0}, 11
    s_sub_u32 s{sF1}, s{sHQ}, 2
    s_and_b32 s{sF1}, s{sF1}, 3
    s_or_b32 s{sF1}, s{sF1}, s{sF2}
    s_lshl_b32 s{sF1}, s{sF1}, 11
""")
    if OPT.get('tp'): A(f"""    v_mov_b32 v{vt1}, s{sF0}
    v_mov_b32 v{vt2}, s{sF1}
    v_cmp_gt_u32 vcc, 4, v0
    s_lshl_b32 s{sF0}, s{sHQ}, 4
    s_lshr_b32 s{sF1}, s{sRB}, 1
    v_cndmask_b32 v{vt1}, v{vt2}, v{vt1}, vcc
    s_and_b32 s{sF2}, s{sF1}, 12
    v_and_b32 v{vt2}, 3, v0
    v_add_u32 v{vt2}, s{sF2}, v{vt2}
    v_lshl_add_u32 v{vFl}, v{vt2}, 7, v{vt1}
    s_add_u32 s{sF0}, s{sF0}, s{sF1}
    s_lshl_b32 s{sF0}, s{sF0}, 7
    s_mov_b32 s{sFGr}, {WS_FG}
    v_writelane_b32 v{vFl}, s{sF0}, 8
""")
    else: A(f"""    v_mov_b32 v{vt1}, s{sF0}
    v_mov_b32 v{vt2}, s{sF1}
    v_cmp_gt_u32 vcc, 16, v0
    s_lshl_b32 s{sF0}, s{sHQ}, 4
    s_lshr_b32 s{sF1}, s{sRB}, 1
    v_cndmask_b32 v{vt1}, v{vt2}, v{vt1}, vcc
    v_lshl_add_u32 v{vFl}, v{vt0}, 7, v{vt1}
    s_add_u32 s{sF0}, s{sF0}, s{sF1}
    s_lshl_b32 s{sF0}, s{sF0}, 7
    s_mov_b32 s{sFGr}, {WS_FG}
    v_writelane_b32 v{vFl}, s{sF0}, 32
""")
    A(f"""    v_mov_b32 v{vLF}, {LF}
    v_and_b32 v{vt0}, 27, v0
    v_cmp_eq_u32 vcc, 16, v{vt0}
    v_mov_b32 v{vt1}, 0x3f803f80
    s_nop 0
    v_cndmask_b32 v{vt1}, 0, v{vt1}, vcc""")
    for d in range(ND):
        for i in range(8): A(f"v_mov_b32 v{Vf[d]+i}, v{vt1}")
    for d in range(2):
        for i in range(16): A(f"v_mov_b32 v{Oa[d]+i}, 0")
    A(f"""s_lshl_b32 s{sF0}, s{sRB}, 1
    s_add_u32 s{sF0}, s{sF0}, s{sKH}
    s_lshl_b32 s{sOst}, s{sF0}, 5
    s_lshl_b32 s{sF1}, s{sHQ}, 1
    s_add_u32 s{sOst}, s{sOst}, s{sF1}
    s_lshr_b32 s{sF1}, s{sE}, 1
    s_add_u32 s{sOst}, s{sOst}, s{sF1}
    s_lshl_b32 s{sOst}, s{sOst}, 10
    s_add_u32 s{sOst}, s{sOst}, {WS_OFB}
    s_lshl_b32 s{sFOr}, s{sRB}, 10
    s_add_u32 s{sFOr}, s{sFOr}, {WS_FOB}
    s_lshl_b32 s{sFOw}, s{sHQ}, 7
    s_add_u32 s{sFOw}, s{sFOw}, s{sFOr}
    s_and_b32 s{sF0}, s{sW}, 3
    s_lshl_b32 s{sF1}, s{sRB}, 2
    s_add_u32 s{sF1}, s{sF1}, s{sF0}
    s_lshr_b32 s{sF2}, s{sW}, 2
    s_lshl_b32 s{sOld}, s{sF1}, 1
    s_add_u32 s{sOld}, s{sOld}, s{sF2}
    s_lshl_b32 s{sOld}, s{sOld}, 13
    s_add_u32 s{sOld}, s{sOld}, {WS_OFB}
    s_lshl_b32 s{sOut}, s{sF1}, 15
    s_lshl_b32 s{sF0}, s{sHQ}, 7
    s_add_u32 s{sOut}, s{sOut}, s{sF0}
    s_lshl_b32 s{sF0}, s{sF2}, 6
    s_add_u32 s{sOut}, s{sOut}, s{sF0}
    s_add_u32 s{sOut}, s{sOut}, 1024
    s_mov_b32 s{sLo}, {f2u(2.0**-80):#x}
    s_mov_b32 s{sHi}, {f2u(2.0**96):#x}""")
    srd(SRD_OUT,16,4194304)
with Cap() as c1: att_setup()
FILL=c1.l
def fill(q,n):
    k=min(n,len(q))
    while k<len(q) and any(x.startswith('v_cmp') for x in q[max(0,k-3):k]): k+=1
    for l in q[:k]: A(l)
    del q[:k]
def kv_load(i):
    if OPT.get('nokv'): return
    d=i%ND
    A(f"""s_add_u32 s{sBlk}, s{sKO}, {i}
    s_and_b32 s{sBlk}, s{sBlk}, 31
    s_lshl_b32 s{sBlk}, s{sBlk}, 12
    s_add_u32 s{sOff}, s{sBlk}, s{sKVb}""")
    A.vmem(f"buffer_load_dwordx4 {vr(Kf[d],4)}, v{vKp}, {sr(SRD_WS,4)}, s{sOff} offen sc1",('kv',i))
    A(f"s_mov_b64 exec, {sr(sVM,2)}")
    A.vmem(f"buffer_load_dwordx4 {vr(Vf[d],4)}, v{vVo}, {sr(SRD_WS,4)}, s{sOff} offen offset:1024 sc1",('kv',i))
    A.vmem(f"buffer_load_dwordx4 {vr(Vf[d]+4,4)}, v{vVo}, {sr(SRD_WS,4)}, s{sOff} offen offset:1536 sc1",('kv',i))
    A("s_mov_b64 exec, -1")
def QK(u): A(f"v_mfma_f32_32x32x16_bf16 {vr(Sb[u%2],16)}, {vr(Kf[(u//2)%ND],4)}, {vr(Qf[u%2],4)}, 0")
def PV(u,t): A(f"v_smfmac_f32_32x32x32_bf16 {vr(Oa[u%2],16)}, {vr(Vf[(u//2)%ND]+4*t,4)}, {vr(Sb[u%2]+8*t,8)}, v{vIdx}")
NU=64
PRIO0=2; PRIO={OPT.get('q1',28):1,OPT.get('q2',56):0}
SCHED={}
nxt=2
for u_ in range(64):
    lim=u_//2-1+ND if u_>=2 else ND-1
    if nxt<=min(lim,31): SCHED.setdefault(u_,[]).append(nxt); nxt+=1
def unit(u):
    S=Sb[u%2]
    E=lambda r: A(f"v_exp_f32 v{S+r}, v{S+r}")
    E(0);E(1)
    if u>0: PV(u-1,1)
    E(2);E(3);E(4)
    if OPT.get('tp') and 8 in SCHED.get(u,[]): lds_word_spin(vt0,vLF,56,sCnt,sU0)
    for i in SCHED.get(u,[]): kv_load(i)
    if u in PRIO: A(f"s_setprio {PRIO[u]}")
    if u==2:
        A("s_mov_b64 exec, 1"); A.lds(f"ds_add_u32 v{vLF}, v{vEK} offset:48"); A("s_mov_b64 exec, -1")
    if u==OPT['rel']: A.lds(f"ds_write_b32 v{vLF}, v{vIdx} offset:44")
    if u+1<NU:
        if (u+1)%2==0: A.wait_vm(('kv',(u+1)//2))
        QK(u+1)
    for r in range(5,10): E(r)
    PV(u,0)
    for r in range(10,16): E(r)
    if u in (3,5,9,17,33): stamp(18+(3,5,9,17,33).index(u), 1 if u in (5,33) else 2)
UP=OPT.get('up',2)
issue_stage(0)
if UP>=2: issue_stage(1)
srd(SRD_WS,20,WS_BYTES)
stamp(0)
if OPT.get('ib'): A("s_barrier")
if UP>=3: issue_stage(2)
for s in range(8):
    A.wait_vm(s)
    A("s_barrier")
    stamp(1+s, 1 if s in (0,4) else 2)
    if s==0:
        for k in range(UP,3): issue_stage(k)
    if 1<=s<=5: issue_stage(s+2)
    if s==7:
        A.wait_vm('non')
    fill(FILL, 24 if s<7 else 999)
    if s==5: A.vmem(f"buffer_load_dwordx2 {vr(vN,2)}, v{vZ}, {sr(SRD_DBG,4)}, 0 offen sc1",'non')
A.wait_vm('non')
nonce_check(vN,vZ,sNon,sCnt,sU0)
if OPT['stamp']: A(f"v_writelane_b32 v{vSt}, s{sCnt}, 29")
A(f"""s_cmp_eq_u32 s{sBR}, 0
s_cbranch_scc1 L_nomask
s_cmp_gt_u32 s{sW}, 5
s_cbranch_scc1 L_nomask
v_and_b32 v{vt0}, 31, v0
v_lshrrev_b32 v{vt1}, 5, v0
v_lshlrev_b32 v{vt1}, 3, v{vt1}
v_sub_u32 v{vt0}, v{vt0}, v{vt1}
s_lshr_b32 s{sU0}, s{sW}, 1
s_lshl_b32 s{sU0}, s{sU0}, 4
s_and_b32 s{sU1}, s{sW}, 1
s_lshl_b32 s{sU1}, s{sU1}, 2
s_add_u32 s{sU0}, s{sU0}, s{sU1}
s_cmp_gt_u32 s{sW}, 3
s_cselect_b32 s{sU1}, 48, 0
s_sub_u32 s{sU0}, s{sU0}, s{sU1}
v_subrev_u32 v{vt0}, s{sU0}, v{vt0}
v_mov_b32 v{vt2}, {NEGBIG:#x}
s_mov_b32 s{sU1}, 0xfffffff1""")
for i in range(4):
    A(f"v_subrev_u32 v{Sb[0]+i}, {i}, v{vt0}\nv_and_b32 v{Sb[0]+i}, s{sU1}, v{Sb[0]+i}")
for i in range(4):
    A(f"v_cmp_eq_u32 vcc, 0, v{Sb[0]+i}\ns_nop 1\nv_cndmask_b32 v{Sb[0]+i}, v{vt2}, 0, vcc")
A(f"""s_add_u32 s{sU0}, s{sM0}, {MSK}
v_add_u32 v{vt0}, s{sU0}, v{vL16}
ds_write_b128 v{vt0}, {vr(Sb[0],4)}
s_waitcnt lgkmcnt(0)""")
A.label("L_nomask")
A("s_barrier")
if OPT['ewo']:
    A(f"s_cmp_eq_u32 s{sT0}, 0\ns_cbranch_scc1 L_noewo")
    srd(SRD_M,14,524288)
    A(f"""v_lshrrev_b32 v{vx}, 3, v0
    v_and_b32 v{vw}, 6, v{vx}
    v_xor_b32 v{vw}, v{vw}, v0
    v_and_b32 v{vw}, 7, v{vw}
    v_lshlrev_b32 v{vx}, 10, v{vx}
    v_lshl_add_u32 v{vx}, v{vw}, 4, v{vx}
    s_lshl_b32 s{sU0}, s{sW}, 16
    s_lshl_b32 s{sU1}, s{sHQ}, 7
    s_add_u32 s{sU0}, s{sU0}, s{sU1}
    s_lshl_b32 s{sU1}, s{sW}, 13""")
    for j in range(8):
        A(f"s_add_u32 m0, s{sU1}, {WOB+j*1024}")
        A(f"s_add_u32 s{sU0}, s{sU0}, 8192" if j else "s_nop 0")
        A.vmem(f"buffer_load_dwordx4 v{vx}, {sr(SRD_M,4)}, s{sU0} offen lds",'wob')
    A.label("L_noewo")
A("s_barrier")
stamp(30)
A(f"""s_cmp_eq_u32 s{sBR}, 0
s_cbranch_scc1 L_noloc
s_and_b32 s{sU0}, s{sW}, 3
s_lshr_b32 s{sU1}, s{sW}, 2
s_lshl_b32 s{sU2}, s{sU1}, 2
s_add_u32 s{sU2}, s{sU2}, s{sU0}
s_lshl_b32 s{sF0}, s{sU2}, 10
s_add_u32 s{sF0}, s{sF0}, {EAQ+2*4096}
v_add_u32 v{vx}, s{sF0}, v{vL16}
s_lshl_b32 s{sF0}, s{sU2}, 11
s_add_u32 s{sF0}, s{sF0}, {EAK+2*8192}
v_add_u32 v{vw}, s{sF0}, v{vL16}
v_add_u32 v{vEK}, s{sF0}, v{vVo}
v_add_u32 v{vEQ0}, {MSK}, v{vL16}""")
RA=dict(Sc=Sb[0],Sp=Sb[1],Oc=Oa[0],Mk=Kf[0],mx=vt0,mt=vt1,Qh=Qf[0],Kc=Qf[1],Kp=Oa[1],Vc=Vf[0],Vp=Vf[1],dst=Oa[1]+4,idx=vIdx,c=sF2)
A(f"s_mov_b32 s{sF2}, {f2u(CSCALE):#x}")
for i in range(6): A.lds(f"ds_read_b128 {vr(Kf[i],4)}, v{vEQ0} offset:{i*1024}")
A.lds(f"ds_read_b128 {vr(RA['Qh'],4)}, v{vx}")
A.lds(f"ds_read_b128 {vr(RA['Kc'],4)}, v{vw} offset:8192",'kc')
A.lds(f"ds_read_b128 {vr(RA['Kp'],4)}, v{vw}",'kp')
A(f"s_mov_b64 exec, {sr(sVM,2)}")
A.lds(f"ds_read_b128 {vr(RA['Vc'],4)}, v{vEK} offset:{8192+1024}",'v')
A.lds(f"ds_read_b128 {vr(RA['Vc']+4,4)}, v{vEK} offset:{8192+1536}",'v')
A.lds(f"ds_read_b128 {vr(RA['Vp'],4)}, v{vEK} offset:1536",'v')
A(f"""s_mov_b64 exec, -1
v_bfe_u32 v{vt2}, v0, 4, 1
v_lshl_add_u32 v{vt2}, v{vt2}, 14, v{vVo}
s_and_b32 s{sF0}, s{sW}, 1
s_lshl_b32 s{sF0}, s{sF0}, 9
v_add_u32 v{vt2}, s{sF0}, v{vt2}
s_lshl_b32 s{sF0}, s{sR2}, 2
s_add_u32 s{sF0}, s{sF0}, s{sU1}
s_add_u32 s{sF0}, s{sF0}, 2
s_lshl_b32 s{sF0}, s{sF0}, 5
s_lshl_b32 s{sF1}, s{sHG}, 1
s_add_u32 s{sF0}, s{sF0}, s{sF1}
s_lshr_b32 s{sF1}, s{sU0}, 1
s_add_u32 s{sF0}, s{sF0}, s{sF1}
s_lshl_b32 s{sF0}, s{sF0}, 10
s_add_u32 s{sF0}, s{sF0}, {WS_OFA}""")
loc_unit(RA)
A.vmem(f"buffer_store_dwordx4 {vr(RA['dst'],4)}, v{vt2}, {sr(SRD_WS,4)}, s{sF0} offen sc1")
for i in range(16): A(f"v_mov_b32 v{Oa[0]+i}, 0")
for i in range(8): A(f"v_mov_b32 v{Oa[1]+i}, 0")
A.label("L_noloc")
A(f"v_mov_b32 v{vEK}, 1")
PM=(1<<33)-1
A(f"s_mov_b32 s{sX0}, {0x1ff if OPT.get('tp') else -1}\ns_mov_b32 s{sX0+1}, {0 if OPT.get('tp') else 1}")
if OPT.get('ap')==1: pass
elif OPT.get('ap')==2: A(f"s_cmp_gt_u32 s{sW}, 3\ns_cbranch_scc1 L_nf2")
else: A(f"s_cmp_lg_u32 s{sW}, 0\ns_cbranch_scc1 L_nf2")
A(f"s_mov_b64 exec, {sr(sX0,2)}")
if OPT['pp']: poll_pipe(Sb[1],vFl,sFGr,sCnt,sNon)
else:
    poll_issue(vP,vFl,sFGr)
    poll_check(vP,vFl,sFGr,sCnt,sNon)
A(f"s_mov_b64 exec, -1\nds_write_b32 v{vLF}, v{vIdx} offset:32\ns_branch L_nf3")
A.label("L_nf2")
lds_word_spin(vt0,vLF,32,sCnt,sU0)
A.label("L_nf3")
A.vm=[]
if OPT.get('idle'):
    for _ in range(OPT['idle']): A("s_sleep 16")
stamp(16,2)
if OPT.get('rep'):
    A(f"s_mov_b32 s{sF2}, {OPT['rep']}")
    A.label("L_rep")
    A("s_nop 15")
    for d in range(2):
        for i in range(16): A(f"v_mov_b32 v{Oa[d]+i}, 0")
A.vmem(f"buffer_load_dwordx4 {vr(Qf[0],4)}, v{vL16}, {sr(SRD_WS,4)}, s{sQ0} offen sc1")
kv_load(0)
A.vmem(f"buffer_load_dwordx4 {vr(Qf[1],4)}, v{vL16}, {sr(SRD_WS,4)}, s{sQ1} offen sc1",'q1')
kv_load(1)
stamp(17)
A(f"s_setprio {PRIO0}")
A.wait_vm('q1')
QK(0)
A("s_nop 11")
for u in range(NU): unit(u)
A("s_nop 1")
PV(NU-1,1)
if OPT.get('rep'):
    A(f"s_sub_u32 s{sF2}, s{sF2}, 1\ns_cmp_lg_u32 s{sF2}, 0\ns_cbranch_scc1 L_rep")
if OPT.get('spin'):
    A(f"s_mov_b32 s{sF2}, {OPT['spin']}")
    A.label("L_spin")
    A(f"s_sub_u32 s{sF2}, s{sF2}, 1\ns_cmp_lg_u32 s{sF2}, 0\ns_cbranch_scc1 L_spin")
stamp(23)
A("s_setprio 3")
vR=Sb[0]; vRa=Sb[1]
A(f"""s_mul_i32 s{sU0}, s{sW}, 2304
s_add_u32 s{sU0}, s{sU0}, {RED}
v_add_u32 v{vRa}, s{sU0}, v{vL16}
v_lshlrev_b32 v{vRa+1}, 2, v0
v_add_u32 v{vRa+1}, s{sU0}, v{vRa+1}
s_xor_b32 s{sU1}, s{sW}, 1
s_mul_i32 s{sU1}, s{sU1}, 2304
s_add_u32 s{sU1}, s{sU1}, {RED}
v_add_u32 v{vEK}, s{sU1}, v{vL16}
v_lshlrev_b32 v{vRa+3}, 2, v0
v_add_u32 v{vRa+3}, s{sU1}, v{vRa+3}""")
A.lds(f"ds_write_b128 v{vRa}, {vr(Oa[1],4)}")
A.lds(f"ds_write_b128 v{vRa}, {vr(Oa[1]+4,4)} offset:1024")
A.lds(f"ds_write_b32 v{vRa+1}, v{Oa[1]+8} offset:2048")
A(f"""v_bfe_u32 v{vRa+4}, v0, 4, 1
v_lshlrev_b32 v{vRa+4}, 14, v{vRa+4}
v_add_u32 v{vRa+4}, v{vRa+4}, v{vVo}
s_and_b32 s{sU0}, s{sE}, 1
s_lshl_b32 s{sU0}, s{sU0}, 9
v_add_u32 v{vRa+4}, s{sU0}, v{vRa+4}""")
A.wait_lg_all()
A("s_barrier")
stamp(24)
A.lds(f"ds_read_b32 v{vR+8}, v{vRa+3} offset:2048",'r2')
A.lds(f"ds_read_b128 {vr(vR,4)}, v{vEK}",'r0')
A.lds(f"ds_read_b128 {vr(vR+4,4)}, v{vEK} offset:1024",'r1')
A.wait_lg('r2')
A(f"""v_add_f32 v{Oa[0]+8}, v{Oa[0]+8}, v{vR+8}
v_cmp_nle_f32 vcc, s{sLo}, v{Oa[0]+8}
v_cmp_nge_f32 {sr(sX0,2)}, s{sHi}, v{Oa[0]+8}""")
A.wait_lg('r0')
for i in range(4): A(f"v_add_f32 v{Oa[0]+i}, v{Oa[0]+i}, v{vR+i}")
A.wait_lg('r1')
for i in range(4,8): A(f"v_add_f32 v{Oa[0]+i}, v{Oa[0]+i}, v{vR+i}")
A(f"""s_or_b64 vcc, vcc, {sr(sX0,2)}
s_cmp_lg_u64 vcc, 0
s_cbranch_scc1 L_fallback""")
A.label("L_norm")
A(f"v_rcp_f32 v{vR+9}, v{Oa[0]+8}\ns_nop 0")
for i in range(8): A(f"v_mul_f32 v{Oa[0]+i}, v{Oa[0]+i}, v{vR+9}")
for i in range(4): A(f"v_cvt_pk_bf16_f32 v{vR+i}, v{Oa[0]+2*i}, v{Oa[0]+2*i+1}")
A.vmem(f"buffer_store_dwordx4 {vr(vR,4)}, v{vRa+4}, {sr(SRD_WS,4)}, s{sOst} offen sc1")
VB=Alloc(vBig,168)
Of=[VB.take(4,4) for _ in range(8)]
Wf=[[VB.take(4,4) for _ in range(4)] for _ in range(6)]
Ac=[VB.take(4,4) for _ in range(4)]
vWA=[vx,vw,vt2,vt3]; vOo=vEQ0; vXw=vEK; vXr=vEV
wo_tr_addr(vx,vt0,vt1)
A(f"""s_lshr_b32 s{sU2}, s{sW}, 2
s_lshl_b32 s{sU0}, s{sU2}, 15
s_lshl_b32 s{sU1}, s{sU2}, 6
v_add_u32 v{vx}, s{sU0}, v{vx}
v_xor_b32 v{vx}, s{sU1}, v{vx}
v_xor_b32 v{vw}, 32, v{vx}
v_xor_b32 v{vt2}, 64, v{vx}
v_xor_b32 v{vt3}, 96, v{vx}""")
assert WOB==0
def wo_read(hp_, slotset):
    for c in range(4):
        A.lds(f"ds_read_b64_tr_b16 {vr(Wf[slotset][c],2)}, v{vWA[c]} offset:{hp_*4096}",('wo',hp_))
        A.lds(f"ds_read_b64_tr_b16 {vr(Wf[slotset][c]+2,2)}, v{vWA[c]} offset:{hp_*4096+1024}",('wo',hp_))
wo_read(0,0)
A(f"""v_and_b32 v{vFl}, 15, v0
v_lshlrev_b32 v{vOo}, 11, v{vFl}
v_lshlrev_b32 v{vFl}, 7, v{vFl}
v_lshrrev_b32 v{vt0}, 4, v0
v_lshl_add_u32 v{vOo}, v{vt0}, 3, v{vOo}
s_xor_b32 s{sU1}, s{sW}, 5
s_mul_i32 s{sU1}, s{sU1}, 2304
s_add_u32 s{sU1}, s{sU1}, {RED}
v_add_u32 v{vXr}, s{sU1}, v{vL16}""")
A.wait_lg_all(); wo_read(1,1)
A(f"v_mov_b32 v{vt0}, {LF}\nv_mov_b32 v{vt1}, 1")
A.wait_vm_all()
if OPT.get('ow'): A.vmem(f"buffer_load_dword v{vN-1 if False else vIdx}, v{vRa+4}, {sr(SRD_WS,4)}, s{sOst} offen sc1")
A("s_mov_b64 exec, 1")
A.lds(f"ds_add_rtn_u32 v{vP}, v{vt0}, v{vt1} offset:40",'cnt')
A("s_mov_b64 exec, -1")
A.wait_lg('cnt')
A(f"""v_readfirstlane_b32 s{sU0}, v{vP}
s_cmp_lg_u32 s{sU0}, 7
s_cbranch_scc1 L_nl1""")
flag_store(vN,vZ,sFOw)
if not OPT['pp']: poll_issue(vP,vFl,sFOr,0xff)
A.label("L_nl1")
stamp(25)
for i in range(2,6):
    A.wait_lg_all(); wo_read(i,i)
A.wait_lg_all()
if OPT.get('dual',1):
    A(f"""s_lshr_b32 s{sU1}, s{sW}, 2
    s_lshl_b32 s{sU2}, s{sU1}, 9
    s_add_u32 s{sFOr}, s{sFOr}, s{sU2}
    s_lshl_b32 s{sU1}, s{sU1}, 4
    v_add_u32 v{vt0}, s{sU1}, v{vt0}
    s_and_b32 s{sU0}, s{sW}, 3
    s_cmp_lg_u32 s{sU0}, 0
    s_cbranch_scc1 L_nl2""")
    A("s_mov_b64 exec, 0xf"); poll_pipe(Ac[0],vFl,sFOr,sCnt,sNon); A("s_mov_b64 exec, -1")
else:
    A(f"s_cmp_lg_u32 s{sU0}, 7\ns_cbranch_scc1 L_nl2")
    A("s_mov_b64 exec, 0xff"); poll_pipe(Ac[0],vFl,sFOr,sCnt,sNon); A("s_mov_b64 exec, -1")
A(f"ds_write_b32 v{vt0}, v{vt1} offset:36\ns_branch L_nl3")
A.label("L_nl2")
lds_word_spin(vP,vt0,36,sCnt,sU1)
A.label("L_nl3")
A.vm=[]
stamp(26)
for i in range(8):
    if i==4: A(f"s_add_u32 s{sOld}, s{sOld}, 4096")
    A.vmem(f"buffer_load_dwordx4 {vr(Of[i],4)}, v{vL16}, {sr(SRD_WS,4)}, s{sOld} offen offset:{(i%4)*1024} sc1",('of',i))
A.wait_lg_all()
for i in range(8):
    A.wait_vm(('of',i))
    if i>=6: A.wait_lg(('wo',i))
    for c in range(4):
        A(f"v_mfma_f32_16x16x32_bf16 {vr(Ac[c],4)}, {vr(Wf[i%6][c],4)}, {vr(Of[i],4)}, {'0' if i==0 else vr(Ac[c],4)}")
    if i<2:
        A.wait_lg_all(); wo_read(6+i,i)
stamp(28,2)
A("s_nop 7")
A.lds(f"ds_write_b128 v{vXw}, {vr(Ac[2],4)}")
A.lds(f"ds_write_b128 v{vXw}, {vr(Ac[3],4)} offset:1024")
A.wait_lg_all()
A("s_barrier")
A.lds(f"ds_read_b128 {vr(Ac[2],4)}, v{vXr}",'x0')
A.lds(f"ds_read_b128 {vr(Ac[3],4)}, v{vXr} offset:1024",'x1')
for c in range(2):
    A.wait_lg(f'x{c}')
    for i in range(4): A(f"v_add_f32 v{Ac[c]+i}, v{Ac[c]+i}, v{Ac[2+c]+i}")
    A(f"v_cvt_pk_bf16_f32 v{Ac[c]}, v{Ac[c]}, v{Ac[c]+1}\nv_cvt_pk_bf16_f32 v{Ac[c]+1}, v{Ac[c]+2}, v{Ac[c]+3}")
    A.vmem(f"buffer_store_dwordx2 {vr(Ac[c],2)}, v{vOo}, {sr(SRD_OUT,4)}, s{sOut} offen offset:{c*32}{OSB}")
stamp(27)
if 'amp' in OPT:
    A(f"""s_memrealtime s[96:97]
    s_sub_u32 s94, s94, s100
    s_mul_i32 s94, s94, {OPT.get('ampk',3)}
    s_min_u32 s94, s94, 20000
    s_waitcnt lgkmcnt(0)""")
    A.label("L_amp")
    A(f"""s_memrealtime s[98:99]
    s_waitcnt lgkmcnt(0)
    s_sub_u32 s98, s98, s96
    s_cmp_lt_u32 s98, s94
    s_cbranch_scc1 L_amp""")
stamp_out(vt0)
A("s_endpgm")

A.label("L_fallback"); A.reset()
fC=Oa[1]; fM=vt0; fT=vt1; fS=Kf[0]
fK=Kf[4]; fV=Vf[0]
A(f"""s_lshl_b32 s{sU0}, s{sKH}, 11
s_sub_u32 s{sU2}, s{sKVb}, s{sU0}
s_mov_b32 s{sOff}, s{sU2}
s_mov_b32 s{sCnt}, 0
v_mov_b32 v{fM}, {NEGBIG:#x}""")
A.label("L_fb1")
A(f"""buffer_load_dwordx4 {vr(fK,4)}, v{vKp}, {sr(SRD_WS,4)}, s{sOff} offen sc1
s_waitcnt vmcnt(0)
v_mfma_f32_32x32x16_bf16 {vr(fS,16)}, {vr(fK,4)}, {vr(Qf[0],4)}, 0
s_add_u32 s{sOff}, s{sOff}, 2048
s_add_u32 s{sCnt}, s{sCnt}, 1
s_nop 11""")
for i in range(8): A(f"v_max3_f32 v{fM}, v{fM}, v{fS+2*i}, v{fS+2*i+1}")
A(f"""s_cmp_lt_u32 s{sCnt}, 64
s_cbranch_scc1 L_fb1
v_mov_b32 v{fT}, v{fM}
s_nop 1
v_permlane32_swap_b32 v{fM}, v{fT}
s_nop 1
v_max_f32 v{fM}, v{fM}, v{fT}""")
for i in range(16): A(f"v_sub_f32 v{fC+i}, 0, v{fM}")
for i in range(16): A(f"v_mov_b32 v{Oa[0]+i}, 0")
A(f"""s_mov_b32 s{sOff}, s{sU2}
s_mov_b32 s{sCnt}, 0""")
A.label("L_fb2")
A(f"""buffer_load_dwordx4 {vr(fK,4)}, v{vKp}, {sr(SRD_WS,4)}, s{sOff} offen sc1
s_mov_b64 exec, {sr(sVM,2)}
buffer_load_dwordx4 {vr(fV,4)}, v{vVo}, {sr(SRD_WS,4)}, s{sOff} offen offset:1024 sc1
buffer_load_dwordx4 {vr(fV+4,4)}, v{vVo}, {sr(SRD_WS,4)}, s{sOff} offen offset:1536 sc1
s_mov_b64 exec, -1
s_waitcnt vmcnt(0)
v_mfma_f32_32x32x16_bf16 {vr(fS,16)}, {vr(fK,4)}, {vr(Qf[0],4)}, {vr(fC,16)}
s_add_u32 s{sOff}, s{sOff}, 2048
s_add_u32 s{sCnt}, s{sCnt}, 1
s_nop 11""")
for i in range(16): A(f"v_exp_f32 v{fS+i}, v{fS+i}")
A(f"""s_nop 1
v_smfmac_f32_32x32x32_bf16 {vr(Oa[0],16)}, {vr(fV,4)}, {vr(fS,8)}, v{vIdx}
v_smfmac_f32_32x32x32_bf16 {vr(Oa[0],16)}, {vr(fV+4,4)}, {vr(fS+8,8)}, v{vIdx}
s_cmp_lt_u32 s{sCnt}, 64
s_cbranch_scc1 L_fb2
s_nop 15
s_branch L_norm""")

A.label("L_aux")
A.reset()
VX=Alloc(2,168)
xt0=VX.take(); xt1=VX.take(); xt2=VX.take(); xZ=VX.take(); xN=VX.take(2,2)
xL16=VX.take(); xVo=VX.take()
xBig=VX.mark()
va=[[VX.take() for _ in range(4)] for _ in range(2)]; vwa=[VX.take() for _ in range(2)]
vKpos=VX.take(); vV1=VX.take(); gDum=VX.take(); gPW=VX.take(); gLF=VX.take()
acc=[VX.take(16,4) for _ in range(6)]
xf=[[VX.take(4,4) for _ in range(2)] for _ in range(2)]
wf=[VX.take(4,4) for _ in range(4)]
xf.append([VX.take(4,4) for _ in range(2)])
sT=sA0; sC=sA0+24; sV0=sA0+2; sV1=sA0+3; sNx=sA0+4; sCx=sA0+6; sVMx=sA0+8; sV2=sA0+11; sV3=sA0+12
sB0=sA0+13; sB1=sA0+14; sB2=sA0+15; sHa=sA0+16; sHf=sA0+17; sTT=sA0+18; sRP=sA0+22; sJ=sA0+23; sG0=sA0+19; sG1=sA0+20
A(f"""s_setprio 3
s_sub_u32 s{sT}, s{sW}, 8
s_and_b32 s{sRP}, s{sT}, 1
s_lshr_b32 s{sJ}, s{sT}, 1
v_mov_b32 v{xZ}, 0
s_waitcnt lgkmcnt(0)""")
srd(SRD_WS,20,WS_BYTES); srd(SRD_DBG,18,256)
if OPT.get('ib'): A("s_barrier")
A(f"""s_add_u32 s{sV0}, s2, s{sT}
s_cmp_lg_u32 s{sV0}, 0
s_cbranch_scc1 L_nonon
s_mov_b32 s{sV0}, {WS_EPOCH}
s_mov_b64 exec, 1
buffer_load_dwordx2 {vr(xN,2)}, v{xZ}, {sr(SRD_WS,4)}, s{sV0} offen sc1
s_waitcnt vmcnt(0)
v_add_u32 v{xN}, 2, v{xN}
v_or_b32 v{xN}, 1, v{xN}
v_or_b32 v{xN+1}, 0x80000000, v{xN+1}
buffer_store_dwordx2 {vr(xN,2)}, v{xZ}, {sr(SRD_DBG,4)}, 0 offen sc1
buffer_store_dwordx2 {vr(xN,2)}, v{xZ}, {sr(SRD_WS,4)}, s{sV0} offen sc1
s_mov_b64 exec, -1""")
A.label("L_nonon")
stamp(0)
if OPT.get('pf',0):
    A(f"""s_cmp_eq_u32 s{sBR}, 0
    s_cselect_b32 s{SRD_X}, s10, s4
    s_cselect_b32 s{SRD_X+1}, s11, s5
    s_cselect_b32 s{SRD_W}, s12, s6
    s_cselect_b32 s{SRD_W+1}, s13, s7
    s_mov_b32 s{SRD_X+2}, 2097152
    s_mov_b32 s{SRD_X+3}, 0x00020000
    s_mov_b32 s{SRD_W+2}, 1572864
    s_mov_b32 s{SRD_W+3}, 0x00020000
    v_lshlrev_b32 v{xt0}, 7, v0
    v_lshrrev_b32 v{xt1}, 2, v0
    v_mul_u32_u24 v{xt1}, 3072, v{xt1}
    v_and_b32 v{xt2}, 3, v0
    v_lshl_add_u32 v{xt1}, v{xt2}, 7, v{xt1}""")
    if OPT['m']==2:
        A(f"""s_and_b32 s{sV0}, s{sR2}, 8
        s_lshl_b32 s{sV0}, s{sV0}, 17
        s_mov_b32 s{sV2}, s{sT1}
        s_mul_i32 s{sV1}, s{sV2}, 49152""")
    else:
        A(f"""s_lshr_b32 s{sV2}, s{sT1}, 3
        s_lshl_b32 s{sV2}, s{sV2}, 2
        s_and_b32 s{sV0}, s{sT1}, 3
        s_add_u32 s{sV2}, s{sV2}, s{sV0}
        s_and_b32 s{sV0}, s2, 6
        s_lshl_b32 s{sV0}, s{sV0}, 18
        s_mul_i32 s{sV1}, s{sV2}, 98304""")
    A(f"""s_lshl_b32 s{sV2}, s{sV2}, 15
    s_add_u32 s{sV0}, s{sV0}, s{sV2}
    s_lshl_b32 s{sV2}, s{sT}, 13
    s_add_u32 s{sV0}, s{sV0}, s{sV2}
    s_and_b32 s{sV2}, s2, 1
    s_lshl_b32 s{sV2}, s{sV2}, 9
    s_add_u32 s{sV1}, s{sV1}, s{sV2}
    s_lshl_b32 s{sV2}, s{sT}, 10
    s_add_u32 s{sV1}, s{sV1}, s{sV2}
    {"s_sleep "+str(OPT['pfd']) if OPT.get('pfd') else ""}
    buffer_load_dword v{gDum}, v{xt0}, {sr(SRD_X,4)}, s{sV0} offen
    s_cmp_eq_u32 s{sT}, 3
    s_cbranch_scc1 L_pfd
    buffer_load_dword v{gDum}, v{xt1}, {sr(SRD_W,4)}, s{sV1} offen""")
    if OPT['m']==1:
        A(f"s_add_u32 s{sV1}, s{sV1}, 49152\nbuffer_load_dword v{gDum}, v{xt1}, {sr(SRD_W,4)}, s{sV1} offen")
    A.label("L_pfd")
A(f"""v_mov_b32 v{gLF}, {LF}
v_lshl_add_u32 v{xt0}, v0, 2, v{gLF}
ds_write_b32 v{xt0}, v{xZ}
v_and_b32 v{xt0}, 31, v0
v_lshrrev_b32 v{xt1}, 5, v0
v_bfe_u32 v{xt2}, v0, 1, 3
v_xor_b32 v{xt2}, v{xt2}, v{xt1}
v_lshlrev_b32 v{xt2}, 4, v{xt2}
v_lshl_add_u32 v{xt2}, v{xt0}, 7, v{xt2}
s_lshl_b32 s{sV0}, s{sRP}, 13
s_add_u32 s{sV0}, s{sV0}, {LXO}
v_add_u32 v{va[0][0]}, s{sV0}, v{xt2}""")
for s in range(1,4): A(f"v_xor_b32 v{va[0][s]}, {32*s}, v{va[0][0]}")
for s in range(4): A(f"v_add_u32 v{va[1][s]}, {2*SL}, v{va[0][s]}")
A(f"""v_bfe_u32 v{xt2}, v0, 2, 2
v_lshl_add_u32 v{xt2}, v{xt1}, 3, v{xt2}
v_lshlrev_b32 v{xt2}, 7, v{xt2}
v_bfe_u32 v{vV1}, v0, 4, 1
v_lshl_add_u32 v{xt2}, v{vV1}, 5, v{xt2}
v_and_b32 v{vwa[0]}, 3, v0
v_lshl_add_u32 v{xt2}, v{vwa[0]}, 3, v{xt2}
v_bfe_u32 v{vwa[0]}, v0, 3, 1
v_lshl_add_u32 v{vwa[0]}, v{vwa[0]}, 6, v{xt2}
s_lshl_b32 s{sV0}, s{sJ}, 6
v_xor_b32 v{vwa[0]}, s{sV0}, v{vwa[0]}
v_add_u32 v{vwa[1]}, {2*SL}, v{vwa[0]}
v_and_b32 v{vKpos}, 0x33, v0
v_bfe_u32 v{xt2}, v0, 2, 1
v_lshl_add_u32 v{vKpos}, v{xt2}, 3, v{vKpos}
v_bfe_u32 v{xt2}, v0, 3, 1
v_lshl_add_u32 v{vKpos}, v{xt2}, 2, v{vKpos}
v_lshlrev_b32 v{vKpos}, 4, v{vKpos}
v_and_b32 v{xt2}, 15, v0
v_lshlrev_b32 v{xt2}, 4, v{xt2}
v_lshl_add_u32 v{xVo}, v{xt1}, 8, v{xt2}
v_lshlrev_b32 v{xL16}, 4, v0
s_mov_b32 s{sC}, {f2u(CSCALE):#x}
s_mov_b32 s{sC+1}, {f2u(CSCALE):#x}
s_mov_b32 s{sVMx}, 0x0000ffff
s_mov_b32 s{sVMx+1}, 0x0000ffff
s_lshl_b32 s{sTT}, s{sR2}, 1
s_add_u32 s{sTT}, s{sTT}, s{sRP}
s_lshl_b32 s{sTT}, s{sTT}, 1
s_lshl_b32 s{sHf}, s{sHG}, 4
s_add_u32 s{sHf}, s{sHf}, s{sR2}""")
if OPT['pfc']:
    A(f"s_getpc_b64 {sr(sNx,2)}")
    A.label("L_pc")
    A(f"""s_sub_u32 s{sNx}, s{sNx}, L_pc-{NAME}
    s_subb_u32 s{sNx+1}, s{sNx+1}, 0
    s_lshl_b32 s{sV0}, s{sT}, 13
    s_mov_b32 s{sV1}, L_codeend-{NAME}-4
    v_lshlrev_b32 v{xt2}, 7, v0
    v_add_u32 v{xt2}, s{sV0}, v{xt2}
    v_min_u32 v{xt2}, s{sV1}, v{xt2}""")
PARTS=(1,2,0)
def rd_x(n,r):
    if n>=32: return
    s,ks=divmod(n,4); slot=(s+1)%3
    A.lds(f"ds_read_b128 {vr(xf[n%2][r],4)}, v{va[slot//2][ks]} offset:{(slot%2)*SL+r*4096}", ('x',n,r))
def rd_w(n,c):
    if n>=32: return
    s,ks=divmod(n,4); slot=(s+1)%3; p=PARTS[c]
    o=(slot%2)*SL+p*8192+ks*2048
    A.lds(f"ds_read_b64_tr_b16 {vr(wf[c],2)}, v{vwa[slot//2]} offset:{o}", ('w',n,c))
    A.lds(f"ds_read_b64_tr_b16 {vr(wf[c]+2,2)}, v{vwa[slot//2]} offset:{o+512}", ('w',n,c))
def pw_prefetch():
    Lp=A.newlabel('L_npw')
    srd(SRD_M,14,524288); srd(SRD_XA,8,524288)
    am=OPT.get('amap',4)
    A(f"""s_and_b32 s{sV0}, s2, { {4:1,2:3,1:7}[am] }
    s_xor_b32 s{sV0}, s{sV0}, { {4:OPT.get('hx',0),2:1,1:3}[am] }
    s_add_u32 s{sV0}, s{sV0}, s{sT}
    s_cmp_lg_u32 s{sV0}, 0
    s_cbranch_scc1 {Lp}
    s_lshl_b32 s{sV0}, s{sT1}, 14
    s_add_u32 s{sV0}, s{sV0}, 384
    v_lshlrev_b32 v{gPW}, 10, v0
    s_mov_b64 exec, 0xffff
    buffer_load_dword v{gDum}, v{gPW}, {sr(SRD_M,4)}, s{sV0} offen
    buffer_load_dword v{gDum}, v{gPW}, {sr(SRD_XA,4)}, s{sV0} offen
    s_mov_b64 exec, -1""")
    A.label(Lp)
QD=OPT.get('qd',20)
def g_step(n, SN=0):
    s,ks=divmod(n,4)
    cur=n<SN; nxt=n+1<SN
    if ks==3 and s<7 and not nxt:
        if cur:
            for c in range(3): rd_w(n,c)
            rd_x(n,0); rd_x(n,1); cur=False
        A.wait_lg_all()
        A("s_barrier")
    for c in range(3 if n<QD else 2):
        if cur:
            if c==0: rd_x(n,0); rd_x(n,1)
            rd_w(n,c)
        for r in range(2):
            A.wait_lg([('x',n,r),('w',n,c)])
            a_=acc[2*c+r]; C="0" if n==0 else vr(a_,16)
            if c==1: A(f"v_mfma_f32_32x32x16_bf16 {vr(a_,16)}, {vr(xf[n%2][r],4)}, {vr(wf[c],4)}, {C}")
            else: A(f"v_mfma_f32_32x32x16_bf16 {vr(a_,16)}, {vr(wf[c],4)}, {vr(xf[n%2][r],4)}, {C}")
            if not nxt:
                if r==0 and c<2: rd_x(n+1,c)
                if r==1 and not (c==2 and n+1>=QD): rd_w(n+1,c)
    if ks==3 and s<7 and nxt:
        A.wait_lg_all()
        A("s_barrier")
    if n==OPT.get('pwn',8): pw_prefetch()
    if n==22: A.vmem(f"buffer_load_dwordx2 {vr(xN,2)}, v{xZ}, {sr(SRD_DBG,4)}, 0 offen sc1",'non')
def q_rd(m):
    if m>=32: return
    s,ks=divmod(m,4); slot=(s+1)%3; b=(m+1)%3
    o=(slot%2)*SL+ks*2048
    W=(wf[2],wf[3],wf[0])[b]
    for r in range(2): A.lds(f"ds_read_b128 {vr(xf[(2,0,1)[b]][r],4)}, v{va[slot//2][ks]} offset:{(slot%2)*SL+r*4096}", ('qx',m,r))
    A.lds(f"ds_read_b64_tr_b16 {vr(W,2)}, v{vwa[slot//2]} offset:{o}", ('qw',m))
    A.lds(f"ds_read_b64_tr_b16 {vr(W+2,2)}, v{vwa[slot//2]} offset:{o+512}", ('qw',m))
def q_phase(fillers):
    q_rd(QD+1)
    per=4
    for m in range(QD,32):
        b=(m+1)%3; W=(wf[2],wf[3],wf[0])[b]
        A.wait_lg(('qw',m))
        for r in range(2):
            A(f"v_mfma_f32_32x32x16_bf16 {vr(acc[4+r],16)}, {vr(W,4)}, {vr(xf[(2,0,1)[b]][r],4)}, {vr(acc[4+r],16)}")
            if r==0: q_rd(m+2)
            for _ in range(per):
                if fillers: fillers.pop(0)()
    while fillers: fillers.pop(0)()
    A.wait_lg_all()
    A("s_barrier")
def I(l): return lambda: A(l)
def Vm(l): return lambda: A.vmem(l)
def packf(a): return [I(f"v_cvt_pk_bf16_f32 v{a+i}, v{a+2*i}, v{a+2*i+1}") for i in range(8)]
def pack16(dst, a, scale=False):
    if scale:
        for i in range(0,16,2): A(f"v_pk_mul_f32 {vr(a+i,2)}, {vr(a+i,2)}, {sr(sC,2)}")
    for i in range(8): A(f"v_cvt_pk_bf16_f32 v{dst+i}, v{a+2*i}, v{a+2*i+1}")
A.wait_lg_all()
A("s_barrier")
if OPT.get('adel'):
    A(f"s_cmp_eq_u32 s{sBR}, 0\ns_cbranch_scc1 L_nodel")
    for _ in range(OPT['adel']): A("s_sleep 16")
    A.label("L_nodel")
assert (QD+1)%3==0
def g_all(SN):
    if SN==0: rd_x(0,0); rd_w(0,0); rd_x(0,1); rd_w(0,1); rd_w(0,2)
    for n in range(32):
        g_step(n,SN)
        if n==30: q_rd(QD)
    stamp(9)
SA=OPT.get('sa',0)
if SA:
    A(f"s_cmp_lg_u32 s{sBR}, 0\ns_cbranch_scc1 L_ga")
g_all(0)
SVL=list(A.lg); SVV=list(A.vm)
if not SA: A(f"s_cmp_lg_u32 s{sBR}, 0\ns_cbranch_scc1 L_epa")
SC=' sc1'
A(f"""s_lshl_b32 s{sV0}, s{sTT}, 11
s_lshl_b32 s{sV1}, s{sJ}, 18
s_add_u32 s{sV0}, s{sV0}, s{sV1}
s_lshl_b32 s{sV1}, s{sHK}, 19
s_add_u32 s{sB0}, s{sV0}, s{sV1}
s_add_u32 s{sG0}, s{sB0}, 131072
s_lshl_b32 s{sV1}, s{sHV}, 19
s_add_u32 s{sB1}, s{sV0}, s{sV1}
s_lshr_b32 s{sB2}, s{sV0}, 1
s_lshl_b32 s{sV1}, s{sHG}, 18
s_add_u32 s{sB2}, s{sB2}, s{sV1}
s_add_u32 s{sB2}, s{sB2}, {WS_Q}
s_add_u32 s{sG1}, s{sB2}, 65536
v_lshl_add_u32 v{xt0}, v{vV1}, 17, v{xVo}""")
F=[]
for r in range(2):
    K=acc[r]; F+=packf(K)
    F.append(Vm(f"buffer_store_dwordx4 {vr(K,4)}, v{xL16}, {sr(SRD_WS,4)}, s{sB0} offen offset:{r*2048}{SC}"))
    F.append(Vm(f"buffer_store_dwordx4 {vr(K+4,4)}, v{xL16}, {sr(SRD_WS,4)}, s{sG0} offen offset:{r*2048}{SC}"))
for r in range(2):
    V=acc[2+r]; F+=packf(V)
    F.append(Vm(f"buffer_store_dwordx4 {vr(V,4)}, v{xt0}, {sr(SRD_WS,4)}, s{sB1} offen offset:{r*2048+1024}{SC}"))
    F.append(Vm(f"buffer_store_dwordx4 {vr(V+4,4)}, v{xt0}, {sr(SRD_WS,4)}, s{sB1} offen offset:{r*2048+1536}{SC}"))
q_phase(F)
A("s_nop 9")
for r in range(2):
    Q=acc[4+r]; pack16(Q,Q,True)
    A.vmem(f"buffer_store_dwordx4 {vr(Q,4)}, v{xL16}, {sr(SRD_WS,4)}, s{sB2} offen offset:{r*1024}{SC}")
    A.vmem(f"buffer_store_dwordx4 {vr(Q+4,4)}, v{xL16}, {sr(SRD_WS,4)}, s{sG1} offen offset:{r*1024}{SC}")
stamp(10,2)
A.wait_vm('non')
nonce_check(xN,xZ,sNx,sCx,sV1)
A(f"""s_lshl_b32 s{sHf}, s{sHf}, 7
s_add_u32 s{sHf}, s{sHf}, {WS_FG}""")
A.wait_vm_all()
stamp(11,2)
A("s_barrier")
A(f"s_cmp_lg_u32 s{sT}, 0\ns_cbranch_scc1 L_wo")
flag_store(xN,xZ,sHf)
A("s_branch L_wo")
if SA:
    A.label("L_ga"); A.reset(); g_all(SA)
else:
    A.label("L_epa"); A.reset(); A.vm=list(SVV); A.lg=list(SVL)
A(f"""s_lshl_b32 s{sV0}, s{sRP}, 14
s_lshl_b32 s{sV1}, s{sJ}, 12
s_add_u32 s{sV2}, s{sV0}, s{sV1}
s_add_u32 s{sV0}, s{sV2}, {EAK+8192}
v_add_u32 v{xt1}, s{sV0}, v{vKpos}
v_lshl_add_u32 v{xt0}, v{vV1}, 11, v{xVo}
v_add_u32 v{xt2}, s{sV0}, v{xt0}
s_lshl_b32 s{sHa}, s{sHf}, 13
s_add_u32 s{sHa}, s{sHa}, {WS_HA}
s_add_u32 s{sV1}, s{sV1}, s{sHa}
s_lshl_b32 s{sHf}, s{sHf}, 1
s_add_u32 s{sHf}, s{sHf}, s{sJ}
s_lshl_b32 s{sHf}, s{sHf}, 7
s_add_u32 s{sHf}, s{sHf}, {WS_FH}""")
F=packf(acc[1])+packf(acc[3])
F.append(I(f"""s_cmp_lg_u32 s{sRP}, 1
s_cbranch_scc1 L_noha
buffer_store_dwordx4 {vr(acc[1],4)}, v{vKpos}, {sr(SRD_WS,4)}, s{sV1} offen sc1
buffer_store_dwordx4 {vr(acc[1]+4,4)}, v{vKpos}, {sr(SRD_WS,4)}, s{sV1} offen offset:2048 sc1
buffer_store_dwordx4 {vr(acc[3]+4,4)}, v{xt0}, {sr(SRD_WS,4)}, s{sV1} offen offset:1536 sc1
L_noha:"""))
F+=packf(acc[0])+packf(acc[2])
q_phase(F)
for r in range(2):
    A.lds(f"ds_write_b128 v{xt1}, {vr(acc[r],4)} offset:{r*8192}")
    A.lds(f"ds_write_b128 v{xt1}, {vr(acc[r]+4,4)} offset:{r*8192+2048}")
    A.lds(f"ds_write_b128 v{xt2}, {vr(acc[2+r],4)} offset:{r*8192+1024}")
    A.lds(f"ds_write_b128 v{xt2}, {vr(acc[2+r]+4,4)} offset:{r*8192+1536}")
A(f"s_lshr_b32 s{sV0}, s{sV2}, 1\ns_add_u32 s{sV0}, s{sV0}, {EAQ}\nv_add_u32 v{xt1}, s{sV0}, v{xL16}")
for r in range(2):
    pack16(acc[4+r],acc[4+r])
    for e in range(2): A.lds(f"ds_write_b128 v{xt1}, {vr(acc[4+r]+4*e,4)} offset:{r*4096+e*1024}")
A.wait_lg_all()
A("s_barrier")
Mk=acc[0]; Sc=acc[2]; Sp=acc[3]; Oc=acc[4]; T5=acc[5]
Qh=T5; Kc=T5+4; Kp=T5+8; dstp=T5+12; Vc=xf[0][0]; Vp=xf[1][0]; FL=wf[0]
vAQ=va[0][0]; vAK=va[0][1]; vAV=va[0][2]; vOf=va[0][3]; mx=va[1][0]; mt=va[1][1]; xIdx=va[1][2]; xOne=va[1][3]
A(f"v_add_u32 v{xt0}, {MSK}, v{xL16}\nv_mov_b32 v{xt2}, {NEGBIG:#x}")
for i in range(6): A.lds(f"ds_read_b128 {vr(Mk+4*i,4)}, v{xt0} offset:{i*1024}")
A(f"""s_lshl_b32 s{sV0}, s{sT}, 10
s_add_u32 s{sV0}, s{sV0}, {EAQ}
v_add_u32 v{vAQ}, s{sV0}, v{xL16}
s_lshl_b32 s{sV0}, s{sT}, 11
s_add_u32 s{sV1}, s{sV0}, {EAK}
v_add_u32 v{vAK}, s{sV1}, v{xL16}
v_add_u32 v{vAV}, s{sV1}, v{xVo}
v_and_b32 v{xt0}, 27, v0
v_cmp_eq_u32 vcc, 16, v{xt0}
v_mov_b32 v{xt1}, 0x3f803f80
v_lshl_add_u32 v{vOf}, v{vV1}, 14, v{xVo}
v_cndmask_b32 v{xt1}, 0, v{xt1}, vcc
v_mov_b32 v{xIdx}, 0xdddddddd
v_mov_b32 v{xOne}, 1
s_and_b32 s{sV1}, s{sT}, 1
s_lshl_b32 s{sV1}, s{sV1}, 9
v_add_u32 v{vOf}, s{sV1}, v{vOf}
s_lshl_b32 s{sV3}, s{sR2}, 7
s_lshl_b32 s{sV1}, s{sHG}, 1
s_add_u32 s{sV3}, s{sV3}, s{sV1}
s_lshr_b32 s{sV1}, s{sT}, 1
s_add_u32 s{sV3}, s{sV3}, s{sV1}
s_lshl_b32 s{sV3}, s{sV3}, 10
s_add_u32 s{sV3}, s{sV3}, {WS_OFA}
s_add_u32 s{sHa}, s{sHa}, s{sV0}
s_sub_u32 s{sHa}, s{sHa}, 8192""")
for i in range(12): A(f"v_mov_b32 v{Vc+i}, v{xt1}")
A.wait_vm_all()
nonce_check(xN,xZ,sNx,sCx,sV1)
A(f"s_cmp_lg_u32 s{sRP}, 1\ns_cbranch_scc1 L_noha2")
flag_store(xN,xZ,sHf)
A.label("L_noha2")
A(f"s_sub_u32 s{sHf}, s{sHf}, 256")
stamp(18)
for it,T in enumerate((1,0)):
    A.lds(f"ds_read_b128 {vr(Qh,4)}, v{vAQ} offset:{T*4096}",'q')
    A.lds(f"ds_read_b128 {vr(Kc,4)}, v{vAK} offset:{(T+1)*8192}",'kc')
    if T: A.lds(f"ds_read_b128 {vr(Kp,4)}, v{vAK} offset:{T*8192}",'kp')
    A(f"s_mov_b64 exec, {sr(sVMx,2)}")
    A.lds(f"ds_read_b128 {vr(Vc,4)}, v{vAV} offset:{(T+1)*8192+1024}",'v')
    A.lds(f"ds_read_b128 {vr(Vc+4,4)}, v{vAV} offset:{(T+1)*8192+1536}",'v')
    if T: A.lds(f"ds_read_b128 {vr(Vp,4)}, v{vAV} offset:{T*8192+1536}",'v')
    A("s_mov_b64 exec, -1")
    if T==0:
        A.wait_lg_all()
        A(f"s_cmp_eq_u32 s{sR2}, 0\ns_cbranch_scc1 L_first")
        poll_issue(FL,xZ,sHf,1)
        poll_check(FL,xZ,sHf,sCx,sNx,1,sleep=OPT['slp'])
        A(f"""buffer_load_dwordx4 {vr(Kp,4)}, v{xL16}, {sr(SRD_WS,4)}, s{sHa} offen sc1
        s_mov_b64 exec, {sr(sVMx,2)}
        buffer_load_dwordx4 {vr(Vp,4)}, v{xVo}, {sr(SRD_WS,4)}, s{sHa} offen offset:1536 sc1
        s_mov_b64 exec, -1
        s_waitcnt vmcnt(0)
        s_branch L_first2""")
        A.label("L_first")
        for i in range(8): A(f"v_mov_b32 v{Mk+16+i}, v{xt2}")
        A("s_nop 1")
        A.label("L_first2")
        A.vm=[]
    dst=dstp if it%2==0 else wf[3]
    loc_unit(dict(Sc=Sc,Sp=Sp,Oc=Oc,Mk=Mk,mx=mx,mt=mt,Qh=Qh,Kc=Kc,Kp=Kp,Vc=Vc,Vp=Vp,dst=dst,idx=xIdx,c=sC))
    A(f"s_add_u32 s{sV1}, s{sV3}, {T*32768}")
    A.vmem(f"buffer_store_dwordx4 {vr(dst,4)}, v{vOf}, {sr(SRD_WS,4)}, s{sV1} offen sc1",'oa')
stamp(19)
A(f"""s_lshl_b32 s{sV1}, s{sR2}, 3
s_add_u32 s{sV1}, s{sV1}, s{sHG}
s_lshl_b32 s{sV1}, s{sV1}, 7
s_add_u32 s{sV1}, s{sV1}, {WS_FOA}""")
A.wait_vm_all()
A("s_mov_b64 exec, 1")
A.lds(f"ds_add_u32 v{gLF}, v{xOne} offset:48")
A("s_mov_b64 exec, -1")
A(f"s_mov_b32 s{sCx}, 0")
A.label("L_cnt")
A(f"""ds_read_b32 v{FL}, v{gLF} offset:48
s_add_u32 s{sCx}, s{sCx}, 1
s_waitcnt lgkmcnt(0)
v_readfirstlane_b32 s{sV0}, v{FL}
s_cmp_gt_u32 s{sCx}, {SPIN*8}
s_cbranch_scc1 L_cntd
{"" if OPT.get('nosl') else "s_sleep 1"}
s_cmp_lt_u32 s{sV0}, 12
s_cbranch_scc1 L_cnt""")
A.label("L_cntd")
A(f"s_cmp_lg_u32 s{sT}, 0\ns_cbranch_scc1 L_wo")
flag_store(xN,xZ,sV1)
A.label("L_wo"); A.reset(); A.vm=['x']
if OPT.get('tp'):
    A(f"""s_cmp_lg_u32 s{sT}, 1
    s_cbranch_scc1 L_np2
    s_and_b32 s{sV2}, s{sHQ}, 4
    s_sub_u32 s{sV0}, s{sHQ}, 1
    s_and_b32 s{sV0}, s{sV0}, 3
    s_or_b32 s{sV0}, s{sV0}, s{sV2}
    s_lshl_b32 s{sV0}, s{sV0}, 11
    s_sub_u32 s{sV1}, s{sHQ}, 2
    s_and_b32 s{sV1}, s{sV1}, 3
    s_or_b32 s{sV1}, s{sV1}, s{sV2}
    s_lshl_b32 s{sV1}, s{sV1}, 11
    v_mov_b32 v{xt0}, s{sV0}
    v_mov_b32 v{xt1}, s{sV1}
    v_cmp_gt_u32 vcc, 16, v0
    v_and_b32 v{xt2}, 15, v0
    s_mov_b32 s{sV0}, {WS_FG}
    v_cndmask_b32 v{xt0}, v{xt1}, v{xt0}, vcc
    v_lshl_add_u32 v{xt0}, v{xt2}, 7, v{xt0}
    v_mov_b32 v{xt1}, 1
    s_mov_b64 exec, 0xffffffff""")
    poll_pipe(acc[0],xt0,sV0,sCx,sNx)
    A(f"s_mov_b64 exec, -1\nds_write_b32 v{gLF}, v{xt1} offset:56\ns_waitcnt vmcnt(0)")
    A.label("L_np2")
lds_word_spin(xt0,gLF,44,sCx,sV0)
A(f"""s_lshr_b32 s{sV0}, s{sRB}, 1
s_lshl_b32 s{sV0}, s{sV0}, 10
s_add_u32 s{sV0}, s{sV0}, {WS_FOA}""")
srd(SRD_M,14,524288); srd(SRD_XA,8,524288); srd(SRD_OUT,16,4194304)
A(f"""v_lshrrev_b32 v{xt0}, 3, v0
v_and_b32 v{xt1}, 6, v{xt0}
v_xor_b32 v{xt1}, v{xt1}, v0
v_and_b32 v{xt1}, 7, v{xt1}
v_lshlrev_b32 v{xt0}, 10, v{xt0}
v_lshl_add_u32 v{xt0}, v{xt1}, 4, v{xt0}
s_lshl_b32 s{sB0}, s{sT}, 17
s_lshl_b32 s{sB1}, s{sHQ}, 7
s_add_u32 s{sB1}, s{sB1}, s{sB0}
s_lshl_b32 s{sB2}, s{sT}, 14""")
def wo_dma(base, srd_):
    for j in range(16):
        A(f"s_add_u32 m0, s{sB2}, {base+j*1024}")
        A(f"s_add_u32 s{sG0}, s{sB1}, {j*8192}")
        A.vmem(f"buffer_load_dwordx4 v{xt0}, {sr(srd_,4)}, s{sG0} offen lds")
        if j%OPT.get('pg',2)==OPT.get('pg',2)-1 and len(A.vm)>OPT['pace']: A(f"s_waitcnt vmcnt({OPT['pace']})"); A.vm=A.vm[len(A.vm)-OPT['pace']:]
if OPT['ewo']: A(f"s_cmp_lg_u32 s{sT0}, 0\ns_cbranch_scc1 L_woa")
wo_dma(WOB,SRD_M)
A.label("L_woa")
wo_dma(WOA,SRD_XA)
VY=Alloc(xBig,168)
yFl=VY.take(); yP=VY.take(2,2); yWA=[VY.take() for _ in range(4)]; yOo=VY.take()
yO=[VY.take(4,4) for _ in range(16)]
yW=[[VY.take(4,4) for _ in range(4)] for _ in range(3)]
yA=[VY.take(4,4) for _ in range(4)]
A(f"""v_and_b32 v{yFl}, 15, v0
v_lshlrev_b32 v{yOo}, 11, v{yFl}
v_lshlrev_b32 v{yFl}, 7, v{yFl}
v_lshrrev_b32 v{xt0}, 4, v0
v_lshl_add_u32 v{yOo}, v{xt0}, 3, v{yOo}""")
poll_issue(yP,yFl,sV0,0xff)
poll_check(yP,yFl,sV0,sCx,sNx,0xff,sleep=OPT['slp'])
stamp(20)
A(f"""s_lshl_b32 s{sV2}, s{sRB}, 2
s_add_u32 s{sV2}, s{sV2}, s{sT}
s_lshl_b32 s{sB0}, s{sV2}, 14
s_add_u32 s{sB0}, s{sB0}, {WS_OFA}""")
for i in range(16 if not OPT.get('nowo') else 0):
    if i and i%4==0: A(f"s_add_u32 s{sB0}, s{sB0}, 4096")
    A.vmem(f"buffer_load_dwordx4 {vr(yO[i],4)}, v{xL16}, {sr(SRD_WS,4)}, s{sB0} offen offset:{(i%4)*1024} sc1")
    if OPT['pace']<60 and i%2==1 and len(A.vm)>OPT['pace']: A(f"s_waitcnt vmcnt({OPT['pace']})"); A.vm=A.vm[-OPT['pace']:]
wo_tr_addr(yWA[0],xt0,xt1)
A(f"""v_add_u32 v{yWA[0]}, {WOA}, v{yWA[0]}
v_xor_b32 v{yWA[1]}, 32, v{yWA[0]}
v_xor_b32 v{yWA[2]}, 64, v{yWA[0]}
v_xor_b32 v{yWA[3]}, 96, v{yWA[0]}
s_lshl_b32 s{sB0}, s{sV2}, 15
s_lshl_b32 s{sB1}, s{sHQ}, 7
s_add_u32 s{sB0}, s{sB0}, s{sB1}""")
A.wait_vm_all()
stamp(21)
A("s_setprio 0")
A("s_barrier")
def woa_read(hp_,c):
    if hp_>=16: return
    b=hp_%3
    A.lds(f"ds_read_b64_tr_b16 {vr(yW[b][c],2)}, v{yWA[c]} offset:{hp_*4096}",('wa',hp_,c))
    A.lds(f"ds_read_b64_tr_b16 {vr(yW[b][c]+2,2)}, v{yWA[c]} offset:{hp_*4096+1024}",('wa',hp_,c))
for c in range(4): woa_read(0,c)
for c in range(2): woa_read(1,c)
for i in range(16):
    for c in range(4):
        A.wait_lg(('wa',i,c))
        A(f"v_mfma_f32_16x16x32_bf16 {vr(yA[c],4)}, {vr(yW[i%3][c],4)}, {vr(yO[i],4)}, {'0' if i==0 else vr(yA[c],4)}")
        woa_read(i+1+(c+2)//4,(c+2)%4)
A("s_nop 7")
for c in range(4):
    acc=yA[c]
    A(f"v_cvt_pk_bf16_f32 v{acc}, v{acc}, v{acc+1}\nv_cvt_pk_bf16_f32 v{acc+1}, v{acc+2}, v{acc+3}")
    A.vmem(f"buffer_store_dwordx2 {vr(acc,2)}, v{yOo}, {sr(SRD_OUT,4)}, s{sB0} offen offset:{c*32}{OSA}")
stamp(22)
stamp_out(yFl)
A.label("L_end")
A("s_endpgm")
A.label("L_codeend")

errs=check(A.lines)
for e in errs[:25]: print("CHECK:",e, file=sys.stderr)
hdr=open('concat_heads__sliding_local_dilated__softmax_full_mha__prompt.s.ref').read().split('; Override')[0]
nv=168
DOC="""; ---------------------------------------------------------------------------------------------
; ---------------------------------------------------------------------------------------------
"""
out=hdr+f"""; @launch grid=(256,1,1) block=(768,1,1) lds={LDS_BYTES}
"""+DOC+f""".amdgcn_target "amdgcn-amd-amdhsa--gfx950"
.text
.globl {NAME}
.p2align 8
.type {NAME},@function
"""+A.text()+f""".section .rodata,"a"
.p2align 6
.amdhsa_kernel {NAME}
  .amdhsa_next_free_vgpr {nv}
  .amdhsa_next_free_sgpr 102
  .amdhsa_accum_offset {nv}
  .amdhsa_group_segment_fixed_size 0
  .amdhsa_kernarg_size 72
  .amdhsa_user_sgpr_count 2
  .amdhsa_user_sgpr_kernarg_segment_ptr 1
  .amdhsa_system_sgpr_workgroup_id_x 1
.end_amdhsa_kernel
"""
open(sys.argv[1],'w').write(out)
print("vgpr att",VA.hi,VB.hi,"aux",VX.hi,VY.hi,"lines",len(A.lines),"errs",len(errs))
```
